```python
import torch

def _softmax(x, axis=-1):
    return torch.softmax(x, dim=axis)
def _gelu(x):
    return torch.nn.functional.gelu(x, approximate="tanh")
def _silu(x):
    return torch.nn.functional.silu(x)
def _sigmoid(x):
    return torch.sigmoid(x)
def _layernorm(x, axis=-1, eps=1e-5):
    m = x.mean(dim=axis, keepdim=True)
    v = x.var(dim=axis, keepdim=True, unbiased=False)
    return (x - m) / torch.sqrt(v + eps)
def _scatter_add(tgt, idx, src, axis=0):
    return tgt.clone().index_add_(axis, idx, src)
def _segment_sum(src, seg, n):
    out = torch.zeros((n,) + src.shape[1:], dtype=src.dtype)
    return out.index_add_(0, seg, src)
def _pad(x, pw):
    flat = tuple(v for pair in reversed(pw) for v in pair)
    return torch.nn.functional.pad(x, flat)

kernel_name = 'recurrent_scan__mha_block__glu_gated_swiglu__prompt'

def setup_inputs():

    _w = (lambda a: (lambda t: t.to(torch.bfloat16) if t.is_floating_point() else t)(torch.as_tensor(a)))
    def _A_setup():
        B, S, D, H = 1, 2048, 640, 32
        return {
            "x": _w((lambda *s: torch.randn(*s, dtype=torch.bfloat16) * 0.05)(B, S, D)),
            "wqkv": _w((lambda *s: torch.randn(*s, dtype=torch.bfloat16) * 0.2)(D, 3 * D)),
            "wo": _w((lambda *s: torch.randn(*s, dtype=torch.bfloat16) * 0.2)(D, D)),
        }
    _A_in = _A_setup()

    def _B_setup():
        B, S, D, F = 1, 2048, 640, 1536
        return {
            "x": _w((lambda *s: torch.randn(*s, dtype=torch.bfloat16) * 0.05)(B, S, D)),
            "w1": _w((lambda *s: torch.randn(*s, dtype=torch.bfloat16) * 0.1)(D, F) * (2.0 / D) ** 0.5),
            "w3": _w((lambda *s: torch.randn(*s, dtype=torch.bfloat16) * 0.1)(D, F) * (2.0 / D) ** 0.5),
            "w2": _w((lambda *s: torch.randn(*s, dtype=torch.bfloat16) * 0.1)(F, D) * (2.0 / F) ** 0.5),
        }
    _B_in = _B_setup()

    return {
        "A_x": _A_in["x"],
        "A_wqkv": _A_in["wqkv"],
        "A_wo": _A_in["wo"],
        "B_x": _B_in["x"],
        "B_w1": _B_in["w1"],
        "B_w3": _B_in["w3"],
        "B_w2": _B_in["w2"],
    }

def reference(A_x, A_wqkv, A_wo, B_x, B_w1, B_w3, B_w2):
    def _A_ref(x, wqkv, wo):
        B, S, D = x.shape
        H = 32
        Dh = D // H
        qkv = (lambda x, *d: x.permute(*d))((x @ wqkv).reshape(B, S, 3, H, Dh), 2, 0, 3, 1, 4)
        q, k, v = qkv[0], qkv[1], qkv[2]
        scores = torch.einsum("bhqd,bhkd->bhqk", q, k) * (Dh ** -0.5)
        p = _softmax(scores, axis=-1)
        o = torch.einsum("bhqk,bhkd->bhqd", p, v)
        return (lambda x, *d: x.permute(*d))(o, 0, 2, 1, 3).reshape(B, S, D) @ wo

    def _B_ref(x, w1, w3, w2):
        gate = torch.einsum("bsd,df->bsf", x, w1)
        up = torch.einsum("bsd,df->bsf", x, w3)
        h = _silu(gate) * up
        out = torch.einsum("bsf,fd->bsd", h, w2)
        return out

    x = A_x
    xn = _layernorm(x, axis=-1)
    s = _A_ref(xn, A_wqkv, A_wo)
    g = _silu(_B_ref(xn, B_w1, B_w3, B_w2))
    return x + s * g
```

```python
class Asm:
    def __init__(self):
        self.lines = []
        self.nlabel = 0
    def e(self, s):
        for ln in s.split('\n'):
            ln = ln.strip()
            if ln:
                self.lines.append('    ' + ln if not ln.endswith(':') else ln)
    def c(self, s):
        self.lines.append('    ; ' + s)
    def label(self, name):
        self.lines.append(name + ':')
    def newlabel(self, base):
        self.nlabel += 1
        return f'L_{base}_{self.nlabel}'
    def text(self):
        return '\n'.join(self.lines) + '\n'

def v(a, n=1):
    return f'v{a}' if n == 1 else f'v[{a}:{a+n-1}]'
def s(a, n=1):
    return f's{a}' if n == 1 else f's[{a}:{a+n-1}]'

def kernel_header(name):
    return f'''.globl {name}
.p2align 8
.type {name},@function
{name}:
'''

def kernel_desc(name, vgpr, sgpr=102, accum=None):
    if accum is None:
        accum = min((vgpr + 3) // 4 * 4, 256)
    return f'''.amdhsa_kernel {name}
  .amdhsa_next_free_vgpr {vgpr}
  .amdhsa_next_free_sgpr {sgpr}
  .amdhsa_accum_offset {accum}
  .amdhsa_group_segment_fixed_size 0
  .amdhsa_kernarg_size 80
  .amdhsa_user_sgpr_count 2
  .amdhsa_user_sgpr_kernarg_segment_ptr 1
  .amdhsa_system_sgpr_workgroup_id_x 1
.end_amdhsa_kernel
'''
```

```python
from asmlib import *
from layouts import QIMG,KIMG,VIMG,OIMG
NAME='att_kernel'
SLOT=20480
Q1=0+8
Q2=12
K1=16
K2=20
V0=24; V1=28
P0=32; P1=36
E=40
SA=48; SB=64
O=80
vKc=96; vK2c=97; vVc=98; vKn=99; vK2n=100; vVn=101
vL16=0
vT=1; vT2=2; vT3=3; vLaneK=4; vLaneK2=5; vLaneV=6; vMx=7
NV=102
def mfma(d,a,b,c):
    cs = '0' if c is None else v(c,16)
    return f'v_mfma_f32_32x32x16_bf16 {v(d,16)}, {v(a,4)}, {v(b,4)}, {cs}'

def emit_dma(a, soff_chunk, sslot):
    a.e(f's_add_u32 s30, s17, {soff_chunk}')
    a.e(f's_add_u32 m0, s20, {sslot}')
    a.e(f's_add_u32 s31, s18, {soff_chunk}')
    a.e(f'buffer_load_dwordx4 {v(vL16)}, s[4:7], s30 offen lds')
    a.e(f's_add_u32 m0, m0, 8192')
    a.e(f's_add_u32 s30, s19, {soff_chunk}')
    a.e(f'buffer_load_dwordx4 {v(vL16)}, s[4:7], s31 offen lds')
    l=a.newlabel('nodma3')
    a.e(f's_cmp_ge_u32 s16, 4')
    a.e(f's_cbranch_scc1 {l}')
    a.e(f's_add_u32 m0, m0, 8192')
    a.e('s_nop 0')
    a.e(f'buffer_load_dwordx4 {v(vL16)}, s[4:7], s30 offen lds')
    a.label(l)

def set_m_pieces(a, add):
    a.e(f'v_mov_b32 {v(vT)}, {v(vMx)}')
    a.e('s_nop 1')
    a.e(f'v_permlane32_swap_b32 {v(vT)}, {v(vMx)}')
    a.e('s_nop 1')
    a.e(f'v_max_f32 {v(vMx)}, {v(vT)}, {v(vMx)}')
    a.e(f'v_ceil_f32 {v(vMx)}, {v(vMx)}')
    a.e(f'v_mov_b32 {v(vT)}, {add}')
    a.e(f'v_add_f32 {v(vMx)}, {v(vT)}, {v(vMx)}')
    a.e(f'v_sub_f32 {v(vMx)}, 0, {v(vMx)}')
    a.e(f'v_and_b32 {v(vT)}, 0xffff0000, {v(vMx)}')
    a.e(f'v_sub_f32 {v(vT2)}, {v(vMx)}, {v(vT)}')
    a.e(f'v_and_b32 {v(vT3)}, 0xffff0000, {v(vT2)}')
    a.e(f'v_sub_f32 {v(vT2)}, {v(vT2)}, {v(vT3)}')
    a.e(f'v_lshrrev_b32 {v(vT)}, 16, {v(vT)}')
    a.e(f'v_or_b32 {v(vT)}, {v(vT)}, {v(vT3)}')
    a.e(f'v_lshrrev_b32 {v(vT2)}, 16, {v(vT2)}')
    a.e('s_mov_b64 exec, 0xffffffff')
    a.e(f'v_mov_b32 {v(Q2+2)}, {v(vT)}')
    a.e(f'v_mov_b32 {v(Q2+3)}, {v(vT2)}')
    a.e('s_mov_b64 exec, -1')

def max16(a, S, first):
    for i in range(0,16,2):
        if first and i==0:
            a.e(f'v_max_f32 {v(vMx)}, {v(S)}, {v(S+1)}')
        else:
            a.e(f'v_max3_f32 {v(vMx)}, {v(vMx)}, {v(S+i)}, {v(S+i+1)}')

FL=set()
def tile(a,i):
    S,N=(SA,SB) if i%2==0 else (SB,SA)
    def addr(kind,ti):
        cur={'k':vKc,'k2':vK2c,'v':vVc}[kind]; nxt={'k':vKn,'k2':vK2n,'v':vVn}[kind]
        return (cur,ti*1280) if ti<8 else (nxt,(ti-8)*1280)
    a.c(f'---- tile {i}')
    if i==6 and 'nodma' not in FL:
        a.e('s_waitcnt vmcnt(0)')
        a.e('s_barrier')
        l=a.newlabel('nodma')
        a.e('s_cmp_ge_u32 s24, 6')
        a.e(f's_cbranch_scc1 {l}')
        emit_dma(a,'s25','s26')
        a.label(l)
    if 'nolds' in FL:
        E_=a.e
        class A2:
            def e(self,s):
                if s.startswith('ds_read') or s.startswith('s_waitcnt lgkm') or s.startswith('s_mov_b64 exec'): return
                E_(s)
        a=A2()
    ex=lambda dst,src: a.e(f'v_exp_f32 {v(dst)}, {v(src)}')
    cv=lambda dst,x: a.e(f'v_cvt_pk_bf16_f32 {v(dst)}, {v(x)}, {v(x+1)}')
    a.e('s_waitcnt lgkmcnt(3)')
    a.e(mfma(N,K1,Q1,None))
    r,o=addr('k',i+2); a.e(f'ds_read_b128 {v(K1,4)}, {v(r)} offset:{o}')
    cv(P1+2,E+4); cv(P1+3,E+6)
    for k in range(4): ex(E+k,S+k)
    a.e('s_waitcnt lgkmcnt(3)')
    a.e(mfma(N,K2,Q2,N))
    r,o=addr('k2',i+2); a.e(f'ds_read_b64 {v(K2,2)}, {v(r)} offset:{o}')
    for k in range(4): ex(E+4+k,S+4+k)
    cv(P0,E); cv(P0+1,E+2)
    a.e('s_waitcnt lgkmcnt(3)')
    a.e(mfma(O,V1,P1,O))
    cv(P0+2,E+4); cv(P0+3,E+6)
    for k in range(4): ex(E+k,S+8+k)
    a.e('s_waitcnt lgkmcnt(2)')
    a.e(mfma(O,V0,P0,O))
    if 'noexec' not in FL: a.e('s_mov_b64 exec, s[22:23]')
    r,o=addr('v',i);   a.e(f'ds_read_b128 {v(V1,4)}, {v(r)} offset:{o+640}')
    r,o=addr('v',i+1); a.e(f'ds_read_b128 {v(V0,4)}, {v(r)} offset:{o}')
    if 'noexec' not in FL: a.e('s_mov_b64 exec, -1')
    for k in range(4): ex(E+4+k,S+12+k)
    cv(P1,E); cv(P1+1,E+2)

from stamps import stamp, stamp_store
def att_kernel(a, name=NAME):
    a.lines.append(kernel_header(name))
    a.e('s_cmp_ge_u32 s2, 256')
    a.e('s_cbranch_scc1 ATT_END')
    a.e('s_load_dwordx2 s[34:35], s[0:1], 72')
    stamp(a,0)
    a.e(f'v_lshrrev_b32 {v(vT)}, 6, v0')
    a.e(f'v_and_b32 v0, 63, v0')
    a.e(f'v_readfirstlane_b32 s16, {v(vT)}')
    a.e('s_and_b32 s27, s2, 7')
    a.e('s_lshr_b32 s28, s2, 3')
    a.e('s_and_b32 s29, s28, 0x18')
    a.e('s_add_u32 s27, s27, s29')
    a.e('s_and_b32 s28, s28, 7')
    a.e('s_lshl_b32 s28, s28, 3')
    a.e('s_add_u32 s28, s28, s16')
    a.e('s_mul_i32 s29, s27, 81920')
    a.e(f'v_and_b32 {v(vT)}, 31, v0')
    a.e(f'v_lshrrev_b32 {v(vT2)}, 5, v0')
    a.e(f'v_lshlrev_b32 {v(vLaneK2)}, 3, {v(vT)}')
    a.e(f'v_add_u32 {v(vLaneK2)}, 1024, {v(vLaneK2)}')
    a.e(f'v_mul_u32_u24 {v(vLaneV)}, 320, {v(vT2)}')
    a.e(f'v_lshlrev_b32 {v(vT)}, 4, {v(vT)}')
    a.e(f'v_add_u32 {v(vLaneV)}, {v(vLaneV)}, {v(vT)}')
    a.e(f'v_lshlrev_b32 {v(vL16)}, 4, v0')
    a.e('s_lshl_b32 s20, s16, 10')
    a.e('s_mov_b32 s17, s20')
    a.e(f's_add_u32 s18, s20, 8192')
    a.e(f's_add_u32 s19, s20, {VIMG-KIMG-2048}')
    a.e('s_cmp_lt_u32 s16, 2')
    a.e('s_cselect_b32 s18, s18, s19')
    a.e(f's_add_u32 s19, s20, {VIMG-KIMG+6144}')
    a.e('s_mov_b32 s22, 0x000fffff')
    a.e('s_mov_b32 s23, 0x000fffff')
    a.e('s_waitcnt lgkmcnt(0)')
    a.e(f's_add_u32 s4, s34, {KIMG}')
    a.e('s_addc_u32 s5, s35, 0')
    a.e('s_add_u32 s4, s4, s29')
    a.e('s_addc_u32 s5, s5, 0')
    a.e(f's_sub_u32 s6, {VIMG+2621440-KIMG}, s29')
    a.e('s_mov_b32 s7, 0x00020000')
    a.e(f's_add_u32 s8, s34, {QIMG}')
    a.e('s_addc_u32 s9, s35, 0')
    a.e('s_mov_b32 s10, 2621440')
    a.e('s_mov_b32 s11, 0x00020000')
    a.e(f's_add_u32 s12, s34, {OIMG}')
    a.e('s_addc_u32 s13, s35, 0')
    a.e('s_mov_b32 s14, 2621440')
    a.e('s_mov_b32 s15, 0x00020000')
    a.e('s_mov_b32 s25, 0'); a.e('s_mov_b32 s26, 0')
    emit_dma(a,'s25','s26')
    a.e('s_mov_b32 s25, 10240'); a.e(f's_mov_b32 s26, {SLOT}')
    emit_dma(a,'s25','s26')
    a.e('s_mul_i32 s33, s28, 1280')
    a.e('s_add_u32 s33, s33, s29')
    for k in range(4): a.e(f'v_mov_b32 {v(Q2+k)}, 0')
    a.e(f'buffer_load_dwordx4 {v(Q1,4)}, {v(vL16)}, s[8:11], s33 offen')
    a.e('s_mov_b64 exec, 0xffffffff')
    a.e(f'buffer_load_dwordx2 {v(Q2,2)}, {v(vLaneK2)}, s[8:11], s33 offen')
    a.e('s_mov_b64 exec, -1')
    a.e(f'v_mov_b32 {v(K2+2)}, 0x3f803f80')
    a.e(f'v_mov_b32 {v(K2+3)}, 0x00003f80')
    for k in range(4):
        a.e(f'v_mov_b32 {v(V0+k)}, 0x3f803f80')
        a.e(f'v_mov_b32 {v(V1+k)}, 0x3f803f80')
    a.e(f'v_mov_b32 {v(vKc)}, {v(vL16)}')
    a.e(f'v_mov_b32 {v(vK2c)}, {v(vLaneK2)}')
    a.e(f'v_add_u32 {v(vLaneV)}, 10240, {v(vLaneV)}')
    a.e(f'v_mov_b32 {v(vVc)}, {v(vLaneV)}')
    a.e(f'v_add_u32 {v(vKn)}, {SLOT}, {v(vL16)}')
    a.e(f'v_add_u32 {v(vK2n)}, {SLOT}, {v(vLaneK2)}')
    a.e(f'v_add_u32 {v(vVn)}, {SLOT}, {v(vLaneV)}')
    T2=[P0,P1,E,E+4]
    for t in T2:
        a.e(f'v_mov_b32 {v(t+2)}, 0'); a.e(f'v_mov_b32 {v(t+3)}, 0')
    a.e('s_waitcnt vmcnt(0)')
    a.e('s_barrier')
    stamp(a,1)
    for t in range(4):
        a.e(f'ds_read_b128 {v(O+4*t,4)}, {v(vKc)} offset:{t*1280}')
        a.e(f'ds_read_b64 {v(T2[t],2)}, {v(vK2c)} offset:{t*1280}')
    a.e('s_waitcnt lgkmcnt(4)')
    a.e(mfma(SA,O,Q1,None)); a.e(mfma(SB,O+4,Q1,None))
    a.e(mfma(SA,T2[0],Q2,SA)); a.e(mfma(SB,T2[1],Q2,SB))
    a.e('s_waitcnt lgkmcnt(0)')
    a.e('s_nop 7'); a.e('s_nop 7')
    max16(a,SA,True)
    a.e(mfma(SA,O+8,Q1,None))
    max16(a,SB,False)
    a.e(mfma(SB,O+12,Q1,None))
    a.e(mfma(SA,T2[2],Q2,SA)); a.e(mfma(SB,T2[3],Q2,SB))
    a.e(f'ds_read_b128 {v(K1,4)}, {v(vKc)} offset:0')
    a.e(f'ds_read_b64 {v(K2,2)}, {v(vK2c)} offset:0')
    a.e('s_nop 7'); a.e('s_nop 7')
    max16(a,SA,False)
    max16(a,SB,False)
    set_m_pieces(a,'0x42c00000')
    for k in range(16): a.e(f'v_mov_b32 {v(O+k)}, 0')
    for k in range(4): a.e(f'v_mov_b32 {v(P1+k)}, 0')
    for k in range(4,8): a.e(f'v_mov_b32 {v(E+k)}, 0')
    a.e('s_waitcnt lgkmcnt(0)')
    a.e(mfma(SA,K1,Q1,None))
    a.e(mfma(SA,K2,Q2,SA))
    a.e(f'ds_read_b128 {v(K1,4)}, {v(vKc)} offset:1280')
    a.e(f'ds_read_b64 {v(K2,2)}, {v(vK2c)} offset:1280')
    a.e('s_mov_b64 exec, s[22:23]')
    a.e(f'ds_read_b128 {v(V1,4)}, {v(vVc)} offset:640')
    a.e(f'ds_read_b128 {v(V0,4)}, {v(vVc)} offset:0')
    a.e('s_mov_b64 exec, -1')
    a.e('s_waitcnt lgkmcnt(0)')
    a.e('s_nop 7'); a.e('s_nop 7')
    a.e('s_mov_b32 s24, 0')
    a.e('s_mov_b32 s25, 20480')
    a.e(f's_mov_b32 s26, {2*SLOT}')
    a.e(f's_mov_b32 s21, {SLOT}')
    stamp(a,2)
    a.label('ATT_LOOP')
    for i in range(8): tile(a,i)
    a.e(f'v_mov_b32 {v(vKc)}, {v(vKn)}')
    a.e(f'v_mov_b32 {v(vK2c)}, {v(vK2n)}')
    a.e(f'v_mov_b32 {v(vVc)}, {v(vVn)}')
    a.e('s_mov_b32 s21, s26')
    a.e(f's_add_u32 s26, s26, {SLOT}')
    a.e(f's_cmp_eq_u32 s26, {3*SLOT}')
    a.e('s_cselect_b32 s26, 0, s26')
    a.e(f'v_add_u32 {v(vKn)}, s21, {v(vL16)}')
    a.e(f'v_add_u32 {v(vK2n)}, s21, {v(vLaneK2)}')
    a.e(f'v_add_u32 {v(vVn)}, s21, {v(vLaneV)}')
    a.e('s_add_u32 s25, s25, 10240')
    a.e('s_add_u32 s24, s24, 1')
    a.e('s_cmp_lt_u32 s24, 8')
    a.e('s_cbranch_scc1 ATT_LOOP')
    stamp(a,3)
    a.e(f'v_cvt_pk_bf16_f32 {v(P1+2)}, {v(E+4)}, {v(E+5)}')
    a.e(f'v_cvt_pk_bf16_f32 {v(P1+3)}, {v(E+6)}, {v(E+7)}')
    a.e('s_waitcnt lgkmcnt(0)')
    a.e('s_nop 1')
    a.e(mfma(O,V1,P1,O))
    a.e('s_nop 7'); a.e('s_nop 7')
    a.e(f'v_mov_b32 {v(vT)}, 0')
    for k in range(13): a.e(f'v_fma_f32 {v(vT)}, {v(O+k)}, 0, {v(vT)}')
    a.e(f'v_cmp_u_f32 vcc, {v(vT)}, {v(vT)}')
    a.e('s_mov_b64 s[36:37], vcc')
    a.e(f'v_mov_b32 {v(vT)}, 0x7b800000')
    a.e(f'v_cmp_nlt_f32 vcc, {v(O+12)}, {v(vT)}')
    a.e('s_or_b64 vcc, vcc, s[36:37]')
    a.e('s_cbranch_vccnz ATT_FALLBACK')
    a.label('ATT_EPI')
    a.e(f'v_rcp_f32 {v(vT)}, {v(O+12)}')
    a.e('s_nop 0')
    for k in range(12): a.e(f'v_mul_f32 {v(O+k)}, {v(O+k)}, {v(vT)}')
    for k in range(6): a.e(f'v_cvt_pk_bf16_f32 {v(E+k)}, {v(O+2*k)}, {v(O+2*k+1)}')
    a.e('s_mul_i32 s33, s28, 40960')
    a.e('s_lshl_b32 s30, s27, 10')
    a.e('s_add_u32 s30, s30, s33')
    a.e(f'buffer_store_dwordx4 {v(E,4)}, {v(vL16)}, s[12:15], s30 offen')
    a.e('s_lshr_b32 s30, s27, 2')
    a.e('s_add_u32 s30, s30, 32')
    a.e('s_lshl_b32 s30, s30, 10')
    a.e('s_add_u32 s30, s30, s33')
    a.e('s_and_b32 s31, s27, 2')
    a.e('s_lshl_b32 s31, s31, 8')
    a.e('s_add_u32 s30, s30, s31')
    a.e('s_and_b32 s31, s27, 1')
    a.e('s_lshl_b32 s31, s31, 3')
    a.e('s_add_u32 s30, s30, s31')
    a.e('s_mov_b64 exec, 0xffffffff')
    a.e(f'buffer_store_dwordx2 {v(E+4,2)}, {v(vL16)}, s[12:15], s30 offen')
    a.e('s_waitcnt vmcnt(0)')
    stamp(a,4)
    stamp_store(a,5,34,'s16',8,0)
    a.label('ATT_END')
    a.e('s_endpgm')
    a.label('ATT_FALLBACK')
    a.e(f'v_mov_b32 {v(Q2+2)}, 0'); a.e(f'v_mov_b32 {v(Q2+3)}, 0')
    a.e(f'v_mov_b32 {v(vMx)}, 0xff800000')
    a.e('s_mov_b32 s30, 0')
    a.label('ATT_FB1')
    a.e(f'buffer_load_dwordx4 {v(K1,4)}, {v(vL16)}, s[4:7], s30 offen')
    a.e(f'buffer_load_dwordx2 {v(K2,2)}, {v(vLaneK2)}, s[4:7], s30 offen')
    a.e('s_waitcnt vmcnt(0)')
    a.e(mfma(SA,K1,Q1,None)); a.e(mfma(SA,K2,Q2,SA))
    a.e('s_nop 7'); a.e('s_nop 7')
    max16(a,SA,False)
    a.e('s_add_u32 s30, s30, 1280')
    a.e('s_cmp_lt_u32 s30, 81920')
    a.e('s_cbranch_scc1 ATT_FB1')
    set_m_pieces(a,'0')
    for k in range(16): a.e(f'v_mov_b32 {v(O+k)}, 0')
    a.e(f'v_add_u32 {v(vVc)}, {VIMG-KIMG-10240}, {v(vLaneV)}')
    a.e('s_mov_b32 s30, 0')
    a.label('ATT_FB2')
    a.e(f'buffer_load_dwordx4 {v(K1,4)}, {v(vL16)}, s[4:7], s30 offen')
    a.e(f'buffer_load_dwordx2 {v(K2,2)}, {v(vLaneK2)}, s[4:7], s30 offen')
    a.e('s_mov_b64 exec, s[22:23]')
    a.e(f'buffer_load_dwordx4 {v(V0,4)}, {v(vVc)}, s[4:7], s30 offen')
    a.e(f'buffer_load_dwordx4 {v(V1,4)}, {v(vVc)}, s[4:7], s30 offen offset:640')
    a.e('s_mov_b64 exec, -1')
    a.e('s_waitcnt vmcnt(0)')
    a.e(mfma(SA,K1,Q1,None)); a.e(mfma(SA,K2,Q2,SA))
    a.e('s_nop 7'); a.e('s_nop 7')
    for k in range(16): a.e(f'v_exp_f32 {v(SB+k)}, {v(SA+k)}')
    a.e('s_nop 0')
    for k in range(4): a.e(f'v_cvt_pk_bf16_f32 {v(P0+k)}, {v(SB+2*k)}, {v(SB+2*k+1)}')
    for k in range(4): a.e(f'v_cvt_pk_bf16_f32 {v(P1+k)}, {v(SB+8+2*k)}, {v(SB+8+2*k+1)}')
    a.e('s_nop 1')
    a.e(mfma(O,V0,P0,O)); a.e(mfma(O,V1,P1,O))
    a.e('s_add_u32 s30, s30, 1280')
    a.e('s_cmp_lt_u32 s30, 81920')
    a.e('s_cbranch_scc1 ATT_FB2')
    a.e('s_nop 7'); a.e('s_nop 7')
    a.e('s_branch ATT_EPI')
    return NV
```

```python
from asmlib import *
from layouts import OIMG,HIMG,GBUF
from stamps import stamp, stamp_store
RING=5120
WREG=5*RING
def mf(d,a,b,c):
    return f'v_mfma_f32_16x16x32_bf16 {v(d,4)}, {v(a,4)}, {v(b,4)}, {v(c,4) if c is not None else 0}'

def g64_kernel(a,name,mode):
    L=mode.upper()
    wo = mode=='wo'
    nsteps = 5 if wo else 12
    P = 5 if wo else 4
    NSET = 5
    TSTR = 40960 if wo else 98304
    vLane=0; vAoff=1; vTr=2; vW=3
    vWr=8; vT=13; vT2=14; vT3=15; vOut=16; vG=17
    ACC=20
    AF=100
    ACT=120
    NV=ACT+NSET*16
    a.lines.append(kernel_header(name))
    a.e('s_cmp_ge_u32 s2, 256')
    a.e(f's_cbranch_scc1 {L}_END')
    a.e('s_load_dwordx2 s[34:35], s[0:1], 72')
    a.e(f's_load_dwordx2 s[36:37], s[0:1], {16 if wo else 48}')
    if wo:
        a.e('s_load_dwordx2 s[38:39], s[0:1], 0')
        a.e('s_load_dwordx2 s[40:41], s[0:1], 56')
    stamp(a,0)
    a.e(f'v_lshrrev_b32 {v(vT)}, 6, v0')
    a.e('v_and_b32 v0, 63, v0')
    a.e(f'v_readfirstlane_b32 s16, {v(vT)}')
    a.e('s_and_b32 s27, s2, 7')
    a.e('s_lshr_b32 s28, s2, 3')
    a.e('s_lshr_b32 s29, s27, 1')
    a.e('s_lshl_b32 s29, s29, 3')
    a.e('s_and_b32 s30, s28, 7')
    a.e('s_add_u32 s17, s29, s30')
    a.e('s_and_b32 s27, s27, 1')
    a.e('s_lshl_b32 s27, s27, 2')
    a.e('s_lshr_b32 s28, s28, 3')
    a.e('s_add_u32 s18, s27, s28')
    a.e(f'v_lshrrev_b32 {v(vT)}, 4, v0')
    a.e(f'v_and_b32 {v(vT2)}, 15, v0')
    a.e(f'v_lshlrev_b32 {v(vAoff)}, 9, {v(vT)}')
    a.e(f'v_lshlrev_b32 {v(vT3)}, 4, {v(vT2)}')
    a.e(f'v_add_u32 {v(vAoff)}, {v(vAoff)}, {v(vT3)}')
    a.e(f'v_mul_u32_u24 {v(vOut)}, 1280, {v(vT2)}')
    a.e(f'v_lshlrev_b32 {v(vT3)}, 3, {v(vT)}')
    a.e(f'v_add_u32 {v(vOut)}, {v(vOut)}, {v(vT3)}')
    a.e(f'v_lshlrev_b32 {v(vG)}, 3, v0')
    a.e(f'v_lshrrev_b32 {v(vT3)}, 1, {v(vT)}')
    a.e(f'v_lshlrev_b32 {v(vT3)}, 4, {v(vT3)}')
    a.e(f'v_and_b32 {v(vT)}, 1, {v(vT)}')
    a.e(f'v_lshlrev_b32 {v(vT)}, 2, {v(vT)}')
    a.e(f'v_add_u32 {v(vT3)}, {v(vT3)}, {v(vT)}')
    a.e(f'v_lshrrev_b32 {v(vT)}, 2, {v(vT2)}')
    a.e(f'v_add_u32 {v(vT3)}, {v(vT3)}, {v(vT)}')
    a.e(f'v_mul_u32_u24 {v(vTr)}, 160, {v(vT3)}')
    a.e(f'v_and_b32 {v(vT)}, 3, v0')
    a.e(f'v_lshlrev_b32 {v(vT)}, 3, {v(vT)}')
    a.e(f'v_add_u32 {v(vTr)}, {v(vTr)}, {v(vT)}')
    a.e(f's_mul_i32 s19, s16, {WREG}')
    a.e(f'v_add_u32 {v(vTr)}, s19, {v(vTr)}')
    for p in range(5):
        a.e(f'v_add_u32 {v(vT)}, {64*p}, v0')
        a.e(f'v_mul_u32_u24 {v(vT2)}, 6554, {v(vT)}')
        a.e(f'v_lshrrev_b32 {v(vT2)}, 16, {v(vT2)}')
        a.e(f'v_mul_u32_u24 {v(vT3)}, 10, {v(vT2)}')
        a.e(f'v_sub_u32 {v(vT)}, {v(vT)}, {v(vT3)}')
        a.e(f'v_lshlrev_b32 {v(vT)}, 4, {v(vT)}')
        if not wo:
            a.e(f'v_mul_u32_u24 {v(vT3)}, 1280, {v(vT2)}')
            a.e(f'v_add_u32 {v(vW+p)}, {v(vT3)}, {v(vT)}')
        else:
            a.e(f'v_lshrrev_b32 {v(vT3)}, 4, {v(vT2)}')
            a.e(f'v_lshlrev_b32 {v(vW+p)}, 2, {v(vT3)}')
            a.e(f'v_add_u32 {v(vW+p)}, {v(vW+p)}, {v(vT2)}')
            a.e(f'v_mul_u32_u24 {v(vW+p)}, 1280, {v(vW+p)}')
            a.e(f'v_add_u32 {v(vW+p)}, {v(vW+p)}, {v(vT)}')
            a.e(f'v_mul_u32_u24 {v(vWr+p)}, 80, {v(vT3)}')
            a.e(f'v_bfe_u32 {v(vT3)}, {v(vT2)}, 2, 1')
            a.e(f'v_mul_u32_u24 {v(vT3)}, 40, {v(vT3)}')
            a.e(f'v_add_u32 {v(vWr+p)}, {v(vWr+p)}, {v(vT3)}')
            a.e(f'v_bfe_u32 {v(vT3)}, {v(vT2)}, 3, 1')
            a.e(f'v_mul_u32_u24 {v(vT3)}, 20, {v(vT3)}')
            a.e(f'v_add_u32 {v(vWr+p)}, {v(vWr+p)}, {v(vT3)}')
            a.e(f'v_and_b32 {v(vT3)}, 3, {v(vT2)}')
            a.e(f'v_add_u32 {v(vWr+p)}, {v(vWr+p)}, {v(vT3)}')
            a.e(f'v_add_u32 {v(vWr+p)}, 16, {v(vWr+p)}')
            a.e(f'v_mul_u32_u24 {v(vWr+p)}, 1280, {v(vWr+p)}')
            a.e(f'v_add_u32 {v(vWr+p)}, {v(vWr+p)}, {v(vT)}')
    a.e('s_waitcnt lgkmcnt(0)')
    a.e('s_mul_i32 s20, s18, 160')
    a.e('s_add_u32 s4, s36, s20')
    a.e('s_addc_u32 s5, s37, 0')
    a.e(f's_sub_u32 s6, {640*1280 if wo else 1536*1280}, s20')
    a.e('s_mov_b32 s7, 0x00020000')
    a.e(f's_mul_i32 s20, s17, {2*TSTR}')
    a.e(f's_add_u32 s8, s34, {OIMG if wo else HIMG}')
    a.e('s_addc_u32 s9, s35, 0')
    a.e('s_add_u32 s8, s8, s20')
    a.e('s_addc_u32 s9, s9, 0')
    a.e(f's_mov_b32 s10, {2*TSTR}')
    a.e('s_mov_b32 s11, 0x00020000')
    if wo:
        a.e(f's_mul_i32 s21, s16, {4*40*1280}')
        a.e(f's_mul_i32 s22, s16, {160*1280}')
        a.e(f's_lshl_b32 s23, s16, 13')
        a.e(f's_lshl_b32 s24, s16, 11')
        a.e(f's_add_u32 s24, s24, {32*1024}')
    else:
        a.e(f's_mul_i32 s21, s16, {12*32*1280}')
        a.e(f's_mul_i32 s23, s16, {12*2048}')
    def issue(s):
        slot=s%5; st=s%NSET
        if wo and s==4:
            wv=vWr; a.e('s_mov_b32 s25, s22'); a.e('s_mov_b32 s26, s24')
        else:
            wv=vW
            a.e(f's_add_u32 s25, s21, {s*(40 if wo else 32)*1280}')
            a.e(f's_add_u32 s26, s23, {s*2048}')
        a.e(f's_add_u32 s30, s26, {TSTR}')
        for p in range(5):
            a.e(f's_add_u32 m0, s19, {slot*RING+p*1024}')
            a.e('s_nop 0')
            a.e(f'buffer_load_dwordx4 {v(wv+p)}, s[4:7], s25 offen lds')
        for tg in range(4):
            so='s26' if tg<2 else 's30'
            a.e(f'buffer_load_dwordx4 {v(ACT+st*16+tg*4,4)}, {v(vAoff)}, s[8:11], {so} offen offset:{(tg%2)*256}')
    def rdA(s,ct):
        slot=s%5
        for part in range(2):
            a.e(f'ds_read_b64_tr_b16 {v(AF+ct*4+part*2,2)}, {v(vTr)} offset:{slot*RING+part*1280+ct*32}')
    stamp(a,4)
    for s in range(min(P,nsteps)):
        issue(s)
        if s==0: stamp(a,5)
    stamp(a,6)
    if wo:
        pass
    issued=min(P,nsteps)
    a.e(f's_waitcnt vmcnt({issued*9-5})')
    stamp(a,1)
    for ct in range(5): rdA(0,ct)
    for s in range(nsteps):
        a.c(f'step {s}')
        need_done = s*9+9 + (5 if s+1<nsteps else 0)
        out=max(0,issued*9-need_done)
        a.e(f's_waitcnt vmcnt({min(out,63)})')
        if issued<nsteps:
            issue(issued); issued+=1
        st=s%NSET
        for ct in range(5):
            if s+1<nsteps: n=8
            else: n=(4-ct)*2
            a.e(f's_waitcnt lgkmcnt({min(n,15)})')
            for tg in range(4):
                d=ACC+(ct*4+tg)*4
                a.e(mf(d,AF+ct*4,ACT+st*16+tg*4,d if s>0 else None))
            if s+1<nsteps: rdA(s+1,ct)
    stamp(a,2)
    X=ACT; GG=ACT+10
    if wo:
        a.e('s_mov_b32 s8, s38'); a.e('s_mov_b32 s9, s39'); a.e('s_mov_b32 s10, 2621440')
    a.e('s_lshl_b32 s20, s17, 2')
    a.e('s_add_u32 s20, s20, s16')
    a.e(f's_mul_i32 s21, s20, {16*1280}')
    a.e('s_mul_i32 s22, s18, 160')
    a.e('s_add_u32 s21, s21, s22')
    a.e('s_lshl_b32 s22, s17, 3')
    a.e('s_add_u32 s22, s22, s18')
    a.e('s_lshl_b32 s22, s22, 2')
    a.e('s_add_u32 s22, s22, s16')
    a.e('s_mul_i32 s22, s22, 2560')
    a.e(f's_add_u32 s12, s34, {GBUF}')
    a.e('s_addc_u32 s13, s35, 0')
    a.e('s_mov_b32 s14, 2621440')
    a.e('s_mov_b32 s15, 0x00020000')
    if wo:
        for ct in range(5):
            a.e(f'buffer_load_dwordx2 {v(X+2*ct,2)}, {v(vOut)}, s[8:11], s21 offen offset:{ct*32}')
            a.e(f'buffer_load_dwordx2 {v(GG+2*ct,2)}, {v(vG)}, s[12:15], s22 offen offset:{ct*512}')
    a.e(f'v_lshlrev_b32 {v(vT)}, 4, v0')
    a.e(f'v_add_u32 {v(vT2)}, s19, {v(vT)}')
    a.e('s_nop 7')
    for tg in range(4):
        for ct in range(5):
            a.e(f'ds_write_b128 {v(vT2)}, {v(ACC+(ct*4+tg)*4,4)} offset:{(tg*5+ct)*1024}')
    a.e('s_waitcnt lgkmcnt(0)')
    a.e('s_barrier')
    stamp(a,7)
    a.e('s_mul_i32 s23, s16, 5120')
    a.e(f'v_add_u32 {v(vT2)}, s23, {v(vT)}')
    a.e(f'v_add_u32 {v(vT3)}, {2*WREG}, {v(vT2)}')
    R=ACC
    for w in range(4):
        for ct in range(5):
            base = vT2 if w<2 else vT3
            a.e(f'ds_read_b128 {v(R+w*20+ct*4,4)}, {v(base)} offset:{(w%2)*WREG+ct*1024}')
    a.e('s_waitcnt lgkmcnt(10)')
    for k in range(20): a.e(f'v_add_f32 {v(R+k)}, {v(R+k)}, {v(R+20+k)}')
    a.e('s_waitcnt lgkmcnt(0)')
    for k in range(20): a.e(f'v_add_f32 {v(R+40+k)}, {v(R+40+k)}, {v(R+60+k)}')
    for k in range(20): a.e(f'v_add_f32 {v(R+k)}, {v(R+k)}, {v(R+40+k)}')
    Y=R+20
    for k in range(10): a.e(f'v_cvt_pk_bf16_f32 {v(Y+k)}, {v(R+2*k)}, {v(R+2*k+1)}')
    for k in range(10):
        a.e(f'v_lshlrev_b32 {v(R+2*k)}, 16, {v(Y+k)}')
        a.e(f'v_and_b32 {v(R+2*k+1)}, 0xffff0000, {v(Y+k)}')
    if not wo:
        T=R+40
        for k in range(20): a.e(f'v_mul_f32 {v(T+k)}, 0xbfb8aa3b, {v(R+k)}')
        for k in range(20): a.e(f'v_exp_f32 {v(T+k)}, {v(T+k)}')
        for k in range(20): a.e(f'v_add_f32 {v(T+k)}, 1.0, {v(T+k)}')
        for k in range(20): a.e(f'v_rcp_f32 {v(T+k)}, {v(T+k)}')
        for k in range(20): a.e(f'v_mul_f32 {v(R+k)}, {v(R+k)}, {v(T+k)}')
        for k in range(10): a.e(f'v_cvt_pk_bf16_f32 {v(Y+k)}, {v(R+2*k)}, {v(R+2*k+1)}')
        for ct in range(5):
            a.e(f'buffer_store_dwordx2 {v(Y+2*ct,2)}, {v(vG)}, s[12:15], s22 offen offset:{ct*512}')
    else:
        T=R+40; U=R+60
        a.e('s_waitcnt vmcnt(0)')
        for k in range(10):
            a.e(f'v_lshlrev_b32 {v(T+2*k)}, 16, {v(GG+k)}')
            a.e(f'v_and_b32 {v(T+2*k+1)}, 0xffff0000, {v(GG+k)}')
        for k in range(20): a.e(f'v_mul_f32 {v(R+k)}, {v(R+k)}, {v(T+k)}')
        for k in range(10): a.e(f'v_cvt_pk_bf16_f32 {v(Y+k)}, {v(R+2*k)}, {v(R+2*k+1)}')
        for k in range(10):
            a.e(f'v_lshlrev_b32 {v(R+2*k)}, 16, {v(Y+k)}')
            a.e(f'v_and_b32 {v(R+2*k+1)}, 0xffff0000, {v(Y+k)}')
            a.e(f'v_lshlrev_b32 {v(T+2*k)}, 16, {v(X+k)}')
            a.e(f'v_and_b32 {v(T+2*k+1)}, 0xffff0000, {v(X+k)}')
        for k in range(20): a.e(f'v_add_f32 {v(R+k)}, {v(R+k)}, {v(T+k)}')
        for k in range(10): a.e(f'v_cvt_pk_bf16_f32 {v(Y+k)}, {v(R+2*k)}, {v(R+2*k+1)}')
        a.e('s_mov_b32 s8, s40'); a.e('s_mov_b32 s9, s41')
        for ct in range(5):
            a.e(f'buffer_store_dwordx2 {v(Y+2*ct,2)}, {v(vOut)}, s[8:11], s21 offen offset:{ct*32}')
    stamp(a,8)
    a.e('s_waitcnt vmcnt(0)')
    stamp(a,3)
    stamp_store(a,9,34,'s16',4,(1 if wo else 2)*1024*1024)
    a.label(f'{L}_END')
    a.e('s_endpgm')
    return NV
def wo_kernel(a,name): return g64_kernel(a,name,'wo')
def w2_kernel(a,name): return g64_kernel(a,name,'w2')
```

```python
from asmlib import *
from layouts import QIMG,KIMG,VIMG,HIMG
from stamps import stamp, stamp_store
import stamps
XS=16384; WBASE=49152; WP=20544
CS=WBASE+5*WP
SUM=CS+1280
SQ=SUM+512
LDS=155136
WF=4
XF=24
CSA=40
ST=45
XA=49
WA=53
vT=58; vT2=59; vT3=60; vT4=61
ACC=96
NV=256
FL=set()
def acc(i,t): return ACC+(i*5+t)*16
def mfma(d,a_,b_): return f'v_mfma_f32_32x32x16_bf16 {v(d,16)}, {v(a_,4)}, {v(b_,4)}, {v(d,16)}'

def wread(a,var,jl,t):
    if var=='ffn':
        reg=WA+2*jl; pitch=320; off=32*t
    else:
        reg=WA+2*jl+(t%2); pitch=640; off=64*t
    for p in range(2):
        a.e(f'ds_read_b64_tr_b16 {v(WF+4*t+2*p,2)}, {v(reg)} offset:{off+4*p*pitch}')
def xread(a,buf,j):
    for i in range(2):
        a.e(f'ds_read_b128 {v(XF+buf*8+i*4,4)}, {v(XA+j)} offset:{i*4096}')

def kstep(a,var,k):
    jl=k%2; xb=k%2
    a.c(f'kstep {k}')
    if jl==0:
        a.e('s_add_u32 s23, s23, 1')
        a.e('s_cmp_eq_u32 s23, 5')
        a.e('s_cselect_b32 s22, s45, s44')
        a.e('s_cselect_b32 s23, 0, s23')
    if k==0:
        a.e('s_add_u32 s25, s25, 1')
        a.e('s_cmp_eq_u32 s25, 3')
        a.e('s_cselect_b32 s24, s47, s46')
        a.e('s_cselect_b32 s25, 0, s25')
    for t in range(5):
        a.e(f's_waitcnt lgkmcnt({8 if t==0 else 10})')
        d=[]
        if 'nodot' not in FL:
            if (jl==0 and t%2==0) or (jl==1 and t%2==1):
                d=[f'v_dot2_f32_bf16 {v(CSA+t)}, {v(WF+4*t+r)}, s28, {v(CSA+t)}' for r in range(4)]
            elif jl==0:
                X=XF+xb*8
                if t==1: d=[f'v_dot2_f32_bf16 {v(ST)}, {v(X+r)}, s28, {v(ST)}' for r in range(4)]
                else:    d=[f'v_dot2_f32_bf16 {v(ST+1)}, {v(X+r)}, {v(X+r)}, {v(ST+1)}' for r in range(4)]
            elif t>0:
                X=XF+xb*8+4
                if t==2: d=[f'v_dot2_f32_bf16 {v(ST+2)}, {v(X+r)}, s28, {v(ST+2)}' for r in range(4)]
                else:    d=[f'v_dot2_f32_bf16 {v(ST+3)}, {v(X+r)}, {v(X+r)}, {v(ST+3)}' for r in range(4)]
        for i in range(2):
            X=XF+xb*8+i*4
            if var=='v': a.e(mfma(acc(i,t),X,WF+4*t))
            else:        a.e(mfma(acc(i,t),WF+4*t,X))
            for s_ in d[2*i:2*i+2]: a.e(s_)
        if t==0:
            if jl==1 and 'nobar' not in FL: a.e('s_barrier')
            xread(a,1-xb,(k+1)%4)
        wread(a,var,1-jl,t)
        if t==1:
            regs=[WA+2*jl] if var=='ffn' else [WA+2*jl,WA+2*jl+1]
            for r in regs: a.e(f'v_add_u32 {v(r)}, s22, {v(r)}')
        if t==3:
            xs={1:[0,1],2:[2],3:[3]}.get(k,[])
            for j in xs: a.e(f'v_add_u32 {v(XA+j)}, s24, {v(XA+j)}')

def stats(a,i,P,Pc=None,mode='qk'):
    a.e(f'v_mul_f32 {v(P)}, 0x3acccccd, {v(P)}')
    a.e(f'v_mul_f32 {v(P+1)}, 0x3acccccd, {v(P+1)}')
    a.e(f'v_fma_f32 {v(P+1)}, -{v(P)}, {v(P)}, {v(P+1)}')
    a.e(f'v_max_f32 {v(P+1)}, 0, {v(P+1)}')
    a.e(f'v_cvt_pk_bf16_f32 {v(P)}, {v(P)}, {v(P+1)}')
    a.e(f'v_and_b32 {v(P+1)}, 0xffff0000, {v(P)}')
    a.e(f'v_lshlrev_b32 {v(P)}, 16, {v(P)}')
    a.e(f'v_add_f32 {v(P+1)}, 0x3727c5ac, {v(P+1)}')
    a.e(f'v_cvt_pk_bf16_f32 {v(P+1)}, {v(P+1)}, {v(P+1)}')
    a.e(f'v_and_b32 {v(P+1)}, 0xffff0000, {v(P+1)}')
    a.e(f'v_sqrt_f32 {v(P+1)}, {v(P+1)}')
    a.e(f'v_xor_b32 {v(P)}, 0x80000000, {v(P)}')
    a.e(f'v_cvt_pk_bf16_f32 {v(P+1)}, {v(P+1)}, {v(P+1)}')
    a.e(f'v_and_b32 {v(P+1)}, 0xffff0000, {v(P+1)}')
    a.e(f'v_rcp_f32 {v(P+1)}, {v(P+1)}')
    a.e('s_nop 0')

def pkfma(d,x,y,z,bx=None,by=None,bz=None):
    sel=[0 if b is None else b for b in (bx,by,bz)]
    hi=[1 if b is None else b for b in (bx,by,bz)]
    return f'v_pk_fma_f32 {v(d,2)}, {v(x,2)}, {v(y,2)}, {v(z,2)} op_sel:[{sel[0]},{sel[1]},{sel[2]}] op_sel_hi:[{hi[0]},{hi[1]},{hi[2]}]'
def pkmul(d,x,y,bx=None,by=None):
    sel=[0 if b is None else b for b in (bx,by)]
    hi=[1 if b is None else b for b in (bx,by)]
    return f'v_pk_mul_f32 {v(d,2)}, {v(x,2)}, {v(y,2)} op_sel:[{sel[0]},{sel[1]}] op_sel_hi:[{hi[0]},{hi[1]}]'

def main_loop(a,var):
    L=f'K1_{var.upper()}'
    a.e('s_barrier')
    stamp(a,1)
    xread(a,0,0)
    for t in range(5): wread(a,var,0,t)
    a.e('s_mov_b32 s26, 0')
    a.label(f'{L}_LOOP')
    for k in range(4): kstep(a,var,k)
    if stamps.STAMP:
        a.e('s_cmp_eq_u32 s26, 0')
        a.e(f's_cbranch_scc0 {L}_NS')
        stamp(a,7)
        a.label(f'{L}_NS')
    a.e('s_add_u32 s26, s26, 1')
    a.e('s_cmp_lt_u32 s26, 10')
    a.e(f's_cbranch_scc1 {L}_LOOP')
    stamp(a,2)
    a.e('s_nop 2')
    for t in range(5):
        step=16 if var=='ffn' else 32
        a.e(f'ds_add_f32 v62, {v(CSA+t)} offset:{t*step*4}')
    a.e(f'ds_add_f32 v63, {v(ST)} offset:0')
    a.e(f'ds_add_f32 v63, {v(ST+1)} offset:512')
    a.e(f'ds_add_f32 v63, {v(ST+2)} offset:128')
    a.e(f'ds_add_f32 v63, {v(ST+3)} offset:{512+128}')
    a.e('s_waitcnt lgkmcnt(0)')
    stamp(a,5)
    a.e('s_barrier')
    stamp(a,6)
    a.e('ds_read_b32 v64, v63 offset:0')
    a.e('ds_read_b32 v65, v63 offset:512')
    a.e('ds_read_b32 v66, v63 offset:128')
    a.e('ds_read_b32 v67, v63 offset:640')

def k1_kernel(a,name):
    a.lines.append(kernel_header(name))
    a.e('s_cmp_ge_u32 s2, 256')
    a.e('s_cbranch_scc1 K1_END')
    a.e('s_load_dwordx2 s[34:35], s[0:1], 72')
    a.e('s_load_dwordx2 s[36:37], s[0:1], 0')
    a.e('s_load_dwordx2 s[38:39], s[0:1], 8')
    a.e('s_load_dwordx4 s[40:43], s[0:1], 32')
    stamp(a,0)
    a.e(f'v_lshrrev_b32 {v(vT)}, 6, v0')
    a.e('v_and_b32 v0, 63, v0')
    a.e(f'v_readfirstlane_b32 s16, {v(vT)}')
    a.e('s_and_b32 s27, s2, 7')
    a.e('s_lshr_b32 s29, s2, 3')
    a.e('s_and_b32 s17, s27, 1')
    a.e('s_lshl_b32 s17, s17, 3')
    a.e('s_and_b32 s30, s29, 7')
    a.e('s_add_u32 s17, s17, s30')
    a.e('s_lshr_b32 s18, s27, 1')
    a.e('s_lshl_b32 s18, s18, 2')
    a.e('s_lshr_b32 s30, s29, 3')
    a.e('s_add_u32 s18, s18, s30')
    a.e('s_cmp_ge_u32 s16, 4')
    a.e('s_cbranch_scc1 K1_LOADER')
    a.e('s_lshr_b32 s19, s16, 1')
    a.e('s_and_b32 s20, s16, 1')
    a.e('s_xor_b32 s21, s19, s20')
    a.e('s_mov_b32 s28, 0x3f803f80')
    a.e(f's_mov_b32 s44, {WP}'); a.e(f's_mov_b32 s45, {(-4*WP)&0xffffffff}'); a.e(f's_mov_b32 s46, {XS}'); a.e(f's_mov_b32 s47, {(-2*XS)&0xffffffff}')
    a.e(f's_lshl_b32 s27, s16, 8')
    a.e(f's_add_u32 s27, s27, {CS}')
    a.e(f'v_lshlrev_b32 {v(vT)}, 2, v0')
    a.e(f'v_add_u32 {v(vT)}, s27, {v(vT)}')
    a.e(f'v_mov_b32 {v(vT2)}, 0')
    for k in range(3): a.e(f'ds_write_b32 {v(vT)}, {v(vT2)} offset:{k*1024}')
    a.e(f'v_and_b32 {v(vT)}, 31, v0')
    a.e(f'v_lshrrev_b32 {v(vT2)}, 5, v0')
    a.e(f'v_bfe_u32 {v(vT3)}, v0, 1, 3')
    a.e(f'v_lshlrev_b32 {v(vT4)}, 7, {v(vT)}')
    a.e('s_lshl_b32 s27, s19, 13')
    a.e(f'v_add_u32 {v(vT4)}, s27, {v(vT4)}')
    for kk in range(4):
        a.e(f's_xor_b32 s27, s21, {kk%2}')
        a.e(f's_add_u32 s27, s27, {2*(kk//2)}')
        a.e('s_lshl_b32 s27, s27, 1')
        a.e(f'v_add_u32 {v(XA+kk)}, s27, {v(vT2)}')
        a.e(f'v_xor_b32 {v(XA+kk)}, {v(XA+kk)}, {v(vT3)}')
        a.e(f'v_lshlrev_b32 {v(XA+kk)}, 4, {v(XA+kk)}')
        a.e(f'v_add_u32 {v(XA+kk)}, {v(XA+kk)}, {v(vT4)}')
    a.e('s_lshl_b32 s27, s19, 8')
    a.e(f's_add_u32 s27, s27, {SUM}')
    a.e(f'v_lshlrev_b32 v63, 2, {v(vT)}')
    a.e('v_add_u32 v63, s27, v63')
    for k in range(9): a.e(f'v_mov_b32 {v(CSA+k)}, 0')
    a.e('s_mov_b32 s23, 0'); a.e('s_mov_b32 s25, 0')
    vH=64; vCh=65; vR=66; vC4=67; vRow=68
    a.e(f'v_lshrrev_b32 {v(vH)}, 5, v0')
    a.e(f'v_bfe_u32 {v(vCh)}, v0, 4, 1')
    a.e(f'v_bfe_u32 {v(vR)}, v0, 2, 2')
    a.e(f'v_and_b32 {v(vC4)}, 3, v0')
    a.e(f'v_lshlrev_b32 {v(vRow)}, 3, {v(vH)}')
    a.e(f'v_add_u32 {v(vRow)}, {v(vRow)}, {v(vR)}')
    a.e('s_cmp_ge_u32 s18, 6')
    a.e('s_cbranch_scc1 K1_FFN_SETUP')
    a.e(f'v_mul_u32_u24 {v(vT2)}, 640, {v(vRow)}')
    a.e(f'v_lshlrev_b32 {v(vT3)}, 5, {v(vCh)}')
    a.e(f'v_add_u32 {v(vT2)}, {v(vT2)}, {v(vT3)}')
    a.e(f'v_lshlrev_b32 {v(vT3)}, 3, {v(vC4)}')
    a.e(f'v_add_u32 {v(vT2)}, {v(vT2)}, {v(vT3)}')
    a.e('s_mul_i32 s27, s20, 320')
    a.e(f's_add_u32 s27, s27, {WBASE}')
    a.e(f'v_add_u32 {v(vT2)}, s27, {v(vT2)}')
    a.e(f'v_lshrrev_b32 {v(vT3)}, 1, {v(vR)}')
    a.e(f'v_lshlrev_b32 {v(vT3)}, 6, {v(vT3)}')
    a.e(f'v_sub_u32 {v(vT4)}, 0, {v(vT3)}')
    a.e('s_cmp_eq_u32 s20, 0')
    a.e('s_cselect_b64 vcc, -1, 0')
    a.e(f'v_cndmask_b32 v69, {v(vT4)}, {v(vT3)}, vcc')
    a.e(f'v_cndmask_b32 v70, {v(vT3)}, {v(vT4)}, vcc')
    for jl in range(2):
        a.e(f's_xor_b32 s27, s21, {jl}')
        a.e(f's_mul_i32 s27, s27, {16*640}')
        a.e(f'v_add_u32 {v(vT3)}, s27, {v(vT2)}')
        a.e(f'v_add_u32 {v(WA+2*jl)}, {v(vT3)}, v69')
        a.e(f'v_add_u32 {v(WA+2*jl+1)}, {v(vT3)}, v70')
    a.e('s_mul_i32 s27, s20, 640')
    a.e(f's_add_u32 s27, s27, {CS}')
    a.e(f'v_lshlrev_b32 v62, 2, {v(vT)}')
    a.e('v_add_u32 v62, s27, v62')
    for k in range(160): a.e(f'v_mov_b32 {v(ACC+k)}, 0')
    a.e('s_waitcnt lgkmcnt(0)')
    a.e('s_cmp_ge_u32 s18, 4')
    a.e('s_cbranch_scc1 K1_V_START')
    main_loop(a,'qk')
    a.e(f'v_lshrrev_b32 {v(vT)}, 5, v0')
    a.e(f'v_lshlrev_b32 {v(vT)}, 4, {v(vT)}')
    a.e('s_mul_i32 s27, s20, 640')
    a.e(f's_add_u32 s27, s27, {CS}')
    a.e(f'v_add_u32 {v(vT)}, s27, {v(vT)}')
    CQ=[4,20]
    for b in range(4): a.e(f'ds_read_b128 {v(CQ[0]+4*b,4)}, {v(vT)} offset:{b*32}')
    a.e('s_cmp_lt_u32 s18, 2')
    a.e(f's_cselect_b32 s27, {QIMG}, {KIMG}')
    a.e('s_add_u32 s4, s34, s27')
    a.e('s_addc_u32 s5, s35, 0')
    a.e('s_mov_b32 s6, 2621440')
    a.e('s_mov_b32 s7, 0x00020000')
    a.e('s_cmp_lt_u32 s18, 2')
    a.e('s_cselect_b32 s29, 0x3ea52b5c, 0x3f800000')
    a.e('s_and_b32 s27, s18, 1')
    a.e('s_lshl_b32 s27, s27, 4')
    a.e('s_lshl_b32 s30, s20, 3')
    a.e('s_add_u32 s27, s27, s30')
    a.e('s_mul_i32 s30, s27, 81920')
    a.e('s_lshl_b32 s31, s17, 2')
    a.e('s_lshl_b32 s27, s19, 1')
    a.e('s_add_u32 s31, s31, s27')
    a.e('s_mul_i32 s31, s31, 1280')
    a.e('s_add_u32 s30, s30, s31')
    vL16=71; vR8=72
    a.e(f'v_lshlrev_b32 {v(vL16)}, 4, v0')
    a.e(f'v_and_b32 {v(vR8)}, 31, v0')
    a.e(f'v_lshlrev_b32 {v(vR8)}, 3, {v(vR8)}')
    a.e(f'v_lshrrev_b32 {v(vT2)}, 5, v0')
    a.e(f'v_mul_u32_u24 {v(vT2)}, 81920, {v(vT2)}')
    a.e(f'v_add_u32 {v(vR8)}, {v(vR8)}, {v(vT2)}')
    a.e(f'v_add_u32 {v(vR8)}, 1024, {v(vR8)}')
    a.e('s_waitcnt lgkmcnt(4)')
    for i in range(2):
        stats(a,i,64+2*i)
        a.e(f'v_mul_f32 {v(65+2*i)}, s29, {v(65+2*i)}')
    TMP=76
    for t in range(5):
        if t<4:
            for b in range(4): a.e(f'ds_read_b128 {v(CQ[(t+1)%2]+4*b,4)}, {v(vT)} offset:{(t+1)*128+b*32}')
            a.e('s_waitcnt lgkmcnt(4)')
        else:
            a.e('s_waitcnt lgkmcnt(0)')
        for b in range(4):
            j=4*t+b; m=j//5; jj=j%5
            dst={0:0,1:2,2:4,3:8,4:10}[jj]+20*m
            for i in range(2):
                A=acc(i,0)+4*j; P=64+2*i; C=CQ[t%2]+4*b; T_=TMP+4*i
                a.e(pkfma(T_,C,P,A,None,0,None))
                a.e(pkfma(T_+2,C+2,P,A+2,None,0,None))
                a.e(pkmul(T_,T_,P,None,1))
                a.e(pkmul(T_+2,T_+2,P,None,1))
            for i in range(2):
                T_=TMP+4*i; D=acc(i,0)+dst
                a.e(f'v_cvt_pk_bf16_f32 {v(D)}, {v(T_)}, {v(T_+1)}')
                a.e(f'v_cvt_pk_bf16_f32 {v(D+1)}, {v(T_+2)}, {v(T_+3)}')
            if jj==4:
                for i in range(2):
                    B=acc(i,0)+20*m
                    a.e(f's_add_u32 s27, s30, {2*m*81920+i*1280}')
                    a.e(f's_add_u32 s31, s27, 81920')
                    a.e(f'buffer_store_dwordx4 {v(B,4)}, {v(vL16)}, s[4:7], s27 offen')
                    a.e(f'buffer_store_dwordx4 {v(B+8,4)}, {v(vL16)}, s[4:7], s31 offen')
                    a.e(f'buffer_store_dwordx2 {v(B+4,2)}, {v(vR8)}, s[4:7], s27 offen')
    a.e('s_branch K1_DONE')
    a.label('K1_V_START')
    main_loop(a,'v')
    CB=76
    for t in range(5): a.e(f'ds_read_b32 {v(CB+2*t)}, v62 offset:{t*128}')
    a.e('s_waitcnt lgkmcnt(5)')
    for i in range(2): stats(a,i,64+2*i)
    a.e(f'v_and_b32 {v(vT)}, 31, v0')
    a.e(f'v_lshlrev_b32 {v(vT)}, 2, {v(vT)}')
    a.e('s_lshl_b32 s27, s16, 9')
    a.e(f'v_add_u32 {v(vT)}, s27, {v(vT)}')
    for i in range(2):
        a.e(f'ds_write_b32 {v(vT)}, {v(64+2*i)} offset:{i*128}')
        a.e(f'ds_write_b32 {v(vT)}, {v(65+2*i)} offset:{256+i*128}')
    a.e(f'v_lshrrev_b32 {v(vT2)}, 5, v0')
    a.e(f'v_lshlrev_b32 {v(vT2)}, 4, {v(vT2)}')
    a.e(f'v_add_u32 {v(vT2)}, s27, {v(vT2)}')
    a.e(f's_add_u32 s4, s34, {VIMG}')
    a.e('s_addc_u32 s5, s35, 0')
    a.e('s_mov_b32 s6, 2621440')
    a.e('s_mov_b32 s7, 0x00020000')
    a.e('s_sub_u32 s27, s18, 4')
    a.e(f's_mul_i32 s30, s27, {16*81920}')
    a.e('s_lshl_b32 s31, s17, 2')
    a.e('s_lshl_b32 s27, s19, 1')
    a.e('s_add_u32 s31, s31, s27')
    a.e('s_mul_i32 s31, s31, 1280')
    a.e('s_add_u32 s30, s30, s31')
    VO=86
    a.e(f'v_and_b32 {v(vT3)}, 31, v0')
    a.e('s_mul_i32 s27, s20, 160')
    a.e(f'v_add_u32 {v(vT3)}, s27, {v(vT3)}')
    a.e(f'v_lshrrev_b32 {v(vT4)}, 5, v0')
    a.e(f'v_mul_u32_u24 {v(vT4)}, 320, {v(vT4)}')
    for t in range(5):
        a.e(f'v_add_u32 v91, {32*t}, {v(vT3)}')
        a.e(f'v_mul_u32_u24 v92, 3277, v91')
        a.e(f'v_lshrrev_b32 v92, 16, v92')
        a.e(f'v_mul_u32_u24 v93, 20, v92')
        a.e(f'v_sub_u32 v91, v91, v93')
        a.e(f'v_lshlrev_b32 v91, 4, v91')
        a.e(f'v_add_u32 v91, v91, {v(vT4)}')
        a.e(f's_mov_b32 s27, 81920')
        a.e(f'v_mul_lo_u32 v92, v92, s27')
        a.e(f'v_add_u32 {v(VO+t)}, v91, v92')
    NM=4; RR=20; TMP=36
    for i in range(2):
        a.e('s_waitcnt lgkmcnt(0)')
        for b in range(4):
            a.e(f'ds_read_b128 {v(NM+4*b,4)}, {v(vT2)} offset:{i*128+b*32}')
            a.e(f'ds_read_b128 {v(RR+4*b,4)}, {v(vT2)} offset:{256+i*128+b*32}')
        a.e(f's_add_u32 s27, s30, {i*1280}')
        a.e('s_waitcnt lgkmcnt(0)')
        for t in range(5):
            A=acc(i,t)
            for j in range(2):
                for q in range(4):
                    r_=8*j+2*q
                    a.e(pkfma(TMP+2*q,NM+r_,CB+2*t,A+r_,None,0,None))
                for q in range(4):
                    r_=8*j+2*q
                    a.e(pkmul(TMP+2*q,TMP+2*q,RR+r_))
                for q in range(4):
                    a.e(f'v_cvt_pk_bf16_f32 {v(A+8*j+q)}, {v(TMP+2*q)}, {v(TMP+2*q+1)}')
                a.e(f'buffer_store_dwordx4 {v(A+8*j,4)}, {v(VO+t)}, s[4:7], s27 offen offset:{j*640}')
    a.e('s_branch K1_DONE')
    a.label('K1_FFN_SETUP')
    a.e(f'v_mul_u32_u24 {v(vT2)}, 320, {v(vRow)}')
    a.e(f'v_mul_u32_u24 {v(vT3)}, 10272, {v(vCh)}')
    a.e(f'v_add_u32 {v(vT2)}, {v(vT2)}, {v(vT3)}')
    a.e(f'v_lshlrev_b32 {v(vT3)}, 3, {v(vC4)}')
    a.e(f'v_add_u32 {v(vT2)}, {v(vT2)}, {v(vT3)}')
    a.e('s_mul_i32 s27, s20, 160')
    a.e(f's_add_u32 s27, s27, {WBASE}')
    a.e(f'v_add_u32 {v(vT2)}, s27, {v(vT2)}')
    for jl in range(2):
        a.e(f's_xor_b32 s27, s21, {jl}')
        a.e(f's_mul_i32 s27, s27, {16*320}')
        a.e(f'v_add_u32 {v(WA+2*jl)}, s27, {v(vT2)}')
    a.e(f'v_mul_u32_u24 v62, 160, {v(vCh)}')
    a.e(f'v_and_b32 {v(vT3)}, 15, v0')
    a.e(f'v_add_u32 v62, v62, {v(vT3)}')
    a.e('v_lshlrev_b32 v62, 2, v62')
    a.e('s_mul_i32 s27, s20, 320')
    a.e(f's_add_u32 s27, s27, {CS}')
    a.e('v_add_u32 v62, s27, v62')
    for k in range(160): a.e(f'v_mov_b32 {v(ACC+k)}, 0')
    a.e('s_waitcnt lgkmcnt(0)')
    main_loop(a,'ffn')
    a.e(f'v_lshrrev_b32 {v(vT)}, 5, v0')
    a.e(f'v_lshlrev_b32 {v(vT)}, 4, {v(vT)}')
    a.e('s_mul_i32 s27, s20, 320')
    a.e(f's_add_u32 s27, s27, {CS}')
    a.e(f'v_add_u32 {v(vT)}, s27, {v(vT)}')
    CQ=[4,20]
    def csread(t):
        C=CQ[t%2]
        for b in range(2):
            a.e(f'ds_read_b128 {v(C+4*b,4)}, {v(vT)} offset:{t*64+b*32}')
            a.e(f'ds_read_b128 {v(C+8+4*b,4)}, {v(vT)} offset:{640+t*64+b*32}')
    csread(0)
    a.e(f's_add_u32 s4, s34, {HIMG}')
    a.e('s_addc_u32 s5, s35, 0')
    a.e('s_mov_b32 s6, 6291456')
    a.e('s_mov_b32 s7, 0x00020000')
    a.e('s_sub_u32 s27, s18, 6')
    a.e('s_mul_i32 s27, s27, 10')
    a.e('s_min_u32 s27, s27, 86')
    a.e('s_mul_i32 s30, s20, 5')
    a.e('s_add_u32 s27, s27, s30')
    a.e('s_lshl_b32 s30, s27, 10')
    a.e('s_lshl_b32 s31, s17, 2')
    a.e('s_lshl_b32 s27, s19, 1')
    a.e('s_add_u32 s31, s31, s27')
    a.e('s_mul_i32 s31, s31, 98304')
    a.e('s_add_u32 s30, s30, s31')
    vL16=71
    a.e(f'v_lshlrev_b32 {v(vL16)}, 4, v0')
    a.e('s_waitcnt lgkmcnt(4)')
    for i in range(2):
        stats(a,i,64+2*i)
        P=64+2*i
        a.e(f'v_mul_f32 {v(72+2*i)}, {v(P+1)}, {v(P+1)}')
        a.e(f'v_rcp_f32 {v(72+2*i)}, {v(72+2*i)}')
        a.e(f'v_mul_f32 {v(P+1)}, 0xbfb8aa3b, {v(P+1)}')
    E=76
    for t in range(5):
        if t<4:
            csread(t+1); a.e('s_waitcnt lgkmcnt(4)')
        else: a.e('s_waitcnt lgkmcnt(0)')
        C=CQ[t%2]
        for i in range(2):
            A=acc(i,t); P=64+2*i
            for q in range(4): a.e(pkfma(A+2*q,C+2*q,P,A+2*q,None,0,None))
        for i in range(2):
            A=acc(i,t); P=64+2*i
            for q in range(4): a.e(pkmul(E+8*i+2*q,A+2*q,P,None,1))
        for i in range(2):
            A=acc(i,t); P=64+2*i
            for q in range(4):
                a.e(f'v_exp_f32 {v(E+8*i+2*q)}, {v(E+8*i+2*q)}')
                a.e(f'v_exp_f32 {v(E+8*i+2*q+1)}, {v(E+8*i+2*q+1)}')
                a.e(pkfma(A+8+2*q,C+8+2*q,P,A+8+2*q,None,0,None))
        for i in range(2):
            A=acc(i,t); I=72+2*i
            for q in range(4):
                a.e(pkfma(E+8*i+2*q,E+8*i+2*q,I,I,None,0,0))
                a.e(pkmul(A+2*q,A+2*q,A+8+2*q))
        for i in range(2):
            for q in range(8): a.e(f'v_rcp_f32 {v(E+8*i+q)}, {v(E+8*i+q)}')
        for i in range(2):
            A=acc(i,t)
            for q in range(4): a.e(pkmul(A+2*q,A+2*q,E+8*i+2*q))
        for i in range(2):
            A=acc(i,t)
            for q in range(4): a.e(f'v_cvt_pk_bf16_f32 {v(A+8+q)}, {v(A+2*q)}, {v(A+2*q+1)}')
            a.e(f's_add_u32 s27, s30, {i*98304+t*1024}')
            a.e(f'buffer_store_dwordx4 {v(A+8,4)}, {v(vL16)}, s[4:7], s27 offen')
    a.label('K1_DONE')
    stamp(a,3)
    a.e('s_waitcnt vmcnt(0)')
    stamp(a,4)
    stamp_store(a,8,34,'s16',8,3*1024*1024)
    a.e('s_endpgm')
    a.label('K1_LOADER')
    a.e('s_sub_u32 s19, s16, 4')
    a.e('s_setprio 3')
    vX=4; vW=8
    a.e(f'v_lshrrev_b32 {v(vT)}, 3, v0')
    a.e(f'v_and_b32 {v(vT2)}, 7, v0')
    a.e(f'v_lshrrev_b32 {v(vT3)}, 4, v0')
    a.e('s_lshl_b32 s27, s17, 7')
    a.e('s_lshl_b32 s29, s19, 5')
    a.e('s_add_u32 s27, s27, s29')
    for i in range(4):
        a.e(f'v_add_u32 {v(vT4)}, {4*i}, {v(vT3)}')
        a.e(f'v_and_b32 {v(vT4)}, 7, {v(vT4)}')
        a.e(f'v_xor_b32 {v(vT4)}, {v(vT4)}, {v(vT2)}')
        a.e(f'v_lshlrev_b32 {v(vT4)}, 4, {v(vT4)}')
        a.e(f's_add_u32 s29, s27, {8*i}')
        a.e(f'v_add_u32 {v(vX+i)}, s29, {v(vT)}')
        a.e(f'v_mul_u32_u24 {v(vX+i)}, 1280, {v(vX+i)}')
        a.e(f'v_add_u32 {v(vX+i)}, {v(vX+i)}, {v(vT4)}')
    a.e('s_cmp_ge_u32 s18, 6')
    a.e('s_cbranch_scc1 K1_LD_FFN')
    a.e('s_mul_i32 s27, s19, 320')
    for p in range(5):
        a.e(f's_add_u32 s29, s27, {64*p}')
        a.e(f'v_add_u32 {v(vT)}, s29, v0')
        a.e(f'v_mul_u32_u24 {v(vT2)}, 1639, {v(vT)}')
        a.e(f'v_lshrrev_b32 {v(vT2)}, 16, {v(vT2)}')
        a.e(f'v_mul_u32_u24 {v(vT3)}, 40, {v(vT2)}')
        a.e(f'v_sub_u32 {v(vT)}, {v(vT)}, {v(vT3)}')
        a.e(f'v_bfe_u32 {v(vT3)}, {v(vT2)}, 1, 1')
        a.e(f'v_lshlrev_b32 {v(vT3)}, 2, {v(vT3)}')
        a.e(f'v_xor_b32 {v(vT)}, {v(vT)}, {v(vT3)}')
        a.e(f'v_lshlrev_b32 {v(vT)}, 4, {v(vT)}')
        a.e(f'v_mul_u32_u24 {v(vT2)}, 3840, {v(vT2)}')
        a.e(f'v_add_u32 {v(vW+p)}, {v(vT)}, {v(vT2)}')
    a.e('s_mul_i32 s29, s18, 640')
    for p in range(5): a.e(f'v_add_u32 {v(vW+p)}, s29, {v(vW+p)}')
    a.e('s_waitcnt lgkmcnt(0)')
    a.e('s_mov_b32 s4, s38'); a.e('s_mov_b32 s5, s39'); a.e(f's_mov_b32 s6, {640*3840}')
    a.e(f's_mov_b32 s22, {32*3840}')
    a.e('s_mul_i32 s20, s19, 5120')
    a.e('s_branch K1_LD_GO')
    a.label('K1_LD_FFN')
    a.e('s_and_b32 s27, s19, 1')
    a.e('s_lshl_b32 s27, s27, 4')
    a.e('s_sub_u32 s29, s18, 6')
    a.e('s_mul_i32 s29, s29, 320')
    a.e('s_min_u32 s29, s29, 2752')
    for p in range(5):
        a.e(f'v_add_u32 {v(vT)}, {64*p}, v0')
        a.e(f'v_mul_u32_u24 {v(vT2)}, 3277, {v(vT)}')
        a.e(f'v_lshrrev_b32 {v(vT2)}, 16, {v(vT2)}')
        a.e(f'v_mul_u32_u24 {v(vT3)}, 20, {v(vT2)}')
        a.e(f'v_sub_u32 {v(vT)}, {v(vT)}, {v(vT3)}')
        a.e(f'v_lshlrev_b32 {v(vT)}, 4, {v(vT)}')
        a.e(f'v_add_u32 {v(vT2)}, s27, {v(vT2)}')
        a.e(f'v_mul_u32_u24 {v(vT2)}, 3072, {v(vT2)}')
        a.e(f'v_add_u32 {v(vW+p)}, {v(vT)}, {v(vT2)}')
        a.e(f'v_add_u32 {v(vW+p)}, s29, {v(vW+p)}')
    a.e('s_waitcnt lgkmcnt(0)')
    a.e('s_cmp_lt_u32 s19, 2')
    a.e('s_cselect_b32 s4, s40, s42')
    a.e('s_cselect_b32 s5, s41, s43')
    a.e(f's_mov_b32 s6, {640*3072}')
    a.e(f's_mov_b32 s22, {32*3072}')
    a.e('s_mul_i32 s20, s19, 5120')
    a.e('s_lshr_b32 s27, s19, 1')
    a.e('s_lshl_b32 s27, s27, 5')
    a.e('s_add_u32 s20, s20, s27')
    a.label('K1_LD_GO')
    a.e('s_mov_b32 s7, 0x00020000')
    a.e('s_mov_b32 s8, s36'); a.e('s_mov_b32 s9, s37'); a.e('s_mov_b32 s10, 2621440'); a.e('s_mov_b32 s11, 0x00020000')
    a.e(f's_add_u32 s20, s20, {WBASE}')
    a.e('s_lshl_b32 s21, s19, 12')
    a.e('s_mov_b32 s23, 0'); a.e('s_mov_b32 s24, s20')
    a.e('s_mov_b32 s25, 0'); a.e('s_mov_b32 s26, s21')
    a.e(f's_add_u32 s29, s20, {5*WP}')
    a.e(f's_add_u32 s30, s21, {3*XS}')
    def issueW(pro=False):
        for p in range(5):
            if 'nodma' in FL and not pro: break
            a.e(f's_add_u32 m0, s24, {p*1024}')
            a.e('s_nop 0')
            a.e(f'buffer_load_dwordx4 {v(vW+p)}, s[4:7], s23 offen lds')
        a.e('s_add_u32 s23, s23, s22')
        a.e(f's_add_u32 s24, s24, {WP}')
        a.e('s_cmp_eq_u32 s24, s29')
        a.e('s_cselect_b32 s24, s20, s24')
    def issueX(pro=False):
        for i in range(4):
            if 'nodma' in FL and not pro: break
            a.e(f's_add_u32 m0, s26, {i*1024}')
            a.e('s_nop 0')
            a.e(f'buffer_load_dwordx4 {v(vX+i)}, s[8:11], s25 offen lds')
        a.e('s_add_u32 s25, s25, 128')
        a.e(f's_add_u32 s26, s26, {XS}')
        a.e('s_cmp_eq_u32 s26, s30')
        a.e('s_cselect_b32 s26, s21, s26')
    issueX(True); issueW(True); issueW(True); issueX(True); issueW(True)
    stamp(a,1)
    a.e('s_mov_b32 s31, 0')
    a.label('K1_LD_LOOP')
    a.e('s_waitcnt vmcnt(14)'); a.e('s_barrier'); issueW()
    a.e('s_waitcnt vmcnt(14)'); a.e('s_barrier'); issueW(); issueX()
    a.e('s_add_u32 s31, s31, 1')
    a.e('s_cmp_lt_u32 s31, 8')
    a.e('s_cbranch_scc1 K1_LD_LOOP')
    a.e('s_waitcnt vmcnt(14)'); a.e('s_barrier'); issueW()
    a.e('s_waitcnt vmcnt(14)'); a.e('s_barrier')
    a.e('s_waitcnt vmcnt(5)'); a.e('s_barrier')
    a.e('s_waitcnt vmcnt(0)'); a.e('s_barrier')
    stamp(a,2); stamp(a,3); stamp(a,4); stamp(a,5); stamp(a,6); stamp(a,7)
    stamp_store(a,8,34,'s16',8,3*1024*1024)
    a.label('K1_END')
    a.e('s_endpgm')
    return NV
```

```python
import numpy as np
S=2048; D=640; H=32; DH=20; F=1536
QIMG=0; KIMG=2621440; VIMG=2*2621440; OIMG=3*2621440; HIMG=4*2621440
GBUF=HIMG+6291456
WS_USED=GBUF+2621440*2

def f2bf(a):
    a=np.ascontiguousarray(a,dtype=np.float32)
    u=a.view(np.uint32)
    r=((u>>16)&1)+0x7fff
    return ((u+r)>>16).astype(np.uint16)
def bf2f(u):
    return (u.astype(np.uint32)<<16).view(np.float32)

EVEN=[[0,1,2,3,8,9,10,11],[4,5,6,7,12,13,14,15],[16,17,18,19]]
ODD=[[4,5,6,7,12,13,14,15],[8,9,10,11,16,17,18,19],[0,1,2,3]]
def qk_img(q_u16):
    img=np.zeros((H,64,640),np.uint16)
    q=q_u16.reshape(64,32,H,DH)
    for h in range(H):
        o=EVEN if h%2==0 else ODD
        img[h,:,0:256]=q[:,:,h,:][:,:,o[0]].reshape(64,256)
        img[h,:,256:512]=q[:,:,h,:][:,:,o[1]].reshape(64,256)
        img[h,:,512:640]=q[:,:,h,:][:,:,o[2]].reshape(64,128)
    return img
def qk_unimg(img):
    q=np.zeros((64,32,H,DH),np.uint16)
    for h in range(H):
        o=EVEN if h%2==0 else ODD
        q[:,:,h,o[0]]=img[h,:,0:256].reshape(64,32,8)
        q[:,:,h,o[1]]=img[h,:,256:512].reshape(64,32,8)
        q[:,:,h,o[2]]=img[h,:,512:640].reshape(64,32,4)
    return q.reshape(S,640)
def v_tok(j,hp):
    return [16*j+4*hp+i for i in range(4)]+[16*j+8+4*hp+i for i in range(4)]
def v_img(v_u16):
    img=np.zeros((H,64,4,20,8),np.uint16)
    v=v_u16.reshape(64,32,H,DH)
    for j in range(2):
        for hp in range(2):
            t=v_tok(j,hp)
            img[:,:,2*j+hp]=v[:,t].transpose(2,0,3,1)
    return img.reshape(H,64,640)
def v_unimg(img):
    img=img.reshape(H,64,4,20,8)
    v=np.zeros((64,32,H,DH),np.uint16)
    for j in range(2):
        for hp in range(2):
            t=v_tok(j,hp)
            v[:,t]=img[:,:,2*j+hp].transpose(1,3,0,2)
    return v.reshape(S,640)
def kslot(hp):
    return [4*hp+i for i in range(4)]+[8+4*hp+i for i in range(4)]
def o_cols():
    c=np.zeros((40,2,8),np.int64)
    for k in range(32):
        for hp in range(2):
            c[k,hp]=[20*k+x for x in kslot(hp)]
    for m in range(8):
        for hp in range(2):
            for e in range(8):
                c[32+m,hp,e]=20*(4*m+2*hp+(e>=4))+16+e%4
    return c
def o_img(o_u16):
    c=o_cols()
    o=o_u16.reshape(64,32,640)
    return o[:,:,c].transpose(0,2,3,1,4).copy()
def o_unimg(img):
    img=img.reshape(64,40,2,32,8)
    c=o_cols()
    o=np.zeros((64,32,640),np.uint16)
    o[:,:,c]=img.transpose(0,3,1,2,4)
    return o.reshape(S,640)
def h_cols():
    c=np.zeros((96,2,8),np.int64)
    for k in range(96):
        for hp in range(2):
            c[k,hp]=[16*k+x for x in kslot(hp)]
    return c
def h_img(h_u16):
    c=h_cols()
    h=h_u16.reshape(64,32,F)
    return h[:,:,c].transpose(0,2,3,1,4).copy()
def h_unimg(img):
    img=img.reshape(64,96,2,32,8)
    c=h_cols()
    h=np.zeros((64,32,F),np.uint16)
    h[:,:,c]=img.transpose(0,3,1,2,4)
    return h.reshape(S,F)
```

```python
STAMP=False
REAL=False
DBGOFF=200*1024*1024
def stamp(a,i):
    if STAMP:
        a.e(f'{"s_memrealtime" if REAL else "s_memtime"} s[{60+2*i}:{61+2*i}]')
def stamp_store(a,n,wsreg,wavereg,nw=8,dbgoff=0):
    if not STAMP: return
    a.e('s_waitcnt lgkmcnt(0)')
    a.e('s_mov_b64 exec, 1')
    a.e(f's_mul_i32 s58, s2, {nw}')
    a.e(f's_add_u32 s58, s58, {wavereg}')
    a.e(f's_lshl_b32 s58, s58, 7')
    a.e(f's_add_u32 s56, s{wsreg}, {DBGOFF+dbgoff}')
    a.e(f's_addc_u32 s57, s{wsreg+1}, 0')
    a.e(f's_add_u32 s56, s56, s58')
    a.e(f's_addc_u32 s57, s57, 0')
    a.e('v_mov_b32 v2, 0')
    for i in range(n):
        a.e(f'v_mov_b32 v4, s{60+2*i}')
        a.e(f'v_mov_b32 v5, s{61+2*i}')
        a.e(f'global_store_dwordx2 v2, v[4:5], s[56:57] offset:{8*i}')
        a.e('s_nop 1')
    a.e('s_waitcnt vmcnt(0)')
```

```python
import sys
from asmlib import *
import gen_att, gen_g64, gen_k1, stamps
HDR=open('recurrent_scan__mha_block__glu_gated_swiglu__prompt.s.ref').read().split('\n')
def build(kernels):
    out=[]
    for ln in HDR:
        if ln.startswith('; Override launch'): break
        out.append(ln)
    for (name,fn,grid,block,lds) in kernels:
        out.append(f'; @launch kernel={name} grid=({grid},1,1) block=({block},1,1) lds={lds}')
    out.append('.amdgcn_target "amdgcn-amd-amdhsa--gfx950"')
    out.append('.text')
    descs=[]
    done=set()
    for (name,fn,grid,block,lds) in kernels:
        if name in done: continue
        done.add(name)
        a=Asm()
        nv=fn(a,name)
        out.append(a.text())
        descs.append(kernel_desc(name,nv))
    out.append('.section .rodata,"a"')
    out.append('.p2align 6')
    out+=descs
    return '\n'.join(out)+'\n'
if __name__=='__main__':
    which=sys.argv[1]; path=sys.argv[2]
    ks=[]
    if len(sys.argv)>3 and sys.argv[3] in('stamp','real'): stamps.STAMP=True
    if len(sys.argv)>3 and sys.argv[3]=='real': stamps.REAL=True
    if len(sys.argv)>4: gen_att.FL=set(sys.argv[4].split(',')); gen_k1.FL=set(sys.argv[4].split(','))
    if which=='att': ks=[('att_kernel',gen_att.att_kernel,256,512,61440)]
    if which=='g64': ks=[('w2_kernel',gen_g64.w2_kernel,256,256,102400),('wo_kernel',gen_g64.wo_kernel,256,256,102400)]
    if which=='k1': ks=[('k1_kernel',gen_k1.k1_kernel,256,512,gen_k1.LDS)]
    if which=='all': ks=[('k1_kernel',gen_k1.k1_kernel,256,512,gen_k1.LDS),('att_kernel',gen_att.att_kernel,256,512,61440),('w2_kernel',gen_g64.w2_kernel,256,256,102400),('wo_kernel',gen_g64.wo_kernel,256,256,102400)]
    open(path,'w').write(build(ks))
```

```python
from asmlib import *
from layouts import QIMG,KIMG,VIMG,HIMG
from stamps import stamp, stamp_store
import stamps
XS=16384; WBASE=49152; WP=20544
CS=WBASE+5*WP
CSP=CS+1280
NM=CSP+2560
RR=NM+512
ST2=RR+512
LDS=ST2+1024
WF=4
XF=24
XA=40
WA=44
SEL=48
vT=58; vT2=59; vT3=60; vT4=61
CSA=64
ACC=96
NV=256
FL=set()
def acc(i,t): return ACC+(i*5+t)*16
def mfma(d,a_,b_): return f'v_mfma_f32_32x32x16_bf16 {v(d,16)}, {v(a_,4)}, {v(b_,4)}, {v(d,16)}'

def wread(a,var,jl,t):
    if var=='ffn':
        reg=WA+2*jl; pitch=320; off=32*t
    else:
        reg=WA+2*jl+(t%2); pitch=640; off=64*t
    for p in range(2):
        a.e(f'ds_read_b64_tr_b16 {v(WF+4*t+2*p,2)}, {v(reg)} offset:{off+4*p*pitch}')
def xread(a,buf,j):
    for i in range(2):
        a.e(f'ds_read_b128 {v(XF+buf*8+i*4,4)}, {v(XA+j)} offset:{i*4096}')

def kstep(a,var,k):
    jl=k%2; xb=k%2
    a.c(f'kstep {k}')
    A=[[] for _ in range(5)]
    if jl==1 and 'nobar' not in FL: A[0].append('BAR')
    A[1]+=[f'ds_read_b128 {v(XF+(1-xb)*8+i*4,4)}, {v(XA+(k+1)%4)} offset:{i*4096}' for i in range(2)]
    regs=[WA+2*jl] if var=='ffn' else [WA+2*jl,WA+2*jl+1]
    A[2]+=[f'v_add_u32 {v(r)}, s22, {v(r)}' for r in regs]
    xs={1:[0,1],2:[2],3:[3]}.get(k,[])
    A[3]+=[f'v_add_u32 {v(XA+j)}, s24, {v(XA+j)}' for j in xs]
    if jl==1:
        A[3]+=['s_add_u32 s23, s23, 1','s_cmp_eq_u32 s23, 5']
        A[4]+=['s_cselect_b32 s22, s45, s44','s_cselect_b32 s23, 0, s23']
    if k==0:
        A[0]+=['s_add_u32 s25, s25, 1','s_cmp_eq_u32 s25, 3']
        A[0]+=['s_cselect_b32 s24, s47, s46']
        A[4]+=['s_cmp_eq_u32 s25, 3','s_cselect_b32 s25, 0, s25']
    if k==2:
        A[4]=['s_add_u32 s26, s26, 1']+A[4]
    if k==3:
        A[4]+=['s_cmp_lt_u32 s26, 10']
    for t in range(5):
        n=8 if t<2 else 10
        a.e(f's_waitcnt lgkmcnt({n})')
        if 'nocs' not in FL and ((jl==0 and t%2==0) or (jl==1 and t%2==1)):
            a.e(f'v_mfma_f32_16x16x32_bf16 {v(CSA+4*t,4)}, {v(SEL,4)}, {v(WF+4*t,4)}, {v(CSA+4*t,4)}')
        for i in range(2):
            X=XF+xb*8+i*4
            if var=='v': a.e(mfma(acc(i,t),X,WF+4*t))
            else:        a.e(mfma(acc(i,t),WF+4*t,X))
            if i==0:
                for f in A[t]:
                    a.e('s_barrier' if f=='BAR' else f)
        wread(a,var,1-jl,t)

def stats(a,i,P,Pc=None,mode='qk'):
    a.e(f'v_mul_f32 {v(P)}, 0x3acccccd, {v(P)}')
    a.e(f'v_mul_f32 {v(P+1)}, 0x3acccccd, {v(P+1)}')
    a.e(f'v_fma_f32 {v(P+1)}, -{v(P)}, {v(P)}, {v(P+1)}')
    a.e(f'v_max_f32 {v(P+1)}, 0, {v(P+1)}')
    a.e(f'v_cvt_pk_bf16_f32 {v(P)}, {v(P)}, {v(P+1)}')
    a.e(f'v_and_b32 {v(P+1)}, 0xffff0000, {v(P)}')
    a.e(f'v_lshlrev_b32 {v(P)}, 16, {v(P)}')
    a.e(f'v_add_f32 {v(P+1)}, 0x3727c5ac, {v(P+1)}')
    a.e(f'v_cvt_pk_bf16_f32 {v(P+1)}, {v(P+1)}, {v(P+1)}')
    a.e(f'v_and_b32 {v(P+1)}, 0xffff0000, {v(P+1)}')
    a.e(f'v_sqrt_f32 {v(P+1)}, {v(P+1)}')
    a.e(f'v_xor_b32 {v(P)}, 0x80000000, {v(P)}')
    a.e(f'v_cvt_pk_bf16_f32 {v(P+1)}, {v(P+1)}, {v(P+1)}')
    a.e(f'v_and_b32 {v(P+1)}, 0xffff0000, {v(P+1)}')
    a.e(f'v_rcp_f32 {v(P+1)}, {v(P+1)}')
    a.e('s_nop 0')

def pkfma(d,x,y,z,bx=None,by=None,bz=None):
    sel=[0 if b is None else b for b in (bx,by,bz)]
    hi=[1 if b is None else b for b in (bx,by,bz)]
    return f'v_pk_fma_f32 {v(d,2)}, {v(x,2)}, {v(y,2)}, {v(z,2)} op_sel:[{sel[0]},{sel[1]},{sel[2]}] op_sel_hi:[{hi[0]},{hi[1]},{hi[2]}]'
def pkmul(d,x,y,bx=None,by=None):
    sel=[0 if b is None else b for b in (bx,by)]
    hi=[1 if b is None else b for b in (bx,by)]
    return f'v_pk_mul_f32 {v(d,2)}, {v(x,2)}, {v(y,2)} op_sel:[{sel[0]},{sel[1]}] op_sel_hi:[{hi[0]},{hi[1]}]'

def main_loop(a,var):
    L=f'K1_{var.upper()}'
    a.e('s_barrier')
    stamp(a,1)
    wread(a,var,0,0)
    xread(a,0,0)
    for t in range(1,5): wread(a,var,0,t)
    a.e('s_mov_b32 s26, 0')
    a.e('s_mov_b32 s22, s44'); a.e('s_mov_b32 s23, 1')
    a.label(f'{L}_LOOP')
    for k in range(4): kstep(a,var,k)
    if stamps.STAMP:
        a.e('s_cmp_eq_u32 s26, 1')
        a.e(f's_cbranch_scc0 {L}_NS')
        stamp(a,7)
        a.label(f'{L}_NS')
        a.e('s_cmp_lt_u32 s26, 10')
    a.e(f's_cbranch_scc1 {L}_LOOP')
    stamp(a,2)
    step,r1=(64,640) if var=='ffn' else (128,64)
    a.e('s_nop 7')
    a.e('s_mov_b64 exec, 0xffff')
    for t in range(5):
        a.e(f'ds_write_b32 v62, {v(CSA+4*t)} offset:{t*step}')
        a.e(f'ds_write_b32 v62, {v(CSA+4*t+1)} offset:{t*step+r1}')
    a.e('s_mov_b64 exec, -1')
    a.e('s_waitcnt lgkmcnt(0)')
    stamp(a,5)
    a.e('s_barrier')
    if var!='v':
        a.e('ds_read_b64 v[64:65], v63 offset:0')
        a.e('ds_read_b64 v[66:67], v63 offset:256')
    a.e('s_barrier')
    stamp(a,6)

def k1_kernel(a,name):
    pol=' '.join(x for x in ('sc0','sc1','nt') if 'st_'+x in FL)
    if 'nost' in FL or pol:
        E0=a.e
        def e2(x):
            if x.startswith('buffer_store'):
                if 'nost' in FL: return
                x=x+' '+pol
            E0(x)
        a.e=e2
    a.lines.append(kernel_header(name))
    a.e('s_cmp_ge_u32 s2, 256')
    a.e('s_cbranch_scc1 K1_END')
    a.e('s_load_dwordx2 s[34:35], s[0:1], 72')
    a.e('s_load_dwordx2 s[36:37], s[0:1], 0')
    a.e('s_load_dwordx2 s[38:39], s[0:1], 8')
    a.e('s_load_dwordx4 s[40:43], s[0:1], 32')
    stamp(a,0)
    a.e(f'v_lshrrev_b32 {v(vT)}, 6, v0')
    a.e('v_and_b32 v0, 63, v0')
    a.e(f'v_readfirstlane_b32 s16, {v(vT)}')
    a.e('s_and_b32 s27, s2, 7')
    a.e('s_lshr_b32 s29, s2, 3')
    a.e('s_and_b32 s17, s27, 1')
    a.e('s_lshl_b32 s17, s17, 3')
    a.e('s_and_b32 s30, s29, 7')
    a.e('s_add_u32 s17, s17, s30')
    a.e('s_lshr_b32 s18, s27, 1')
    a.e('s_lshl_b32 s18, s18, 2')
    a.e('s_lshr_b32 s30, s29, 3')
    a.e('s_add_u32 s18, s18, s30')
    if 'mix' in FL:
        perm=[0,1,6,7,2,3,8,9,4,10,11,12,5,13,14,15]
        lo=sum(perm[i]<<(4*i) for i in range(8)); hi=sum(perm[8+i]<<(4*i) for i in range(8))
        a.e(f's_mov_b32 s30, {lo}'); a.e(f's_mov_b32 s31, {hi}')
        a.e('s_lshl_b32 s18, s18, 2')
        a.e('s_lshr_b64 s[30:31], s[30:31], s18')
        a.e('s_and_b32 s18, s30, 15')
    a.e('s_cmp_ge_u32 s16, 4')
    a.e('s_cbranch_scc1 K1_LOADER')
    if 'pf' in FL:
        pol=' '.join(x for x in ('sc0','sc1','nt') if 'pf_'+x in FL)
        a.e('s_lshr_b32 s27, s2, 6')
        a.e('s_lshr_b32 s29, s2, 3'); a.e('s_and_b32 s29, s29, 7')
        a.e('s_lshl_b32 s30, s17, 7'); a.e('s_lshl_b32 s27, s27, 5'); a.e('s_add_u32 s30, s30, s27')
        a.e('v_and_b32 v52, 31, v0')
        a.e('v_add_u32 v52, s30, v52')
        a.e('v_mul_u32_u24 v52, 1280, v52')
        a.e('v_lshrrev_b32 v53, 5, v0')
        a.e('v_lshlrev_b32 v53, 7, v53')
        a.e('v_add_u32 v52, v52, v53')
        a.e('s_lshl_b32 s30, s16, 8')
        a.e('s_cmp_ge_u32 s18, 6')
        a.e('s_cbranch_scc1 K1_PF_FFN')
        a.e('s_lshl_b32 s27, s16, 6')
        for q in range(2):
            a.e(f'v_add_u32 v53, s27, v0')
            if q==1: a.e('v_add_u32 v53, 256, v53')
            a.e(f'v_mul_u32_u24 v54, 13108, v53')
            a.e('v_lshrrev_b32 v54, 16, v54')
            a.e('v_mul_u32_u24 v55, 5, v54')
            a.e('v_sub_u32 v55, v53, v55')
            a.e('v_lshlrev_b32 v54, 3, v54')
            a.e('v_add_u32 v54, s29, v54')
            a.e('v_mul_u32_u24 v54, 3840, v54')
            a.e('v_lshlrev_b32 v55, 7, v55')
            a.e(f'v_add_u32 v{55+q+1}, v54, v55')
        a.e('s_mul_i32 s31, s18, 640')
        a.e('s_waitcnt lgkmcnt(0)')
        a.e('s_mov_b32 s4, s38'); a.e('s_mov_b32 s5, s39'); a.e(f's_mov_b32 s6, {640*3840}')
        a.e('s_branch K1_PF_GO')
        a.label('K1_PF_FFN')
        a.e('s_and_b32 s27, s16, 1')
        a.e('s_lshl_b32 s27, s27, 6')
        for q in range(2):
            a.e(f'v_add_u32 v53, s27, v0')
            if q==1: a.e('v_add_u32 v53, 128, v53')
            a.e(f'v_mul_u32_u24 v54, 21846, v53')
            a.e('v_lshrrev_b32 v54, 16, v54')
            a.e('v_mul_u32_u24 v55, 3, v54')
            a.e('v_sub_u32 v55, v53, v55')
            a.e('v_lshlrev_b32 v54, 3, v54')
            a.e('v_add_u32 v54, s29, v54')
            a.e('v_mul_u32_u24 v54, 3072, v54')
            a.e('v_lshlrev_b32 v55, 7, v55')
            a.e(f'v_add_u32 v{55+q+1}, v54, v55')
        a.e('s_sub_u32 s31, s18, 6')
        a.e('s_mul_i32 s31, s31, 320')
        a.e('s_min_u32 s31, s31, 2752')
        a.e('s_andn2_b32 s31, s31, 127')
        a.e('s_waitcnt lgkmcnt(0)')
        a.e('s_cmp_lt_u32 s16, 2')
        a.e('s_cselect_b32 s4, s40, s42')
        a.e('s_cselect_b32 s5, s41, s43')
        a.e(f's_mov_b32 s6, {640*3072}')
        a.label('K1_PF_GO')
        a.e('s_mov_b32 s7, 0x00020000')
        a.e('s_mov_b32 s8, s36'); a.e('s_mov_b32 s9, s37'); a.e('s_mov_b32 s10, 2621440'); a.e('s_mov_b32 s11, 0x00020000')
        a.e(f'buffer_load_dword v95, v56, s[4:7], s31 offen {pol}')
        a.e(f'buffer_load_dword v95, v52, s[8:11], s30 offen {pol}')
        a.e(f'buffer_load_dword v95, v57, s[4:7], s31 offen {pol}')
        a.e('s_cmp_eq_u32 s16, 0')
        a.e('s_cbranch_scc0 K1_PF_END')
        a.e(f'buffer_load_dword v95, v52, s[8:11], 0 offen offset:1024 {pol}')
        a.label('K1_PF_END')
    if 'cp3' in FL: a.e('s_setprio 3')
    a.e('s_lshr_b32 s19, s16, 1')
    a.e('s_and_b32 s20, s16, 1')
    a.e('s_xor_b32 s21, s19, s20')
    a.e(f's_mov_b32 s44, {WP}'); a.e(f's_mov_b32 s45, {(-4*WP)&0xffffffff}'); a.e(f's_mov_b32 s46, {XS}'); a.e(f's_mov_b32 s47, {(-2*XS)&0xffffffff}')
    a.e(f'v_and_b32 {v(vT)}, 31, v0')
    a.e(f'v_lshrrev_b32 {v(vT2)}, 5, v0')
    a.e(f'v_bfe_u32 {v(vT3)}, v0, 1, 3')
    a.e(f'v_lshlrev_b32 {v(vT4)}, 7, {v(vT)}')
    a.e('s_lshl_b32 s27, s19, 13')
    a.e(f'v_add_u32 {v(vT4)}, s27, {v(vT4)}')
    for kk in range(4):
        a.e(f's_xor_b32 s27, s21, {kk%2}')
        a.e(f's_add_u32 s27, s27, {2*(kk//2)}')
        a.e('s_lshl_b32 s27, s27, 1')
        a.e(f'v_add_u32 {v(XA+kk)}, s27, {v(vT2)}')
        a.e(f'v_xor_b32 {v(XA+kk)}, {v(XA+kk)}, {v(vT3)}')
        a.e(f'v_lshlrev_b32 {v(XA+kk)}, 4, {v(XA+kk)}')
        a.e(f'v_add_u32 {v(XA+kk)}, {v(XA+kk)}, {v(vT4)}')
    a.e('s_lshl_b32 s27, s19, 9')
    a.e(f's_add_u32 s27, s27, {ST2}')
    a.e(f'v_lshlrev_b32 v63, 3, {v(vT)}')
    a.e('v_add_u32 v63, s27, v63')
    for k in range(20): a.e(f'v_mov_b32 {v(CSA+k)}, 0')
    a.e(f'v_and_b32 {v(vT2)}, 15, v0')
    a.e(f'v_bfe_u32 {v(vT3)}, v0, 4, 1')
    a.e(f'v_cmp_eq_u32 vcc, {v(vT2)}, {v(vT3)}')
    a.e(f'v_mov_b32 {v(vT2)}, 0')
    a.e(f'v_mov_b32 {v(vT3)}, 0x3f803f80')
    for k in range(4): a.e(f'v_cndmask_b32 {v(SEL+k)}, {v(vT2)}, {v(vT3)}, vcc')
    a.e('s_mov_b32 s25, 0')
    vH=84; vCh=85; vR=86; vC4=87; vRow=88
    a.e(f'v_lshrrev_b32 {v(vH)}, 5, v0')
    a.e(f'v_bfe_u32 {v(vCh)}, v0, 4, 1')
    a.e(f'v_bfe_u32 {v(vR)}, v0, 2, 2')
    a.e(f'v_and_b32 {v(vC4)}, 3, v0')
    a.e(f'v_lshlrev_b32 {v(vRow)}, 3, {v(vH)}')
    a.e(f'v_add_u32 {v(vRow)}, {v(vRow)}, {v(vR)}')
    a.e('s_cmp_ge_u32 s18, 6')
    a.e('s_cbranch_scc1 K1_FFN_SETUP')
    a.e(f'v_mul_u32_u24 {v(vT2)}, 640, {v(vRow)}')
    a.e(f'v_lshlrev_b32 {v(vT3)}, 5, {v(vCh)}')
    a.e(f'v_add_u32 {v(vT2)}, {v(vT2)}, {v(vT3)}')
    a.e(f'v_lshlrev_b32 {v(vT3)}, 3, {v(vC4)}')
    a.e(f'v_add_u32 {v(vT2)}, {v(vT2)}, {v(vT3)}')
    a.e('s_mul_i32 s27, s20, 320')
    a.e(f's_add_u32 s27, s27, {WBASE}')
    a.e(f'v_add_u32 {v(vT2)}, s27, {v(vT2)}')
    a.e(f'v_lshrrev_b32 {v(vT3)}, 1, {v(vR)}')
    a.e(f'v_lshlrev_b32 {v(vT3)}, 6, {v(vT3)}')
    a.e(f'v_sub_u32 {v(vT4)}, 0, {v(vT3)}')
    a.e('s_cmp_eq_u32 s20, 0')
    a.e('s_cselect_b64 vcc, -1, 0')
    a.e(f'v_cndmask_b32 v89, {v(vT4)}, {v(vT3)}, vcc')
    a.e(f'v_cndmask_b32 v90, {v(vT3)}, {v(vT4)}, vcc')
    for jl in range(2):
        a.e(f's_xor_b32 s27, s21, {jl}')
        a.e(f's_mul_i32 s27, s27, {16*640}')
        a.e(f'v_add_u32 {v(vT3)}, s27, {v(vT2)}')
        a.e(f'v_add_u32 {v(WA+2*jl)}, {v(vT3)}, v89')
        a.e(f'v_add_u32 {v(WA+2*jl+1)}, {v(vT3)}, v90')
    a.e('s_mul_i32 s27, s20, 640')
    a.e('s_mul_i32 s29, s19, 1280')
    a.e('s_add_u32 s27, s27, s29')
    a.e(f's_add_u32 s27, s27, {CSP}')
    a.e(f'v_and_b32 v62, 15, v0')
    a.e(f'v_lshlrev_b32 v62, 2, v62')
    a.e('v_add_u32 v62, s27, v62')
    for k in range(160): a.e(f'v_mov_b32 {v(ACC+k)}, 0')
    a.e('s_waitcnt lgkmcnt(0)')
    a.e('s_cmp_ge_u32 s18, 4')
    a.e('s_cbranch_scc1 K1_V_START')
    main_loop(a,'qk')
    a.e(f'v_lshrrev_b32 {v(vT)}, 5, v0')
    a.e(f'v_lshlrev_b32 {v(vT)}, 4, {v(vT)}')
    a.e('s_mul_i32 s27, s20, 640')
    a.e(f's_add_u32 s27, s27, {CS}')
    a.e(f'v_add_u32 {v(vT)}, s27, {v(vT)}')
    CQ=[4,20]
    for b in range(4): a.e(f'ds_read_b128 {v(CQ[0]+4*b,4)}, {v(vT)} offset:{b*32}')
    a.e('s_cmp_lt_u32 s18, 2')
    a.e(f's_cselect_b32 s27, {QIMG}, {KIMG}')
    a.e('s_add_u32 s4, s34, s27')
    a.e('s_addc_u32 s5, s35, 0')
    a.e('s_mov_b32 s6, 2621440')
    a.e('s_mov_b32 s7, 0x00020000')
    a.e('s_cmp_lt_u32 s18, 2')
    a.e('s_cselect_b32 s29, 0x3ea52b5c, 0x3f800000')
    a.e('s_and_b32 s27, s18, 1')
    a.e('s_lshl_b32 s27, s27, 4')
    a.e('s_lshl_b32 s30, s20, 3')
    a.e('s_add_u32 s27, s27, s30')
    a.e('s_mul_i32 s30, s27, 81920')
    a.e('s_lshl_b32 s31, s17, 2')
    a.e('s_lshl_b32 s27, s19, 1')
    a.e('s_add_u32 s31, s31, s27')
    a.e('s_mul_i32 s31, s31, 1280')
    a.e('s_add_u32 s30, s30, s31')
    vL16=71; vR8=72
    a.e(f'v_lshlrev_b32 {v(vL16)}, 4, v0')
    a.e(f'v_and_b32 {v(vR8)}, 31, v0')
    a.e(f'v_lshlrev_b32 {v(vR8)}, 3, {v(vR8)}')
    a.e(f'v_lshrrev_b32 {v(vT2)}, 5, v0')
    a.e(f'v_mul_u32_u24 {v(vT2)}, 81920, {v(vT2)}')
    a.e(f'v_add_u32 {v(vR8)}, {v(vR8)}, {v(vT2)}')
    a.e(f'v_add_u32 {v(vR8)}, 1024, {v(vR8)}')
    a.e('s_waitcnt lgkmcnt(4)')
    for i in range(2):
        a.e(f'v_mul_f32 {v(65+2*i)}, s29, {v(65+2*i)}')
    TMP=76
    for t in range(5):
        if t<4:
            for b in range(4): a.e(f'ds_read_b128 {v(CQ[(t+1)%2]+4*b,4)}, {v(vT)} offset:{(t+1)*128+b*32}')
            a.e('s_waitcnt lgkmcnt(4)')
        else:
            a.e('s_waitcnt lgkmcnt(0)')
        for b in range(4):
            j=4*t+b; m=j//5; jj=j%5
            dst={0:0,1:2,2:4,3:8,4:10}[jj]+20*m
            for i in range(2):
                A=acc(i,0)+4*j; P=64+2*i; C=CQ[t%2]+4*b; T_=TMP+4*i
                a.e(pkfma(T_,C,P,A,None,0,None))
                a.e(pkfma(T_+2,C+2,P,A+2,None,0,None))
                a.e(pkmul(T_,T_,P,None,1))
                a.e(pkmul(T_+2,T_+2,P,None,1))
            for i in range(2):
                T_=TMP+4*i; D=acc(i,0)+dst
                a.e(f'v_cvt_pk_bf16_f32 {v(D)}, {v(T_)}, {v(T_+1)}')
                a.e(f'v_cvt_pk_bf16_f32 {v(D+1)}, {v(T_+2)}, {v(T_+3)}')
            if jj==4:
                for i in range(2):
                    B=acc(i,0)+20*m
                    a.e(f's_add_u32 s27, s30, {2*m*81920+i*1280}')
                    a.e(f's_add_u32 s31, s27, 81920')
                    a.e(f'buffer_store_dwordx4 {v(B,4)}, {v(vL16)}, s[4:7], s27 offen')
                    a.e(f'buffer_store_dwordx4 {v(B+8,4)}, {v(vL16)}, s[4:7], s31 offen')
                    a.e(f'buffer_store_dwordx2 {v(B+4,2)}, {v(vR8)}, s[4:7], s27 offen')
    a.e('s_branch K1_DONE')
    a.label('K1_V_START')
    main_loop(a,'v')
    CB=76
    a.e('s_mul_i32 s27, s20, 640')
    a.e(f's_add_u32 s27, s27, {CS}')
    a.e(f'v_and_b32 v62, 31, v0')
    a.e(f'v_lshlrev_b32 v62, 2, v62')
    a.e('v_add_u32 v62, s27, v62')
    for t in range(5): a.e(f'ds_read_b32 {v(CB+2*t)}, v62 offset:{t*128}')
    a.e(f'v_lshrrev_b32 {v(vT2)}, 5, v0')
    a.e(f'v_lshlrev_b32 {v(vT2)}, 4, {v(vT2)}')
    a.e('s_lshl_b32 s27, s19, 8')
    a.e(f's_add_u32 s27, s27, {NM}')
    a.e(f'v_add_u32 {v(vT2)}, s27, {v(vT2)}')
    a.e(f's_add_u32 s4, s34, {VIMG}')
    a.e('s_addc_u32 s5, s35, 0')
    a.e('s_mov_b32 s6, 2621440')
    a.e('s_mov_b32 s7, 0x00020000')
    a.e('s_sub_u32 s27, s18, 4')
    a.e(f's_mul_i32 s30, s27, {16*81920}')
    a.e('s_lshl_b32 s31, s17, 2')
    a.e('s_lshl_b32 s27, s19, 1')
    a.e('s_add_u32 s31, s31, s27')
    a.e('s_mul_i32 s31, s31, 1280')
    a.e('s_add_u32 s30, s30, s31')
    VO=86
    a.e(f'v_and_b32 {v(vT3)}, 31, v0')
    a.e('s_mul_i32 s27, s20, 160')
    a.e(f'v_add_u32 {v(vT3)}, s27, {v(vT3)}')
    a.e(f'v_lshrrev_b32 {v(vT4)}, 5, v0')
    a.e(f'v_mul_u32_u24 {v(vT4)}, 320, {v(vT4)}')
    for t in range(5):
        a.e(f'v_add_u32 v91, {32*t}, {v(vT3)}')
        a.e(f'v_mul_u32_u24 v92, 3277, v91')
        a.e(f'v_lshrrev_b32 v92, 16, v92')
        a.e(f'v_mul_u32_u24 v93, 20, v92')
        a.e(f'v_sub_u32 v91, v91, v93')
        a.e(f'v_lshlrev_b32 v91, 4, v91')
        a.e(f'v_add_u32 v91, v91, {v(vT4)}')
        a.e(f's_mov_b32 s27, 81920')
        a.e(f'v_mul_lo_u32 v92, v92, s27')
        a.e(f'v_add_u32 {v(VO+t)}, v91, v92')
    qN=4; qR=20; TMP=36
    for i in range(2):
        a.e('s_waitcnt lgkmcnt(0)')
        for b in range(4):
            a.e(f'ds_read_b128 {v(qN+4*b,4)}, {v(vT2)} offset:{i*128+b*32}')
            a.e(f'ds_read_b128 {v(qR+4*b,4)}, {v(vT2)} offset:{512+i*128+b*32}')
        a.e(f's_add_u32 s27, s30, {i*1280}')
        a.e('s_waitcnt lgkmcnt(0)')
        for t in range(5):
            A=acc(i,t)
            for j in range(2):
                for q in range(4):
                    r_=8*j+2*q
                    a.e(pkfma(TMP+2*q,qN+r_,CB+2*t,A+r_,None,0,None))
                for q in range(4):
                    r_=8*j+2*q
                    a.e(pkmul(TMP+2*q,TMP+2*q,qR+r_))
                for q in range(4):
                    a.e(f'v_cvt_pk_bf16_f32 {v(A+8*j+q)}, {v(TMP+2*q)}, {v(TMP+2*q+1)}')
                a.e(f'buffer_store_dwordx4 {v(A+8*j,4)}, {v(VO+t)}, s[4:7], s27 offen offset:{j*640}')
    a.e('s_branch K1_DONE')
    a.label('K1_FFN_SETUP')
    a.e(f'v_mul_u32_u24 {v(vT2)}, 320, {v(vRow)}')
    a.e(f'v_mul_u32_u24 {v(vT3)}, 10272, {v(vCh)}')
    a.e(f'v_add_u32 {v(vT2)}, {v(vT2)}, {v(vT3)}')
    a.e(f'v_lshlrev_b32 {v(vT3)}, 3, {v(vC4)}')
    a.e(f'v_add_u32 {v(vT2)}, {v(vT2)}, {v(vT3)}')
    a.e('s_mul_i32 s27, s20, 160')
    a.e(f's_add_u32 s27, s27, {WBASE}')
    a.e(f'v_add_u32 {v(vT2)}, s27, {v(vT2)}')
    for jl in range(2):
        a.e(f's_xor_b32 s27, s21, {jl}')
        a.e(f's_mul_i32 s27, s27, {16*320}')
        a.e(f'v_add_u32 {v(WA+2*jl)}, s27, {v(vT2)}')
    a.e(f'v_and_b32 v62, 15, v0')
    a.e('v_lshlrev_b32 v62, 2, v62')
    a.e('s_mul_i32 s27, s20, 320')
    a.e('s_mul_i32 s29, s19, 1280')
    a.e('s_add_u32 s27, s27, s29')
    a.e(f's_add_u32 s27, s27, {CSP}')
    a.e('v_add_u32 v62, s27, v62')
    for k in range(160): a.e(f'v_mov_b32 {v(ACC+k)}, 0')
    a.e('s_waitcnt lgkmcnt(0)')
    main_loop(a,'ffn')
    a.e(f'v_lshrrev_b32 {v(vT)}, 5, v0')
    a.e(f'v_lshlrev_b32 {v(vT)}, 4, {v(vT)}')
    a.e('s_mul_i32 s27, s20, 320')
    a.e(f's_add_u32 s27, s27, {CS}')
    a.e(f'v_add_u32 {v(vT)}, s27, {v(vT)}')
    CQ=[4,20]
    def csread(t):
        C=CQ[t%2]
        for b in range(2):
            a.e(f'ds_read_b128 {v(C+4*b,4)}, {v(vT)} offset:{t*64+b*32}')
            a.e(f'ds_read_b128 {v(C+8+4*b,4)}, {v(vT)} offset:{640+t*64+b*32}')
    csread(0)
    a.e(f's_add_u32 s4, s34, {HIMG}')
    a.e('s_addc_u32 s5, s35, 0')
    a.e('s_mov_b32 s6, 6291456')
    a.e('s_mov_b32 s7, 0x00020000')
    a.e('s_sub_u32 s27, s18, 6')
    a.e('s_mul_i32 s27, s27, 10')
    a.e('s_min_u32 s27, s27, 86')
    a.e('s_mul_i32 s30, s20, 5')
    a.e('s_add_u32 s27, s27, s30')
    a.e('s_lshl_b32 s30, s27, 10')
    a.e('s_lshl_b32 s31, s17, 2')
    a.e('s_lshl_b32 s27, s19, 1')
    a.e('s_add_u32 s31, s31, s27')
    a.e('s_mul_i32 s31, s31, 98304')
    a.e('s_add_u32 s30, s30, s31')
    vL16=71
    a.e(f'v_lshlrev_b32 {v(vL16)}, 4, v0')
    a.e('s_waitcnt lgkmcnt(4)')
    for i in range(2):
        P=64+2*i
        a.e(f'v_mul_f32 {v(72+2*i)}, {v(P+1)}, {v(P+1)}')
        a.e(f'v_rcp_f32 {v(72+2*i)}, {v(72+2*i)}')
        a.e(f'v_mul_f32 {v(P+1)}, 0xbfb8aa3b, {v(P+1)}')
    E=76
    for t in range(5):
        if t<4:
            csread(t+1); a.e('s_waitcnt lgkmcnt(4)')
        else: a.e('s_waitcnt lgkmcnt(0)')
        C=CQ[t%2]
        for i in range(2):
            A=acc(i,t); P=64+2*i
            for q in range(4): a.e(pkfma(A+2*q,C+2*q,P,A+2*q,None,0,None))
        for i in range(2):
            A=acc(i,t); P=64+2*i
            for q in range(4): a.e(pkmul(E+8*i+2*q,A+2*q,P,None,1))
        for i in range(2):
            A=acc(i,t); P=64+2*i
            for q in range(4):
                a.e(f'v_exp_f32 {v(E+8*i+2*q)}, {v(E+8*i+2*q)}')
                a.e(f'v_exp_f32 {v(E+8*i+2*q+1)}, {v(E+8*i+2*q+1)}')
                a.e(pkfma(A+8+2*q,C+8+2*q,P,A+8+2*q,None,0,None))
        for i in range(2):
            A=acc(i,t); I=72+2*i
            for q in range(4):
                a.e(pkfma(E+8*i+2*q,E+8*i+2*q,I,I,None,0,0))
                a.e(pkmul(A+2*q,A+2*q,A+8+2*q))
        for i in range(2):
            for q in range(8): a.e(f'v_rcp_f32 {v(E+8*i+q)}, {v(E+8*i+q)}')
        for i in range(2):
            A=acc(i,t)
            for q in range(4): a.e(pkmul(A+2*q,A+2*q,E+8*i+2*q))
        for i in range(2):
            A=acc(i,t)
            for q in range(4): a.e(f'v_cvt_pk_bf16_f32 {v(A+8+q)}, {v(A+2*q)}, {v(A+2*q+1)}')
            a.e(f's_add_u32 s27, s30, {i*98304+t*1024}')
            a.e(f'buffer_store_dwordx4 {v(A+8,4)}, {v(vL16)}, s[4:7], s27 offen')
    a.label('K1_DONE')
    stamp(a,3)
    a.e('s_waitcnt vmcnt(0)')
    stamp(a,4)
    stamp_store(a,8,34,'s16',8,3*1024*1024)
    a.e('s_endpgm')
    a.label('K1_LOADER')
    a.e('s_sub_u32 s19, s16, 4')
    if 'lp0' not in FL: a.e('s_setprio 3')
    if 'lst' in FL: stamp(a,5)
    vX=4; vW=8
    a.e(f'v_lshrrev_b32 {v(vT)}, 3, v0')
    a.e(f'v_and_b32 {v(vT2)}, 7, v0')
    a.e(f'v_lshrrev_b32 {v(vT3)}, 4, v0')
    a.e('s_lshl_b32 s27, s17, 7')
    a.e('s_lshl_b32 s29, s19, 5')
    a.e('s_add_u32 s27, s27, s29')
    a.e(f'v_xor_b32 {v(vT4)}, {v(vT3)}, {v(vT2)}')
    a.e(f'v_lshlrev_b32 {v(vT4)}, 4, {v(vT4)}')
    a.e(f'v_add_u32 {v(vX)}, s27, {v(vT)}')
    a.e(f'v_mul_u32_u24 {v(vX)}, 1280, {v(vX)}')
    a.e(f'v_xor_b32 {v(vT3)}, 64, {v(vT4)}')
    a.e(f'v_add_u32 {v(vX+1)}, {v(vX)}, {v(vT3)}')
    a.e(f'v_add_u32 {v(vX)}, {v(vX)}, {v(vT4)}')
    a.e(f'v_add_u32 {v(vX+1)}, 10240, {v(vX+1)}')
    a.e(f'v_add_u32 {v(vX+2)}, 20480, {v(vX)}')
    a.e(f'v_add_u32 {v(vX+3)}, 20480, {v(vX+1)}')
    if 'lst' in FL: stamp(a,6)
    a.e('s_waitcnt lgkmcnt(0)')
    a.e('s_mov_b32 s8, s36'); a.e('s_mov_b32 s9, s37'); a.e('s_mov_b32 s10, 2621440'); a.e('s_mov_b32 s11, 0x00020000')
    a.e('s_lshl_b32 s21, s19, 12')
    a.e('s_mov_b32 s25, 0'); a.e('s_mov_b32 s26, s21')
    a.e(f's_add_u32 s30, s21, {3*XS}')
    def issueX(pro=False):
        for i in range(4):
            if 'nodma' in FL and not pro: break
            a.e(f's_add_u32 m0, s26, {i*1024}')
            a.e('s_nop 0')
            a.e(f'buffer_load_dwordx4 {v(vX+i)}, s[8:11], s25 offen lds')
        a.e('s_add_u32 s25, s25, 128')
        a.e(f's_add_u32 s26, s26, {XS}')
        a.e('s_cmp_eq_u32 s26, s30')
        a.e('s_cselect_b32 s26, s21, s26')
    issueX(True)
    if 'lst' in FL: stamp(a,4)
    a.e('s_cmp_ge_u32 s18, 6')
    a.e('s_cbranch_scc1 K1_LD_FFN')
    a.e('s_mul_i32 s27, s19, 320')
    for p in range(5):
        a.e(f's_add_u32 s29, s27, {64*p}')
        a.e(f'v_add_u32 {v(vT)}, s29, v0')
        a.e(f'v_mul_u32_u24 {v(vT2)}, 1639, {v(vT)}')
        a.e(f'v_lshrrev_b32 {v(vT2)}, 16, {v(vT2)}')
        a.e(f'v_mul_u32_u24 {v(vT3)}, 40, {v(vT2)}')
        a.e(f'v_sub_u32 {v(vT)}, {v(vT)}, {v(vT3)}')
        a.e(f'v_bfe_u32 {v(vT3)}, {v(vT2)}, 1, 1')
        a.e(f'v_lshlrev_b32 {v(vT3)}, 2, {v(vT3)}')
        a.e(f'v_xor_b32 {v(vT)}, {v(vT)}, {v(vT3)}')
        a.e(f'v_lshlrev_b32 {v(vT)}, 4, {v(vT)}')
        a.e(f'v_mul_u32_u24 {v(vT2)}, 3840, {v(vT2)}')
        a.e(f'v_add_u32 {v(vW+p)}, {v(vT)}, {v(vT2)}')
    a.e('s_mul_i32 s29, s18, 640')
    for p in range(5): a.e(f'v_add_u32 {v(vW+p)}, s29, {v(vW+p)}')
    a.e('s_waitcnt lgkmcnt(0)')
    a.e('s_mov_b32 s4, s38'); a.e('s_mov_b32 s5, s39'); a.e(f's_mov_b32 s6, {640*3840}')
    a.e(f's_mov_b32 s22, {32*3840}')
    a.e('s_mul_i32 s20, s19, 5120')
    a.e('s_branch K1_LD_GO')
    a.label('K1_LD_FFN')
    a.e('s_and_b32 s27, s19, 1')
    a.e('s_lshl_b32 s27, s27, 4')
    a.e('s_sub_u32 s29, s18, 6')
    a.e('s_mul_i32 s29, s29, 320')
    a.e('s_min_u32 s29, s29, 2752')
    for p in range(5):
        a.e(f'v_add_u32 {v(vT)}, {64*p}, v0')
        a.e(f'v_mul_u32_u24 {v(vT2)}, 3277, {v(vT)}')
        a.e(f'v_lshrrev_b32 {v(vT2)}, 16, {v(vT2)}')
        a.e(f'v_mul_u32_u24 {v(vT3)}, 20, {v(vT2)}')
        a.e(f'v_sub_u32 {v(vT)}, {v(vT)}, {v(vT3)}')
        a.e(f'v_lshlrev_b32 {v(vT)}, 4, {v(vT)}')
        a.e(f'v_add_u32 {v(vT2)}, s27, {v(vT2)}')
        a.e(f'v_mul_u32_u24 {v(vT2)}, 3072, {v(vT2)}')
        a.e(f'v_add_u32 {v(vW+p)}, {v(vT)}, {v(vT2)}')
        a.e(f'v_add_u32 {v(vW+p)}, s29, {v(vW+p)}')
    a.e('s_waitcnt lgkmcnt(0)')
    a.e('s_cmp_lt_u32 s19, 2')
    a.e('s_cselect_b32 s4, s40, s42')
    a.e('s_cselect_b32 s5, s41, s43')
    a.e(f's_mov_b32 s6, {640*3072}')
    a.e(f's_mov_b32 s22, {32*3072}')
    a.e('s_mul_i32 s20, s19, 5120')
    a.e('s_lshr_b32 s27, s19, 1')
    a.e('s_lshl_b32 s27, s27, 5')
    a.e('s_add_u32 s20, s20, s27')
    a.label('K1_LD_GO')
    if 'lst' in FL: stamp(a,7)
    a.e('s_mov_b32 s7, 0x00020000')
    a.e(f's_add_u32 s20, s20, {WBASE}')
    a.e('s_mov_b32 s23, 0'); a.e('s_mov_b32 s24, s20')
    a.e(f's_add_u32 s29, s20, {5*WP}')
    def issueW(pro=False):
        for p in range(5):
            if 'nodma' in FL and not pro: break
            a.e(f's_add_u32 m0, s24, {p*1024}')
            a.e('s_nop 0')
            a.e(f'buffer_load_dwordx4 {v(vW+p)}, s[4:7], s23 offen lds')
        a.e('s_add_u32 s23, s23, s22')
        a.e(f's_add_u32 s24, s24, {WP}')
        a.e('s_cmp_eq_u32 s24, s29')
        a.e('s_cselect_b32 s24, s20, s24')
    issueW(True); issueW(True); issueX(True)
    stamp(a,1)
    if 'lp0' in FL or 'lp30' in FL: a.e('s_setprio 0')
    vSA=16
    D=20
    U=36
    sL,sH,qL,qH=40,41,42,43
    a.e(f'v_and_b32 {v(vT)}, 31, v0')
    a.e(f'v_lshrrev_b32 {v(vT2)}, 5, v0')
    a.e(f'v_lshlrev_b32 {v(vT2)}, 2, {v(vT2)}')
    a.e(f'v_bfe_u32 {v(vT3)}, v0, 1, 3')
    a.e(f'v_xor_b32 {v(vT2)}, {v(vT2)}, {v(vT3)}')
    a.e(f'v_lshlrev_b32 {v(vT2)}, 4, {v(vT2)}')
    a.e(f'v_lshlrev_b32 {v(vT3)}, 7, {v(vT)}')
    a.e(f'v_add_u32 {v(vT2)}, {v(vT2)}, {v(vT3)}')
    a.e(f'v_add_u32 {v(vSA)}, s21, {v(vT2)}')
    for i in range(1,4): a.e(f'v_xor_b32 {v(vSA+i)}, {16*i}, {v(vSA)}')
    for r in (sL,sH,qL,qH): a.e(f'v_mov_b32 {v(r)}, 0')
    a.e(f's_mov_b32 s27, 0')
    a.e(f's_mov_b32 s46, {XS}'); a.e(f's_mov_b32 s47, {(-2*XS)&0xffffffff}')
    def st_read():
        if 'nostat' in FL: return
        for i in range(4): a.e(f'ds_read_b128 {v(D+4*i,4)}, {v(vSA+i)}')
        a.e('s_add_u32 s27, s27, 1')
        a.e('s_cmp_eq_u32 s27, 3')
        a.e('s_cselect_b32 s28, s47, s46')
        a.e('s_cselect_b32 s27, 0, s27')
        for i in range(4): a.e(f'v_add_u32 {v(vSA+i)}, s28, {v(vSA+i)}')
    def st_acc(half):
        if 'nostat' in FL: return
        a.e(f's_waitcnt lgkmcnt({2 if half==0 else 0})')
        for d in range(8*half,8*half+8,2):
            a.e(f'v_lshlrev_b32 {v(U)}, 16, {v(D+d)}')
            a.e(f'v_and_b32 {v(U+1)}, 0xffff0000, {v(D+d)}')
            a.e(f'v_lshlrev_b32 {v(U+2)}, 16, {v(D+d+1)}')
            a.e(f'v_and_b32 {v(U+3)}, 0xffff0000, {v(D+d+1)}')
            a.e(f'v_add_f32 {v(sL)}, {v(sL)}, {v(U)}')
            a.e(f'v_add_f32 {v(sH)}, {v(sH)}, {v(U+1)}')
            a.e(f'v_fma_f32 {v(qL)}, {v(U)}, {v(U)}, {v(qL)}')
            a.e(f'v_fma_f32 {v(qH)}, {v(U+1)}, {v(U+1)}, {v(qH)}')
            a.e(f'v_add_f32 {v(sL)}, {v(sL)}, {v(U+2)}')
            a.e(f'v_add_f32 {v(sH)}, {v(sH)}, {v(U+3)}')
            a.e(f'v_fma_f32 {v(qL)}, {v(U+2)}, {v(U+2)}, {v(qL)}')
            a.e(f'v_fma_f32 {v(qH)}, {v(U+3)}, {v(U+3)}, {v(qH)}')
    a.e('s_waitcnt vmcnt(9)'); a.e('s_barrier'); issueW(True); st_read(); st_acc(0)
    a.e('s_waitcnt vmcnt(9)'); a.e('s_barrier'); issueW(True); issueX(True); st_acc(1)
    a.e('s_waitcnt vmcnt(9)'); a.e('s_barrier'); issueW(True); issueW(True); st_read(); st_acc(0)
    a.e('s_waitcnt vmcnt(14)'); a.e('s_barrier'); issueW(True); issueX(True); st_acc(1)
    a.e('s_mov_b32 s31, 2')
    a.label('K1_LD_LOOP')
    a.e('s_waitcnt vmcnt(14)'); a.e('s_barrier'); issueW(); st_read(); st_acc(0)
    a.e('s_waitcnt vmcnt(14)'); a.e('s_barrier'); issueW(); issueX(); st_acc(1)
    a.e('s_add_u32 s31, s31, 1')
    a.e('s_cmp_lt_u32 s31, 8')
    a.e('s_cbranch_scc1 K1_LD_LOOP')
    a.e('s_waitcnt vmcnt(14)'); a.e('s_barrier'); issueW(); st_read(); st_acc(0)
    a.e('s_waitcnt vmcnt(14)'); a.e('s_barrier'); st_acc(1)
    a.e('s_waitcnt vmcnt(5)'); a.e('s_barrier'); st_read(); st_acc(0)
    a.e('s_waitcnt vmcnt(0)'); a.e('s_barrier'); st_acc(1)
    a.e('s_barrier')
    stamp(a,2)
    P=44
    a.e(f'v_add_f32 {v(P)}, {v(sL)}, {v(sH)}')
    a.e(f'v_add_f32 {v(P+1)}, {v(qL)}, {v(qH)}')
    a.e(f'v_mov_b32 {v(U)}, {v(P)}')
    a.e(f'v_mov_b32 {v(U+1)}, {v(P+1)}')
    a.e('s_nop 1')
    a.e(f'v_permlane32_swap_b32 {v(U)}, {v(P)}')
    a.e(f'v_permlane32_swap_b32 {v(U+1)}, {v(P+1)}')
    a.e('s_nop 1')
    a.e(f'v_add_f32 {v(P)}, {v(U)}, {v(P)}')
    a.e(f'v_add_f32 {v(P+1)}, {v(U+1)}, {v(P+1)}')
    stats(a,0,P)
    a.e(f'v_and_b32 {v(vT)}, 31, v0')
    a.e('s_lshl_b32 s27, s19, 5')
    a.e(f'v_add_u32 {v(vT)}, s27, {v(vT)}')
    a.e(f'v_lshlrev_b32 {v(vT2)}, 2, {v(vT)}')
    a.e(f'v_lshlrev_b32 {v(vT3)}, 3, {v(vT)}')
    a.e('s_mov_b64 exec, 0xffffffff')
    a.e(f'ds_write_b32 {v(vT2)}, {v(P)} offset:{NM}' if NM<65536 else f'v_add_u32 {v(vT2)}, {NM}, {v(vT2)}')
    if NM>=65536:
        a.e(f'v_add_u32 {v(vT3)}, {ST2}, {v(vT3)}')
        a.e(f'ds_write_b32 {v(vT2)}, {v(P)}')
        a.e(f'ds_write_b32 {v(vT2)}, {v(P+1)} offset:512')
        a.e(f'ds_write_b64 {v(vT3)}, {v(P,2)}')
    a.e('s_mov_b64 exec, -1')
    a.e('s_lshl_b32 s27, s19, 6')
    a.e(f'v_add_u32 {v(vT)}, s27, v0')
    a.e(f'v_lshlrev_b32 {v(vT2)}, 3, {v(vT)}')
    a.e(f'v_add_u32 {v(vT2)}, {CS}, {v(vT2)}')
    a.e('s_waitcnt lgkmcnt(0)')
    stamp(a,3)
    a.e('s_barrier')
    a.e(f'v_cmp_gt_u32 vcc, 160, {v(vT)}')
    a.e('s_and_saveexec_b64 s[48:49], vcc')
    a.e(f'ds_read_b64 {v(D,2)}, {v(vT2)} offset:1280')
    a.e(f'ds_read_b64 {v(D+2,2)}, {v(vT2)} offset:2560')
    a.e('s_waitcnt lgkmcnt(0)')
    a.e(f'v_add_f32 {v(D)}, {v(D)}, {v(D+2)}')
    a.e(f'v_add_f32 {v(D+1)}, {v(D+1)}, {v(D+3)}')
    a.e(f'ds_write_b64 {v(vT2)}, {v(D,2)}')
    a.e('s_mov_b64 exec, -1')
    a.e('s_waitcnt lgkmcnt(0)')
    a.e('s_barrier')
    if 'lst' not in FL:
        stamp(a,4); stamp(a,5); stamp(a,6); stamp(a,7)
    stamp_store(a,8,34,'s16',8,3*1024*1024)
    a.label('K1_END')
    a.e('s_endpgm')
    return NV
```

```python
from asmlib import *
from layouts import QIMG,KIMG,VIMG,OIMG
NAME='att_kernel'
SLOT=20480
Q1=0+8
Q2=12
K1=16
K2=20
V0=24; V1=28
P0=32; P1=36
E=40
SA=48; SB=64
O=80
vKc=96; vK2c=97; vVc=98; vKn=99; vK2n=100; vVn=101
vL16=0
vT=1; vT2=2; vT3=3; vLaneK=4; vLaneK2=5; vLaneV=6; vMx=7
NV=102
def mfma(d,a,b,c):
    cs = '0' if c is None else v(c,16)
    return f'v_mfma_f32_32x32x16_bf16 {v(d,16)}, {v(a,4)}, {v(b,4)}, {cs}'

def emit_dma(a, soff_chunk, sslot):
    a.e(f's_add_u32 s30, s17, {soff_chunk}')
    a.e(f's_add_u32 m0, s20, {sslot}')
    a.e(f's_add_u32 s31, s18, {soff_chunk}')
    a.e(f'buffer_load_dwordx4 {v(vL16)}, s[4:7], s30 offen lds')
    a.e(f's_add_u32 m0, m0, 8192')
    a.e(f's_add_u32 s30, s19, {soff_chunk}')
    a.e(f'buffer_load_dwordx4 {v(vL16)}, s[4:7], s31 offen lds')
    l=a.newlabel('nodma3')
    a.e(f's_cmp_ge_u32 s16, 4')
    a.e(f's_cbranch_scc1 {l}')
    a.e(f's_add_u32 m0, m0, 8192')
    a.e('s_nop 0')
    a.e(f'buffer_load_dwordx4 {v(vL16)}, s[4:7], s30 offen lds')
    a.label(l)

def set_m_pieces(a, add):
    a.e(f'v_mov_b32 {v(vT)}, {v(vMx)}')
    a.e('s_nop 1')
    a.e(f'v_permlane32_swap_b32 {v(vT)}, {v(vMx)}')
    a.e('s_nop 1')
    a.e(f'v_max_f32 {v(vMx)}, {v(vT)}, {v(vMx)}')
    a.e(f'v_ceil_f32 {v(vMx)}, {v(vMx)}')
    a.e(f'v_mov_b32 {v(vT)}, {add}')
    a.e(f'v_add_f32 {v(vMx)}, {v(vT)}, {v(vMx)}')
    a.e(f'v_sub_f32 {v(vMx)}, 0, {v(vMx)}')
    a.e(f'v_and_b32 {v(vT)}, 0xffff0000, {v(vMx)}')
    a.e(f'v_sub_f32 {v(vT2)}, {v(vMx)}, {v(vT)}')
    a.e(f'v_and_b32 {v(vT3)}, 0xffff0000, {v(vT2)}')
    a.e(f'v_sub_f32 {v(vT2)}, {v(vT2)}, {v(vT3)}')
    a.e(f'v_lshrrev_b32 {v(vT)}, 16, {v(vT)}')
    a.e(f'v_or_b32 {v(vT)}, {v(vT)}, {v(vT3)}')
    a.e(f'v_lshrrev_b32 {v(vT2)}, 16, {v(vT2)}')
    a.e('s_mov_b64 exec, 0xffffffff')
    a.e(f'v_mov_b32 {v(Q2+2)}, {v(vT)}')
    a.e(f'v_mov_b32 {v(Q2+3)}, {v(vT2)}')
    a.e('s_mov_b64 exec, -1')

def max16(a, S, first):
    for i in range(0,16,2):
        if first and i==0:
            a.e(f'v_max_f32 {v(vMx)}, {v(S)}, {v(S+1)}')
        else:
            a.e(f'v_max3_f32 {v(vMx)}, {v(vMx)}, {v(S+i)}, {v(S+i+1)}')

FL=set()
def tile(a,i):
    S,N=(SA,SB) if i%2==0 else (SB,SA)
    def addr(kind,ti):
        cur={'k':vKc,'k2':vK2c,'v':vVc}[kind]; nxt={'k':vKn,'k2':vK2n,'v':vVn}[kind]
        return (cur,ti*1280) if ti<8 else (nxt,(ti-8)*1280)
    a.c(f'---- tile {i}')
    if i==6 and 'nodma' not in FL:
        a.e('s_waitcnt vmcnt(0)')
        a.e('s_barrier')
        l=a.newlabel('nodma')
        a.e('s_cmp_ge_u32 s24, 6')
        a.e(f's_cbranch_scc1 {l}')
        emit_dma(a,'s25','s26')
        a.label(l)
    if 'nolds' in FL:
        E_=a.e
        class A2:
            def e(self,s):
                if s.startswith('ds_read') or s.startswith('s_waitcnt lgkm') or s.startswith('s_mov_b64 exec'): return
                E_(s)
        a=A2()
    ex=lambda dst,src: a.e(f'v_exp_f32 {v(dst)}, {v(src)}')
    cv=lambda dst,x: a.e(f'v_cvt_pk_bf16_f32 {v(dst)}, {v(x)}, {v(x+1)}')
    a.e('s_waitcnt lgkmcnt(3)')
    a.e(mfma(N,K1,Q1,None))
    r,o=addr('k',i+2); a.e(f'ds_read_b128 {v(K1,4)}, {v(r)} offset:{o}')
    cv(P1+2,E+4); cv(P1+3,E+6)
    for k in range(4): ex(E+k,S+k)
    a.e('s_waitcnt lgkmcnt(3)')
    a.e(mfma(N,K2,Q2,N))
    r,o=addr('k2',i+2); a.e(f'ds_read_b64 {v(K2,2)}, {v(r)} offset:{o}')
    for k in range(4): ex(E+4+k,S+4+k)
    cv(P0,E); cv(P0+1,E+2)
    a.e('s_waitcnt lgkmcnt(3)')
    a.e(mfma(O,V1,P1,O))
    cv(P0+2,E+4); cv(P0+3,E+6)
    for k in range(4): ex(E+k,S+8+k)
    a.e('s_waitcnt lgkmcnt(2)')
    a.e(mfma(O,V0,P0,O))
    if 'noexec' not in FL: a.e('s_mov_b64 exec, s[22:23]')
    r,o=addr('v',i);   a.e(f'ds_read_b128 {v(V1,4)}, {v(r)} offset:{o+640}')
    r,o=addr('v',i+1); a.e(f'ds_read_b128 {v(V0,4)}, {v(r)} offset:{o}')
    if 'noexec' not in FL: a.e('s_mov_b64 exec, -1')
    for k in range(4): ex(E+4+k,S+12+k)
    cv(P1,E); cv(P1+1,E+2)

from stamps import stamp, stamp_store, stampc
def att_kernel(a, name=NAME):
    a.lines.append(kernel_header(name))
    a.e('s_cmp_ge_u32 s2, 256')
    a.e('s_cbranch_scc1 ATT_END')
    a.e('s_load_dwordx2 s[34:35], s[0:1], 72')
    stamp(a,0)
    a.e(f'v_lshrrev_b32 {v(vT)}, 6, v0')
    a.e(f'v_and_b32 v0, 63, v0')
    a.e(f'v_readfirstlane_b32 s16, {v(vT)}')
    a.e('s_and_b32 s27, s2, 7')
    a.e('s_lshr_b32 s28, s2, 3')
    a.e('s_and_b32 s29, s28, 0x18')
    a.e('s_add_u32 s27, s27, s29')
    a.e('s_and_b32 s28, s28, 7')
    a.e('s_lshl_b32 s28, s28, 3')
    a.e('s_add_u32 s28, s28, s16')
    a.e('s_mul_i32 s29, s27, 81920')
    a.e(f'v_and_b32 {v(vT)}, 31, v0')
    a.e(f'v_lshrrev_b32 {v(vT2)}, 5, v0')
    a.e(f'v_lshlrev_b32 {v(vLaneK2)}, 3, {v(vT)}')
    a.e(f'v_add_u32 {v(vLaneK2)}, 1024, {v(vLaneK2)}')
    a.e(f'v_mul_u32_u24 {v(vLaneV)}, 320, {v(vT2)}')
    a.e(f'v_lshlrev_b32 {v(vT)}, 4, {v(vT)}')
    a.e(f'v_add_u32 {v(vLaneV)}, {v(vLaneV)}, {v(vT)}')
    a.e(f'v_lshlrev_b32 {v(vL16)}, 4, v0')
    a.e('s_lshl_b32 s20, s16, 10')
    a.e('s_mov_b32 s17, s20')
    a.e(f's_add_u32 s18, s20, 8192')
    a.e(f's_add_u32 s19, s20, {VIMG-KIMG-2048}')
    a.e('s_cmp_lt_u32 s16, 2')
    a.e('s_cselect_b32 s18, s18, s19')
    a.e(f's_add_u32 s19, s20, {VIMG-KIMG+6144}')
    a.e('s_mov_b32 s22, 0x000fffff')
    a.e('s_mov_b32 s23, 0x000fffff')
    a.e('s_waitcnt lgkmcnt(0)')
    a.e(f's_add_u32 s4, s34, {KIMG}')
    a.e('s_addc_u32 s5, s35, 0')
    a.e('s_add_u32 s4, s4, s29')
    a.e('s_addc_u32 s5, s5, 0')
    a.e(f's_sub_u32 s6, {VIMG+2621440-KIMG}, s29')
    a.e('s_mov_b32 s7, 0x00020000')
    a.e(f's_add_u32 s8, s34, {QIMG}')
    a.e('s_addc_u32 s9, s35, 0')
    a.e('s_mov_b32 s10, 2621440')
    a.e('s_mov_b32 s11, 0x00020000')
    a.e(f's_add_u32 s12, s34, {OIMG}')
    a.e('s_addc_u32 s13, s35, 0')
    a.e('s_mov_b32 s14, 2621440')
    a.e('s_mov_b32 s15, 0x00020000')
    a.e('s_mov_b32 s25, 0'); a.e('s_mov_b32 s26, 0')
    emit_dma(a,'s25','s26')
    a.e('s_mov_b32 s25, 10240'); a.e(f's_mov_b32 s26, {SLOT}')
    emit_dma(a,'s25','s26')
    a.e('s_mul_i32 s33, s28, 1280')
    a.e('s_add_u32 s33, s33, s29')
    for k in range(4): a.e(f'v_mov_b32 {v(Q2+k)}, 0')
    a.e(f'buffer_load_dwordx4 {v(Q1,4)}, {v(vL16)}, s[8:11], s33 offen')
    a.e('s_mov_b64 exec, 0xffffffff')
    a.e(f'buffer_load_dwordx2 {v(Q2,2)}, {v(vLaneK2)}, s[8:11], s33 offen')
    a.e('s_mov_b64 exec, -1')
    a.e(f'v_mov_b32 {v(K2+2)}, 0x3f803f80')
    a.e(f'v_mov_b32 {v(K2+3)}, 0x00003f80')
    for k in range(4):
        a.e(f'v_mov_b32 {v(V0+k)}, 0x3f803f80')
        a.e(f'v_mov_b32 {v(V1+k)}, 0x3f803f80')
    a.e(f'v_mov_b32 {v(vKc)}, {v(vL16)}')
    a.e(f'v_mov_b32 {v(vK2c)}, {v(vLaneK2)}')
    a.e(f'v_add_u32 {v(vLaneV)}, 10240, {v(vLaneV)}')
    a.e(f'v_mov_b32 {v(vVc)}, {v(vLaneV)}')
    a.e(f'v_add_u32 {v(vKn)}, {SLOT}, {v(vL16)}')
    a.e(f'v_add_u32 {v(vK2n)}, {SLOT}, {v(vLaneK2)}')
    a.e(f'v_add_u32 {v(vVn)}, {SLOT}, {v(vLaneV)}')
    T2=[P0,P1,E,E+4]
    for t in T2:
        a.e(f'v_mov_b32 {v(t+2)}, 0'); a.e(f'v_mov_b32 {v(t+3)}, 0')
    a.e('s_waitcnt vmcnt(0)')
    a.e('s_barrier')
    stamp(a,1)
    for t in range(4):
        a.e(f'ds_read_b128 {v(O+4*t,4)}, {v(vKc)} offset:{t*1280}')
        a.e(f'ds_read_b64 {v(T2[t],2)}, {v(vK2c)} offset:{t*1280}')
    a.e('s_waitcnt lgkmcnt(4)')
    a.e(mfma(SA,O,Q1,None)); a.e(mfma(SB,O+4,Q1,None))
    a.e(mfma(SA,T2[0],Q2,SA)); a.e(mfma(SB,T2[1],Q2,SB))
    a.e('s_waitcnt lgkmcnt(0)')
    a.e('s_nop 7'); a.e('s_nop 7')
    max16(a,SA,True)
    a.e(mfma(SA,O+8,Q1,None))
    max16(a,SB,False)
    a.e(mfma(SB,O+12,Q1,None))
    a.e(mfma(SA,T2[2],Q2,SA)); a.e(mfma(SB,T2[3],Q2,SB))
    a.e(f'ds_read_b128 {v(K1,4)}, {v(vKc)} offset:0')
    a.e(f'ds_read_b64 {v(K2,2)}, {v(vK2c)} offset:0')
    a.e('s_nop 7'); a.e('s_nop 7')
    max16(a,SA,False)
    max16(a,SB,False)
    set_m_pieces(a,'0x42c00000')
    for k in range(16): a.e(f'v_mov_b32 {v(O+k)}, 0')
    for k in range(4): a.e(f'v_mov_b32 {v(P1+k)}, 0')
    for k in range(4,8): a.e(f'v_mov_b32 {v(E+k)}, 0')
    a.e('s_waitcnt lgkmcnt(0)')
    a.e(mfma(SA,K1,Q1,None))
    a.e(mfma(SA,K2,Q2,SA))
    a.e(f'ds_read_b128 {v(K1,4)}, {v(vKc)} offset:1280')
    a.e(f'ds_read_b64 {v(K2,2)}, {v(vK2c)} offset:1280')
    a.e('s_mov_b64 exec, s[22:23]')
    a.e(f'ds_read_b128 {v(V1,4)}, {v(vVc)} offset:640')
    a.e(f'ds_read_b128 {v(V0,4)}, {v(vVc)} offset:0')
    a.e('s_mov_b64 exec, -1')
    a.e('s_waitcnt lgkmcnt(0)')
    a.e('s_nop 7'); a.e('s_nop 7')
    a.e('s_mov_b32 s24, 0')
    a.e('s_mov_b32 s25, 20480')
    a.e(f's_mov_b32 s26, {2*SLOT}')
    a.e(f's_mov_b32 s21, {SLOT}')
    stamp(a,2); stampc(a,5)
    a.label('ATT_LOOP')
    for i in range(8): tile(a,i)
    a.e(f'v_mov_b32 {v(vKc)}, {v(vKn)}')
    a.e(f'v_mov_b32 {v(vK2c)}, {v(vK2n)}')
    a.e(f'v_mov_b32 {v(vVc)}, {v(vVn)}')
    a.e('s_mov_b32 s21, s26')
    a.e(f's_add_u32 s26, s26, {SLOT}')
    a.e(f's_cmp_eq_u32 s26, {3*SLOT}')
    a.e('s_cselect_b32 s26, 0, s26')
    a.e(f'v_add_u32 {v(vKn)}, s21, {v(vL16)}')
    a.e(f'v_add_u32 {v(vK2n)}, s21, {v(vLaneK2)}')
    a.e(f'v_add_u32 {v(vVn)}, s21, {v(vLaneV)}')
    a.e('s_add_u32 s25, s25, 10240')
    a.e('s_add_u32 s24, s24, 1')
    a.e('s_cmp_lt_u32 s24, 8')
    a.e('s_cbranch_scc1 ATT_LOOP')
    stamp(a,3); stampc(a,6)
    a.e(f'v_cvt_pk_bf16_f32 {v(P1+2)}, {v(E+4)}, {v(E+5)}')
    a.e(f'v_cvt_pk_bf16_f32 {v(P1+3)}, {v(E+6)}, {v(E+7)}')
    a.e('s_waitcnt lgkmcnt(0)')
    a.e('s_nop 1')
    a.e(mfma(O,V1,P1,O))
    a.e('s_nop 7'); a.e('s_nop 7')
    a.e(f'v_mov_b32 {v(vT)}, 0')
    for k in range(13): a.e(f'v_fma_f32 {v(vT)}, {v(O+k)}, 0, {v(vT)}')
    a.e(f'v_cmp_u_f32 vcc, {v(vT)}, {v(vT)}')
    a.e('s_mov_b64 s[36:37], vcc')
    a.e(f'v_mov_b32 {v(vT)}, 0x7b800000')
    a.e(f'v_cmp_nlt_f32 vcc, {v(O+12)}, {v(vT)}')
    a.e('s_or_b64 vcc, vcc, s[36:37]')
    a.e('s_cbranch_vccnz ATT_FALLBACK')
    a.label('ATT_EPI')
    a.e(f'v_rcp_f32 {v(vT)}, {v(O+12)}')
    a.e('s_nop 0')
    for k in range(12): a.e(f'v_mul_f32 {v(O+k)}, {v(O+k)}, {v(vT)}')
    for k in range(6): a.e(f'v_cvt_pk_bf16_f32 {v(E+k)}, {v(O+2*k)}, {v(O+2*k+1)}')
    a.e('s_mul_i32 s33, s28, 40960')
    a.e('s_lshl_b32 s30, s27, 10')
    a.e('s_add_u32 s30, s30, s33')
    a.e(f'buffer_store_dwordx4 {v(E,4)}, {v(vL16)}, s[12:15], s30 offen')
    a.e('s_lshr_b32 s30, s27, 2')
    a.e('s_add_u32 s30, s30, 32')
    a.e('s_lshl_b32 s30, s30, 10')
    a.e('s_add_u32 s30, s30, s33')
    a.e('s_and_b32 s31, s27, 2')
    a.e('s_lshl_b32 s31, s31, 8')
    a.e('s_add_u32 s30, s30, s31')
    a.e('s_and_b32 s31, s27, 1')
    a.e('s_lshl_b32 s31, s31, 3')
    a.e('s_add_u32 s30, s30, s31')
    a.e('s_mov_b64 exec, 0xffffffff')
    a.e(f'buffer_store_dwordx2 {v(E+4,2)}, {v(vL16)}, s[12:15], s30 offen')
    a.e('s_waitcnt vmcnt(0)')
    stamp(a,4)
    stamp_store(a,7,34,'s16',8,0)
    a.label('ATT_END')
    a.e('s_endpgm')
    a.label('ATT_FALLBACK')
    a.e(f'v_mov_b32 {v(Q2+2)}, 0'); a.e(f'v_mov_b32 {v(Q2+3)}, 0')
    a.e(f'v_mov_b32 {v(vMx)}, 0xff800000')
    a.e('s_mov_b32 s30, 0')
    a.label('ATT_FB1')
    a.e(f'buffer_load_dwordx4 {v(K1,4)}, {v(vL16)}, s[4:7], s30 offen')
    a.e(f'buffer_load_dwordx2 {v(K2,2)}, {v(vLaneK2)}, s[4:7], s30 offen')
    a.e('s_waitcnt vmcnt(0)')
    a.e(mfma(SA,K1,Q1,None)); a.e(mfma(SA,K2,Q2,SA))
    a.e('s_nop 7'); a.e('s_nop 7')
    max16(a,SA,False)
    a.e('s_add_u32 s30, s30, 1280')
    a.e('s_cmp_lt_u32 s30, 81920')
    a.e('s_cbranch_scc1 ATT_FB1')
    set_m_pieces(a,'0')
    for k in range(16): a.e(f'v_mov_b32 {v(O+k)}, 0')
    a.e(f'v_add_u32 {v(vVc)}, {VIMG-KIMG-10240}, {v(vLaneV)}')
    a.e('s_mov_b32 s30, 0')
    a.label('ATT_FB2')
    a.e(f'buffer_load_dwordx4 {v(K1,4)}, {v(vL16)}, s[4:7], s30 offen')
    a.e(f'buffer_load_dwordx2 {v(K2,2)}, {v(vLaneK2)}, s[4:7], s30 offen')
    a.e('s_mov_b64 exec, s[22:23]')
    a.e(f'buffer_load_dwordx4 {v(V0,4)}, {v(vVc)}, s[4:7], s30 offen')
    a.e(f'buffer_load_dwordx4 {v(V1,4)}, {v(vVc)}, s[4:7], s30 offen offset:640')
    a.e('s_mov_b64 exec, -1')
    a.e('s_waitcnt vmcnt(0)')
    a.e(mfma(SA,K1,Q1,None)); a.e(mfma(SA,K2,Q2,SA))
    a.e('s_nop 7'); a.e('s_nop 7')
    for k in range(16): a.e(f'v_exp_f32 {v(SB+k)}, {v(SA+k)}')
    a.e('s_nop 0')
    for k in range(4): a.e(f'v_cvt_pk_bf16_f32 {v(P0+k)}, {v(SB+2*k)}, {v(SB+2*k+1)}')
    for k in range(4): a.e(f'v_cvt_pk_bf16_f32 {v(P1+k)}, {v(SB+8+2*k)}, {v(SB+8+2*k+1)}')
    a.e('s_nop 1')
    a.e(mfma(O,V0,P0,O)); a.e(mfma(O,V1,P1,O))
    a.e('s_add_u32 s30, s30, 1280')
    a.e('s_cmp_lt_u32 s30, 81920')
    a.e('s_cbranch_scc1 ATT_FB2')
    a.e('s_nop 7'); a.e('s_nop 7')
    a.e('s_branch ATT_EPI')
    return NV
```

```python
from asmlib import *
from layouts import QIMG,KIMG,VIMG,HIMG,WIMG,WIMG_BYTES
from stamps import stamp, stamp_store, stampc
import stamps
XS=16384; WBASE=49152; WP=20544
CS=WBASE+5*WP
CSP=CS+1280
NM=CSP+2560
RR=NM+512
ST2=RR+512
LDS=ST2+1024
WF=4
XF=24
XA=40
WA=44
SEL=48
vT=58; vT2=59; vT3=60; vT4=61
CSA=64
ACC=96
NV=256
FL=set()
def acc(i,t): return ACC+(i*5+t)*16
def mfma(d,a_,b_): return f'v_mfma_f32_32x32x16_bf16 {v(d,16)}, {v(a_,4)}, {v(b_,4)}, {v(d,16)}'

def wread(a,var,jl,t):
    if var=='ffn':
        reg=WA+2*jl; pitch=320; off=32*t
    else:
        reg=WA+2*jl+(t%2); pitch=640; off=64*t
    for p in range(2):
        a.e(f'ds_read_b64_tr_b16 {v(WF+4*t+2*p,2)}, {v(reg)} offset:{off+4*p*pitch}')
def xread(a,buf,j):
    for i in range(2):
        a.e(f'ds_read_b128 {v(XF+buf*8+i*4,4)}, {v(XA+j)} offset:{i*4096}')

def kstep(a,var,k):
    jl=k%2; xb=k%2
    a.c(f'kstep {k}')
    A=[[] for _ in range(5)]
    if jl==1 and 'nobar' not in FL: A[0].append('BAR')
    A[1]+=[f'ds_read_b128 {v(XF+(1-xb)*8+i*4,4)}, {v(XA+(k+1)%4)} offset:{i*4096}' for i in range(2)]
    regs=[WA+2*jl] if var=='ffn' else [WA+2*jl,WA+2*jl+1]
    A[2]+=[f'v_add_u32 {v(r)}, s22, {v(r)}' for r in regs]
    xs={1:[0,1],2:[2],3:[3]}.get(k,[])
    A[3]+=[f'v_add_u32 {v(XA+j)}, s24, {v(XA+j)}' for j in xs]
    if jl==1:
        A[3]+=['s_add_u32 s23, s23, 1','s_cmp_eq_u32 s23, 5']
        A[4]+=['s_cselect_b32 s22, s45, s44','s_cselect_b32 s23, 0, s23']
    if k==0:
        A[0]+=['s_add_u32 s25, s25, 1','s_cmp_eq_u32 s25, 3']
        A[0]+=['s_cselect_b32 s24, s47, s46']
        A[4]+=['s_cmp_eq_u32 s25, 3','s_cselect_b32 s25, 0, s25']
    if k==2:
        A[4]=['s_add_u32 s26, s26, 1']+A[4]
    if k==3:
        A[4]+=['s_cmp_lt_u32 s26, 10']
    for t in range(5):
        n=8 if t<2 else 10
        a.e(f's_waitcnt lgkmcnt({n})')
        if 'nocs' not in FL and ((jl==0 and t%2==0) or (jl==1 and t%2==1)):
            a.e(f'v_mfma_f32_16x16x32_bf16 {v(CSA+4*t,4)}, {v(SEL,4)}, {v(WF+4*t,4)}, {v(CSA+4*t,4)}')
        for i in range(2):
            X=XF+xb*8+i*4
            if var=='v': a.e(mfma(acc(i,t),X,WF+4*t))
            else:        a.e(mfma(acc(i,t),WF+4*t,X))
            if i==0:
                for f in A[t]:
                    a.e('s_barrier' if f=='BAR' else f)
        wread(a,var,1-jl,t)

def stats(a,i,P,Pc=None,mode='qk'):
    a.e(f'v_mul_f32 {v(P)}, 0x3acccccd, {v(P)}')
    a.e(f'v_mul_f32 {v(P+1)}, 0x3acccccd, {v(P+1)}')
    a.e(f'v_fma_f32 {v(P+1)}, -{v(P)}, {v(P)}, {v(P+1)}')
    a.e(f'v_max_f32 {v(P+1)}, 0, {v(P+1)}')
    a.e(f'v_cvt_pk_bf16_f32 {v(P)}, {v(P)}, {v(P+1)}')
    a.e(f'v_and_b32 {v(P+1)}, 0xffff0000, {v(P)}')
    a.e(f'v_lshlrev_b32 {v(P)}, 16, {v(P)}')
    a.e(f'v_add_f32 {v(P+1)}, 0x3727c5ac, {v(P+1)}')
    a.e(f'v_cvt_pk_bf16_f32 {v(P+1)}, {v(P+1)}, {v(P+1)}')
    a.e(f'v_and_b32 {v(P+1)}, 0xffff0000, {v(P+1)}')
    a.e(f'v_sqrt_f32 {v(P+1)}, {v(P+1)}')
    a.e(f'v_xor_b32 {v(P)}, 0x80000000, {v(P)}')
    a.e(f'v_cvt_pk_bf16_f32 {v(P+1)}, {v(P+1)}, {v(P+1)}')
    a.e(f'v_and_b32 {v(P+1)}, 0xffff0000, {v(P+1)}')
    a.e(f'v_rcp_f32 {v(P+1)}, {v(P+1)}')
    a.e('s_nop 0')

def pkfma(d,x,y,z,bx=None,by=None,bz=None):
    sel=[0 if b is None else b for b in (bx,by,bz)]
    hi=[1 if b is None else b for b in (bx,by,bz)]
    return f'v_pk_fma_f32 {v(d,2)}, {v(x,2)}, {v(y,2)}, {v(z,2)} op_sel:[{sel[0]},{sel[1]},{sel[2]}] op_sel_hi:[{hi[0]},{hi[1]},{hi[2]}]'
def pkmul(d,x,y,bx=None,by=None):
    sel=[0 if b is None else b for b in (bx,by)]
    hi=[1 if b is None else b for b in (bx,by)]
    return f'v_pk_mul_f32 {v(d,2)}, {v(x,2)}, {v(y,2)} op_sel:[{sel[0]},{sel[1]}] op_sel_hi:[{hi[0]},{hi[1]}]'

def main_loop(a,var):
    L=f'K1_{var.upper()}'
    a.e('s_barrier')
    stamp(a,1); stampc(a,8)
    wread(a,var,0,0)
    xread(a,0,0)
    for t in range(1,5): wread(a,var,0,t)
    a.e('s_mov_b32 s26, 0')
    a.e('s_mov_b32 s22, s44'); a.e('s_mov_b32 s23, 1')
    a.label(f'{L}_LOOP')
    for k in range(4): kstep(a,var,k)
    if stamps.STAMP:
        a.e('s_cmp_eq_u32 s26, 1')
        a.e(f's_cbranch_scc0 {L}_NS')
        stamp(a,7)
        a.label(f'{L}_NS')
        a.e('s_cmp_lt_u32 s26, 10')
    a.e(f's_cbranch_scc1 {L}_LOOP')
    stamp(a,2); stampc(a,9)
    step,r1=(64,640) if var=='ffn' else (128,64)
    a.e('s_nop 7')
    a.e('s_mov_b64 exec, 0xffff')
    for t in range(5):
        a.e(f'ds_write_b32 v62, {v(CSA+4*t)} offset:{t*step}')
        a.e(f'ds_write_b32 v62, {v(CSA+4*t+1)} offset:{t*step+r1}')
    a.e('s_mov_b64 exec, -1')
    a.e('s_waitcnt lgkmcnt(0)')
    stamp(a,5)
    a.e('s_barrier')
    if var!='v':
        a.e('ds_read_b64 v[64:65], v63 offset:0')
        a.e('ds_read_b64 v[66:67], v63 offset:256')
    a.e('s_barrier')
    stamp(a,6)

def k1_kernel(a,name):
    pol=' '.join(x for x in ('sc0','sc1','nt') if 'st_'+x in FL)
    if 'nost' in FL or pol:
        E0=a.e
        def e2(x):
            if x.startswith('buffer_store'):
                if 'nost' in FL: return
                x=x+' '+pol
            E0(x)
        a.e=e2
    a.lines.append(kernel_header(name))
    a.e('s_cmp_ge_u32 s2, 256')
    a.e('s_cbranch_scc1 K1_END')
    a.e('s_load_dwordx2 s[34:35], s[0:1], 72')
    a.e('s_load_dwordx2 s[36:37], s[0:1], 0')
    a.e('s_load_dwordx2 s[38:39], s[0:1], 8')
    a.e('s_load_dwordx4 s[40:43], s[0:1], 32')
    if 'wimg' in FL:
        a.e('s_load_dwordx2 s[50:51], s[0:1], 16')
        a.e('s_load_dwordx2 s[52:53], s[0:1], 48')
    stamp(a,0)
    a.e(f'v_lshrrev_b32 {v(vT)}, 6, v0')
    a.e('v_and_b32 v0, 63, v0')
    a.e(f'v_readfirstlane_b32 s16, {v(vT)}')
    a.e('s_and_b32 s27, s2, 7')
    a.e('s_lshr_b32 s29, s2, 3')
    a.e('s_and_b32 s17, s27, 1')
    a.e('s_lshl_b32 s17, s17, 3')
    a.e('s_and_b32 s30, s29, 7')
    a.e('s_add_u32 s17, s17, s30')
    a.e('s_lshr_b32 s18, s27, 1')
    a.e('s_lshl_b32 s18, s18, 2')
    a.e('s_lshr_b32 s30, s29, 3')
    a.e('s_add_u32 s18, s18, s30')
    if 'mix' in FL:
        perm=[0,1,6,7,2,3,8,9,4,10,11,12,5,13,14,15]
        lo=sum(perm[i]<<(4*i) for i in range(8)); hi=sum(perm[8+i]<<(4*i) for i in range(8))
        a.e(f's_mov_b32 s30, {lo}'); a.e(f's_mov_b32 s31, {hi}')
        a.e('s_lshl_b32 s18, s18, 2')
        a.e('s_lshr_b64 s[30:31], s[30:31], s18')
        a.e('s_and_b32 s18, s30, 15')
    a.e('s_cmp_ge_u32 s16, 4')
    a.e('s_cbranch_scc1 K1_LOADER')
    if 'pf' in FL:
        pol=' '.join(x for x in ('sc0','sc1','nt') if 'pf_'+x in FL)
        a.e('s_lshr_b32 s27, s2, 6')
        a.e('s_lshr_b32 s29, s2, 3'); a.e('s_and_b32 s29, s29, 7')
        a.e('s_lshl_b32 s30, s17, 7'); a.e('s_lshl_b32 s27, s27, 5'); a.e('s_add_u32 s30, s30, s27')
        a.e('v_and_b32 v52, 31, v0')
        a.e('v_add_u32 v52, s30, v52')
        a.e('v_mul_u32_u24 v52, 1280, v52')
        a.e('v_lshrrev_b32 v53, 5, v0')
        a.e('v_lshlrev_b32 v53, 7, v53')
        a.e('v_add_u32 v52, v52, v53')
        a.e('s_lshl_b32 s30, s16, 8')
        a.e('s_cmp_ge_u32 s18, 6')
        a.e('s_cbranch_scc1 K1_PF_FFN')
        a.e('s_lshl_b32 s27, s16, 6')
        for q in range(2):
            a.e(f'v_add_u32 v53, s27, v0')
            if q==1: a.e('v_add_u32 v53, 256, v53')
            a.e(f'v_mul_u32_u24 v54, 13108, v53')
            a.e('v_lshrrev_b32 v54, 16, v54')
            a.e('v_mul_u32_u24 v55, 5, v54')
            a.e('v_sub_u32 v55, v53, v55')
            a.e('v_lshlrev_b32 v54, 3, v54')
            a.e('v_add_u32 v54, s29, v54')
            a.e('v_mul_u32_u24 v54, 3840, v54')
            a.e('v_lshlrev_b32 v55, 7, v55')
            a.e(f'v_add_u32 v{55+q+1}, v54, v55')
        a.e('s_mul_i32 s31, s18, 640')
        a.e('s_waitcnt lgkmcnt(0)')
        a.e('s_mov_b32 s4, s38'); a.e('s_mov_b32 s5, s39'); a.e(f's_mov_b32 s6, {640*3840}')
        a.e('s_branch K1_PF_GO')
        a.label('K1_PF_FFN')
        a.e('s_and_b32 s27, s16, 1')
        a.e('s_lshl_b32 s27, s27, 6')
        for q in range(2):
            a.e(f'v_add_u32 v53, s27, v0')
            if q==1: a.e('v_add_u32 v53, 128, v53')
            a.e(f'v_mul_u32_u24 v54, 21846, v53')
            a.e('v_lshrrev_b32 v54, 16, v54')
            a.e('v_mul_u32_u24 v55, 3, v54')
            a.e('v_sub_u32 v55, v53, v55')
            a.e('v_lshlrev_b32 v54, 3, v54')
            a.e('v_add_u32 v54, s29, v54')
            a.e('v_mul_u32_u24 v54, 3072, v54')
            a.e('v_lshlrev_b32 v55, 7, v55')
            a.e(f'v_add_u32 v{55+q+1}, v54, v55')
        a.e('s_sub_u32 s31, s18, 6')
        a.e('s_mul_i32 s31, s31, 320')
        a.e('s_min_u32 s31, s31, 2752')
        a.e('s_andn2_b32 s31, s31, 127')
        a.e('s_waitcnt lgkmcnt(0)')
        a.e('s_cmp_lt_u32 s16, 2')
        a.e('s_cselect_b32 s4, s40, s42')
        a.e('s_cselect_b32 s5, s41, s43')
        a.e(f's_mov_b32 s6, {640*3072}')
        a.label('K1_PF_GO')
        a.e('s_mov_b32 s7, 0x00020000')
        a.e('s_mov_b32 s8, s36'); a.e('s_mov_b32 s9, s37'); a.e('s_mov_b32 s10, 2621440'); a.e('s_mov_b32 s11, 0x00020000')
        a.e(f'buffer_load_dword v95, v56, s[4:7], s31 offen {pol}')
        a.e(f'buffer_load_dword v95, v52, s[8:11], s30 offen {pol}')
        a.e(f'buffer_load_dword v95, v57, s[4:7], s31 offen {pol}')
        a.e('s_cmp_eq_u32 s16, 0')
        a.e('s_cbranch_scc0 K1_PF_END')
        a.e(f'buffer_load_dword v95, v52, s[8:11], 0 offen offset:1024 {pol}')
        a.label('K1_PF_END')
    if 'cp3' in FL: a.e('s_setprio 3')
    a.e('s_lshr_b32 s19, s16, 1')
    a.e('s_and_b32 s20, s16, 1')
    a.e('s_xor_b32 s21, s19, s20')
    a.e(f's_mov_b32 s44, {WP}'); a.e(f's_mov_b32 s45, {(-4*WP)&0xffffffff}'); a.e(f's_mov_b32 s46, {XS}'); a.e(f's_mov_b32 s47, {(-2*XS)&0xffffffff}')
    a.e(f'v_and_b32 {v(vT)}, 31, v0')
    a.e(f'v_lshrrev_b32 {v(vT2)}, 5, v0')
    a.e(f'v_bfe_u32 {v(vT3)}, v0, 1, 3')
    a.e(f'v_lshlrev_b32 {v(vT4)}, 7, {v(vT)}')
    a.e('s_lshl_b32 s27, s19, 13')
    a.e(f'v_add_u32 {v(vT4)}, s27, {v(vT4)}')
    for kk in range(4):
        a.e(f's_xor_b32 s27, s21, {kk%2}')
        a.e(f's_add_u32 s27, s27, {2*(kk//2)}')
        a.e('s_lshl_b32 s27, s27, 1')
        a.e(f'v_add_u32 {v(XA+kk)}, s27, {v(vT2)}')
        a.e(f'v_xor_b32 {v(XA+kk)}, {v(XA+kk)}, {v(vT3)}')
        a.e(f'v_lshlrev_b32 {v(XA+kk)}, 4, {v(XA+kk)}')
        a.e(f'v_add_u32 {v(XA+kk)}, {v(XA+kk)}, {v(vT4)}')
    a.e('s_lshl_b32 s27, s19, 9')
    a.e(f's_add_u32 s27, s27, {ST2}')
    a.e(f'v_lshlrev_b32 v63, 3, {v(vT)}')
    a.e('v_add_u32 v63, s27, v63')
    for k in range(20): a.e(f'v_mov_b32 {v(CSA+k)}, 0')
    a.e(f'v_and_b32 {v(vT2)}, 15, v0')
    a.e(f'v_bfe_u32 {v(vT3)}, v0, 4, 1')
    a.e(f'v_cmp_eq_u32 vcc, {v(vT2)}, {v(vT3)}')
    a.e(f'v_mov_b32 {v(vT2)}, 0')
    a.e(f'v_mov_b32 {v(vT3)}, 0x3f803f80')
    for k in range(4): a.e(f'v_cndmask_b32 {v(SEL+k)}, {v(vT2)}, {v(vT3)}, vcc')
    a.e('s_mov_b32 s25, 0')
    vH=84; vCh=85; vR=86; vC4=87; vRow=88
    a.e(f'v_lshrrev_b32 {v(vH)}, 5, v0')
    a.e(f'v_bfe_u32 {v(vCh)}, v0, 4, 1')
    a.e(f'v_bfe_u32 {v(vR)}, v0, 2, 2')
    a.e(f'v_and_b32 {v(vC4)}, 3, v0')
    a.e(f'v_lshlrev_b32 {v(vRow)}, 3, {v(vH)}')
    a.e(f'v_add_u32 {v(vRow)}, {v(vRow)}, {v(vR)}')
    a.e('s_cmp_ge_u32 s18, 6')
    a.e('s_cbranch_scc1 K1_FFN_SETUP')
    a.e(f'v_mul_u32_u24 {v(vT2)}, 640, {v(vRow)}')
    a.e(f'v_lshlrev_b32 {v(vT3)}, 5, {v(vCh)}')
    a.e(f'v_add_u32 {v(vT2)}, {v(vT2)}, {v(vT3)}')
    a.e(f'v_lshlrev_b32 {v(vT3)}, 3, {v(vC4)}')
    a.e(f'v_add_u32 {v(vT2)}, {v(vT2)}, {v(vT3)}')
    a.e('s_mul_i32 s27, s20, 320')
    a.e(f's_add_u32 s27, s27, {WBASE}')
    a.e(f'v_add_u32 {v(vT2)}, s27, {v(vT2)}')
    a.e(f'v_lshrrev_b32 {v(vT3)}, 1, {v(vR)}')
    a.e(f'v_lshlrev_b32 {v(vT3)}, 6, {v(vT3)}')
    a.e(f'v_sub_u32 {v(vT4)}, 0, {v(vT3)}')
    a.e('s_cmp_eq_u32 s20, 0')
    a.e('s_cselect_b64 vcc, -1, 0')
    a.e(f'v_cndmask_b32 v89, {v(vT4)}, {v(vT3)}, vcc')
    a.e(f'v_cndmask_b32 v90, {v(vT3)}, {v(vT4)}, vcc')
    for jl in range(2):
        a.e(f's_xor_b32 s27, s21, {jl}')
        a.e(f's_mul_i32 s27, s27, {16*640}')
        a.e(f'v_add_u32 {v(vT3)}, s27, {v(vT2)}')
        a.e(f'v_add_u32 {v(WA+2*jl)}, {v(vT3)}, v89')
        a.e(f'v_add_u32 {v(WA+2*jl+1)}, {v(vT3)}, v90')
    a.e('s_mul_i32 s27, s20, 640')
    a.e('s_mul_i32 s29, s19, 1280')
    a.e('s_add_u32 s27, s27, s29')
    a.e(f's_add_u32 s27, s27, {CSP}')
    a.e(f'v_and_b32 v62, 15, v0')
    a.e(f'v_lshlrev_b32 v62, 2, v62')
    a.e('v_add_u32 v62, s27, v62')
    for k in range(160): a.e(f'v_mov_b32 {v(ACC+k)}, 0')
    a.e('s_waitcnt lgkmcnt(0)')
    a.e('s_cmp_ge_u32 s18, 4')
    a.e('s_cbranch_scc1 K1_V_START')
    main_loop(a,'qk')
    a.e(f'v_lshrrev_b32 {v(vT)}, 5, v0')
    a.e(f'v_lshlrev_b32 {v(vT)}, 4, {v(vT)}')
    a.e('s_mul_i32 s27, s20, 640')
    a.e(f's_add_u32 s27, s27, {CS}')
    a.e(f'v_add_u32 {v(vT)}, s27, {v(vT)}')
    CQ=[4,20]
    for b in range(4): a.e(f'ds_read_b128 {v(CQ[0]+4*b,4)}, {v(vT)} offset:{b*32}')
    a.e('s_cmp_lt_u32 s18, 2')
    a.e(f's_cselect_b32 s27, {QIMG}, {KIMG}')
    a.e('s_add_u32 s4, s34, s27')
    a.e('s_addc_u32 s5, s35, 0')
    a.e('s_mov_b32 s6, 2621440')
    a.e('s_mov_b32 s7, 0x00020000')
    a.e('s_cmp_lt_u32 s18, 2')
    a.e('s_cselect_b32 s29, 0x3ea52b5c, 0x3f800000')
    a.e('s_and_b32 s27, s18, 1')
    a.e('s_lshl_b32 s27, s27, 4')
    a.e('s_lshl_b32 s30, s20, 3')
    a.e('s_add_u32 s27, s27, s30')
    a.e('s_mul_i32 s30, s27, 81920')
    a.e('s_lshl_b32 s31, s17, 2')
    a.e('s_lshl_b32 s27, s19, 1')
    a.e('s_add_u32 s31, s31, s27')
    a.e('s_mul_i32 s31, s31, 1280')
    a.e('s_add_u32 s30, s30, s31')
    vL16=71; vR8=72
    a.e(f'v_lshlrev_b32 {v(vL16)}, 4, v0')
    a.e(f'v_and_b32 {v(vR8)}, 31, v0')
    a.e(f'v_lshlrev_b32 {v(vR8)}, 3, {v(vR8)}')
    a.e(f'v_lshrrev_b32 {v(vT2)}, 5, v0')
    a.e(f'v_mul_u32_u24 {v(vT2)}, 81920, {v(vT2)}')
    a.e(f'v_add_u32 {v(vR8)}, {v(vR8)}, {v(vT2)}')
    a.e(f'v_add_u32 {v(vR8)}, 1024, {v(vR8)}')
    a.e('s_waitcnt lgkmcnt(4)')
    for i in range(2):
        a.e(f'v_mul_f32 {v(65+2*i)}, s29, {v(65+2*i)}')
    TMP=76
    for t in range(5):
        if t<4:
            for b in range(4): a.e(f'ds_read_b128 {v(CQ[(t+1)%2]+4*b,4)}, {v(vT)} offset:{(t+1)*128+b*32}')
            a.e('s_waitcnt lgkmcnt(4)')
        else:
            a.e('s_waitcnt lgkmcnt(0)')
        for b in range(4):
            j=4*t+b; m=j//5; jj=j%5
            dst={0:0,1:2,2:4,3:8,4:10}[jj]+20*m
            for i in range(2):
                A=acc(i,0)+4*j; P=64+2*i; C=CQ[t%2]+4*b; T_=TMP+4*i
                a.e(pkfma(T_,C,P,A,None,0,None))
                a.e(pkfma(T_+2,C+2,P,A+2,None,0,None))
                a.e(pkmul(T_,T_,P,None,1))
                a.e(pkmul(T_+2,T_+2,P,None,1))
            for i in range(2):
                T_=TMP+4*i; D=acc(i,0)+dst
                a.e(f'v_cvt_pk_bf16_f32 {v(D)}, {v(T_)}, {v(T_+1)}')
                a.e(f'v_cvt_pk_bf16_f32 {v(D+1)}, {v(T_+2)}, {v(T_+3)}')
            if jj==4:
                for i in range(2):
                    B=acc(i,0)+20*m
                    a.e(f's_add_u32 s27, s30, {2*m*81920+i*1280}')
                    a.e(f's_add_u32 s31, s27, 81920')
                    a.e(f'buffer_store_dwordx4 {v(B,4)}, {v(vL16)}, s[4:7], s27 offen')
                    a.e(f'buffer_store_dwordx4 {v(B+8,4)}, {v(vL16)}, s[4:7], s31 offen')
                    a.e(f'buffer_store_dwordx2 {v(B+4,2)}, {v(vR8)}, s[4:7], s27 offen')
    a.e('s_branch K1_DONE')
    a.label('K1_V_START')
    main_loop(a,'v')
    CB=76
    a.e('s_mul_i32 s27, s20, 640')
    a.e(f's_add_u32 s27, s27, {CS}')
    a.e(f'v_and_b32 v62, 31, v0')
    a.e(f'v_lshlrev_b32 v62, 2, v62')
    a.e('v_add_u32 v62, s27, v62')
    for t in range(5): a.e(f'ds_read_b32 {v(CB+2*t)}, v62 offset:{t*128}')
    a.e(f'v_lshrrev_b32 {v(vT2)}, 5, v0')
    a.e(f'v_lshlrev_b32 {v(vT2)}, 4, {v(vT2)}')
    a.e('s_lshl_b32 s27, s19, 8')
    a.e(f's_add_u32 s27, s27, {NM}')
    a.e(f'v_add_u32 {v(vT2)}, s27, {v(vT2)}')
    a.e(f's_add_u32 s4, s34, {VIMG}')
    a.e('s_addc_u32 s5, s35, 0')
    a.e('s_mov_b32 s6, 2621440')
    a.e('s_mov_b32 s7, 0x00020000')
    a.e('s_sub_u32 s27, s18, 4')
    a.e(f's_mul_i32 s30, s27, {16*81920}')
    a.e('s_lshl_b32 s31, s17, 2')
    a.e('s_lshl_b32 s27, s19, 1')
    a.e('s_add_u32 s31, s31, s27')
    a.e('s_mul_i32 s31, s31, 1280')
    a.e('s_add_u32 s30, s30, s31')
    VO=86
    a.e(f'v_and_b32 {v(vT3)}, 31, v0')
    a.e('s_mul_i32 s27, s20, 160')
    a.e(f'v_add_u32 {v(vT3)}, s27, {v(vT3)}')
    a.e(f'v_lshrrev_b32 {v(vT4)}, 5, v0')
    a.e(f'v_mul_u32_u24 {v(vT4)}, 320, {v(vT4)}')
    for t in range(5):
        a.e(f'v_add_u32 v91, {32*t}, {v(vT3)}')
        a.e(f'v_mul_u32_u24 v92, 3277, v91')
        a.e(f'v_lshrrev_b32 v92, 16, v92')
        a.e(f'v_mul_u32_u24 v93, 20, v92')
        a.e(f'v_sub_u32 v91, v91, v93')
        a.e(f'v_lshlrev_b32 v91, 4, v91')
        a.e(f'v_add_u32 v91, v91, {v(vT4)}')
        a.e(f's_mov_b32 s27, 81920')
        a.e(f'v_mul_lo_u32 v92, v92, s27')
        a.e(f'v_add_u32 {v(VO+t)}, v91, v92')
    qN=4; qR=20; TMP=36
    for i in range(2):
        a.e('s_waitcnt lgkmcnt(0)')
        for b in range(4):
            a.e(f'ds_read_b128 {v(qN+4*b,4)}, {v(vT2)} offset:{i*128+b*32}')
            a.e(f'ds_read_b128 {v(qR+4*b,4)}, {v(vT2)} offset:{512+i*128+b*32}')
        a.e(f's_add_u32 s27, s30, {i*1280}')
        a.e('s_waitcnt lgkmcnt(0)')
        for t in range(5):
            A=acc(i,t)
            for j in range(2):
                for q in range(4):
                    r_=8*j+2*q
                    a.e(pkfma(TMP+2*q,qN+r_,CB+2*t,A+r_,None,0,None))
                for q in range(4):
                    r_=8*j+2*q
                    a.e(pkmul(TMP+2*q,TMP+2*q,qR+r_))
                for q in range(4):
                    a.e(f'v_cvt_pk_bf16_f32 {v(A+8*j+q)}, {v(TMP+2*q)}, {v(TMP+2*q+1)}')
                a.e(f'buffer_store_dwordx4 {v(A+8*j,4)}, {v(VO+t)}, s[4:7], s27 offen offset:{j*640}')
    a.e('s_branch K1_DONE')
    a.label('K1_FFN_SETUP')
    a.e(f'v_mul_u32_u24 {v(vT2)}, 320, {v(vRow)}')
    a.e(f'v_mul_u32_u24 {v(vT3)}, 10272, {v(vCh)}')
    a.e(f'v_add_u32 {v(vT2)}, {v(vT2)}, {v(vT3)}')
    a.e(f'v_lshlrev_b32 {v(vT3)}, 3, {v(vC4)}')
    a.e(f'v_add_u32 {v(vT2)}, {v(vT2)}, {v(vT3)}')
    a.e('s_mul_i32 s27, s20, 160')
    a.e(f's_add_u32 s27, s27, {WBASE}')
    a.e(f'v_add_u32 {v(vT2)}, s27, {v(vT2)}')
    for jl in range(2):
        a.e(f's_xor_b32 s27, s21, {jl}')
        a.e(f's_mul_i32 s27, s27, {16*320}')
        a.e(f'v_add_u32 {v(WA+2*jl)}, s27, {v(vT2)}')
    a.e(f'v_and_b32 v62, 15, v0')
    a.e('v_lshlrev_b32 v62, 2, v62')
    a.e('s_mul_i32 s27, s20, 320')
    a.e('s_mul_i32 s29, s19, 1280')
    a.e('s_add_u32 s27, s27, s29')
    a.e(f's_add_u32 s27, s27, {CSP}')
    a.e('v_add_u32 v62, s27, v62')
    for k in range(160): a.e(f'v_mov_b32 {v(ACC+k)}, 0')
    a.e('s_waitcnt lgkmcnt(0)')
    main_loop(a,'ffn')
    a.e(f'v_lshrrev_b32 {v(vT)}, 5, v0')
    a.e(f'v_lshlrev_b32 {v(vT)}, 4, {v(vT)}')
    a.e('s_mul_i32 s27, s20, 320')
    a.e(f's_add_u32 s27, s27, {CS}')
    a.e(f'v_add_u32 {v(vT)}, s27, {v(vT)}')
    CQ=[4,20]
    def csread(t):
        C=CQ[t%2]
        for b in range(2):
            a.e(f'ds_read_b128 {v(C+4*b,4)}, {v(vT)} offset:{t*64+b*32}')
            a.e(f'ds_read_b128 {v(C+8+4*b,4)}, {v(vT)} offset:{640+t*64+b*32}')
    csread(0)
    a.e(f's_add_u32 s4, s34, {HIMG}')
    a.e('s_addc_u32 s5, s35, 0')
    a.e('s_mov_b32 s6, 6291456')
    a.e('s_mov_b32 s7, 0x00020000')
    a.e('s_sub_u32 s27, s18, 6')
    a.e('s_mul_i32 s27, s27, 10')
    a.e('s_min_u32 s27, s27, 86')
    a.e('s_mul_i32 s30, s20, 5')
    a.e('s_add_u32 s27, s27, s30')
    a.e('s_lshl_b32 s30, s27, 10')
    a.e('s_lshl_b32 s31, s17, 2')
    a.e('s_lshl_b32 s27, s19, 1')
    a.e('s_add_u32 s31, s31, s27')
    a.e('s_mul_i32 s31, s31, 98304')
    a.e('s_add_u32 s30, s30, s31')
    vL16=71
    a.e(f'v_lshlrev_b32 {v(vL16)}, 4, v0')
    a.e('s_waitcnt lgkmcnt(4)')
    for i in range(2):
        P=64+2*i
        a.e(f'v_mul_f32 {v(72+2*i)}, {v(P+1)}, {v(P+1)}')
        a.e(f'v_rcp_f32 {v(72+2*i)}, {v(72+2*i)}')
        a.e(f'v_mul_f32 {v(P+1)}, 0xbfb8aa3b, {v(P+1)}')
    E=76
    for t in range(5):
        if t<4:
            csread(t+1); a.e('s_waitcnt lgkmcnt(4)')
        else: a.e('s_waitcnt lgkmcnt(0)')
        C=CQ[t%2]
        for i in range(2):
            A=acc(i,t); P=64+2*i
            for q in range(4): a.e(pkfma(A+2*q,C+2*q,P,A+2*q,None,0,None))
        for i in range(2):
            A=acc(i,t); P=64+2*i
            for q in range(4): a.e(pkmul(E+8*i+2*q,A+2*q,P,None,1))
        for i in range(2):
            A=acc(i,t); P=64+2*i
            for q in range(4):
                a.e(f'v_exp_f32 {v(E+8*i+2*q)}, {v(E+8*i+2*q)}')
                a.e(f'v_exp_f32 {v(E+8*i+2*q+1)}, {v(E+8*i+2*q+1)}')
                a.e(pkfma(A+8+2*q,C+8+2*q,P,A+8+2*q,None,0,None))
        for i in range(2):
            A=acc(i,t); I=72+2*i
            for q in range(4):
                a.e(pkfma(E+8*i+2*q,E+8*i+2*q,I,I,None,0,0))
                a.e(pkmul(A+2*q,A+2*q,A+8+2*q))
        for i in range(2):
            for q in range(8): a.e(f'v_rcp_f32 {v(E+8*i+q)}, {v(E+8*i+q)}')
        for i in range(2):
            A=acc(i,t)
            for q in range(4): a.e(pkmul(A+2*q,A+2*q,E+8*i+2*q))
        for i in range(2):
            A=acc(i,t)
            for q in range(4): a.e(f'v_cvt_pk_bf16_f32 {v(A+8+q)}, {v(A+2*q)}, {v(A+2*q+1)}')
            a.e(f's_add_u32 s27, s30, {i*98304+t*1024}')
            a.e(f'buffer_store_dwordx4 {v(A+8,4)}, {v(vL16)}, s[4:7], s27 offen')
    a.label('K1_DONE')
    stamp(a,3)
    a.e('s_waitcnt vmcnt(0)')
    stamp(a,4)
    stamp_store(a,10,34,'s16',8,3*1024*1024)
    a.e('s_endpgm')
    a.label('K1_LOADER')
    a.e('s_sub_u32 s19, s16, 4')
    if 'lp0' not in FL: a.e('s_setprio 3')
    if 'lst' in FL: stamp(a,5)
    vX=4; vW=8
    a.e(f'v_lshrrev_b32 {v(vT)}, 3, v0')
    a.e(f'v_and_b32 {v(vT2)}, 7, v0')
    a.e(f'v_lshrrev_b32 {v(vT3)}, 4, v0')
    a.e('s_lshl_b32 s27, s17, 7')
    a.e('s_lshl_b32 s29, s19, 5')
    a.e('s_add_u32 s27, s27, s29')
    a.e(f'v_xor_b32 {v(vT4)}, {v(vT3)}, {v(vT2)}')
    a.e(f'v_lshlrev_b32 {v(vT4)}, 4, {v(vT4)}')
    a.e(f'v_add_u32 {v(vX)}, s27, {v(vT)}')
    a.e(f'v_mul_u32_u24 {v(vX)}, 1280, {v(vX)}')
    a.e(f'v_xor_b32 {v(vT3)}, 64, {v(vT4)}')
    a.e(f'v_add_u32 {v(vX+1)}, {v(vX)}, {v(vT3)}')
    a.e(f'v_add_u32 {v(vX)}, {v(vX)}, {v(vT4)}')
    a.e(f'v_add_u32 {v(vX+1)}, 10240, {v(vX+1)}')
    a.e(f'v_add_u32 {v(vX+2)}, 20480, {v(vX)}')
    a.e(f'v_add_u32 {v(vX+3)}, 20480, {v(vX+1)}')
    if 'lst' in FL: stamp(a,6)
    a.e('s_waitcnt lgkmcnt(0)')
    a.e('s_mov_b32 s8, s36'); a.e('s_mov_b32 s9, s37'); a.e('s_mov_b32 s10, 2621440'); a.e('s_mov_b32 s11, 0x00020000')
    a.e('s_lshl_b32 s21, s19, 12')
    a.e('s_mov_b32 s25, 0'); a.e('s_mov_b32 s26, s21')
    a.e(f's_add_u32 s30, s21, {3*XS}')
    def issueX(pro=False):
        for i in range(4):
            if 'nodma' in FL and not pro: break
            a.e(f's_add_u32 m0, s26, {i*1024}')
            a.e('s_nop 0')
            a.e(f'buffer_load_dwordx4 {v(vX+i)}, s[8:11], s25 offen lds')
        a.e('s_add_u32 s25, s25, 128')
        a.e(f's_add_u32 s26, s26, {XS}')
        a.e('s_cmp_eq_u32 s26, s30')
        a.e('s_cselect_b32 s26, s21, s26')
    issueX(True)
    if 'lst' in FL: stamp(a,4)
    a.e('s_cmp_ge_u32 s18, 6')
    a.e('s_cbranch_scc1 K1_LD_FFN')
    a.e('s_mul_i32 s27, s19, 320')
    for p in range(5):
        a.e(f's_add_u32 s29, s27, {64*p}')
        a.e(f'v_add_u32 {v(vT)}, s29, v0')
        a.e(f'v_mul_u32_u24 {v(vT2)}, 1639, {v(vT)}')
        a.e(f'v_lshrrev_b32 {v(vT2)}, 16, {v(vT2)}')
        a.e(f'v_mul_u32_u24 {v(vT3)}, 40, {v(vT2)}')
        a.e(f'v_sub_u32 {v(vT)}, {v(vT)}, {v(vT3)}')
        a.e(f'v_bfe_u32 {v(vT3)}, {v(vT2)}, 1, 1')
        a.e(f'v_lshlrev_b32 {v(vT3)}, 2, {v(vT3)}')
        a.e(f'v_xor_b32 {v(vT)}, {v(vT)}, {v(vT3)}')
        a.e(f'v_lshlrev_b32 {v(vT)}, 4, {v(vT)}')
        a.e(f'v_mul_u32_u24 {v(vT2)}, 3840, {v(vT2)}')
        a.e(f'v_add_u32 {v(vW+p)}, {v(vT)}, {v(vT2)}')
    a.e('s_mul_i32 s29, s18, 640')
    for p in range(5): a.e(f'v_add_u32 {v(vW+p)}, s29, {v(vW+p)}')
    a.e('s_waitcnt lgkmcnt(0)')
    a.e('s_mov_b32 s4, s38'); a.e('s_mov_b32 s5, s39'); a.e(f's_mov_b32 s6, {640*3840}')
    a.e(f's_mov_b32 s22, {32*3840}')
    a.e('s_mul_i32 s20, s19, 5120')
    a.e('s_branch K1_LD_GO')
    a.label('K1_LD_FFN')
    a.e('s_and_b32 s27, s19, 1')
    a.e('s_lshl_b32 s27, s27, 4')
    a.e('s_sub_u32 s29, s18, 6')
    a.e('s_mul_i32 s29, s29, 320')
    a.e('s_min_u32 s29, s29, 2752')
    for p in range(5):
        a.e(f'v_add_u32 {v(vT)}, {64*p}, v0')
        a.e(f'v_mul_u32_u24 {v(vT2)}, 3277, {v(vT)}')
        a.e(f'v_lshrrev_b32 {v(vT2)}, 16, {v(vT2)}')
        a.e(f'v_mul_u32_u24 {v(vT3)}, 20, {v(vT2)}')
        a.e(f'v_sub_u32 {v(vT)}, {v(vT)}, {v(vT3)}')
        a.e(f'v_lshlrev_b32 {v(vT)}, 4, {v(vT)}')
        a.e(f'v_add_u32 {v(vT2)}, s27, {v(vT2)}')
        a.e(f'v_mul_u32_u24 {v(vT2)}, 3072, {v(vT2)}')
        a.e(f'v_add_u32 {v(vW+p)}, {v(vT)}, {v(vT2)}')
        a.e(f'v_add_u32 {v(vW+p)}, s29, {v(vW+p)}')
    a.e('s_waitcnt lgkmcnt(0)')
    a.e('s_cmp_lt_u32 s19, 2')
    a.e('s_cselect_b32 s4, s40, s42')
    a.e('s_cselect_b32 s5, s41, s43')
    a.e(f's_mov_b32 s6, {640*3072}')
    a.e(f's_mov_b32 s22, {32*3072}')
    a.e('s_mul_i32 s20, s19, 5120')
    a.e('s_lshr_b32 s27, s19, 1')
    a.e('s_lshl_b32 s27, s27, 5')
    a.e('s_add_u32 s20, s20, s27')
    a.label('K1_LD_GO')
    if 'lst' in FL: stamp(a,7)
    a.e('s_mov_b32 s7, 0x00020000')
    a.e(f's_add_u32 s20, s20, {WBASE}')
    a.e('s_mov_b32 s23, 0'); a.e('s_mov_b32 s24, s20')
    a.e(f's_add_u32 s29, s20, {5*WP}')
    def issueW(pro=False):
        for p in range(5):
            if 'nodma' in FL and not pro: break
            a.e(f's_add_u32 m0, s24, {p*1024}')
            a.e('s_nop 0')
            a.e(f'buffer_load_dwordx4 {v(vW+p)}, s[4:7], s23 offen lds')
        a.e('s_add_u32 s23, s23, s22')
        a.e(f's_add_u32 s24, s24, {WP}')
        a.e('s_cmp_eq_u32 s24, s29')
        a.e('s_cselect_b32 s24, s20, s24')
    issueW(True); issueW(True); issueX(True)
    stamp(a,1)
    if 'lp0' in FL or 'lp30' in FL: a.e('s_setprio 0')
    vU=50
    if 'wimg' in FL:
        a.e('s_lshl_b32 s27, s2, 1'); a.e('s_add_u32 s27, s27, s19')
        a.e('s_add_u32 s28, s2, 512')
        a.e('s_cmp_eq_u32 s19, 2'); a.e('s_cselect_b32 s27, s28, s27')
        a.e('s_cmp_lt_u32 s27, 544'); a.e('s_cselect_b32 s33, 1, 0')
        a.e('s_cmp_eq_u32 s19, 3'); a.e('s_cselect_b32 s33, 0, s33')
        a.e('s_and_b32 s32, s27, 7')
        a.e('s_lshr_b32 s27, s27, 3')
        a.e('s_mul_i32 s54, s32, 68'); a.e('s_add_u32 s54, s54, s27'); a.e('s_mul_i32 s54, s54, 5120')
        a.e('s_mul_i32 s32, s32, 160')
        a.e('s_lshl_b32 s28, s27, 5'); a.e('s_mov_b32 s55, 16'); a.e('s_mov_b32 s48, 8'); a.e('s_mov_b32 s49, 4')
        a.e('s_mov_b32 s12, s52'); a.e('s_mov_b32 s13, s53'); a.e(f's_mov_b32 s14, {1536*1280}')
        a.e('s_cmp_lt_u32 s27, 48'); a.e('s_cbranch_scc1 K1_WI_SET')
        a.e('s_mov_b32 s12, s50'); a.e('s_mov_b32 s13, s51'); a.e(f's_mov_b32 s14, {640*1280}')
        a.e('s_sub_u32 s27, s27, 48')
        a.e('s_mul_i32 s28, s27, 40'); a.e('s_mov_b32 s55, 20')
        a.e('s_cmp_lt_u32 s27, 16'); a.e('s_cbranch_scc1 K1_WI_SET')
        a.e('s_sub_u32 s27, s27, 16')
        a.e('s_mul_i32 s28, s27, 160'); a.e('s_add_u32 s28, s28, 16')
        a.e('s_mov_b32 s55, 80'); a.e('s_mov_b32 s48, 20'); a.e('s_mov_b32 s49, 40')
        a.label('K1_WI_SET')
        a.e('s_mov_b32 s15, 0x00020000')
        a.e('s_cmp_eq_u32 s33, 0'); a.e('s_cselect_b32 s14, 0, s14')
        for p in range(5):
            a.e(f'v_add_u32 v56, {64*p}, v0')
            a.e('v_mul_u32_u24 v57, 6554, v56')
            a.e('v_lshrrev_b32 v57, 16, v57')
            a.e('v_mul_u32_u24 v58, 10, v57')
            a.e('v_sub_u32 v56, v56, v58')
            a.e('v_lshlrev_b32 v56, 4, v56')
            a.e('v_add_u32 v56, s32, v56')
            a.e('v_lshrrev_b32 v58, 4, v57')
            a.e('v_mul_u32_u24 v58, s55, v58')
            a.e('v_bfe_u32 v59, v57, 3, 1')
            a.e('v_mul_u32_u24 v59, s48, v59')
            a.e('v_add_u32 v58, v58, v59')
            a.e('v_bfe_u32 v59, v57, 2, 1')
            a.e('v_mul_u32_u24 v59, s49, v59')
            a.e('v_add_u32 v58, v58, v59')
            a.e('v_and_b32 v59, 3, v57')
            a.e('v_add_u32 v58, v58, v59')
            a.e('v_add_u32 v58, s28, v58')
            a.e('v_mul_u32_u24 v58, 1280, v58')
            a.e(f'v_add_u32 {v(vU+p)}, v56, v58')
    vSA=16
    D=20
    U=36
    sL,sH,qL,qH=40,41,42,43
    a.e(f'v_and_b32 {v(vT)}, 31, v0')
    a.e(f'v_lshrrev_b32 {v(vT2)}, 5, v0')
    a.e(f'v_lshlrev_b32 {v(vT2)}, 2, {v(vT2)}')
    a.e(f'v_bfe_u32 {v(vT3)}, v0, 1, 3')
    a.e(f'v_xor_b32 {v(vT2)}, {v(vT2)}, {v(vT3)}')
    a.e(f'v_lshlrev_b32 {v(vT2)}, 4, {v(vT2)}')
    a.e(f'v_lshlrev_b32 {v(vT3)}, 7, {v(vT)}')
    a.e(f'v_add_u32 {v(vT2)}, {v(vT2)}, {v(vT3)}')
    a.e(f'v_add_u32 {v(vSA)}, s21, {v(vT2)}')
    for i in range(1,4): a.e(f'v_xor_b32 {v(vSA+i)}, {16*i}, {v(vSA)}')
    for r in (sL,sH,qL,qH): a.e(f'v_mov_b32 {v(r)}, 0')
    a.e(f's_mov_b32 s27, 0')
    a.e(f's_mov_b32 s46, {XS}'); a.e(f's_mov_b32 s47, {(-2*XS)&0xffffffff}')
    def st_read():
        if 'nostat' in FL: return
        for i in range(4): a.e(f'ds_read_b128 {v(D+4*i,4)}, {v(vSA+i)}')
        a.e('s_add_u32 s27, s27, 1')
        a.e('s_cmp_eq_u32 s27, 3')
        a.e('s_cselect_b32 s28, s47, s46')
        a.e('s_cselect_b32 s27, 0, s27')
        for i in range(4): a.e(f'v_add_u32 {v(vSA+i)}, s28, {v(vSA+i)}')
    def st_acc(half):
        if 'nostat' in FL: return
        a.e(f's_waitcnt lgkmcnt({2 if half==0 else 0})')
        for d in range(8*half,8*half+8,2):
            a.e(f'v_lshlrev_b32 {v(U)}, 16, {v(D+d)}')
            a.e(f'v_and_b32 {v(U+1)}, 0xffff0000, {v(D+d)}')
            a.e(f'v_lshlrev_b32 {v(U+2)}, 16, {v(D+d+1)}')
            a.e(f'v_and_b32 {v(U+3)}, 0xffff0000, {v(D+d+1)}')
            a.e(f'v_add_f32 {v(sL)}, {v(sL)}, {v(U)}')
            a.e(f'v_add_f32 {v(sH)}, {v(sH)}, {v(U+1)}')
            a.e(f'v_fma_f32 {v(qL)}, {v(U)}, {v(U)}, {v(qL)}')
            a.e(f'v_fma_f32 {v(qH)}, {v(U+1)}, {v(U+1)}, {v(qH)}')
            a.e(f'v_add_f32 {v(sL)}, {v(sL)}, {v(U+2)}')
            a.e(f'v_add_f32 {v(sH)}, {v(sH)}, {v(U+3)}')
            a.e(f'v_fma_f32 {v(qL)}, {v(U+2)}, {v(U+2)}, {v(qL)}')
            a.e(f'v_fma_f32 {v(qH)}, {v(U+3)}, {v(U+3)}, {v(qH)}')
    a.e('s_waitcnt vmcnt(9)'); a.e('s_barrier'); issueW(True); st_read(); st_acc(0)
    a.e('s_waitcnt vmcnt(9)'); a.e('s_barrier'); issueW(True); issueX(True); st_acc(1)
    a.e('s_waitcnt vmcnt(9)'); a.e('s_barrier'); issueW(True); issueW(True); st_read(); st_acc(0)
    a.e('s_waitcnt vmcnt(14)'); a.e('s_barrier'); issueW(True); issueX(True); st_acc(1)
    a.e('s_mov_b32 s31, 2')
    a.label('K1_LD_LOOP')
    a.e('s_waitcnt vmcnt(14)'); a.e('s_barrier'); issueW(); st_read(); st_acc(0)
    a.e('s_waitcnt vmcnt(14)'); a.e('s_barrier'); issueW(); issueX(); st_acc(1)
    a.e('s_add_u32 s31, s31, 1')
    a.e('s_cmp_lt_u32 s31, 8')
    a.e('s_cbranch_scc1 K1_LD_LOOP')
    a.e('s_waitcnt vmcnt(14)'); a.e('s_barrier'); issueW(); st_read(); st_acc(0)
    wi=5 if 'wimg' in FL else 0
    a.e('s_waitcnt vmcnt(14)'); a.e('s_barrier')
    if wi:
        for p in range(5):
            a.e(f's_add_u32 m0, s20, {p*1024}')
            a.e('s_nop 0')
            a.e(f'buffer_load_dwordx4 {v(vU+p)}, s[12:15], 0 offen lds')
    st_acc(1)
    a.e(f's_waitcnt vmcnt({5+wi})'); a.e('s_barrier'); st_read(); st_acc(0)
    a.e(f's_waitcnt vmcnt({wi})'); a.e('s_barrier'); st_acc(1)
    a.e('s_barrier')
    stamp(a,2)
    P=44
    a.e(f'v_add_f32 {v(P)}, {v(sL)}, {v(sH)}')
    a.e(f'v_add_f32 {v(P+1)}, {v(qL)}, {v(qH)}')
    a.e(f'v_mov_b32 {v(U)}, {v(P)}')
    a.e(f'v_mov_b32 {v(U+1)}, {v(P+1)}')
    a.e('s_nop 1')
    a.e(f'v_permlane32_swap_b32 {v(U)}, {v(P)}')
    a.e(f'v_permlane32_swap_b32 {v(U+1)}, {v(P+1)}')
    a.e('s_nop 1')
    a.e(f'v_add_f32 {v(P)}, {v(U)}, {v(P)}')
    a.e(f'v_add_f32 {v(P+1)}, {v(U+1)}, {v(P+1)}')
    stats(a,0,P)
    a.e(f'v_and_b32 {v(vT)}, 31, v0')
    a.e('s_lshl_b32 s27, s19, 5')
    a.e(f'v_add_u32 {v(vT)}, s27, {v(vT)}')
    a.e(f'v_lshlrev_b32 {v(vT2)}, 2, {v(vT)}')
    a.e(f'v_lshlrev_b32 {v(vT3)}, 3, {v(vT)}')
    a.e('s_mov_b64 exec, 0xffffffff')
    a.e(f'ds_write_b32 {v(vT2)}, {v(P)} offset:{NM}' if NM<65536 else f'v_add_u32 {v(vT2)}, {NM}, {v(vT2)}')
    if NM>=65536:
        a.e(f'v_add_u32 {v(vT3)}, {ST2}, {v(vT3)}')
        a.e(f'ds_write_b32 {v(vT2)}, {v(P)}')
        a.e(f'ds_write_b32 {v(vT2)}, {v(P+1)} offset:512')
        a.e(f'ds_write_b64 {v(vT3)}, {v(P,2)}')
    a.e('s_mov_b64 exec, -1')
    a.e('s_lshl_b32 s27, s19, 6')
    a.e(f'v_add_u32 {v(vT)}, s27, v0')
    a.e(f'v_lshlrev_b32 {v(vT2)}, 3, {v(vT)}')
    a.e(f'v_add_u32 {v(vT2)}, {CS}, {v(vT2)}')
    a.e('s_waitcnt lgkmcnt(0)')
    stamp(a,3)
    a.e('s_barrier')
    a.e(f'v_cmp_gt_u32 vcc, 160, {v(vT)}')
    a.e('s_and_saveexec_b64 s[48:49], vcc')
    a.e(f'ds_read_b64 {v(D,2)}, {v(vT2)} offset:1280')
    a.e(f'ds_read_b64 {v(D+2,2)}, {v(vT2)} offset:2560')
    a.e('s_waitcnt lgkmcnt(0)')
    a.e(f'v_add_f32 {v(D)}, {v(D)}, {v(D+2)}')
    a.e(f'v_add_f32 {v(D+1)}, {v(D+1)}, {v(D+3)}')
    a.e(f'ds_write_b64 {v(vT2)}, {v(D,2)}')
    a.e('s_mov_b64 exec, -1')
    a.e('s_waitcnt lgkmcnt(0)')
    a.e('s_barrier')
    if 'wimg' in FL:
        a.e('s_cmp_eq_u32 s33, 0')
        a.e('s_cbranch_scc1 K1_WI_END')
        a.e('v_lshrrev_b32 v56, 5, v0')
        a.e('v_lshlrev_b32 v56, 4, v56')
        a.e('v_bfe_u32 v57, v0, 4, 1')
        a.e('v_lshlrev_b32 v57, 2, v57')
        a.e('v_add_u32 v56, v56, v57')
        a.e('v_bfe_u32 v57, v0, 2, 2')
        a.e('v_add_u32 v56, v56, v57')
        a.e('v_mul_u32_u24 v56, 160, v56')
        a.e('v_add_u32 v56, s20, v56')
        a.e('v_and_b32 v57, 3, v0')
        a.e('v_lshlrev_b32 v58, 4, v57')
        a.e('v_add_u32 v54, v56, v58')
        a.e('v_lshlrev_b32 v58, 3, v57')
        a.e('v_add_u32 v55, v56, v58')
        a.e('v_lshlrev_b32 v53, 4, v0')
        a.e(f's_add_u32 s12, s34, {WIMG}'); a.e('s_addc_u32 s13, s35, 0'); a.e(f's_mov_b32 s14, {WIMG_BYTES}')
        a.e('s_waitcnt vmcnt(0)')
        for t in range(5):
            reg,off=(54,[0,8,64,72][t]) if t<4 else (55,128)
            a.e(f'ds_read_b64_tr_b16 {v(56+4*t,2)}, {v(reg)} offset:{off}')
            a.e(f'ds_read_b64_tr_b16 {v(58+4*t,2)}, {v(reg)} offset:{off+1280}')
        a.e('s_waitcnt lgkmcnt(0)')
        for t in range(5):
            a.e(f's_add_u32 s27, s54, {t*1024}')
            a.e(f'buffer_store_dwordx4 {v(56+4*t,4)}, v53, s[12:15], s27 offen')
        a.e('s_waitcnt vmcnt(0)')
        a.label('K1_WI_END')
    if 'lst' not in FL:
        stamp(a,4); stamp(a,5); stamp(a,6); stamp(a,7)
    stamp_store(a,8,34,'s16',8,3*1024*1024)
    a.label('K1_END')
    a.e('s_endpgm')
    return NV
```

```python
from asmlib import *
from layouts import OIMG,HIMG,WIMG,WIMG_BYTES
from stamps import stamp, stamp_store, stampc
FL=set()
NB=6
BUF=16
vA0=1; vA1=2; vB0=3; vB1=4; vX=6
vXo=5
def acc(u,t): return (u*5+t)*4
def areg(i,n=4): return f'a[{i}:{i+n-1}]' if n>1 else f'a{i}'
def bufA(b,t): return BUF+36*b+4*t
def bufB(b,u): return BUF+36*b+20+4*u

def loadA(a,b,t,pol):
    if t<4: a.e(f'buffer_load_dwordx4 {v(bufA(b,t),4)}, {v(vA0)}, s[4:7], s20 offen offset:{t*1024} {pol}')
    else:   a.e(f'buffer_load_dwordx4 {v(bufA(b,t),4)}, {v(vA1)}, s[4:7], s20 offen {pol}')
def loadB(a,b,u,pol):
    a.e(f'buffer_load_dwordx4 {v(bufB(b,u),4)}, {v(vB0 if u<2 else vB1)}, s[8:11], s21 offen offset:{(u%2)*256} {pol}')
def advance(a):
    a.e('s_add_u32 s20, s20, 5120'); a.e('s_add_u32 s21, s21, 2048')

def gemm(a,n,pol):
    for j in range(n):
        b=j%NB
        issued=min(j+NB,n)
        a.e(f's_waitcnt vmcnt({9*(issued-j-1)+(3 if j<NB else 0)})')
        if j==0: stamp(a,1); stampc(a,5)
        more=j+NB<n
        for t in range(5):
            for u in range(4):
                c=areg(acc(u,t)) if j>0 else '0'
                a.e(f'v_mfma_f32_16x16x32_bf16 {areg(acc(u,t))}, {v(bufA(b,t),4)}, {v(bufB(b,u),4)}, {c}')
                if more and u==3 and t>0: loadA(a,b,t-1,pol)
        if more:
            loadA(a,b,4,pol)
            for u in range(4): loadB(a,b,u,pol)
            advance(a)

def k3_kernel(a,name):
    pol=' '.join(x for x in ('sc0','sc1','nt') if 'k3ld_'+x in FL)
    spol=' '.join(x for x in ('sc0','sc1','nt') if 'k3st_'+x in FL)
    a.lines.append(kernel_header(name))
    a.e('s_cmp_ge_u32 s2, 256')
    a.e('s_cbranch_scc1 K3_END')
    a.e('s_load_dwordx2 s[34:35], s[0:1], 72')
    a.e('s_load_dwordx2 s[36:37], s[0:1], 0')
    a.e('s_load_dwordx2 s[38:39], s[0:1], 56')
    stamp(a,0)
    a.e('v_lshrrev_b32 v5, 6, v0')
    a.e('v_and_b32 v0, 63, v0')
    a.e('v_readfirstlane_b32 s16, v5')
    a.e('s_and_b32 s27, s2, 7')
    a.e('s_lshr_b32 s28, s2, 3')
    a.e('s_lshr_b32 s29, s27, 1')
    a.e('s_lshl_b32 s29, s29, 3')
    a.e('s_lshr_b32 s30, s28, 2')
    a.e('s_add_u32 s17, s29, s30')
    a.e('s_and_b32 s27, s27, 1')
    a.e('s_lshl_b32 s27, s27, 2')
    a.e('s_and_b32 s28, s28, 3')
    a.e('s_add_u32 s18, s27, s28')
    a.e(f'v_lshlrev_b32 {v(vA0)}, 4, v0')
    a.e(f'v_add_u32 {v(vA1)}, 4096, {v(vA0)}')
    a.e('v_lshrrev_b32 v5, 4, v0')
    a.e('v_and_b32 v6, 15, v0')
    a.e(f'v_lshlrev_b32 {v(vB0)}, 9, v5')
    a.e('v_lshlrev_b32 v7, 4, v6')
    a.e(f'v_add_u32 {v(vB0)}, {v(vB0)}, v7')
    a.e('s_lshl_b32 s22, s16, 4')
    a.e('s_mul_i32 s27, s18, 348160')
    a.e('s_mul_i32 s28, s22, 5120')
    a.e('s_add_u32 s27, s27, s28')
    a.e(f's_add_u32 s27, s27, {WIMG}')
    a.e('s_cmp_eq_u32 s16, 3')
    a.e('s_cselect_b32 s23, 40960, 0')
    a.e('s_cbranch_scc1 K3_SSET')
    a.e('s_mov_b32 s23, 98304')
    a.e('s_lshl_b32 s28, s16, 15')
    a.e(f's_add_u32 s28, s28, {HIMG}')
    a.e(f's_mov_b32 s24, {98304+16*2048}')
    a.e(f's_mov_b32 s25, {16*5120}')
    a.e('s_branch K3_SET2')
    a.label('K3_SSET')
    a.e(f's_mov_b32 s28, {OIMG}')
    a.e(f's_mov_b32 s24, {2*40960}')
    a.e(f's_mov_b32 s25, {20*5120}')
    a.label('K3_SET2')
    a.e('s_mul_i32 s29, s17, s23')
    a.e('s_lshl_b32 s29, s29, 1')
    a.e('s_add_u32 s28, s28, s29')
    a.e(f'v_add_u32 {v(vB1)}, s23, {v(vB0)}')
    a.e('s_mov_b32 s20, 0'); a.e('s_mov_b32 s21, 0')
    a.e('s_waitcnt lgkmcnt(0)')
    a.e('s_add_u32 s4, s34, s27'); a.e('s_addc_u32 s5, s35, 0'); a.e('s_mov_b32 s6, s25'); a.e('s_mov_b32 s7, 0x00020000')
    a.e('s_add_u32 s8, s34, s28'); a.e('s_addc_u32 s9, s35, 0'); a.e('s_mov_b32 s10, s24'); a.e('s_mov_b32 s11, 0x00020000')
    for b in range(NB):
        for u in range(4): loadB(a,b,u,pol)
        for t in range(5): loadA(a,b,t,pol)
        advance(a)
    a.e('s_lshl_b32 s27, s17, 6'); a.e('s_lshl_b32 s28, s16, 4'); a.e('s_add_u32 s27, s27, s28')
    a.e('s_mul_i32 s27, s27, 1280'); a.e('s_mul_i32 s28, s18, 160'); a.e('s_add_u32 s26, s27, s28')
    a.e('v_mul_u32_u24 v6, 1280, v6')
    a.e('v_lshlrev_b32 v7, 3, v5')
    a.e(f'v_add_u32 v8, v6, v7')
    a.e(f'v_add_u32 {v(vXo)}, v8, v7')
    a.e('v_add_u32 v0, 128, v8')
    a.e('s_mov_b32 s12, s36'); a.e('s_mov_b32 s13, s37'); a.e('s_mov_b32 s14, 2621440'); a.e('s_mov_b32 s15, 0x00020000')
    a.e(f'buffer_load_dwordx4 {v(vX,4)}, {v(vXo)}, s[12:15], s26 offen')
    a.e(f'buffer_load_dwordx4 {v(vX+4,4)}, {v(vXo)}, s[12:15], s26 offen offset:64')
    a.e(f'buffer_load_dwordx2 {v(vX+8,2)}, v0, s[12:15], s26 offen')
    a.e('s_cmp_eq_u32 s16, 3')
    a.e('s_cbranch_scc1 K3_S')
    gemm(a,16,pol)
    a.e('s_branch K3_X')
    a.label('K3_S')
    gemm(a,20,pol)
    a.label('K3_X')
    stamp(a,2); stampc(a,6)
    a.e('s_mov_b32 s12, s38'); a.e('s_mov_b32 s13, s39')
    a.e('s_nop 7')
    R=BUF
    OWN=BUF+60
    for w in range(4):
        if w<3:
            a.e(f's_cmp_eq_u32 s16, {w}')
            a.e(f's_cbranch_scc0 K3_EX{w+1}')
        for u in range(4):
            if u==w: continue
            k=w if w<u else w-1
            for t in range(5):
                a.e(f'ds_write_b128 {v(vA0)}, {areg(acc(u,t))} offset:{((u*3+k)*5+t)*1024}')
        for i in range(20): a.e(f'v_accvgpr_read_b32 {v(OWN+i)}, a{acc(w,0)+i}')
        a.e('s_waitcnt lgkmcnt(0)')
        a.e('s_barrier')
        for k in range(3):
            for t in range(5):
                a.e(f'ds_read_b128 {v(R+20*k+4*t,4)}, {v(vA0)} offset:{((w*3+k)*5+t)*1024}')
        G=R;
        if w<3:
            a.e('s_waitcnt lgkmcnt(5)')
            for i in range(0,20,2):
                a.e(f'v_pk_add_f32 {v(G+i,2)}, {v(R+i,2)}, {v(R+20+i,2)}')
            for i in range(0,20,2):
                a.e(f'v_pk_add_f32 {v(G+i,2)}, {v(G+i,2)}, {v(OWN+i,2)}')
            a.e('s_waitcnt lgkmcnt(0)')
            a.e(f's_branch K3_FIN_A')
        else:
            a.e('s_waitcnt lgkmcnt(5)')
            for i in range(0,20,2):
                a.e(f'v_pk_add_f32 {v(G+i,2)}, {v(R+i,2)}, {v(R+20+i,2)}')
            a.e('s_waitcnt lgkmcnt(0)')
            for i in range(0,20,2):
                a.e(f'v_pk_add_f32 {v(G+i,2)}, {v(G+i,2)}, {v(R+40+i,2)}')
            for i in range(20): a.e(f'v_mov_b32 {v(R+40+i)}, {v(OWN+i)}')
        if w<3: a.label(f'K3_EX{w+1}')
    a.label('K3_FIN_A')
    stamp(a,4)
    S=R+40; E=R+20
    a.e('s_mov_b32 s27, 0xbfb8aa3b')
    a.e('s_mov_b32 s28, 0xbfb8aa3b')
    a.e('s_mov_b32 s30, 1.0'); a.e('s_mov_b32 s31, 1.0')
    for i in range(0,20,2): a.e(f'v_pk_mul_f32 {v(E+i,2)}, {v(G+i,2)}, s[28:29] op_sel_hi:[1,0]')
    for i in range(20): a.e(f'v_exp_f32 {v(E+i)}, {v(E+i)}')
    for i in range(0,20,2): a.e(f'v_pk_add_f32 {v(E+i,2)}, {v(E+i,2)}, s[30:31]')
    for i in range(20): a.e(f'v_rcp_f32 {v(E+i)}, {v(E+i)}')
    for i in range(0,20,2): a.e(f'v_pk_mul_f32 {v(G+i,2)}, {v(G+i,2)}, {v(S+i,2)}')
    a.e('s_waitcnt vmcnt(0)')
    for i in range(10):
        a.e(f'v_lshlrev_b32 {v(OWN+2*i)}, 16, {v(vX+i)}')
        a.e(f'v_and_b32 {v(OWN+2*i+1)}, 0xffff0000, {v(vX+i)}')
    for i in range(0,20,2): a.e(f'v_pk_fma_f32 {v(G+i,2)}, {v(G+i,2)}, {v(E+i,2)}, {v(OWN+i,2)}')
    for i in range(10): a.e(f'v_cvt_pk_bf16_f32 {v(E+i)}, {v(G+2*i)}, {v(G+2*i+1)}')
    a.e(f'buffer_store_dwordx4 {v(E,4)}, {v(vXo)}, s[12:15], s26 offen {spol}')
    a.e(f'buffer_store_dwordx4 {v(E+4,4)}, {v(vXo)}, s[12:15], s26 offen offset:64 {spol}')
    a.e(f'buffer_store_dwordx2 {v(E+8,2)}, v0, s[12:15], s26 offen {spol}')
    stamp(a,7)
    a.e('s_waitcnt vmcnt(0)')
    stamp(a,3)
    stamp_store(a,8,34,'s16',4,2*1024*1024)
    a.label('K3_END')
    a.e('s_endpgm')
    return 256+80
```

```python
import numpy as np
S=2048; D=640; H=32; DH=20; F=1536
QIMG=0; KIMG=2621440; VIMG=2*2621440; OIMG=3*2621440; HIMG=4*2621440
GBUF=HIMG+6291456
WS_USED=GBUF+2621440*2

def f2bf(a):
    a=np.ascontiguousarray(a,dtype=np.float32)
    u=a.view(np.uint32)
    r=((u>>16)&1)+0x7fff
    return ((u+r)>>16).astype(np.uint16)
def bf2f(u):
    return (u.astype(np.uint32)<<16).view(np.float32)

EVEN=[[0,1,2,3,8,9,10,11],[4,5,6,7,12,13,14,15],[16,17,18,19]]
ODD=[[4,5,6,7,12,13,14,15],[8,9,10,11,16,17,18,19],[0,1,2,3]]
def qk_img(q_u16):
    img=np.zeros((H,64,640),np.uint16)
    q=q_u16.reshape(64,32,H,DH)
    for h in range(H):
        o=EVEN if h%2==0 else ODD
        img[h,:,0:256]=q[:,:,h,:][:,:,o[0]].reshape(64,256)
        img[h,:,256:512]=q[:,:,h,:][:,:,o[1]].reshape(64,256)
        img[h,:,512:640]=q[:,:,h,:][:,:,o[2]].reshape(64,128)
    return img
def qk_unimg(img):
    q=np.zeros((64,32,H,DH),np.uint16)
    for h in range(H):
        o=EVEN if h%2==0 else ODD
        q[:,:,h,o[0]]=img[h,:,0:256].reshape(64,32,8)
        q[:,:,h,o[1]]=img[h,:,256:512].reshape(64,32,8)
        q[:,:,h,o[2]]=img[h,:,512:640].reshape(64,32,4)
    return q.reshape(S,640)
def v_tok(j,hp):
    return [16*j+4*hp+i for i in range(4)]+[16*j+8+4*hp+i for i in range(4)]
def v_img(v_u16):
    img=np.zeros((H,64,4,20,8),np.uint16)
    v=v_u16.reshape(64,32,H,DH)
    for j in range(2):
        for hp in range(2):
            t=v_tok(j,hp)
            img[:,:,2*j+hp]=v[:,t].transpose(2,0,3,1)
    return img.reshape(H,64,640)
def v_unimg(img):
    img=img.reshape(H,64,4,20,8)
    v=np.zeros((64,32,H,DH),np.uint16)
    for j in range(2):
        for hp in range(2):
            t=v_tok(j,hp)
            v[:,t]=img[:,:,2*j+hp].transpose(1,3,0,2)
    return v.reshape(S,640)
def kslot(hp):
    return [4*hp+i for i in range(4)]+[8+4*hp+i for i in range(4)]
def o_cols():
    c=np.zeros((40,2,8),np.int64)
    for k in range(32):
        for hp in range(2):
            c[k,hp]=[20*k+x for x in kslot(hp)]
    for m in range(8):
        for hp in range(2):
            for e in range(8):
                c[32+m,hp,e]=20*(4*m+2*hp+(e>=4))+16+e%4
    return c
def o_img(o_u16):
    c=o_cols()
    o=o_u16.reshape(64,32,640)
    return o[:,:,c].transpose(0,2,3,1,4).copy()
def o_unimg(img):
    img=img.reshape(64,40,2,32,8)
    c=o_cols()
    o=np.zeros((64,32,640),np.uint16)
    o[:,:,c]=img.transpose(0,3,1,2,4)
    return o.reshape(S,640)
def h_cols():
    c=np.zeros((96,2,8),np.int64)
    for k in range(96):
        for hp in range(2):
            c[k,hp]=[16*k+x for x in kslot(hp)]
    return c
def h_img(h_u16):
    c=h_cols()
    h=h_u16.reshape(64,32,F)
    return h[:,:,c].transpose(0,2,3,1,4).copy()
def h_unimg(img):
    img=img.reshape(64,96,2,32,8)
    c=h_cols()
    h=np.zeros((64,32,F),np.uint16)
    h[:,:,c]=img.transpose(0,3,1,2,4)
    return h.reshape(S,F)

WIMG=GBUF
WIMG_BYTES=8*68*5*1024
WS_USED=WIMG+WIMG_BYTES
def colmap(t,i):
    g,r=i//4,i%4
    return [8*g+r,8*g+4+r,32+8*g+r,32+8*g+4+r,64+4*g+r][t]
def w_img(w2_u16,wo_u16):
    hc=h_cols(); oc=o_cols()
    img=np.zeros((8,68,5,4,16,8),np.uint16)
    cols=np.array([[colmap(t,i) for i in range(16)] for t in range(5)])
    for s in range(68):
        for q in range(4):
            if s<48: rows=hc[2*s+q//2,q%2]; W=w2_u16
            else:    rows=oc[2*(s-48)+q//2,q%2]; W=wo_u16
            for cb in range(8):
                blk=W[rows][:,80*cb+cols]
                img[cb,s,:,q]=blk.transpose(1,2,0)
    return img
```

```python
STAMP=False
REAL=False
DBGOFF=200*1024*1024
def stamp(a,i):
    if STAMP:
        a.e(f'{"s_memrealtime" if REAL else "s_memtime"} s[{60+2*i}:{61+2*i}]')
def stamp_store(a,n,wsreg,wavereg,nw=8,dbgoff=0):
    if not STAMP: return
    a.e('s_waitcnt lgkmcnt(0)')
    a.e('s_mov_b64 exec, 1')
    a.e(f's_mul_i32 s58, s2, {nw}')
    a.e(f's_add_u32 s58, s58, {wavereg}')
    a.e(f's_lshl_b32 s58, s58, 7')
    a.e(f's_add_u32 s56, s{wsreg}, {DBGOFF+dbgoff}')
    a.e(f's_addc_u32 s57, s{wsreg+1}, 0')
    a.e(f's_add_u32 s56, s56, s58')
    a.e(f's_addc_u32 s57, s57, 0')
    a.e('v_mov_b32 v2, 0')
    for i in range(n):
        a.e(f'v_mov_b32 v4, s{60+2*i}')
        a.e(f'v_mov_b32 v5, s{61+2*i}')
        a.e(f'global_store_dwordx2 v2, v[4:5], s[56:57] offset:{8*i}')
        a.e('s_nop 1')
    a.e('s_waitcnt vmcnt(0)')

def stampc(a,i):
    if STAMP:
        a.e(f's_memtime s[{60+2*i}:{61+2*i}]')
```

```python
import sys
from asmlib import *
import gen_att, gen_g64, gen_k1, gen_k3, stamps
HDR=open('recurrent_scan__mha_block__glu_gated_swiglu__prompt.s.ref').read().split('\n')
def build(kernels):
    out=[]
    for ln in HDR:
        if ln.startswith('; Override launch'): break
        out.append(ln)
    for (name,fn,grid,block,lds) in kernels:
        out.append(f'; @launch kernel={name} grid=({grid},1,1) block=({block},1,1) lds={lds}')
    out.append('.amdgcn_target "amdgcn-amd-amdhsa--gfx950"')
    out.append('.text')
    descs=[]
    done=set()
    for (name,fn,grid,block,lds) in kernels:
        if name in done: continue
        done.add(name)
        a=Asm()
        nv=fn(a,name)
        out.append(a.text())
        descs.append(kernel_desc(name,nv))
    out.append('.section .rodata,"a"')
    out.append('.p2align 6')
    out+=descs
    return '\n'.join(out)+'\n'
if __name__=='__main__':
    which=sys.argv[1]; path=sys.argv[2]
    ks=[]
    if len(sys.argv)>3 and sys.argv[3] in('stamp','real'): stamps.STAMP=True
    if len(sys.argv)>3 and sys.argv[3]=='real': stamps.REAL=True
    if len(sys.argv)>4: gen_att.FL=set(sys.argv[4].split(',')); gen_k1.FL=set(sys.argv[4].split(',')); gen_k3.FL=set(sys.argv[4].split(','))
    if which=='att': ks=[('att_kernel',gen_att.att_kernel,256,512,61440)]
    if which=='g64': ks=[('w2_kernel',gen_g64.w2_kernel,256,256,102400),('wo_kernel',gen_g64.wo_kernel,256,256,102400)]
    if which=='k1': ks=[('k1_kernel',gen_k1.k1_kernel,256,512,gen_k1.LDS)]
    if which=='all': ks=[('k1_kernel',gen_k1.k1_kernel,256,512,gen_k1.LDS),('att_kernel',gen_att.att_kernel,256,512,61440),('w2_kernel',gen_g64.w2_kernel,256,256,102400),('wo_kernel',gen_g64.wo_kernel,256,256,102400)]
    if which=='k3': ks=[('k3_kernel',gen_k3.k3_kernel,256,256,61440)]
    if which=='all3': ks=[('k1_kernel',gen_k1.k1_kernel,256,512,gen_k1.LDS),('att_kernel',gen_att.att_kernel,256,512,61440),('k3_kernel',gen_k3.k3_kernel,256,256,61440)]
    open(path,'w').write(build(ks))
```

```python
from asmlib import *
from layouts import QIMG,KIMG,VIMG,OIMG
import gen_ffn2
NAME='att_kernel'
SLOT=20480
Q1=0+8
Q2=12
K1=16
K2=20
V0=24; V1=28
P0=32; P1=36
E=40
SA=48; SB=64
O=80
vKc=96; vK2c=97; vVc=98; vKn=99; vK2n=100; vVn=101
vL16=0
vT=1; vT2=2; vT3=3; vLaneK=4; vLaneK2=5; vLaneV=6; vMx=7
NV=102
def mfma(d,a,b,c):
    cs = '0' if c is None else v(c,16)
    return f'v_mfma_f32_32x32x16_bf16 {v(d,16)}, {v(a,4)}, {v(b,4)}, {cs}'

def emit_dma(a, soff_chunk, sslot):
    a.e(f's_add_u32 s30, s17, {soff_chunk}')
    a.e(f's_add_u32 m0, s20, {sslot}')
    a.e(f's_add_u32 s31, s18, {soff_chunk}')
    a.e(f'buffer_load_dwordx4 {v(vL16)}, s[4:7], s30 offen lds')
    a.e(f's_add_u32 m0, m0, 8192')
    a.e(f's_add_u32 s30, s19, {soff_chunk}')
    a.e(f'buffer_load_dwordx4 {v(vL16)}, s[4:7], s31 offen lds')
    l=a.newlabel('nodma3')
    a.e(f's_cmp_ge_u32 s16, 4')
    a.e(f's_cbranch_scc1 {l}')
    a.e(f's_add_u32 m0, m0, 8192')
    a.e('s_nop 0')
    a.e(f'buffer_load_dwordx4 {v(vL16)}, s[4:7], s30 offen lds')
    a.label(l)

def set_m_pieces(a, add):
    a.e(f'v_mov_b32 {v(vT)}, {v(vMx)}')
    a.e('s_nop 1')
    a.e(f'v_permlane32_swap_b32 {v(vT)}, {v(vMx)}')
    a.e('s_nop 1')
    a.e(f'v_max_f32 {v(vMx)}, {v(vT)}, {v(vMx)}')
    a.e(f'v_ceil_f32 {v(vMx)}, {v(vMx)}')
    a.e(f'v_mov_b32 {v(vT)}, {add}')
    a.e(f'v_add_f32 {v(vMx)}, {v(vT)}, {v(vMx)}')
    a.e(f'v_sub_f32 {v(vMx)}, 0, {v(vMx)}')
    a.e(f'v_and_b32 {v(vT)}, 0xffff0000, {v(vMx)}')
    a.e(f'v_sub_f32 {v(vT2)}, {v(vMx)}, {v(vT)}')
    a.e(f'v_and_b32 {v(vT3)}, 0xffff0000, {v(vT2)}')
    a.e(f'v_sub_f32 {v(vT2)}, {v(vT2)}, {v(vT3)}')
    a.e(f'v_lshrrev_b32 {v(vT)}, 16, {v(vT)}')
    a.e(f'v_or_b32 {v(vT)}, {v(vT)}, {v(vT3)}')
    a.e(f'v_lshrrev_b32 {v(vT2)}, 16, {v(vT2)}')
    a.e('s_mov_b64 exec, 0xffffffff')
    a.e(f'v_mov_b32 {v(Q2+2)}, {v(vT)}')
    a.e(f'v_mov_b32 {v(Q2+3)}, {v(vT2)}')
    a.e('s_mov_b64 exec, -1')

def max16(a, S, first):
    for i in range(0,16,2):
        if first and i==0:
            a.e(f'v_max_f32 {v(vMx)}, {v(S)}, {v(S+1)}')
        else:
            a.e(f'v_max3_f32 {v(vMx)}, {v(vMx)}, {v(S+i)}, {v(S+i+1)}')

FL=set()
def tile(a,i):
    S,N=(SA,SB) if i%2==0 else (SB,SA)
    def addr(kind,ti):
        cur={'k':vKc,'k2':vK2c,'v':vVc}[kind]; nxt={'k':vKn,'k2':vK2n,'v':vVn}[kind]
        return (cur,ti*1280) if ti<8 else (nxt,(ti-8)*1280)
    a.c(f'---- tile {i}')
    if i==6 and 'nodma' not in FL:
        a.e('s_waitcnt vmcnt(0)')
        a.e('s_barrier')
        l=a.newlabel('nodma')
        a.e('s_cmp_ge_u32 s24, 6')
        a.e(f's_cbranch_scc1 {l}')
        emit_dma(a,'s25','s26')
        a.label(l)
    if 'nolds' in FL:
        E_=a.e
        class A2:
            def e(self,s):
                if s.startswith('ds_read') or s.startswith('s_waitcnt lgkm') or s.startswith('s_mov_b64 exec'): return
                E_(s)
        a=A2()
    ex=lambda dst,src: a.e(f'v_exp_f32 {v(dst)}, {v(src)}')
    cv=lambda dst,x: a.e(f'v_cvt_pk_bf16_f32 {v(dst)}, {v(x)}, {v(x+1)}')
    a.e('s_waitcnt lgkmcnt(3)')
    a.e(mfma(N,K1,Q1,None))
    r,o=addr('k',i+2); a.e(f'ds_read_b128 {v(K1,4)}, {v(r)} offset:{o}')
    cv(P1+2,E+4); cv(P1+3,E+6)
    for k in range(4): ex(E+k,S+k)
    a.e('s_waitcnt lgkmcnt(3)')
    a.e(mfma(N,K2,Q2,N))
    r,o=addr('k2',i+2); a.e(f'ds_read_b64 {v(K2,2)}, {v(r)} offset:{o}')
    for k in range(4): ex(E+4+k,S+4+k)
    cv(P0,E); cv(P0+1,E+2)
    a.e('s_waitcnt lgkmcnt(3)')
    a.e(mfma(O,V1,P1,O))
    cv(P0+2,E+4); cv(P0+3,E+6)
    for k in range(4): ex(E+k,S+8+k)
    a.e('s_waitcnt lgkmcnt(2)')
    a.e(mfma(O,V0,P0,O))
    if 'noexec' not in FL: a.e('s_mov_b64 exec, s[22:23]')
    r,o=addr('v',i);   a.e(f'ds_read_b128 {v(V1,4)}, {v(r)} offset:{o+640}')
    r,o=addr('v',i+1); a.e(f'ds_read_b128 {v(V0,4)}, {v(r)} offset:{o}')
    if 'noexec' not in FL: a.e('s_mov_b64 exec, -1')
    for k in range(4): ex(E+4+k,S+12+k)
    cv(P1,E); cv(P1+1,E+2)

from stamps import stamp, stamp_store, stampc
def att_kernel(a, name=NAME):
    a.lines.append(kernel_header(name))
    a.e(f's_cmp_ge_u32 s2, {512 if ("dup" in FL or "ffn2" in FL) else 256}')
    a.e('s_cbranch_scc1 ATT_END')
    if 'dup' in FL: a.e('s_and_b32 s2, s2, 255')
    a.e('s_load_dwordx2 s[34:35], s[0:1], 72')
    if 'ffn2' in FL:
        a.e('s_cmp_ge_u32 s2, 256')
        a.e('s_cbranch_scc1 ATT_FFN2')
        if 'aprio' in FL: a.e('s_setprio 2')
    stamp(a,0)
    a.e(f'v_lshrrev_b32 {v(vT)}, 6, v0')
    a.e(f'v_and_b32 v0, 63, v0')
    a.e(f'v_readfirstlane_b32 s16, {v(vT)}')
    a.e('s_and_b32 s27, s2, 7')
    a.e('s_lshr_b32 s28, s2, 3')
    a.e('s_and_b32 s29, s28, 0x18')
    a.e('s_add_u32 s27, s27, s29')
    a.e('s_and_b32 s28, s28, 7')
    a.e('s_lshl_b32 s28, s28, 3')
    a.e('s_add_u32 s28, s28, s16')
    a.e('s_mul_i32 s29, s27, 81920')
    a.e(f'v_and_b32 {v(vT)}, 31, v0')
    a.e(f'v_lshrrev_b32 {v(vT2)}, 5, v0')
    a.e(f'v_lshlrev_b32 {v(vLaneK2)}, 3, {v(vT)}')
    a.e(f'v_add_u32 {v(vLaneK2)}, 1024, {v(vLaneK2)}')
    a.e(f'v_mul_u32_u24 {v(vLaneV)}, 320, {v(vT2)}')
    a.e(f'v_lshlrev_b32 {v(vT)}, 4, {v(vT)}')
    a.e(f'v_add_u32 {v(vLaneV)}, {v(vLaneV)}, {v(vT)}')
    a.e(f'v_lshlrev_b32 {v(vL16)}, 4, v0')
    a.e('s_lshl_b32 s20, s16, 10')
    a.e('s_mov_b32 s17, s20')
    a.e(f's_add_u32 s18, s20, 8192')
    a.e(f's_add_u32 s19, s20, {VIMG-KIMG-2048}')
    a.e('s_cmp_lt_u32 s16, 2')
    a.e('s_cselect_b32 s18, s18, s19')
    a.e(f's_add_u32 s19, s20, {VIMG-KIMG+6144}')
    a.e('s_mov_b32 s22, 0x000fffff')
    a.e('s_mov_b32 s23, 0x000fffff')
    a.e('s_waitcnt lgkmcnt(0)')
    a.e(f's_add_u32 s4, s34, {KIMG}')
    a.e('s_addc_u32 s5, s35, 0')
    a.e('s_add_u32 s4, s4, s29')
    a.e('s_addc_u32 s5, s5, 0')
    a.e(f's_sub_u32 s6, {VIMG+2621440-KIMG}, s29')
    a.e('s_mov_b32 s7, 0x00020000')
    a.e(f's_add_u32 s8, s34, {QIMG}')
    a.e('s_addc_u32 s9, s35, 0')
    a.e('s_mov_b32 s10, 2621440')
    a.e('s_mov_b32 s11, 0x00020000')
    a.e(f's_add_u32 s12, s34, {OIMG}')
    a.e('s_addc_u32 s13, s35, 0')
    a.e('s_mov_b32 s14, 2621440')
    a.e('s_mov_b32 s15, 0x00020000')
    a.e('s_mov_b32 s25, 0'); a.e('s_mov_b32 s26, 0')
    emit_dma(a,'s25','s26')
    a.e('s_mov_b32 s25, 10240'); a.e(f's_mov_b32 s26, {SLOT}')
    emit_dma(a,'s25','s26')
    a.e('s_mul_i32 s33, s28, 1280')
    a.e('s_add_u32 s33, s33, s29')
    for k in range(4): a.e(f'v_mov_b32 {v(Q2+k)}, 0')
    a.e(f'buffer_load_dwordx4 {v(Q1,4)}, {v(vL16)}, s[8:11], s33 offen')
    a.e('s_mov_b64 exec, 0xffffffff')
    a.e(f'buffer_load_dwordx2 {v(Q2,2)}, {v(vLaneK2)}, s[8:11], s33 offen')
    a.e('s_mov_b64 exec, -1')
    a.e(f'v_mov_b32 {v(K2+2)}, 0x3f803f80')
    a.e(f'v_mov_b32 {v(K2+3)}, 0x00003f80')
    for k in range(4):
        a.e(f'v_mov_b32 {v(V0+k)}, 0x3f803f80')
        a.e(f'v_mov_b32 {v(V1+k)}, 0x3f803f80')
    a.e(f'v_mov_b32 {v(vKc)}, {v(vL16)}')
    a.e(f'v_mov_b32 {v(vK2c)}, {v(vLaneK2)}')
    a.e(f'v_add_u32 {v(vLaneV)}, 10240, {v(vLaneV)}')
    a.e(f'v_mov_b32 {v(vVc)}, {v(vLaneV)}')
    a.e(f'v_add_u32 {v(vKn)}, {SLOT}, {v(vL16)}')
    a.e(f'v_add_u32 {v(vK2n)}, {SLOT}, {v(vLaneK2)}')
    a.e(f'v_add_u32 {v(vVn)}, {SLOT}, {v(vLaneV)}')
    T2=[P0,P1,E,E+4]
    for t in T2:
        a.e(f'v_mov_b32 {v(t+2)}, 0'); a.e(f'v_mov_b32 {v(t+3)}, 0')
    a.e('s_waitcnt vmcnt(0)')
    a.e('s_barrier')
    stamp(a,1)
    for t in range(4):
        a.e(f'ds_read_b128 {v(O+4*t,4)}, {v(vKc)} offset:{t*1280}')
        a.e(f'ds_read_b64 {v(T2[t],2)}, {v(vK2c)} offset:{t*1280}')
    a.e('s_waitcnt lgkmcnt(4)')
    a.e(mfma(SA,O,Q1,None)); a.e(mfma(SB,O+4,Q1,None))
    a.e(mfma(SA,T2[0],Q2,SA)); a.e(mfma(SB,T2[1],Q2,SB))
    a.e('s_waitcnt lgkmcnt(0)')
    a.e('s_nop 7'); a.e('s_nop 7')
    max16(a,SA,True)
    a.e(mfma(SA,O+8,Q1,None))
    max16(a,SB,False)
    a.e(mfma(SB,O+12,Q1,None))
    a.e(mfma(SA,T2[2],Q2,SA)); a.e(mfma(SB,T2[3],Q2,SB))
    a.e(f'ds_read_b128 {v(K1,4)}, {v(vKc)} offset:0')
    a.e(f'ds_read_b64 {v(K2,2)}, {v(vK2c)} offset:0')
    a.e('s_nop 7'); a.e('s_nop 7')
    max16(a,SA,False)
    max16(a,SB,False)
    set_m_pieces(a,'0x42c00000')
    for k in range(16): a.e(f'v_mov_b32 {v(O+k)}, 0')
    for k in range(4): a.e(f'v_mov_b32 {v(P1+k)}, 0')
    for k in range(4,8): a.e(f'v_mov_b32 {v(E+k)}, 0')
    a.e('s_waitcnt lgkmcnt(0)')
    a.e(mfma(SA,K1,Q1,None))
    a.e(mfma(SA,K2,Q2,SA))
    a.e(f'ds_read_b128 {v(K1,4)}, {v(vKc)} offset:1280')
    a.e(f'ds_read_b64 {v(K2,2)}, {v(vK2c)} offset:1280')
    a.e('s_mov_b64 exec, s[22:23]')
    a.e(f'ds_read_b128 {v(V1,4)}, {v(vVc)} offset:640')
    a.e(f'ds_read_b128 {v(V0,4)}, {v(vVc)} offset:0')
    a.e('s_mov_b64 exec, -1')
    a.e('s_waitcnt lgkmcnt(0)')
    a.e('s_nop 7'); a.e('s_nop 7')
    a.e('s_mov_b32 s24, 0')
    a.e('s_mov_b32 s25, 20480')
    a.e(f's_mov_b32 s26, {2*SLOT}')
    a.e(f's_mov_b32 s21, {SLOT}')
    stamp(a,2); stampc(a,5)
    a.label('ATT_LOOP')
    for i in range(8): tile(a,i)
    a.e(f'v_mov_b32 {v(vKc)}, {v(vKn)}')
    a.e(f'v_mov_b32 {v(vK2c)}, {v(vK2n)}')
    a.e(f'v_mov_b32 {v(vVc)}, {v(vVn)}')
    a.e('s_mov_b32 s21, s26')
    a.e(f's_add_u32 s26, s26, {SLOT}')
    a.e(f's_cmp_eq_u32 s26, {3*SLOT}')
    a.e('s_cselect_b32 s26, 0, s26')
    a.e(f'v_add_u32 {v(vKn)}, s21, {v(vL16)}')
    a.e(f'v_add_u32 {v(vK2n)}, s21, {v(vLaneK2)}')
    a.e(f'v_add_u32 {v(vVn)}, s21, {v(vLaneV)}')
    a.e('s_add_u32 s25, s25, 10240')
    a.e('s_add_u32 s24, s24, 1')
    a.e('s_cmp_lt_u32 s24, 8')
    a.e('s_cbranch_scc1 ATT_LOOP')
    stamp(a,3); stampc(a,6)
    a.e(f'v_cvt_pk_bf16_f32 {v(P1+2)}, {v(E+4)}, {v(E+5)}')
    a.e(f'v_cvt_pk_bf16_f32 {v(P1+3)}, {v(E+6)}, {v(E+7)}')
    a.e('s_waitcnt lgkmcnt(0)')
    a.e('s_nop 1')
    a.e(mfma(O,V1,P1,O))
    a.e('s_nop 7'); a.e('s_nop 7')
    a.e(f'v_mov_b32 {v(vT)}, 0')
    for k in range(13): a.e(f'v_fma_f32 {v(vT)}, {v(O+k)}, 0, {v(vT)}')
    a.e(f'v_cmp_u_f32 vcc, {v(vT)}, {v(vT)}')
    a.e('s_mov_b64 s[36:37], vcc')
    a.e(f'v_mov_b32 {v(vT)}, 0x7b800000')
    a.e(f'v_cmp_nlt_f32 vcc, {v(O+12)}, {v(vT)}')
    a.e('s_or_b64 vcc, vcc, s[36:37]')
    a.e('s_cbranch_vccnz ATT_FALLBACK')
    a.label('ATT_EPI')
    a.e(f'v_rcp_f32 {v(vT)}, {v(O+12)}')
    a.e('s_nop 0')
    for k in range(12): a.e(f'v_mul_f32 {v(O+k)}, {v(O+k)}, {v(vT)}')
    for k in range(6): a.e(f'v_cvt_pk_bf16_f32 {v(E+k)}, {v(O+2*k)}, {v(O+2*k+1)}')
    a.e('s_mul_i32 s33, s28, 40960')
    a.e('s_lshl_b32 s30, s27, 10')
    a.e('s_add_u32 s30, s30, s33')
    a.e(f'buffer_store_dwordx4 {v(E,4)}, {v(vL16)}, s[12:15], s30 offen')
    a.e('s_lshr_b32 s30, s27, 2')
    a.e('s_add_u32 s30, s30, 32')
    a.e('s_lshl_b32 s30, s30, 10')
    a.e('s_add_u32 s30, s30, s33')
    a.e('s_and_b32 s31, s27, 2')
    a.e('s_lshl_b32 s31, s31, 8')
    a.e('s_add_u32 s30, s30, s31')
    a.e('s_and_b32 s31, s27, 1')
    a.e('s_lshl_b32 s31, s31, 3')
    a.e('s_add_u32 s30, s30, s31')
    a.e('s_mov_b64 exec, 0xffffffff')
    a.e(f'buffer_store_dwordx2 {v(E+4,2)}, {v(vL16)}, s[12:15], s30 offen')
    a.e('s_waitcnt vmcnt(0)')
    stamp(a,4)
    stamp_store(a,7,34,'s16',8,0)
    a.label('ATT_END')
    a.e('s_endpgm')
    a.label('ATT_FALLBACK')
    a.e(f'v_mov_b32 {v(Q2+2)}, 0'); a.e(f'v_mov_b32 {v(Q2+3)}, 0')
    a.e(f'v_mov_b32 {v(vMx)}, 0xff800000')
    a.e('s_mov_b32 s30, 0')
    a.label('ATT_FB1')
    a.e(f'buffer_load_dwordx4 {v(K1,4)}, {v(vL16)}, s[4:7], s30 offen')
    a.e(f'buffer_load_dwordx2 {v(K2,2)}, {v(vLaneK2)}, s[4:7], s30 offen')
    a.e('s_waitcnt vmcnt(0)')
    a.e(mfma(SA,K1,Q1,None)); a.e(mfma(SA,K2,Q2,SA))
    a.e('s_nop 7'); a.e('s_nop 7')
    max16(a,SA,False)
    a.e('s_add_u32 s30, s30, 1280')
    a.e('s_cmp_lt_u32 s30, 81920')
    a.e('s_cbranch_scc1 ATT_FB1')
    set_m_pieces(a,'0')
    for k in range(16): a.e(f'v_mov_b32 {v(O+k)}, 0')
    a.e(f'v_add_u32 {v(vVc)}, {VIMG-KIMG-10240}, {v(vLaneV)}')
    a.e('s_mov_b32 s30, 0')
    a.label('ATT_FB2')
    a.e(f'buffer_load_dwordx4 {v(K1,4)}, {v(vL16)}, s[4:7], s30 offen')
    a.e(f'buffer_load_dwordx2 {v(K2,2)}, {v(vLaneK2)}, s[4:7], s30 offen')
    a.e('s_mov_b64 exec, s[22:23]')
    a.e(f'buffer_load_dwordx4 {v(V0,4)}, {v(vVc)}, s[4:7], s30 offen')
    a.e(f'buffer_load_dwordx4 {v(V1,4)}, {v(vVc)}, s[4:7], s30 offen offset:640')
    a.e('s_mov_b64 exec, -1')
    a.e('s_waitcnt vmcnt(0)')
    a.e(mfma(SA,K1,Q1,None)); a.e(mfma(SA,K2,Q2,SA))
    a.e('s_nop 7'); a.e('s_nop 7')
    for k in range(16): a.e(f'v_exp_f32 {v(SB+k)}, {v(SA+k)}')
    a.e('s_nop 0')
    for k in range(4): a.e(f'v_cvt_pk_bf16_f32 {v(P0+k)}, {v(SB+2*k)}, {v(SB+2*k+1)}')
    for k in range(4): a.e(f'v_cvt_pk_bf16_f32 {v(P1+k)}, {v(SB+8+2*k)}, {v(SB+8+2*k+1)}')
    a.e('s_nop 1')
    a.e(mfma(O,V0,P0,O)); a.e(mfma(O,V1,P1,O))
    a.e('s_add_u32 s30, s30, 1280')
    a.e('s_cmp_lt_u32 s30, 81920')
    a.e('s_cbranch_scc1 ATT_FB2')
    a.e('s_nop 7'); a.e('s_nop 7')
    a.e('s_branch ATT_EPI')
    if 'ffn2' in FL:
        a.label('ATT_FFN2')
        gen_ffn2.FL=FL
        gen_ffn2.ffn2_role(a)
        return 128
    return NV
```

```python
from asmlib import *
from layouts import HIMG,WIMG,GIMG,GIMG_BYTES
from stamps import stamp, stamp_store, stampc
FL=set()
NB=3
BUF=4; ACC=88
vA0=0; vA1=1; vB0=2; vT=3
def acc(u,t): return ACC+(u*5+t)*4
def bufA(b,t): return BUF+28*b+4*t
def bufB(b,u): return BUF+28*b+20+4*u
def loadA(a,b,t):
    if t<4: a.e(f'buffer_load_dwordx4 {v(bufA(b,t),4)}, {v(vA0)}, s[4:7], s20 offen offset:{t*1024}')
    else:   a.e(f'buffer_load_dwordx4 {v(bufA(b,t),4)}, {v(vA1)}, s[4:7], s20 offen')
def loadB(a,b,u):
    a.e(f'buffer_load_dwordx4 {v(bufB(b,u),4)}, {v(vB0)}, s[8:11], s21 offen offset:{u*256}')
def advance(a):
    a.e('s_add_u32 s20, s20, 5120'); a.e('s_add_u32 s21, s21, 2048')

def ffn2_role(a):
    spol=' '.join(x for x in ('sc0','sc1','nt') if 'gst_'+x in FL)
    stamp(a,0)
    a.e('v_lshrrev_b32 v3, 6, v0')
    a.e('v_and_b32 v0, 63, v0')
    a.e('v_readfirstlane_b32 s16, v3')
    a.e('s_and_b32 s27, s2, 7')
    a.e('s_lshr_b32 s28, s2, 3'); a.e('s_and_b32 s28, s28, 31')
    a.e('s_lshr_b32 s29, s27, 1')
    a.e('s_lshl_b32 s29, s29, 3')
    a.e('s_lshr_b32 s30, s28, 2')
    a.e('s_add_u32 s17, s29, s30')
    a.e('s_and_b32 s27, s27, 1')
    a.e('s_lshl_b32 s27, s27, 2')
    a.e('s_and_b32 s28, s28, 3')
    a.e('s_add_u32 s18, s27, s28')
    a.e('s_and_b32 s19, s16, 1')
    a.e('s_lshr_b32 s22, s16, 1')
    a.e('v_lshrrev_b32 v3, 4, v0')
    a.e('v_and_b32 v4, 15, v0')
    a.e(f'v_lshlrev_b32 {v(vB0)}, 9, v3')
    a.e('v_lshlrev_b32 v4, 4, v4')
    a.e(f'v_add_u32 {v(vB0)}, {v(vB0)}, v4')
    a.e(f'v_lshlrev_b32 {v(vA0)}, 4, v0')
    a.e(f'v_add_u32 {v(vA1)}, 4096, {v(vA0)}')
    a.e('s_mul_i32 s27, s18, 348160')
    a.e(f's_mul_i32 s28, s22, {12*5120}')
    a.e('s_add_u32 s27, s27, s28')
    a.e(f's_add_u32 s27, s27, {WIMG}')
    a.e('s_lshl_b32 s28, s17, 1'); a.e('s_add_u32 s28, s28, s19')
    a.e('s_mul_i32 s28, s28, 98304')
    a.e(f's_mul_i32 s29, s22, {12*2048}')
    a.e('s_add_u32 s28, s28, s29')
    a.e(f's_add_u32 s28, s28, {HIMG}')
    a.e('s_mov_b32 s20, 0'); a.e('s_mov_b32 s21, 0')
    a.e('s_waitcnt lgkmcnt(0)')
    a.e('s_add_u32 s4, s34, s27'); a.e('s_addc_u32 s5, s35, 0'); a.e(f's_mov_b32 s6, {12*5120}'); a.e('s_mov_b32 s7, 0x00020000')
    a.e('s_add_u32 s8, s34, s28'); a.e('s_addc_u32 s9, s35, 0'); a.e(f's_mov_b32 s10, {12*2048}'); a.e('s_mov_b32 s11, 0x00020000')
    for b in range(NB):
        for u in range(2): loadB(a,b,u)
        for t in range(5): loadA(a,b,t)
        advance(a)
    n=12
    for j in range(n):
        b=j%NB
        issued=min(j+NB,n)
        a.e(f's_waitcnt vmcnt({7*(issued-j-1)})')
        if j==0: stamp(a,1)
        more=j+NB<n
        for t in range(5):
            for u in range(2):
                c=v(acc(u,t),4) if j>0 else '0'
                a.e(f'v_mfma_f32_16x16x32_bf16 {v(acc(u,t),4)}, {v(bufA(b,t),4)}, {v(bufB(b,u),4)}, {c}')
            if more and t>0: loadA(a,b,t-1)
        if more:
            loadA(a,b,4)
            for u in range(2): loadB(a,b,u)
            advance(a)
    stamp(a,2)
    a.e('s_lshl_b32 s23, s19, 1')
    for u in range(2):
        a.e(f's_add_u32 s27, s23, {u}')
        a.e('s_mul_i32 s27, s27, 3')
        a.e(f's_cmp_gt_u32 s22, {u}')
        a.e('s_cselect_b32 s28, 1, 0')
        a.e('s_sub_u32 s28, s22, s28')
        a.e('s_add_u32 s27, s27, s28')
        a.e('s_mul_i32 s27, s27, 5120')
        a.e(f'v_add_u32 {v(BUF+u)}, s27, {v(vA0)}')
    a.e('s_nop 7')
    for u in range(2):
        l=a.newlabel('fx')
        a.e(f's_cmp_eq_u32 s22, {u}')
        a.e(f's_cbranch_scc1 {l}')
        for t in range(5): a.e(f'ds_write_b128 {v(BUF+u)}, {v(acc(u,t),4)} offset:{t*1024}')
        a.label(l)
    a.e('s_waitcnt lgkmcnt(0)')
    a.e('s_barrier')
    a.e('s_cmp_ge_u32 s22, 2')
    a.e('s_cbranch_scc1 FFN_TAIL')
    a.e('s_add_u32 s23, s23, s22')
    a.e(f's_mul_i32 s27, s23, {3*5120}')
    a.e(f'v_add_u32 {v(vT)}, s27, {v(vA0)}')
    R=BUF
    for k in range(3):
        for t in range(5): a.e(f'ds_read_b128 {v(R+20*k+4*t,4)}, {v(vT)} offset:{(k*5+t)*1024}')
    a.e('s_cmp_eq_u32 s22, 0')
    a.e('s_cbranch_scc1 FFN_OWN0')
    for i in range(20): a.e(f'v_mov_b32 {v(ACC+i)}, {v(ACC+20+i)}')
    a.label('FFN_OWN0')
    G=ACC; E=ACC+20
    a.e('s_waitcnt lgkmcnt(10)')
    for i in range(20): a.e(f'v_add_f32 {v(G+i)}, {v(G+i)}, {v(R+i)}')
    a.e('s_waitcnt lgkmcnt(5)')
    for i in range(20): a.e(f'v_add_f32 {v(G+i)}, {v(G+i)}, {v(R+20+i)}')
    a.e('s_waitcnt lgkmcnt(0)')
    for i in range(20): a.e(f'v_add_f32 {v(G+i)}, {v(G+i)}, {v(R+40+i)}')
    for i in range(20): a.e(f'v_mul_f32 {v(E+i)}, 0xbfb8aa3b, {v(G+i)}')
    for i in range(20): a.e(f'v_exp_f32 {v(E+i)}, {v(E+i)}')
    for i in range(20): a.e(f'v_add_f32 {v(E+i)}, 1.0, {v(E+i)}')
    for i in range(20): a.e(f'v_rcp_f32 {v(E+i)}, {v(E+i)}')
    for i in range(20): a.e(f'v_mul_f32 {v(G+i)}, {v(G+i)}, {v(E+i)}')
    for i in range(10): a.e(f'v_cvt_pk_bf16_f32 {v(E+i)}, {v(G+2*i)}, {v(G+2*i+1)}')
    a.e('s_lshl_b32 s27, s17, 3'); a.e('s_add_u32 s27, s27, s18'); a.e('s_lshl_b32 s27, s27, 2'); a.e('s_add_u32 s27, s27, s23')
    a.e('s_mul_i32 s27, s27, 2560')
    a.e(f's_add_u32 s4, s34, {GIMG}'); a.e('s_addc_u32 s5, s35, 0'); a.e(f's_mov_b32 s6, {GIMG_BYTES}')
    a.e(f'v_lshrrev_b32 {v(vT)}, 1, {v(vA0)}')
    a.e(f'buffer_store_dwordx4 {v(E,4)}, {v(vA0)}, s[4:7], s27 offen {spol}')
    a.e(f'buffer_store_dwordx4 {v(E+4,4)}, {v(vA0)}, s[4:7], s27 offen offset:1024 {spol}')
    a.e(f'buffer_store_dwordx2 {v(E+8,2)}, {v(vT)}, s[4:7], s27 offen offset:2048 {spol}')
    a.e('s_waitcnt vmcnt(0)')
    stamp(a,3)
    stamp(a,4)
    stamp_store(a,5,34,'s16',8,1*1024*1024-256*8*128)
    a.e('s_endpgm')
    a.label('FFN_TAIL')
    if 'pfk3' in FL:
        pass
    stamp(a,3); stamp(a,4)
    stamp_store(a,5,34,'s16',8,1*1024*1024-256*8*128)
    a.e('s_endpgm')
```

```python
from asmlib import *
from layouts import OIMG,WIMG,GIMG,GIMG_BYTES
from stamps import stamp, stamp_store, stampc
FL=set()
NS=5
BUF=32
vA0=1; vA1=2; vB0=3; vB1=4; vXo=5; vX=8; vG=20
def acc(u,t): return (u*5+t)*4
def areg(i,n=4): return f'a[{i}:{i+n-1}]' if n>1 else f'a{i}'
def bufA(b,t): return BUF+36*b+4*t
def bufB(b,u): return BUF+36*b+20+4*u
def k3p_kernel(a,name):
    pol=' '.join(x for x in ('sc0','sc1','nt') if 'k3ld_'+x in FL)
    spol=' '.join(x for x in ('sc0','sc1','nt') if 'k3st_'+x in FL)
    a.lines.append(kernel_header(name))
    a.e('s_cmp_ge_u32 s2, 256')
    a.e('s_cbranch_scc1 K3_END')
    a.e('s_load_dwordx2 s[34:35], s[0:1], 72')
    a.e('s_load_dwordx2 s[36:37], s[0:1], 0')
    a.e('s_load_dwordx2 s[38:39], s[0:1], 56')
    stamp(a,0)
    a.e('v_lshrrev_b32 v5, 6, v0')
    a.e('v_and_b32 v0, 63, v0')
    a.e('v_readfirstlane_b32 s16, v5')
    a.e('s_and_b32 s27, s2, 7')
    a.e('s_lshr_b32 s28, s2, 3')
    a.e('s_lshr_b32 s29, s27, 1')
    a.e('s_lshl_b32 s29, s29, 3')
    a.e('s_lshr_b32 s30, s28, 2')
    a.e('s_add_u32 s17, s29, s30')
    a.e('s_and_b32 s27, s27, 1')
    a.e('s_lshl_b32 s27, s27, 2')
    a.e('s_and_b32 s28, s28, 3')
    a.e('s_add_u32 s18, s27, s28')
    a.e(f'v_lshlrev_b32 {v(vA0)}, 4, v0')
    a.e(f'v_add_u32 {v(vA1)}, 4096, {v(vA0)}')
    a.e('v_lshrrev_b32 v5, 4, v0')
    a.e('v_and_b32 v6, 15, v0')
    a.e(f'v_lshlrev_b32 {v(vB0)}, 9, v5')
    a.e('v_lshlrev_b32 v7, 4, v6')
    a.e(f'v_add_u32 {v(vB0)}, {v(vB0)}, v7')
    a.e(f'v_add_u32 {v(vB1)}, 40960, {v(vB0)}')
    a.e('s_mul_i32 s27, s18, 348160')
    a.e(f's_mul_i32 s28, s16, {NS*5120}')
    a.e('s_add_u32 s27, s27, s28')
    a.e(f's_add_u32 s27, s27, {WIMG+48*5120}')
    a.e('s_mul_i32 s28, s17, 81920')
    a.e(f's_mul_i32 s29, s16, {NS*2048}')
    a.e('s_add_u32 s28, s28, s29')
    a.e(f's_add_u32 s28, s28, {OIMG}')
    a.e('s_lshl_b32 s29, s17, 3'); a.e('s_add_u32 s29, s29, s18'); a.e('s_lshl_b32 s29, s29, 2'); a.e('s_add_u32 s29, s29, s16')
    a.e('s_mul_i32 s29, s29, 2560')
    a.e('s_lshl_b32 s30, s17, 6'); a.e('s_lshl_b32 s31, s16, 4'); a.e('s_add_u32 s30, s30, s31')
    a.e('s_mul_i32 s30, s30, 1280'); a.e('s_mul_i32 s31, s18, 160'); a.e('s_add_u32 s26, s30, s31')
    a.e('v_mul_u32_u24 v6, 1280, v6')
    a.e('v_lshlrev_b32 v7, 3, v5')
    a.e('v_add_u32 v6, v6, v7')
    a.e(f'v_add_u32 {v(vXo)}, v6, v7')
    a.e('v_add_u32 v6, 128, v6')
    a.e('v_lshlrev_b32 v7, 3, v0')
    a.e('s_waitcnt lgkmcnt(0)')
    a.e('s_add_u32 s4, s34, s27'); a.e('s_addc_u32 s5, s35, 0'); a.e(f's_mov_b32 s6, {NS*5120}'); a.e('s_mov_b32 s7, 0x00020000')
    a.e('s_add_u32 s8, s34, s28'); a.e('s_addc_u32 s9, s35, 0'); a.e(f's_mov_b32 s10, {40960+NS*2048}'); a.e('s_mov_b32 s11, 0x00020000')
    a.e('s_mov_b32 s20, 0'); a.e('s_mov_b32 s21, 0')
    stamp(a,8)
    for b in range(NS):
        for u in range(4):
            a.e(f'buffer_load_dwordx4 {v(bufB(b,u),4)}, {v(vB0 if u<2 else vB1)}, s[8:11], s21 offen offset:{(u%2)*256} {pol}')
        for t in range(5):
            if t<4: a.e(f'buffer_load_dwordx4 {v(bufA(b,t),4)}, {v(vA0)}, s[4:7], s20 offen offset:{t*1024} {pol}')
            else:   a.e(f'buffer_load_dwordx4 {v(bufA(b,t),4)}, {v(vA1)}, s[4:7], s20 offen {pol}')
        if b<NS-1: a.e('s_add_u32 s20, s20, 5120'); a.e('s_add_u32 s21, s21, 2048')
    a.e('s_mov_b32 s12, s36'); a.e('s_mov_b32 s13, s37'); a.e('s_mov_b32 s14, 2621440'); a.e('s_mov_b32 s15, 0x00020000')
    a.e(f's_add_u32 s40, s34, {GIMG}'); a.e('s_addc_u32 s41, s35, 0'); a.e(f's_mov_b32 s42, {GIMG_BYTES}'); a.e('s_mov_b32 s43, 0x00020000')
    a.e(f'buffer_load_dwordx4 {v(vG,4)}, {v(vA0)}, s[40:43], s29 offen')
    a.e(f'buffer_load_dwordx4 {v(vG+4,4)}, {v(vA0)}, s[40:43], s29 offen offset:1024')
    a.e(f'buffer_load_dwordx2 {v(vG+8,2)}, v7, s[40:43], s29 offen offset:2048')
    a.e(f'buffer_load_dwordx4 {v(vX,4)}, {v(vXo)}, s[12:15], s26 offen')
    a.e(f'buffer_load_dwordx4 {v(vX+4,4)}, {v(vXo)}, s[12:15], s26 offen offset:64')
    a.e(f'buffer_load_dwordx2 {v(vX+8,2)}, v6, s[12:15], s26 offen')
    stamp(a,9)
    for j in range(NS):
        a.e(f's_waitcnt vmcnt({9*(NS-j-1)+6})')
        if j==0: stamp(a,1); stampc(a,5)
        for t in range(5):
            for u in range(4):
                c=areg(acc(u,t)) if j>0 else '0'
                a.e(f'v_mfma_f32_16x16x32_bf16 {areg(acc(u,t))}, {v(bufA(j,t),4)}, {v(bufB(j,u),4)}, {c}')
    stamp(a,2); stampc(a,6)
    a.e('s_mov_b32 s12, s38'); a.e('s_mov_b32 s13, s39')
    a.e('s_nop 7')
    R=BUF
    OWN=BUF+60
    for w in range(4):
        if w<3:
            a.e(f's_cmp_eq_u32 s16, {w}')
            a.e(f's_cbranch_scc0 K3_EX{w+1}')
        for u in range(4):
            if u==w: continue
            k=w if w<u else w-1
            for t in range(5):
                a.e(f'ds_write_b128 {v(vA0)}, {areg(acc(u,t))} offset:{((u*3+k)*5+t)*1024}')
        for i in range(20): a.e(f'v_accvgpr_read_b32 {v(OWN+i)}, a{acc(w,0)+i}')
        a.e('s_waitcnt lgkmcnt(0)')
        a.e('s_barrier')
        for k in range(3):
            for t in range(5):
                a.e(f'ds_read_b128 {v(R+20*k+4*t,4)}, {v(vA0)} offset:{((w*3+k)*5+t)*1024}')
        if w<3: a.e('s_branch K3_FIN')
        if w<3: a.label(f'K3_EX{w+1}')
    a.label('K3_FIN')
    S=OWN; X=BUF+80; G=BUF+100; E=BUF+120
    a.e('s_waitcnt vmcnt(0)')
    for i in range(10):
        a.e(f'v_lshlrev_b32 {v(X+2*i)}, 16, {v(vX+i)}')
        a.e(f'v_and_b32 {v(X+2*i+1)}, 0xffff0000, {v(vX+i)}')
        a.e(f'v_lshlrev_b32 {v(G+2*i)}, 16, {v(vG+i)}')
        a.e(f'v_and_b32 {v(G+2*i+1)}, 0xffff0000, {v(vG+i)}')
    for k in range(3):
        a.e(f's_waitcnt lgkmcnt({10-5*k})')
        for i in range(0,20,2):
            a.e(f'v_pk_add_f32 {v(S+i,2)}, {v(S+i,2)}, {v(R+20*k+i,2)}')
    stamp(a,4)
    for i in range(0,20,2): a.e(f'v_pk_fma_f32 {v(S+i,2)}, {v(S+i,2)}, {v(G+i,2)}, {v(X+i,2)}')
    for i in range(10): a.e(f'v_cvt_pk_bf16_f32 {v(E+i)}, {v(S+2*i)}, {v(S+2*i+1)}')
    a.e(f'buffer_store_dwordx4 {v(E,4)}, {v(vXo)}, s[12:15], s26 offen {spol}')
    a.e(f'buffer_store_dwordx4 {v(E+4,4)}, {v(vXo)}, s[12:15], s26 offen offset:64 {spol}')
    a.e(f'buffer_store_dwordx2 {v(E+8,2)}, v6, s[12:15], s26 offen {spol}')
    stamp(a,7)
    a.e('s_waitcnt vmcnt(0)')
    stamp(a,3)
    stamp_store(a,10,34,'s16',4,2*1024*1024)
    a.label('K3_END')
    a.e('s_endpgm')
    return 256+80
```

```python
import numpy as np
S=2048; D=640; H=32; DH=20; F=1536
QIMG=0; KIMG=2621440; VIMG=2*2621440; OIMG=3*2621440; HIMG=4*2621440
GBUF=HIMG+6291456
WS_USED=GBUF+2621440*2

def f2bf(a):
    a=np.ascontiguousarray(a,dtype=np.float32)
    u=a.view(np.uint32)
    r=((u>>16)&1)+0x7fff
    return ((u+r)>>16).astype(np.uint16)
def bf2f(u):
    return (u.astype(np.uint32)<<16).view(np.float32)

EVEN=[[0,1,2,3,8,9,10,11],[4,5,6,7,12,13,14,15],[16,17,18,19]]
ODD=[[4,5,6,7,12,13,14,15],[8,9,10,11,16,17,18,19],[0,1,2,3]]
def qk_img(q_u16):
    img=np.zeros((H,64,640),np.uint16)
    q=q_u16.reshape(64,32,H,DH)
    for h in range(H):
        o=EVEN if h%2==0 else ODD
        img[h,:,0:256]=q[:,:,h,:][:,:,o[0]].reshape(64,256)
        img[h,:,256:512]=q[:,:,h,:][:,:,o[1]].reshape(64,256)
        img[h,:,512:640]=q[:,:,h,:][:,:,o[2]].reshape(64,128)
    return img
def qk_unimg(img):
    q=np.zeros((64,32,H,DH),np.uint16)
    for h in range(H):
        o=EVEN if h%2==0 else ODD
        q[:,:,h,o[0]]=img[h,:,0:256].reshape(64,32,8)
        q[:,:,h,o[1]]=img[h,:,256:512].reshape(64,32,8)
        q[:,:,h,o[2]]=img[h,:,512:640].reshape(64,32,4)
    return q.reshape(S,640)
def v_tok(j,hp):
    return [16*j+4*hp+i for i in range(4)]+[16*j+8+4*hp+i for i in range(4)]
def v_img(v_u16):
    img=np.zeros((H,64,4,20,8),np.uint16)
    v=v_u16.reshape(64,32,H,DH)
    for j in range(2):
        for hp in range(2):
            t=v_tok(j,hp)
            img[:,:,2*j+hp]=v[:,t].transpose(2,0,3,1)
    return img.reshape(H,64,640)
def v_unimg(img):
    img=img.reshape(H,64,4,20,8)
    v=np.zeros((64,32,H,DH),np.uint16)
    for j in range(2):
        for hp in range(2):
            t=v_tok(j,hp)
            v[:,t]=img[:,:,2*j+hp].transpose(1,3,0,2)
    return v.reshape(S,640)
def kslot(hp):
    return [4*hp+i for i in range(4)]+[8+4*hp+i for i in range(4)]
def o_cols():
    c=np.zeros((40,2,8),np.int64)
    for k in range(32):
        for hp in range(2):
            c[k,hp]=[20*k+x for x in kslot(hp)]
    for m in range(8):
        for hp in range(2):
            for e in range(8):
                c[32+m,hp,e]=20*(4*m+2*hp+(e>=4))+16+e%4
    return c
def o_img(o_u16):
    c=o_cols()
    o=o_u16.reshape(64,32,640)
    return o[:,:,c].transpose(0,2,3,1,4).copy()
def o_unimg(img):
    img=img.reshape(64,40,2,32,8)
    c=o_cols()
    o=np.zeros((64,32,640),np.uint16)
    o[:,:,c]=img.transpose(0,3,1,2,4)
    return o.reshape(S,640)
def h_cols():
    c=np.zeros((96,2,8),np.int64)
    for k in range(96):
        for hp in range(2):
            c[k,hp]=[16*k+x for x in kslot(hp)]
    return c
def h_img(h_u16):
    c=h_cols()
    h=h_u16.reshape(64,32,F)
    return h[:,:,c].transpose(0,2,3,1,4).copy()
def h_unimg(img):
    img=img.reshape(64,96,2,32,8)
    c=h_cols()
    h=np.zeros((64,32,F),np.uint16)
    h[:,:,c]=img.transpose(0,3,1,2,4)
    return h.reshape(S,F)

WIMG=GBUF
WIMG_BYTES=8*68*5*1024
WS_USED=WIMG+WIMG_BYTES
def colmap(t,i):
    g,r=i//4,i%4
    return [8*g+r,8*g+4+r,32+8*g+r,32+8*g+4+r,64+4*g+r][t]
def w_img(w2_u16,wo_u16):
    hc=h_cols(); oc=o_cols()
    img=np.zeros((8,68,5,4,16,8),np.uint16)
    cols=np.array([[colmap(t,i) for i in range(16)] for t in range(5)])
    for s in range(68):
        for q in range(4):
            if s<48: rows=hc[2*s+q//2,q%2]; W=w2_u16
            else:    rows=oc[2*(s-48)+q//2,q%2]; W=wo_u16
            for cb in range(8):
                blk=W[rows][:,80*cb+cols]
                img[cb,s,:,q]=blk.transpose(1,2,0)
    return img
GIMG=WIMG+WIMG_BYTES
GIMG_BYTES=256*10240
WS_USED=GIMG+GIMG_BYTES
def g_unimg(img_u16):
    img=img_u16.reshape(32,8,4,1280)
    out=np.zeros((2048,640),np.uint16)
    a=img[...,:512].reshape(32,8,4,4,16,8); b=img[...,512:1024].reshape(32,8,4,4,16,8); c=img[...,1024:].reshape(32,8,4,4,16,4)
    o=out.reshape(32,4,16,8,80)
    for kg in range(4):
        o[:,:,:,:,8*kg:8*kg+8]=a[:,:,:,kg].transpose(0,2,3,1,4)
        o[:,:,:,:,32+8*kg:32+8*kg+8]=b[:,:,:,kg].transpose(0,2,3,1,4)
        o[:,:,:,:,64+4*kg:64+4*kg+4]=c[:,:,:,kg].transpose(0,2,3,1,4)
    return out
def g_img(g_u16):
    img=np.zeros((32,8,4,1280),np.uint16)
    o=g_u16.reshape(32,4,16,8,80)
    a=np.zeros((32,8,4,4,16,8),np.uint16); b=a.copy(); c=np.zeros((32,8,4,4,16,4),np.uint16)
    for kg in range(4):
        a[:,:,:,kg]=o[:,:,:,:,8*kg:8*kg+8].transpose(0,3,1,2,4)
        b[:,:,:,kg]=o[:,:,:,:,32+8*kg:32+8*kg+8].transpose(0,3,1,2,4)
        c[:,:,:,kg]=o[:,:,:,:,64+4*kg:64+4*kg+4].transpose(0,3,1,2,4)
    img[...,:512]=a.reshape(32,8,4,512); img[...,512:1024]=b.reshape(32,8,4,512); img[...,1024:]=c.reshape(32,8,4,256)
    return img
```

```python
import sys
from asmlib import *
import gen_att, gen_g64, gen_k1, gen_k3, gen_k3p, stamps
HDR=open('recurrent_scan__mha_block__glu_gated_swiglu__prompt.s.ref').read().split('\n')
def build(kernels):
    out=[]
    for ln in HDR:
        if ln.startswith('; Override launch'): break
        out.append(ln)
    for (name,fn,grid,block,lds) in kernels:
        out.append(f'; @launch kernel={name} grid=({grid},1,1) block=({block},1,1) lds={lds}')
    out.append('.amdgcn_target "amdgcn-amd-amdhsa--gfx950"')
    out.append('.text')
    descs=[]
    done=set()
    for (name,fn,grid,block,lds) in kernels:
        if name in done: continue
        done.add(name)
        a=Asm()
        nv=fn(a,name)
        out.append(a.text())
        descs.append(kernel_desc(name,nv))
    out.append('.section .rodata,"a"')
    out.append('.p2align 6')
    out+=descs
    return '\n'.join(out)+'\n'
if __name__=='__main__':
    which=sys.argv[1]; path=sys.argv[2]
    ks=[]
    if len(sys.argv)>3 and sys.argv[3] in('stamp','real'): stamps.STAMP=True
    if len(sys.argv)>3 and sys.argv[3]=='real': stamps.REAL=True
    if len(sys.argv)>4: gen_att.FL=set(sys.argv[4].split(',')); gen_k1.FL=set(sys.argv[4].split(',')); gen_k3.FL=set(sys.argv[4].split(',')); gen_k3p.FL=set(sys.argv[4].split(','))
    if which=='att': ks=[('att_kernel',gen_att.att_kernel,512 if ('dup' in gen_att.FL or 'ffn2' in gen_att.FL) else 256,512,61440)]
    if which=='g64': ks=[('w2_kernel',gen_g64.w2_kernel,256,256,102400),('wo_kernel',gen_g64.wo_kernel,256,256,102400)]
    if which=='k1': ks=[('k1_kernel',gen_k1.k1_kernel,256,512,gen_k1.LDS)]
    if which=='all': ks=[('k1_kernel',gen_k1.k1_kernel,256,512,gen_k1.LDS),('att_kernel',gen_att.att_kernel,256,512,61440),('w2_kernel',gen_g64.w2_kernel,256,256,102400),('wo_kernel',gen_g64.wo_kernel,256,256,102400)]
    if which=='k3': ks=[('k3_kernel',gen_k3.k3_kernel,256,256,61440)]
    if which=='all3': ks=[('k1_kernel',gen_k1.k1_kernel,256,512,gen_k1.LDS),('att_kernel',gen_att.att_kernel,256,512,61440),('k3_kernel',gen_k3.k3_kernel,256,256,61440)]
    if which=='ally': ks=[('k1_kernel',gen_k1.k1_kernel,256,512,gen_k1.LDS),('att_kernel',gen_att.att_kernel,512,512,61440),('k3_kernel',gen_k3p.k3p_kernel,256,256,61440)]
    open(path,'w').write(build(ks))
```

```python
import sys
from asmlib import *
import gen_att, gen_g64, gen_k1, gen_k3, stamps
HDR=open('recurrent_scan__mha_block__glu_gated_swiglu__prompt.s.ref').read().split('\n')
def build(kernels):
    out=[]
    for ln in HDR:
        if ln.startswith('; Override launch'): break
        out.append(ln)
    for (name,fn,grid,block,lds) in kernels:
        out.append(f'; @launch kernel={name} grid=({grid},1,1) block=({block},1,1) lds={lds}')
    out.append('.amdgcn_target "amdgcn-amd-amdhsa--gfx950"')
    out.append('.text')
    descs=[]
    done=set()
    for (name,fn,grid,block,lds) in kernels:
        if name in done: continue
        done.add(name)
        a=Asm()
        nv=fn(a,name)
        out.append(a.text())
        descs.append(kernel_desc(name,nv))
    out.append('.section .rodata,"a"')
    out.append('.p2align 6')
    out+=descs
    return '\n'.join(out)+'\n'
if __name__=='__main__':
    which=sys.argv[1]; path=sys.argv[2]
    ks=[]
    if len(sys.argv)>3 and sys.argv[3] in('stamp','real'): stamps.STAMP=True
    if len(sys.argv)>3 and sys.argv[3]=='real': stamps.REAL=True
    if len(sys.argv)>4: gen_att.FL=set(sys.argv[4].split(',')); gen_k1.FL=set(sys.argv[4].split(',')); gen_k3.FL=set(sys.argv[4].split(','))
    if which=='att': ks=[('att_kernel',gen_att.att_kernel,512 if 'dup' in gen_att.FL else 256,512,61440)]
    if which=='g64': ks=[('w2_kernel',gen_g64.w2_kernel,256,256,102400),('wo_kernel',gen_g64.wo_kernel,256,256,102400)]
    if which=='k1': ks=[('k1_kernel',gen_k1.k1_kernel,256,512,gen_k1.LDS)]
    if which=='all': ks=[('k1_kernel',gen_k1.k1_kernel,256,512,gen_k1.LDS),('att_kernel',gen_att.att_kernel,256,512,61440),('w2_kernel',gen_g64.w2_kernel,256,256,102400),('wo_kernel',gen_g64.wo_kernel,256,256,102400)]
    if which=='k3': ks=[('k3_kernel',gen_k3.k3_kernel,256,256,61440)]
    if which=='all3': ks=[('k1_kernel',gen_k1.k1_kernel,256,512,gen_k1.LDS),('att_kernel',gen_att.att_kernel,256,512,61440),('k3_kernel',gen_k3.k3_kernel,256,256,61440)]
    open(path,'w').write(build(ks))
```

```python
from asmlib import *
from layouts import QIMG,KIMG,VIMG,OIMG
NAME='att_kernel'
SLOT=20480
Q1=0+8
Q2=12
K1=16
K2=20
V0=24; V1=28
P0=32; P1=36
E=40
SA=48; SB=64
O=80
vKc=96; vK2c=97; vVc=98; vKn=99; vK2n=100; vVn=101
vL16=0
vT=1; vT2=2; vT3=3; vLaneK=4; vLaneK2=5; vLaneV=6; vMx=7
NV=102
def mfma(d,a,b,c):
    cs = '0' if c is None else v(c,16)
    return f'v_mfma_f32_32x32x16_bf16 {v(d,16)}, {v(a,4)}, {v(b,4)}, {cs}'

def emit_dma(a, soff_chunk, sslot):
    a.e(f's_add_u32 s30, s17, {soff_chunk}')
    a.e(f's_add_u32 m0, s20, {sslot}')
    a.e(f's_add_u32 s31, s18, {soff_chunk}')
    a.e(f'buffer_load_dwordx4 {v(vL16)}, s[4:7], s30 offen lds')
    a.e(f's_add_u32 m0, m0, 8192')
    a.e(f's_add_u32 s30, s19, {soff_chunk}')
    a.e(f'buffer_load_dwordx4 {v(vL16)}, s[4:7], s31 offen lds')
    l=a.newlabel('nodma3')
    a.e(f's_cmp_ge_u32 s16, 4')
    a.e(f's_cbranch_scc1 {l}')
    a.e(f's_add_u32 m0, m0, 8192')
    a.e('s_nop 0')
    a.e(f'buffer_load_dwordx4 {v(vL16)}, s[4:7], s30 offen lds')
    a.label(l)

def set_m_pieces(a, add):
    a.e(f'v_mov_b32 {v(vT)}, {v(vMx)}')
    a.e('s_nop 1')
    a.e(f'v_permlane32_swap_b32 {v(vT)}, {v(vMx)}')
    a.e('s_nop 1')
    a.e(f'v_max_f32 {v(vMx)}, {v(vT)}, {v(vMx)}')
    a.e(f'v_ceil_f32 {v(vMx)}, {v(vMx)}')
    a.e(f'v_mov_b32 {v(vT)}, {add}')
    a.e(f'v_add_f32 {v(vMx)}, {v(vT)}, {v(vMx)}')
    a.e(f'v_sub_f32 {v(vMx)}, 0, {v(vMx)}')
    a.e(f'v_and_b32 {v(vT)}, 0xffff0000, {v(vMx)}')
    a.e(f'v_sub_f32 {v(vT2)}, {v(vMx)}, {v(vT)}')
    a.e(f'v_and_b32 {v(vT3)}, 0xffff0000, {v(vT2)}')
    a.e(f'v_sub_f32 {v(vT2)}, {v(vT2)}, {v(vT3)}')
    a.e(f'v_lshrrev_b32 {v(vT)}, 16, {v(vT)}')
    a.e(f'v_or_b32 {v(vT)}, {v(vT)}, {v(vT3)}')
    a.e(f'v_lshrrev_b32 {v(vT2)}, 16, {v(vT2)}')
    a.e('s_mov_b64 exec, 0xffffffff')
    a.e(f'v_mov_b32 {v(Q2+2)}, {v(vT)}')
    a.e(f'v_mov_b32 {v(Q2+3)}, {v(vT2)}')
    a.e('s_mov_b64 exec, -1')

def max16(a, S, first):
    for i in range(0,16,2):
        if first and i==0:
            a.e(f'v_max_f32 {v(vMx)}, {v(S)}, {v(S+1)}')
        else:
            a.e(f'v_max3_f32 {v(vMx)}, {v(vMx)}, {v(S+i)}, {v(S+i+1)}')

FL=set()
def tile(a,i):
    S,N=(SA,SB) if i%2==0 else (SB,SA)
    def addr(kind,ti):
        cur={'k':vKc,'k2':vK2c,'v':vVc}[kind]; nxt={'k':vKn,'k2':vK2n,'v':vVn}[kind]
        return (cur,ti*1280) if ti<8 else (nxt,(ti-8)*1280)
    a.c(f'---- tile {i}')
    if i==6 and 'nodma' not in FL:
        a.e('s_waitcnt vmcnt(0)')
        a.e('s_barrier')
        l=a.newlabel('nodma')
        a.e('s_cmp_ge_u32 s24, 6')
        a.e(f's_cbranch_scc1 {l}')
        emit_dma(a,'s25','s26')
        a.label(l)
    if 'nolds' in FL:
        E_=a.e
        class A2:
            def e(self,s):
                if s.startswith('ds_read') or s.startswith('s_waitcnt lgkm') or s.startswith('s_mov_b64 exec'): return
                E_(s)
        a=A2()
    ex=lambda dst,src: a.e(f'v_exp_f32 {v(dst)}, {v(src)}')
    cv=lambda dst,x: a.e(f'v_cvt_pk_bf16_f32 {v(dst)}, {v(x)}, {v(x+1)}')
    a.e('s_waitcnt lgkmcnt(3)')
    a.e(mfma(N,K1,Q1,None))
    r,o=addr('k',i+2); a.e(f'ds_read_b128 {v(K1,4)}, {v(r)} offset:{o}')
    cv(P1+2,E+4); cv(P1+3,E+6)
    for k in range(4): ex(E+k,S+k)
    a.e('s_waitcnt lgkmcnt(3)')
    a.e(mfma(N,K2,Q2,N))
    r,o=addr('k2',i+2); a.e(f'ds_read_b64 {v(K2,2)}, {v(r)} offset:{o}')
    for k in range(4): ex(E+4+k,S+4+k)
    cv(P0,E); cv(P0+1,E+2)
    a.e('s_waitcnt lgkmcnt(3)')
    a.e(mfma(O,V1,P1,O))
    cv(P0+2,E+4); cv(P0+3,E+6)
    for k in range(4): ex(E+k,S+8+k)
    a.e('s_waitcnt lgkmcnt(2)')
    a.e(mfma(O,V0,P0,O))
    if 'noexec' not in FL: a.e('s_mov_b64 exec, s[22:23]')
    r,o=addr('v',i);   a.e(f'ds_read_b128 {v(V1,4)}, {v(r)} offset:{o+640}')
    r,o=addr('v',i+1); a.e(f'ds_read_b128 {v(V0,4)}, {v(r)} offset:{o}')
    if 'noexec' not in FL: a.e('s_mov_b64 exec, -1')
    for k in range(4): ex(E+4+k,S+12+k)
    cv(P1,E); cv(P1+1,E+2)

from stamps import stamp, stamp_store, stampc
def att_kernel(a, name=NAME):
    a.lines.append(kernel_header(name))
    a.e(f's_cmp_ge_u32 s2, {512 if "dup" in FL else 256}')
    a.e('s_cbranch_scc1 ATT_END')
    if 'dup' in FL: a.e('s_and_b32 s2, s2, 255')
    a.e('s_load_dwordx2 s[34:35], s[0:1], 72')
    stamp(a,0)
    a.e(f'v_lshrrev_b32 {v(vT)}, 6, v0')
    a.e(f'v_and_b32 v0, 63, v0')
    a.e(f'v_readfirstlane_b32 s16, {v(vT)}')
    a.e('s_and_b32 s27, s2, 7')
    a.e('s_lshr_b32 s28, s2, 3')
    a.e('s_and_b32 s29, s28, 0x18')
    a.e('s_add_u32 s27, s27, s29')
    a.e('s_and_b32 s28, s28, 7')
    a.e('s_lshl_b32 s28, s28, 3')
    a.e('s_add_u32 s28, s28, s16')
    a.e('s_mul_i32 s29, s27, 81920')
    a.e(f'v_and_b32 {v(vT)}, 31, v0')
    a.e(f'v_lshrrev_b32 {v(vT2)}, 5, v0')
    a.e(f'v_lshlrev_b32 {v(vLaneK2)}, 3, {v(vT)}')
    a.e(f'v_add_u32 {v(vLaneK2)}, 1024, {v(vLaneK2)}')
    a.e(f'v_mul_u32_u24 {v(vLaneV)}, 320, {v(vT2)}')
    a.e(f'v_lshlrev_b32 {v(vT)}, 4, {v(vT)}')
    a.e(f'v_add_u32 {v(vLaneV)}, {v(vLaneV)}, {v(vT)}')
    a.e(f'v_lshlrev_b32 {v(vL16)}, 4, v0')
    a.e('s_lshl_b32 s20, s16, 10')
    a.e('s_mov_b32 s17, s20')
    a.e(f's_add_u32 s18, s20, 8192')
    a.e(f's_add_u32 s19, s20, {VIMG-KIMG-2048}')
    a.e('s_cmp_lt_u32 s16, 2')
    a.e('s_cselect_b32 s18, s18, s19')
    a.e(f's_add_u32 s19, s20, {VIMG-KIMG+6144}')
    a.e('s_mov_b32 s22, 0x000fffff')
    a.e('s_mov_b32 s23, 0x000fffff')
    a.e('s_waitcnt lgkmcnt(0)')
    a.e(f's_add_u32 s4, s34, {KIMG}')
    a.e('s_addc_u32 s5, s35, 0')
    a.e('s_add_u32 s4, s4, s29')
    a.e('s_addc_u32 s5, s5, 0')
    a.e(f's_sub_u32 s6, {VIMG+2621440-KIMG}, s29')
    a.e('s_mov_b32 s7, 0x00020000')
    a.e(f's_add_u32 s8, s34, {QIMG}')
    a.e('s_addc_u32 s9, s35, 0')
    a.e('s_mov_b32 s10, 2621440')
    a.e('s_mov_b32 s11, 0x00020000')
    a.e(f's_add_u32 s12, s34, {OIMG}')
    a.e('s_addc_u32 s13, s35, 0')
    a.e('s_mov_b32 s14, 2621440')
    a.e('s_mov_b32 s15, 0x00020000')
    a.e('s_mov_b32 s25, 0'); a.e('s_mov_b32 s26, 0')
    emit_dma(a,'s25','s26')
    a.e('s_mov_b32 s25, 10240'); a.e(f's_mov_b32 s26, {SLOT}')
    emit_dma(a,'s25','s26')
    a.e('s_mul_i32 s33, s28, 1280')
    a.e('s_add_u32 s33, s33, s29')
    for k in range(4): a.e(f'v_mov_b32 {v(Q2+k)}, 0')
    a.e(f'buffer_load_dwordx4 {v(Q1,4)}, {v(vL16)}, s[8:11], s33 offen')
    a.e('s_mov_b64 exec, 0xffffffff')
    a.e(f'buffer_load_dwordx2 {v(Q2,2)}, {v(vLaneK2)}, s[8:11], s33 offen')
    a.e('s_mov_b64 exec, -1')
    a.e(f'v_mov_b32 {v(K2+2)}, 0x3f803f80')
    a.e(f'v_mov_b32 {v(K2+3)}, 0x00003f80')
    for k in range(4):
        a.e(f'v_mov_b32 {v(V0+k)}, 0x3f803f80')
        a.e(f'v_mov_b32 {v(V1+k)}, 0x3f803f80')
    a.e(f'v_mov_b32 {v(vKc)}, {v(vL16)}')
    a.e(f'v_mov_b32 {v(vK2c)}, {v(vLaneK2)}')
    a.e(f'v_add_u32 {v(vLaneV)}, 10240, {v(vLaneV)}')
    a.e(f'v_mov_b32 {v(vVc)}, {v(vLaneV)}')
    a.e(f'v_add_u32 {v(vKn)}, {SLOT}, {v(vL16)}')
    a.e(f'v_add_u32 {v(vK2n)}, {SLOT}, {v(vLaneK2)}')
    a.e(f'v_add_u32 {v(vVn)}, {SLOT}, {v(vLaneV)}')
    T2=[P0,P1,E,E+4]
    for t in T2:
        a.e(f'v_mov_b32 {v(t+2)}, 0'); a.e(f'v_mov_b32 {v(t+3)}, 0')
    a.e('s_waitcnt vmcnt(0)')
    a.e('s_barrier')
    stamp(a,1)
    for t in range(4):
        a.e(f'ds_read_b128 {v(O+4*t,4)}, {v(vKc)} offset:{t*1280}')
        a.e(f'ds_read_b64 {v(T2[t],2)}, {v(vK2c)} offset:{t*1280}')
    a.e('s_waitcnt lgkmcnt(4)')
    a.e(mfma(SA,O,Q1,None)); a.e(mfma(SB,O+4,Q1,None))
    a.e(mfma(SA,T2[0],Q2,SA)); a.e(mfma(SB,T2[1],Q2,SB))
    a.e('s_waitcnt lgkmcnt(0)')
    a.e('s_nop 7'); a.e('s_nop 7')
    max16(a,SA,True)
    a.e(mfma(SA,O+8,Q1,None))
    max16(a,SB,False)
    a.e(mfma(SB,O+12,Q1,None))
    a.e(mfma(SA,T2[2],Q2,SA)); a.e(mfma(SB,T2[3],Q2,SB))
    a.e(f'ds_read_b128 {v(K1,4)}, {v(vKc)} offset:0')
    a.e(f'ds_read_b64 {v(K2,2)}, {v(vK2c)} offset:0')
    a.e('s_nop 7'); a.e('s_nop 7')
    max16(a,SA,False)
    max16(a,SB,False)
    set_m_pieces(a,'0x42c00000')
    for k in range(16): a.e(f'v_mov_b32 {v(O+k)}, 0')
    for k in range(4): a.e(f'v_mov_b32 {v(P1+k)}, 0')
    for k in range(4,8): a.e(f'v_mov_b32 {v(E+k)}, 0')
    a.e('s_waitcnt lgkmcnt(0)')
    a.e(mfma(SA,K1,Q1,None))
    a.e(mfma(SA,K2,Q2,SA))
    a.e(f'ds_read_b128 {v(K1,4)}, {v(vKc)} offset:1280')
    a.e(f'ds_read_b64 {v(K2,2)}, {v(vK2c)} offset:1280')
    a.e('s_mov_b64 exec, s[22:23]')
    a.e(f'ds_read_b128 {v(V1,4)}, {v(vVc)} offset:640')
    a.e(f'ds_read_b128 {v(V0,4)}, {v(vVc)} offset:0')
    a.e('s_mov_b64 exec, -1')
    a.e('s_waitcnt lgkmcnt(0)')
    a.e('s_nop 7'); a.e('s_nop 7')
    a.e('s_mov_b32 s24, 0')
    a.e('s_mov_b32 s25, 20480')
    a.e(f's_mov_b32 s26, {2*SLOT}')
    a.e(f's_mov_b32 s21, {SLOT}')
    stamp(a,2); stampc(a,5)
    a.label('ATT_LOOP')
    for i in range(8): tile(a,i)
    a.e(f'v_mov_b32 {v(vKc)}, {v(vKn)}')
    a.e(f'v_mov_b32 {v(vK2c)}, {v(vK2n)}')
    a.e(f'v_mov_b32 {v(vVc)}, {v(vVn)}')
    a.e('s_mov_b32 s21, s26')
    a.e(f's_add_u32 s26, s26, {SLOT}')
    a.e(f's_cmp_eq_u32 s26, {3*SLOT}')
    a.e('s_cselect_b32 s26, 0, s26')
    a.e(f'v_add_u32 {v(vKn)}, s21, {v(vL16)}')
    a.e(f'v_add_u32 {v(vK2n)}, s21, {v(vLaneK2)}')
    a.e(f'v_add_u32 {v(vVn)}, s21, {v(vLaneV)}')
    a.e('s_add_u32 s25, s25, 10240')
    a.e('s_add_u32 s24, s24, 1')
    a.e('s_cmp_lt_u32 s24, 8')
    a.e('s_cbranch_scc1 ATT_LOOP')
    stamp(a,3); stampc(a,6)
    a.e(f'v_cvt_pk_bf16_f32 {v(P1+2)}, {v(E+4)}, {v(E+5)}')
    a.e(f'v_cvt_pk_bf16_f32 {v(P1+3)}, {v(E+6)}, {v(E+7)}')
    a.e('s_waitcnt lgkmcnt(0)')
    a.e('s_nop 1')
    a.e(mfma(O,V1,P1,O))
    a.e('s_nop 7'); a.e('s_nop 7')
    a.e(f'v_mov_b32 {v(vT)}, 0')
    for k in range(13): a.e(f'v_fma_f32 {v(vT)}, {v(O+k)}, 0, {v(vT)}')
    a.e(f'v_cmp_u_f32 vcc, {v(vT)}, {v(vT)}')
    a.e('s_mov_b64 s[36:37], vcc')
    a.e(f'v_mov_b32 {v(vT)}, 0x7b800000')
    a.e(f'v_cmp_nlt_f32 vcc, {v(O+12)}, {v(vT)}')
    a.e('s_or_b64 vcc, vcc, s[36:37]')
    a.e('s_cbranch_vccnz ATT_FALLBACK')
    a.label('ATT_EPI')
    a.e(f'v_rcp_f32 {v(vT)}, {v(O+12)}')
    a.e('s_nop 0')
    for k in range(12): a.e(f'v_mul_f32 {v(O+k)}, {v(O+k)}, {v(vT)}')
    for k in range(6): a.e(f'v_cvt_pk_bf16_f32 {v(E+k)}, {v(O+2*k)}, {v(O+2*k+1)}')
    a.e('s_mul_i32 s33, s28, 40960')
    a.e('s_lshl_b32 s30, s27, 10')
    a.e('s_add_u32 s30, s30, s33')
    a.e(f'buffer_store_dwordx4 {v(E,4)}, {v(vL16)}, s[12:15], s30 offen')
    a.e('s_lshr_b32 s30, s27, 2')
    a.e('s_add_u32 s30, s30, 32')
    a.e('s_lshl_b32 s30, s30, 10')
    a.e('s_add_u32 s30, s30, s33')
    a.e('s_and_b32 s31, s27, 2')
    a.e('s_lshl_b32 s31, s31, 8')
    a.e('s_add_u32 s30, s30, s31')
    a.e('s_and_b32 s31, s27, 1')
    a.e('s_lshl_b32 s31, s31, 3')
    a.e('s_add_u32 s30, s30, s31')
    a.e('s_mov_b64 exec, 0xffffffff')
    a.e(f'buffer_store_dwordx2 {v(E+4,2)}, {v(vL16)}, s[12:15], s30 offen')
    a.e('s_waitcnt vmcnt(0)')
    stamp(a,4)
    stamp_store(a,7,34,'s16',8,0)
    a.label('ATT_END')
    a.e('s_endpgm')
    a.label('ATT_FALLBACK')
    a.e(f'v_mov_b32 {v(Q2+2)}, 0'); a.e(f'v_mov_b32 {v(Q2+3)}, 0')
    a.e(f'v_mov_b32 {v(vMx)}, 0xff800000')
    a.e('s_mov_b32 s30, 0')
    a.label('ATT_FB1')
    a.e(f'buffer_load_dwordx4 {v(K1,4)}, {v(vL16)}, s[4:7], s30 offen')
    a.e(f'buffer_load_dwordx2 {v(K2,2)}, {v(vLaneK2)}, s[4:7], s30 offen')
    a.e('s_waitcnt vmcnt(0)')
    a.e(mfma(SA,K1,Q1,None)); a.e(mfma(SA,K2,Q2,SA))
    a.e('s_nop 7'); a.e('s_nop 7')
    max16(a,SA,False)
    a.e('s_add_u32 s30, s30, 1280')
    a.e('s_cmp_lt_u32 s30, 81920')
    a.e('s_cbranch_scc1 ATT_FB1')
    set_m_pieces(a,'0')
    for k in range(16): a.e(f'v_mov_b32 {v(O+k)}, 0')
    a.e(f'v_add_u32 {v(vVc)}, {VIMG-KIMG-10240}, {v(vLaneV)}')
    a.e('s_mov_b32 s30, 0')
    a.label('ATT_FB2')
    a.e(f'buffer_load_dwordx4 {v(K1,4)}, {v(vL16)}, s[4:7], s30 offen')
    a.e(f'buffer_load_dwordx2 {v(K2,2)}, {v(vLaneK2)}, s[4:7], s30 offen')
    a.e('s_mov_b64 exec, s[22:23]')
    a.e(f'buffer_load_dwordx4 {v(V0,4)}, {v(vVc)}, s[4:7], s30 offen')
    a.e(f'buffer_load_dwordx4 {v(V1,4)}, {v(vVc)}, s[4:7], s30 offen offset:640')
    a.e('s_mov_b64 exec, -1')
    a.e('s_waitcnt vmcnt(0)')
    a.e(mfma(SA,K1,Q1,None)); a.e(mfma(SA,K2,Q2,SA))
    a.e('s_nop 7'); a.e('s_nop 7')
    for k in range(16): a.e(f'v_exp_f32 {v(SB+k)}, {v(SA+k)}')
    a.e('s_nop 0')
    for k in range(4): a.e(f'v_cvt_pk_bf16_f32 {v(P0+k)}, {v(SB+2*k)}, {v(SB+2*k+1)}')
    for k in range(4): a.e(f'v_cvt_pk_bf16_f32 {v(P1+k)}, {v(SB+8+2*k)}, {v(SB+8+2*k+1)}')
    a.e('s_nop 1')
    a.e(mfma(O,V0,P0,O)); a.e(mfma(O,V1,P1,O))
    a.e('s_add_u32 s30, s30, 1280')
    a.e('s_cmp_lt_u32 s30, 81920')
    a.e('s_cbranch_scc1 ATT_FB2')
    a.e('s_nop 7'); a.e('s_nop 7')
    a.e('s_branch ATT_EPI')
    return NV
```

```python
import sys
from asmlib import *
import gen
def k(a,name):
    a.lines.append(kernel_header(name))
    a.e('s_cmp_ge_u32 s2, 512'); a.e('s_cbranch_scc1 P_END')
    a.e('s_load_dwordx2 s[34:35], s[0:1], 72')
    a.e('s_getreg_b32 s4, hwreg(HW_REG_HW_ID)')
    a.e('s_getreg_b32 s5, hwreg(HW_REG_XCC_ID)')
    a.e('s_memrealtime s[6:7]')
    a.e('s_waitcnt lgkmcnt(0)')
    a.e('v_lshrrev_b32 v1, 6, v0'); a.e('s_nop 1'); a.e('v_readfirstlane_b32 s16, v1'); a.e('s_nop 3')
    a.e('s_lshl_b32 s8, s2, 3'); a.e('s_add_u32 s8, s8, s16'); a.e('s_lshl_b32 s8, s8, 4')
    a.e('s_add_u32 s34, s34, s8'); a.e('s_addc_u32 s35, s35, 0')
    a.e('v_mov_b32 v4, s4'); a.e('v_mov_b32 v5, s5'); a.e('v_mov_b32 v6, s6'); a.e('v_mov_b32 v7, s7'); a.e('v_mov_b32 v2, 0')
    a.e('s_mov_b64 exec, 1')
    a.e('global_store_dwordx4 v2, v[4:7], s[34:35]')
    a.e('s_add_u32 s10, s6, 2000')
    a.label('P_SPIN')
    a.e('s_memrealtime s[12:13]'); a.e('s_waitcnt lgkmcnt(0)')
    a.e('s_sub_u32 s14, s12, s10'); a.e('s_cmp_lt_i32 s14, 0'); a.e('s_cbranch_scc1 P_SPIN')
    a.e('s_waitcnt vmcnt(0)')
    a.label('P_END'); a.e('s_endpgm')
    return 128
open('place.s','w').write(gen.build([('k1_kernel',k,512,512,61440)]))
```

```python
from asmlib import *
from layouts import QIMG,KIMG,VIMG,OIMG
import gen_ffn2
NAME='att_kernel'
SLOT=20480
Q1=0+8
Q2=12
K1=16
K2=20
V0=24; V1=28
P0=32; P1=36
E=40
SA=48; SB=64
O=80
vKc=96; vK2c=97; vVc=98; vKn=99; vK2n=100; vVn=101
vL16=0
vT=1; vT2=2; vT3=3; vLaneK=4; vLaneK2=5; vLaneV=6; vMx=7
NV=102
def mfma(d,a,b,c):
    cs = '0' if c is None else v(c,16)
    return f'v_mfma_f32_32x32x16_bf16 {v(d,16)}, {v(a,4)}, {v(b,4)}, {cs}'

def emit_dma(a, soff_chunk, sslot):
    a.e(f's_add_u32 s30, s17, {soff_chunk}')
    a.e(f's_add_u32 m0, s20, {sslot}')
    a.e(f's_add_u32 s31, s18, {soff_chunk}')
    a.e(f'buffer_load_dwordx4 {v(vL16)}, s[4:7], s30 offen lds')
    a.e(f's_add_u32 m0, m0, 8192')
    a.e(f's_add_u32 s30, s19, {soff_chunk}')
    a.e(f'buffer_load_dwordx4 {v(vL16)}, s[4:7], s31 offen lds')
    l=a.newlabel('nodma3')
    a.e(f's_cmp_ge_u32 s16, 4')
    a.e(f's_cbranch_scc1 {l}')
    a.e(f's_add_u32 m0, m0, 8192')
    a.e('s_nop 0')
    a.e(f'buffer_load_dwordx4 {v(vL16)}, s[4:7], s30 offen lds')
    a.label(l)

def set_m_pieces(a, add):
    a.e(f'v_mov_b32 {v(vT)}, {v(vMx)}')
    a.e('s_nop 1')
    a.e(f'v_permlane32_swap_b32 {v(vT)}, {v(vMx)}')
    a.e('s_nop 1')
    a.e(f'v_max_f32 {v(vMx)}, {v(vT)}, {v(vMx)}')
    a.e(f'v_ceil_f32 {v(vMx)}, {v(vMx)}')
    a.e(f'v_mov_b32 {v(vT)}, {add}')
    a.e(f'v_add_f32 {v(vMx)}, {v(vT)}, {v(vMx)}')
    a.e(f'v_sub_f32 {v(vMx)}, 0, {v(vMx)}')
    a.e(f'v_and_b32 {v(vT)}, 0xffff0000, {v(vMx)}')
    a.e(f'v_sub_f32 {v(vT2)}, {v(vMx)}, {v(vT)}')
    a.e(f'v_and_b32 {v(vT3)}, 0xffff0000, {v(vT2)}')
    a.e(f'v_sub_f32 {v(vT2)}, {v(vT2)}, {v(vT3)}')
    a.e(f'v_lshrrev_b32 {v(vT)}, 16, {v(vT)}')
    a.e(f'v_or_b32 {v(vT)}, {v(vT)}, {v(vT3)}')
    a.e(f'v_lshrrev_b32 {v(vT2)}, 16, {v(vT2)}')
    a.e('s_mov_b64 exec, 0xffffffff')
    a.e(f'v_mov_b32 {v(Q2+2)}, {v(vT)}')
    a.e(f'v_mov_b32 {v(Q2+3)}, {v(vT2)}')
    a.e('s_mov_b64 exec, -1')

def max16(a, S, first):
    for i in range(0,16,2):
        if first and i==0:
            a.e(f'v_max_f32 {v(vMx)}, {v(S)}, {v(S+1)}')
        else:
            a.e(f'v_max3_f32 {v(vMx)}, {v(vMx)}, {v(S+i)}, {v(S+i+1)}')

FL=set()
def tile(a,i):
    S,N=(SA,SB) if i%2==0 else (SB,SA)
    def addr(kind,ti):
        cur={'k':vKc,'k2':vK2c,'v':vVc}[kind]; nxt={'k':vKn,'k2':vK2n,'v':vVn}[kind]
        return (cur,ti*1280) if ti<8 else (nxt,(ti-8)*1280)
    a.c(f'---- tile {i}')
    if i==6 and 'nodma' not in FL:
        a.e('s_waitcnt vmcnt(0)')
        a.e('s_barrier')
        l=a.newlabel('nodma')
        a.e('s_cmp_ge_u32 s24, 6')
        a.e(f's_cbranch_scc1 {l}')
        emit_dma(a,'s25','s26')
        a.label(l)
    if 'nolds' in FL:
        E_=a.e
        class A2:
            def e(self,s):
                if s.startswith('ds_read') or s.startswith('s_waitcnt lgkm') or s.startswith('s_mov_b64 exec'): return
                E_(s)
        a=A2()
    ex=lambda dst,src: a.e(f'v_exp_f32 {v(dst)}, {v(src)}')
    cv=lambda dst,x: a.e(f'v_cvt_pk_bf16_f32 {v(dst)}, {v(x)}, {v(x+1)}')
    a.e('s_waitcnt lgkmcnt(3)')
    a.e(mfma(N,K1,Q1,None))
    r,o=addr('k',i+2); a.e(f'ds_read_b128 {v(K1,4)}, {v(r)} offset:{o}')
    cv(P1+2,E+4); cv(P1+3,E+6)
    for k in range(4): ex(E+k,S+k)
    a.e('s_waitcnt lgkmcnt(3)')
    a.e(mfma(N,K2,Q2,N))
    r,o=addr('k2',i+2); a.e(f'ds_read_b64 {v(K2,2)}, {v(r)} offset:{o}')
    for k in range(4): ex(E+4+k,S+4+k)
    cv(P0,E); cv(P0+1,E+2)
    a.e('s_waitcnt lgkmcnt(3)')
    a.e(mfma(O,V1,P1,O))
    cv(P0+2,E+4); cv(P0+3,E+6)
    for k in range(4): ex(E+k,S+8+k)
    a.e('s_waitcnt lgkmcnt(2)')
    a.e(mfma(O,V0,P0,O))
    if 'noexec' not in FL: a.e('s_mov_b64 exec, s[22:23]')
    r,o=addr('v',i);   a.e(f'ds_read_b128 {v(V1,4)}, {v(r)} offset:{o+640}')
    r,o=addr('v',i+1); a.e(f'ds_read_b128 {v(V0,4)}, {v(r)} offset:{o}')
    if 'noexec' not in FL: a.e('s_mov_b64 exec, -1')
    for k in range(4): ex(E+4+k,S+12+k)
    cv(P1,E); cv(P1+1,E+2)

from stamps import stamp, stamp_store, stampc
def att_kernel(a, name=NAME):
    a.lines.append(kernel_header(name))
    a.e(f's_cmp_ge_u32 s2, {512 if ("dup" in FL or "ffn2" in FL) else 256}')
    a.e('s_cbranch_scc1 ATT_END')
    if 'dup' in FL: a.e('s_and_b32 s2, s2, 255')
    a.e('s_load_dwordx2 s[34:35], s[0:1], 72')
    if 'ffn2' in FL:
        a.e('s_cmp_ge_u32 s2, 256')
        a.e('s_cbranch_scc1 ATT_FFN2')
        if 'aprio' in FL: a.e('s_setprio 2')
    stamp(a,0)
    a.e(f'v_lshrrev_b32 {v(vT)}, 6, v0')
    a.e(f'v_and_b32 v0, 63, v0')
    a.e(f'v_readfirstlane_b32 s16, {v(vT)}')
    a.e('s_and_b32 s27, s2, 7')
    a.e('s_lshr_b32 s28, s2, 3')
    a.e('s_and_b32 s29, s28, 0x18')
    a.e('s_add_u32 s27, s27, s29')
    a.e('s_and_b32 s28, s28, 7')
    a.e('s_lshl_b32 s28, s28, 3')
    a.e('s_add_u32 s28, s28, s16')
    a.e('s_mul_i32 s29, s27, 81920')
    a.e(f'v_and_b32 {v(vT)}, 31, v0')
    a.e(f'v_lshrrev_b32 {v(vT2)}, 5, v0')
    a.e(f'v_lshlrev_b32 {v(vLaneK2)}, 3, {v(vT)}')
    a.e(f'v_add_u32 {v(vLaneK2)}, 1024, {v(vLaneK2)}')
    a.e(f'v_mul_u32_u24 {v(vLaneV)}, 320, {v(vT2)}')
    a.e(f'v_lshlrev_b32 {v(vT)}, 4, {v(vT)}')
    a.e(f'v_add_u32 {v(vLaneV)}, {v(vLaneV)}, {v(vT)}')
    a.e(f'v_lshlrev_b32 {v(vL16)}, 4, v0')
    a.e('s_lshl_b32 s20, s16, 10')
    a.e('s_mov_b32 s17, s20')
    a.e(f's_add_u32 s18, s20, 8192')
    a.e(f's_add_u32 s19, s20, {VIMG-KIMG-2048}')
    a.e('s_cmp_lt_u32 s16, 2')
    a.e('s_cselect_b32 s18, s18, s19')
    a.e(f's_add_u32 s19, s20, {VIMG-KIMG+6144}')
    a.e('s_mov_b32 s22, 0x000fffff')
    a.e('s_mov_b32 s23, 0x000fffff')
    a.e('s_waitcnt lgkmcnt(0)')
    a.e(f's_add_u32 s4, s34, {KIMG}')
    a.e('s_addc_u32 s5, s35, 0')
    a.e('s_add_u32 s4, s4, s29')
    a.e('s_addc_u32 s5, s5, 0')
    a.e(f's_sub_u32 s6, {VIMG+2621440-KIMG}, s29')
    a.e('s_mov_b32 s7, 0x00020000')
    a.e(f's_add_u32 s8, s34, {QIMG}')
    a.e('s_addc_u32 s9, s35, 0')
    a.e('s_mov_b32 s10, 2621440')
    a.e('s_mov_b32 s11, 0x00020000')
    a.e(f's_add_u32 s12, s34, {OIMG}')
    a.e('s_addc_u32 s13, s35, 0')
    a.e('s_mov_b32 s14, 2621440')
    a.e('s_mov_b32 s15, 0x00020000')
    a.e('s_mov_b32 s25, 0'); a.e('s_mov_b32 s26, 0')
    emit_dma(a,'s25','s26')
    a.e('s_mov_b32 s25, 10240'); a.e(f's_mov_b32 s26, {SLOT}')
    emit_dma(a,'s25','s26')
    a.e('s_mul_i32 s33, s28, 1280')
    a.e('s_add_u32 s33, s33, s29')
    for k in range(4): a.e(f'v_mov_b32 {v(Q2+k)}, 0')
    a.e(f'buffer_load_dwordx4 {v(Q1,4)}, {v(vL16)}, s[8:11], s33 offen')
    a.e('s_mov_b64 exec, 0xffffffff')
    a.e(f'buffer_load_dwordx2 {v(Q2,2)}, {v(vLaneK2)}, s[8:11], s33 offen')
    a.e('s_mov_b64 exec, -1')
    a.e(f'v_mov_b32 {v(K2+2)}, 0x3f803f80')
    a.e(f'v_mov_b32 {v(K2+3)}, 0x00003f80')
    for k in range(4):
        a.e(f'v_mov_b32 {v(V0+k)}, 0x3f803f80')
        a.e(f'v_mov_b32 {v(V1+k)}, 0x3f803f80')
    a.e(f'v_mov_b32 {v(vKc)}, {v(vL16)}')
    a.e(f'v_mov_b32 {v(vK2c)}, {v(vLaneK2)}')
    a.e(f'v_add_u32 {v(vLaneV)}, 10240, {v(vLaneV)}')
    a.e(f'v_mov_b32 {v(vVc)}, {v(vLaneV)}')
    a.e(f'v_add_u32 {v(vKn)}, {SLOT}, {v(vL16)}')
    a.e(f'v_add_u32 {v(vK2n)}, {SLOT}, {v(vLaneK2)}')
    a.e(f'v_add_u32 {v(vVn)}, {SLOT}, {v(vLaneV)}')
    T2=[P0,P1,E,E+4]
    for t in T2:
        a.e(f'v_mov_b32 {v(t+2)}, 0'); a.e(f'v_mov_b32 {v(t+3)}, 0')
    a.e('s_waitcnt vmcnt(0)')
    a.e('s_barrier')
    stamp(a,1)
    for t in range(4):
        a.e(f'ds_read_b128 {v(O+4*t,4)}, {v(vKc)} offset:{t*1280}')
        a.e(f'ds_read_b64 {v(T2[t],2)}, {v(vK2c)} offset:{t*1280}')
    a.e('s_waitcnt lgkmcnt(4)')
    a.e(mfma(SA,O,Q1,None)); a.e(mfma(SB,O+4,Q1,None))
    a.e(mfma(SA,T2[0],Q2,SA)); a.e(mfma(SB,T2[1],Q2,SB))
    a.e('s_waitcnt lgkmcnt(0)')
    a.e('s_nop 7'); a.e('s_nop 7')
    max16(a,SA,True)
    a.e(mfma(SA,O+8,Q1,None))
    max16(a,SB,False)
    a.e(mfma(SB,O+12,Q1,None))
    a.e(mfma(SA,T2[2],Q2,SA)); a.e(mfma(SB,T2[3],Q2,SB))
    a.e(f'ds_read_b128 {v(K1,4)}, {v(vKc)} offset:0')
    a.e(f'ds_read_b64 {v(K2,2)}, {v(vK2c)} offset:0')
    a.e('s_nop 7'); a.e('s_nop 7')
    max16(a,SA,False)
    max16(a,SB,False)
    set_m_pieces(a,'0x42c00000')
    for k in range(16): a.e(f'v_mov_b32 {v(O+k)}, 0')
    for k in range(4): a.e(f'v_mov_b32 {v(P1+k)}, 0')
    for k in range(4,8): a.e(f'v_mov_b32 {v(E+k)}, 0')
    a.e('s_waitcnt lgkmcnt(0)')
    a.e(mfma(SA,K1,Q1,None))
    a.e(mfma(SA,K2,Q2,SA))
    a.e(f'ds_read_b128 {v(K1,4)}, {v(vKc)} offset:1280')
    a.e(f'ds_read_b64 {v(K2,2)}, {v(vK2c)} offset:1280')
    a.e('s_mov_b64 exec, s[22:23]')
    a.e(f'ds_read_b128 {v(V1,4)}, {v(vVc)} offset:640')
    a.e(f'ds_read_b128 {v(V0,4)}, {v(vVc)} offset:0')
    a.e('s_mov_b64 exec, -1')
    a.e('s_waitcnt lgkmcnt(0)')
    a.e('s_nop 7'); a.e('s_nop 7')
    a.e('s_mov_b32 s24, 0')
    a.e('s_mov_b32 s25, 20480')
    a.e(f's_mov_b32 s26, {2*SLOT}')
    a.e(f's_mov_b32 s21, {SLOT}')
    stamp(a,2); stampc(a,5)
    a.label('ATT_LOOP')
    for i in range(8): tile(a,i)
    a.e(f'v_mov_b32 {v(vKc)}, {v(vKn)}')
    a.e(f'v_mov_b32 {v(vK2c)}, {v(vK2n)}')
    a.e(f'v_mov_b32 {v(vVc)}, {v(vVn)}')
    a.e('s_mov_b32 s21, s26')
    a.e(f's_add_u32 s26, s26, {SLOT}')
    a.e(f's_cmp_eq_u32 s26, {3*SLOT}')
    a.e('s_cselect_b32 s26, 0, s26')
    a.e(f'v_add_u32 {v(vKn)}, s21, {v(vL16)}')
    a.e(f'v_add_u32 {v(vK2n)}, s21, {v(vLaneK2)}')
    a.e(f'v_add_u32 {v(vVn)}, s21, {v(vLaneV)}')
    a.e('s_add_u32 s25, s25, 10240')
    a.e('s_add_u32 s24, s24, 1')
    a.e('s_cmp_lt_u32 s24, 8')
    a.e('s_cbranch_scc1 ATT_LOOP')
    stamp(a,3); stampc(a,6)
    a.e(f'v_cvt_pk_bf16_f32 {v(P1+2)}, {v(E+4)}, {v(E+5)}')
    a.e(f'v_cvt_pk_bf16_f32 {v(P1+3)}, {v(E+6)}, {v(E+7)}')
    a.e('s_waitcnt lgkmcnt(0)')
    a.e('s_nop 1')
    a.e(mfma(O,V1,P1,O))
    a.e('s_nop 7'); a.e('s_nop 7')
    a.e(f'v_mov_b32 {v(vT)}, 0')
    for k in range(13): a.e(f'v_fma_f32 {v(vT)}, {v(O+k)}, 0, {v(vT)}')
    a.e(f'v_cmp_u_f32 vcc, {v(vT)}, {v(vT)}')
    a.e('s_mov_b64 s[36:37], vcc')
    a.e(f'v_mov_b32 {v(vT)}, 0x7b800000')
    a.e(f'v_cmp_nlt_f32 vcc, {v(O+12)}, {v(vT)}')
    a.e('s_or_b64 vcc, vcc, s[36:37]')
    a.e('s_cbranch_vccnz ATT_FALLBACK')
    a.label('ATT_EPI')
    a.e(f'v_rcp_f32 {v(vT)}, {v(O+12)}')
    a.e('s_nop 0')
    for k in range(12): a.e(f'v_mul_f32 {v(O+k)}, {v(O+k)}, {v(vT)}')
    for k in range(6): a.e(f'v_cvt_pk_bf16_f32 {v(E+k)}, {v(O+2*k)}, {v(O+2*k+1)}')
    a.e('s_mul_i32 s33, s28, 40960')
    a.e('s_lshl_b32 s30, s27, 10')
    a.e('s_add_u32 s30, s30, s33')
    opol=' '.join(x for x in ('sc0','sc1','nt') if 'ost_'+x in FL)
    a.e(f'buffer_store_dwordx4 {v(E,4)}, {v(vL16)}, s[12:15], s30 offen {opol}')
    a.e('s_lshr_b32 s30, s27, 2')
    a.e('s_add_u32 s30, s30, 32')
    a.e('s_lshl_b32 s30, s30, 10')
    a.e('s_add_u32 s30, s30, s33')
    a.e('s_and_b32 s31, s27, 2')
    a.e('s_lshl_b32 s31, s31, 8')
    a.e('s_add_u32 s30, s30, s31')
    a.e('s_and_b32 s31, s27, 1')
    a.e('s_lshl_b32 s31, s31, 3')
    a.e('s_add_u32 s30, s30, s31')
    a.e('s_mov_b64 exec, 0xffffffff')
    a.e(f'buffer_store_dwordx2 {v(E+4,2)}, {v(vL16)}, s[12:15], s30 offen {opol}')
    a.e('s_waitcnt vmcnt(0)')
    stamp(a,4)
    stamp_store(a,7,34,'s16',8,0)
    a.label('ATT_END')
    a.e('s_endpgm')
    a.label('ATT_FALLBACK')
    a.e(f'v_mov_b32 {v(Q2+2)}, 0'); a.e(f'v_mov_b32 {v(Q2+3)}, 0')
    a.e(f'v_mov_b32 {v(vMx)}, 0xff800000')
    a.e('s_mov_b32 s30, 0')
    a.label('ATT_FB1')
    a.e(f'buffer_load_dwordx4 {v(K1,4)}, {v(vL16)}, s[4:7], s30 offen')
    a.e(f'buffer_load_dwordx2 {v(K2,2)}, {v(vLaneK2)}, s[4:7], s30 offen')
    a.e('s_waitcnt vmcnt(0)')
    a.e(mfma(SA,K1,Q1,None)); a.e(mfma(SA,K2,Q2,SA))
    a.e('s_nop 7'); a.e('s_nop 7')
    max16(a,SA,False)
    a.e('s_add_u32 s30, s30, 1280')
    a.e('s_cmp_lt_u32 s30, 81920')
    a.e('s_cbranch_scc1 ATT_FB1')
    set_m_pieces(a,'0')
    for k in range(16): a.e(f'v_mov_b32 {v(O+k)}, 0')
    a.e(f'v_add_u32 {v(vVc)}, {VIMG-KIMG-10240}, {v(vLaneV)}')
    a.e('s_mov_b32 s30, 0')
    a.label('ATT_FB2')
    a.e(f'buffer_load_dwordx4 {v(K1,4)}, {v(vL16)}, s[4:7], s30 offen')
    a.e(f'buffer_load_dwordx2 {v(K2,2)}, {v(vLaneK2)}, s[4:7], s30 offen')
    a.e('s_mov_b64 exec, s[22:23]')
    a.e(f'buffer_load_dwordx4 {v(V0,4)}, {v(vVc)}, s[4:7], s30 offen')
    a.e(f'buffer_load_dwordx4 {v(V1,4)}, {v(vVc)}, s[4:7], s30 offen offset:640')
    a.e('s_mov_b64 exec, -1')
    a.e('s_waitcnt vmcnt(0)')
    a.e(mfma(SA,K1,Q1,None)); a.e(mfma(SA,K2,Q2,SA))
    a.e('s_nop 7'); a.e('s_nop 7')
    for k in range(16): a.e(f'v_exp_f32 {v(SB+k)}, {v(SA+k)}')
    a.e('s_nop 0')
    for k in range(4): a.e(f'v_cvt_pk_bf16_f32 {v(P0+k)}, {v(SB+2*k)}, {v(SB+2*k+1)}')
    for k in range(4): a.e(f'v_cvt_pk_bf16_f32 {v(P1+k)}, {v(SB+8+2*k)}, {v(SB+8+2*k+1)}')
    a.e('s_nop 1')
    a.e(mfma(O,V0,P0,O)); a.e(mfma(O,V1,P1,O))
    a.e('s_add_u32 s30, s30, 1280')
    a.e('s_cmp_lt_u32 s30, 81920')
    a.e('s_cbranch_scc1 ATT_FB2')
    a.e('s_nop 7'); a.e('s_nop 7')
    a.e('s_branch ATT_EPI')
    if 'ffn2' in FL:
        a.label('ATT_FFN2')
        gen_ffn2.FL=FL
        gen_ffn2.ffn2_role(a)
        return 128
    return NV
```

```python
from asmlib import *
from layouts import QIMG,KIMG,VIMG,OIMG,FLAGS,FLAGS_BYTES
import gen_ffn2
NAME='att_kernel'
SLOT=20480
Q1=0+8
Q2=12
K1=16
K2=20
V0=24; V1=28
P0=32; P1=36
E=40
SA=48; SB=64
O=80
vKc=96; vK2c=97; vVc=98; vKn=99; vK2n=100; vVn=101
vL16=0
vT=1; vT2=2; vT3=3; vLaneK=4; vLaneK2=5; vLaneV=6; vMx=7
NV=102
def mfma(d,a,b,c):
    cs = '0' if c is None else v(c,16)
    return f'v_mfma_f32_32x32x16_bf16 {v(d,16)}, {v(a,4)}, {v(b,4)}, {cs}'

def emit_dma(a, soff_chunk, sslot):
    a.e(f's_add_u32 s30, s17, {soff_chunk}')
    a.e(f's_add_u32 m0, s20, {sslot}')
    a.e(f's_add_u32 s31, s18, {soff_chunk}')
    a.e(f'buffer_load_dwordx4 {v(vL16)}, s[4:7], s30 offen lds')
    a.e(f's_add_u32 m0, m0, 8192')
    a.e(f's_add_u32 s30, s19, {soff_chunk}')
    a.e(f'buffer_load_dwordx4 {v(vL16)}, s[4:7], s31 offen lds')
    l=a.newlabel('nodma3')
    a.e(f's_cmp_ge_u32 s16, 4')
    a.e(f's_cbranch_scc1 {l}')
    a.e(f's_add_u32 m0, m0, 8192')
    a.e('s_nop 0')
    a.e(f'buffer_load_dwordx4 {v(vL16)}, s[4:7], s30 offen lds')
    a.label(l)

def set_m_pieces(a, add):
    a.e(f'v_mov_b32 {v(vT)}, {v(vMx)}')
    a.e('s_nop 1')
    a.e(f'v_permlane32_swap_b32 {v(vT)}, {v(vMx)}')
    a.e('s_nop 1')
    a.e(f'v_max_f32 {v(vMx)}, {v(vT)}, {v(vMx)}')
    a.e(f'v_ceil_f32 {v(vMx)}, {v(vMx)}')
    a.e(f'v_mov_b32 {v(vT)}, {add}')
    a.e(f'v_add_f32 {v(vMx)}, {v(vT)}, {v(vMx)}')
    a.e(f'v_sub_f32 {v(vMx)}, 0, {v(vMx)}')
    a.e(f'v_and_b32 {v(vT)}, 0xffff0000, {v(vMx)}')
    a.e(f'v_sub_f32 {v(vT2)}, {v(vMx)}, {v(vT)}')
    a.e(f'v_and_b32 {v(vT3)}, 0xffff0000, {v(vT2)}')
    a.e(f'v_sub_f32 {v(vT2)}, {v(vT2)}, {v(vT3)}')
    a.e(f'v_lshrrev_b32 {v(vT)}, 16, {v(vT)}')
    a.e(f'v_or_b32 {v(vT)}, {v(vT)}, {v(vT3)}')
    a.e(f'v_lshrrev_b32 {v(vT2)}, 16, {v(vT2)}')
    a.e('s_mov_b64 exec, 0xffffffff')
    a.e(f'v_mov_b32 {v(Q2+2)}, {v(vT)}')
    a.e(f'v_mov_b32 {v(Q2+3)}, {v(vT2)}')
    a.e('s_mov_b64 exec, -1')

def max16(a, S, first):
    for i in range(0,16,2):
        if first and i==0:
            a.e(f'v_max_f32 {v(vMx)}, {v(S)}, {v(S+1)}')
        else:
            a.e(f'v_max3_f32 {v(vMx)}, {v(vMx)}, {v(S+i)}, {v(S+i+1)}')

FL=set()
def tile(a,i):
    S,N=(SA,SB) if i%2==0 else (SB,SA)
    def addr(kind,ti):
        cur={'k':vKc,'k2':vK2c,'v':vVc}[kind]; nxt={'k':vKn,'k2':vK2n,'v':vVn}[kind]
        return (cur,ti*1280) if ti<8 else (nxt,(ti-8)*1280)
    a.c(f'---- tile {i}')
    if i==6 and 'nodma' not in FL:
        a.e('s_waitcnt vmcnt(0)')
        a.e('s_barrier')
        l=a.newlabel('nodma')
        a.e('s_cmp_ge_u32 s24, 6')
        a.e(f's_cbranch_scc1 {l}')
        emit_dma(a,'s25','s26')
        a.label(l)
    if 'nolds' in FL:
        E_=a.e
        class A2:
            def e(self,s):
                if s.startswith('ds_read') or s.startswith('s_waitcnt lgkm') or s.startswith('s_mov_b64 exec'): return
                E_(s)
        a=A2()
    ex=lambda dst,src: a.e(f'v_exp_f32 {v(dst)}, {v(src)}')
    cv=lambda dst,x: a.e(f'v_cvt_pk_bf16_f32 {v(dst)}, {v(x)}, {v(x+1)}')
    a.e('s_waitcnt lgkmcnt(3)')
    a.e(mfma(N,K1,Q1,None))
    r,o=addr('k',i+2); a.e(f'ds_read_b128 {v(K1,4)}, {v(r)} offset:{o}')
    cv(P1+2,E+4); cv(P1+3,E+6)
    for k in range(4): ex(E+k,S+k)
    a.e('s_waitcnt lgkmcnt(3)')
    a.e(mfma(N,K2,Q2,N))
    r,o=addr('k2',i+2); a.e(f'ds_read_b64 {v(K2,2)}, {v(r)} offset:{o}')
    for k in range(4): ex(E+4+k,S+4+k)
    cv(P0,E); cv(P0+1,E+2)
    a.e('s_waitcnt lgkmcnt(3)')
    a.e(mfma(O,V1,P1,O))
    cv(P0+2,E+4); cv(P0+3,E+6)
    for k in range(4): ex(E+k,S+8+k)
    a.e('s_waitcnt lgkmcnt(2)')
    a.e(mfma(O,V0,P0,O))
    if 'noexec' not in FL: a.e('s_mov_b64 exec, s[22:23]')
    r,o=addr('v',i);   a.e(f'ds_read_b128 {v(V1,4)}, {v(r)} offset:{o+640}')
    r,o=addr('v',i+1); a.e(f'ds_read_b128 {v(V0,4)}, {v(r)} offset:{o}')
    if 'noexec' not in FL: a.e('s_mov_b64 exec, -1')
    for k in range(4): ex(E+4+k,S+12+k)
    cv(P1,E); cv(P1+1,E+2)

from stamps import stamp, stamp_store, stampc
import stamps
def att_kernel(a, name=NAME):
    a.lines.append(kernel_header(name))
    a.e(f's_cmp_ge_u32 s2, {512 if ("dup" in FL or "ffn2" in FL) else 256}')
    a.e('s_cbranch_scc1 ATT_END')
    if 'dup' in FL: a.e('s_and_b32 s2, s2, 255')
    a.e('s_load_dwordx2 s[34:35], s[0:1], 72')
    if 'ffn2' in FL:
        a.e('s_cmp_ge_u32 s2, 256')
        a.e('s_cbranch_scc1 ATT_FFN2')
        if 'aprio' in FL: a.e('s_setprio 2')
    stamp(a,0)
    a.e(f'v_lshrrev_b32 {v(vT)}, 6, v0')
    a.e(f'v_and_b32 v0, 63, v0')
    a.e(f'v_readfirstlane_b32 s16, {v(vT)}')
    a.e('s_and_b32 s27, s2, 7')
    a.e('s_lshr_b32 s28, s2, 3')
    a.e('s_and_b32 s29, s28, 0x18')
    a.e('s_add_u32 s27, s27, s29')
    a.e('s_and_b32 s28, s28, 7')
    a.e('s_lshl_b32 s28, s28, 3')
    a.e('s_add_u32 s28, s28, s16')
    a.e('s_mul_i32 s29, s27, 81920')
    a.e(f'v_and_b32 {v(vT)}, 31, v0')
    a.e(f'v_lshrrev_b32 {v(vT2)}, 5, v0')
    a.e(f'v_lshlrev_b32 {v(vLaneK2)}, 3, {v(vT)}')
    a.e(f'v_add_u32 {v(vLaneK2)}, 1024, {v(vLaneK2)}')
    a.e(f'v_mul_u32_u24 {v(vLaneV)}, 320, {v(vT2)}')
    a.e(f'v_lshlrev_b32 {v(vT)}, 4, {v(vT)}')
    a.e(f'v_add_u32 {v(vLaneV)}, {v(vLaneV)}, {v(vT)}')
    a.e(f'v_lshlrev_b32 {v(vL16)}, 4, v0')
    a.e('s_lshl_b32 s20, s16, 10')
    a.e('s_mov_b32 s17, s20')
    a.e(f's_add_u32 s18, s20, 8192')
    a.e(f's_add_u32 s19, s20, {VIMG-KIMG-2048}')
    a.e('s_cmp_lt_u32 s16, 2')
    a.e('s_cselect_b32 s18, s18, s19')
    a.e(f's_add_u32 s19, s20, {VIMG-KIMG+6144}')
    a.e('s_mov_b32 s22, 0x000fffff')
    a.e('s_mov_b32 s23, 0x000fffff')
    a.e('s_waitcnt lgkmcnt(0)')
    a.e(f's_add_u32 s4, s34, {KIMG}')
    a.e('s_addc_u32 s5, s35, 0')
    a.e('s_add_u32 s4, s4, s29')
    a.e('s_addc_u32 s5, s5, 0')
    a.e(f's_sub_u32 s6, {VIMG+2621440-KIMG}, s29')
    a.e('s_mov_b32 s7, 0x00020000')
    a.e(f's_add_u32 s8, s34, {QIMG}')
    a.e('s_addc_u32 s9, s35, 0')
    a.e('s_mov_b32 s10, 2621440')
    a.e('s_mov_b32 s11, 0x00020000')
    a.e(f's_add_u32 s12, s34, {OIMG}')
    a.e('s_addc_u32 s13, s35, 0')
    a.e('s_mov_b32 s14, 2621440')
    a.e('s_mov_b32 s15, 0x00020000')
    a.e('s_mov_b32 s25, 0'); a.e('s_mov_b32 s26, 0')
    emit_dma(a,'s25','s26')
    a.e('s_mov_b32 s25, 10240'); a.e(f's_mov_b32 s26, {SLOT}')
    emit_dma(a,'s25','s26')
    a.e('s_mul_i32 s33, s28, 1280')
    a.e('s_add_u32 s33, s33, s29')
    for k in range(4): a.e(f'v_mov_b32 {v(Q2+k)}, 0')
    a.e(f'buffer_load_dwordx4 {v(Q1,4)}, {v(vL16)}, s[8:11], s33 offen')
    a.e('s_mov_b64 exec, 0xffffffff')
    a.e(f'buffer_load_dwordx2 {v(Q2,2)}, {v(vLaneK2)}, s[8:11], s33 offen')
    a.e('s_mov_b64 exec, -1')
    a.e(f'v_mov_b32 {v(K2+2)}, 0x3f803f80')
    a.e(f'v_mov_b32 {v(K2+3)}, 0x00003f80')
    for k in range(4):
        a.e(f'v_mov_b32 {v(V0+k)}, 0x3f803f80')
        a.e(f'v_mov_b32 {v(V1+k)}, 0x3f803f80')
    a.e(f'v_mov_b32 {v(vKc)}, {v(vL16)}')
    a.e(f'v_mov_b32 {v(vK2c)}, {v(vLaneK2)}')
    a.e(f'v_add_u32 {v(vLaneV)}, 10240, {v(vLaneV)}')
    a.e(f'v_mov_b32 {v(vVc)}, {v(vLaneV)}')
    a.e(f'v_add_u32 {v(vKn)}, {SLOT}, {v(vL16)}')
    a.e(f'v_add_u32 {v(vK2n)}, {SLOT}, {v(vLaneK2)}')
    a.e(f'v_add_u32 {v(vVn)}, {SLOT}, {v(vLaneV)}')
    T2=[P0,P1,E,E+4]
    for t in T2:
        a.e(f'v_mov_b32 {v(t+2)}, 0'); a.e(f'v_mov_b32 {v(t+3)}, 0')
    a.e('s_waitcnt vmcnt(0)')
    a.e('s_barrier')
    stamp(a,1)
    for t in range(4):
        a.e(f'ds_read_b128 {v(O+4*t,4)}, {v(vKc)} offset:{t*1280}')
        a.e(f'ds_read_b64 {v(T2[t],2)}, {v(vK2c)} offset:{t*1280}')
    a.e('s_waitcnt lgkmcnt(4)')
    a.e(mfma(SA,O,Q1,None)); a.e(mfma(SB,O+4,Q1,None))
    a.e(mfma(SA,T2[0],Q2,SA)); a.e(mfma(SB,T2[1],Q2,SB))
    a.e('s_waitcnt lgkmcnt(0)')
    a.e('s_nop 7'); a.e('s_nop 7')
    max16(a,SA,True)
    a.e(mfma(SA,O+8,Q1,None))
    max16(a,SB,False)
    a.e(mfma(SB,O+12,Q1,None))
    a.e(mfma(SA,T2[2],Q2,SA)); a.e(mfma(SB,T2[3],Q2,SB))
    a.e(f'ds_read_b128 {v(K1,4)}, {v(vKc)} offset:0')
    a.e(f'ds_read_b64 {v(K2,2)}, {v(vK2c)} offset:0')
    a.e('s_nop 7'); a.e('s_nop 7')
    max16(a,SA,False)
    max16(a,SB,False)
    set_m_pieces(a,'0x42c00000')
    for k in range(16): a.e(f'v_mov_b32 {v(O+k)}, 0')
    for k in range(4): a.e(f'v_mov_b32 {v(P1+k)}, 0')
    for k in range(4,8): a.e(f'v_mov_b32 {v(E+k)}, 0')
    a.e('s_waitcnt lgkmcnt(0)')
    a.e(mfma(SA,K1,Q1,None))
    a.e(mfma(SA,K2,Q2,SA))
    a.e(f'ds_read_b128 {v(K1,4)}, {v(vKc)} offset:1280')
    a.e(f'ds_read_b64 {v(K2,2)}, {v(vK2c)} offset:1280')
    a.e('s_mov_b64 exec, s[22:23]')
    a.e(f'ds_read_b128 {v(V1,4)}, {v(vVc)} offset:640')
    a.e(f'ds_read_b128 {v(V0,4)}, {v(vVc)} offset:0')
    a.e('s_mov_b64 exec, -1')
    a.e('s_waitcnt lgkmcnt(0)')
    a.e('s_nop 7'); a.e('s_nop 7')
    a.e('s_mov_b32 s24, 0')
    a.e('s_mov_b32 s25, 20480')
    a.e(f's_mov_b32 s26, {2*SLOT}')
    a.e(f's_mov_b32 s21, {SLOT}')
    stamp(a,2); stampc(a,5)
    a.label('ATT_LOOP')
    for i in range(8): tile(a,i)
    a.e(f'v_mov_b32 {v(vKc)}, {v(vKn)}')
    a.e(f'v_mov_b32 {v(vK2c)}, {v(vK2n)}')
    a.e(f'v_mov_b32 {v(vVc)}, {v(vVn)}')
    a.e('s_mov_b32 s21, s26')
    a.e(f's_add_u32 s26, s26, {SLOT}')
    a.e(f's_cmp_eq_u32 s26, {3*SLOT}')
    a.e('s_cselect_b32 s26, 0, s26')
    a.e(f'v_add_u32 {v(vKn)}, s21, {v(vL16)}')
    a.e(f'v_add_u32 {v(vK2n)}, s21, {v(vLaneK2)}')
    a.e(f'v_add_u32 {v(vVn)}, s21, {v(vLaneV)}')
    a.e('s_add_u32 s25, s25, 10240')
    a.e('s_add_u32 s24, s24, 1')
    a.e('s_cmp_lt_u32 s24, 8')
    a.e('s_cbranch_scc1 ATT_LOOP')
    stamp(a,3); stampc(a,6)
    a.e(f'v_cvt_pk_bf16_f32 {v(P1+2)}, {v(E+4)}, {v(E+5)}')
    a.e(f'v_cvt_pk_bf16_f32 {v(P1+3)}, {v(E+6)}, {v(E+7)}')
    a.e('s_waitcnt lgkmcnt(0)')
    a.e('s_nop 1')
    a.e(mfma(O,V1,P1,O))
    a.e('s_nop 7'); a.e('s_nop 7')
    a.e(f'v_mov_b32 {v(vT)}, 0')
    for k in range(13): a.e(f'v_fma_f32 {v(vT)}, {v(O+k)}, 0, {v(vT)}')
    a.e(f'v_cmp_u_f32 vcc, {v(vT)}, {v(vT)}')
    a.e('s_mov_b64 s[36:37], vcc')
    a.e(f'v_mov_b32 {v(vT)}, 0x7b800000')
    a.e(f'v_cmp_nlt_f32 vcc, {v(O+12)}, {v(vT)}')
    a.e('s_or_b64 vcc, vcc, s[36:37]')
    a.e('s_cbranch_vccnz ATT_FALLBACK')
    a.label('ATT_EPI')
    a.e(f'v_rcp_f32 {v(vT)}, {v(O+12)}')
    a.e('s_nop 0')
    for k in range(12): a.e(f'v_mul_f32 {v(O+k)}, {v(O+k)}, {v(vT)}')
    for k in range(6): a.e(f'v_cvt_pk_bf16_f32 {v(E+k)}, {v(O+2*k)}, {v(O+2*k+1)}')
    a.e('s_mul_i32 s33, s28, 40960')
    a.e('s_lshl_b32 s30, s27, 10')
    a.e('s_add_u32 s30, s30, s33')
    opol=' '.join(x for x in ('sc0','sc1','nt') if 'ost_'+x in FL)
    a.e(f'buffer_store_dwordx4 {v(E,4)}, {v(vL16)}, s[12:15], s30 offen {opol}')
    a.e('s_lshr_b32 s30, s27, 2')
    a.e('s_add_u32 s30, s30, 32')
    a.e('s_lshl_b32 s30, s30, 10')
    a.e('s_add_u32 s30, s30, s33')
    a.e('s_and_b32 s31, s27, 2')
    a.e('s_lshl_b32 s31, s31, 8')
    a.e('s_add_u32 s30, s30, s31')
    a.e('s_and_b32 s31, s27, 1')
    a.e('s_lshl_b32 s31, s31, 3')
    a.e('s_add_u32 s30, s30, s31')
    a.e('s_mov_b64 exec, 0xffffffff')
    a.e(f'buffer_store_dwordx2 {v(E+4,2)}, {v(vL16)}, s[12:15], s30 offen {opol}')
    a.e('s_waitcnt vmcnt(0)')
    if 'fuse' in FL:
        a.e(f's_add_u32 s8, s34, {FLAGS}'); a.e('s_addc_u32 s9, s35, 0'); a.e(f's_mov_b32 s10, {FLAGS_BYTES}')
        a.e('s_lshl_b32 s30, s28, 5'); a.e('s_add_u32 s30, s30, s27'); a.e('s_lshl_b32 s30, s30, 2')
        a.e(f'v_mov_b32 {v(vT)}, 1')
        a.e('s_mov_b64 exec, 1')
        a.e(f'buffer_store_dword {v(vT)}, off, s[8:11], s30 sc1')
        a.e('s_waitcnt vmcnt(0)')
    stamp(a,4)
    stamp_store(a,7,34,'s16',8,0)
    a.label('ATT_END')
    a.e('s_endpgm')
    a.label('ATT_FALLBACK')
    a.e(f'v_mov_b32 {v(Q2+2)}, 0'); a.e(f'v_mov_b32 {v(Q2+3)}, 0')
    a.e(f'v_mov_b32 {v(vMx)}, 0xff800000')
    a.e('s_mov_b32 s30, 0')
    a.label('ATT_FB1')
    a.e(f'buffer_load_dwordx4 {v(K1,4)}, {v(vL16)}, s[4:7], s30 offen')
    a.e(f'buffer_load_dwordx2 {v(K2,2)}, {v(vLaneK2)}, s[4:7], s30 offen')
    a.e('s_waitcnt vmcnt(0)')
    a.e(mfma(SA,K1,Q1,None)); a.e(mfma(SA,K2,Q2,SA))
    a.e('s_nop 7'); a.e('s_nop 7')
    max16(a,SA,False)
    a.e('s_add_u32 s30, s30, 1280')
    a.e('s_cmp_lt_u32 s30, 81920')
    a.e('s_cbranch_scc1 ATT_FB1')
    set_m_pieces(a,'0')
    for k in range(16): a.e(f'v_mov_b32 {v(O+k)}, 0')
    a.e(f'v_add_u32 {v(vVc)}, {VIMG-KIMG-10240}, {v(vLaneV)}')
    a.e('s_mov_b32 s30, 0')
    a.label('ATT_FB2')
    a.e(f'buffer_load_dwordx4 {v(K1,4)}, {v(vL16)}, s[4:7], s30 offen')
    a.e(f'buffer_load_dwordx2 {v(K2,2)}, {v(vLaneK2)}, s[4:7], s30 offen')
    a.e('s_mov_b64 exec, s[22:23]')
    a.e(f'buffer_load_dwordx4 {v(V0,4)}, {v(vVc)}, s[4:7], s30 offen')
    a.e(f'buffer_load_dwordx4 {v(V1,4)}, {v(vVc)}, s[4:7], s30 offen offset:640')
    a.e('s_mov_b64 exec, -1')
    a.e('s_waitcnt vmcnt(0)')
    a.e(mfma(SA,K1,Q1,None)); a.e(mfma(SA,K2,Q2,SA))
    a.e('s_nop 7'); a.e('s_nop 7')
    for k in range(16): a.e(f'v_exp_f32 {v(SB+k)}, {v(SA+k)}')
    a.e('s_nop 0')
    for k in range(4): a.e(f'v_cvt_pk_bf16_f32 {v(P0+k)}, {v(SB+2*k)}, {v(SB+2*k+1)}')
    for k in range(4): a.e(f'v_cvt_pk_bf16_f32 {v(P1+k)}, {v(SB+8+2*k)}, {v(SB+8+2*k+1)}')
    a.e('s_nop 1')
    a.e(mfma(O,V0,P0,O)); a.e(mfma(O,V1,P1,O))
    a.e('s_add_u32 s30, s30, 1280')
    a.e('s_cmp_lt_u32 s30, 81920')
    a.e('s_cbranch_scc1 ATT_FB2')
    a.e('s_nop 7'); a.e('s_nop 7')
    a.e('s_branch ATT_EPI')
    if 'ffn2' in FL:
        a.label('ATT_FFN2')
        gen_ffn2.FL=FL
        gen_ffn2.ffn2_role(a)
        return 128
    return NV
```

```python
from asmlib import *
from layouts import HIMG,WIMG,GIMG,GIMG_BYTES,OIMG,FLAGS,FLAGS_BYTES
from stamps import stamp, stamp_store, stampc
FL=set()
NB=3
BUF=4; ACC=88
vA0=0; vA1=1; vB0=2; vT=3
def acc(u,t): return ACC+(u*5+t)*4
def bufA(b,t): return BUF+28*b+4*t
def bufB(b,u): return BUF+28*b+20+4*u
def loadA(a,b,t):
    if t<4: a.e(f'buffer_load_dwordx4 {v(bufA(b,t),4)}, {v(vA0)}, s[4:7], s20 offen offset:{t*1024}')
    else:   a.e(f'buffer_load_dwordx4 {v(bufA(b,t),4)}, {v(vA1)}, s[4:7], s20 offen')
def loadB(a,b,u):
    a.e(f'buffer_load_dwordx4 {v(bufB(b,u),4)}, {v(vB0)}, s[8:11], s21 offen offset:{u*256}')
def advance(a):
    a.e('s_add_u32 s20, s20, 5120'); a.e('s_add_u32 s21, s21, 2048')

def ffn2_role(a):
    spol=' '.join(x for x in ('sc0','sc1','nt') if 'gst_'+x in FL)
    if 'fuse' in FL:
        a.e('s_load_dwordx2 s[36:37], s[0:1], 0')
        a.e('s_load_dwordx2 s[38:39], s[0:1], 56')
    stamp(a,0)
    a.e('v_lshrrev_b32 v3, 6, v0')
    a.e('v_and_b32 v0, 63, v0')
    a.e('v_readfirstlane_b32 s16, v3')
    a.e('s_and_b32 s27, s2, 7')
    a.e('s_lshr_b32 s28, s2, 3'); a.e('s_and_b32 s28, s28, 31')
    a.e('s_lshr_b32 s29, s27, 1')
    a.e('s_lshl_b32 s29, s29, 3')
    a.e('s_lshr_b32 s30, s28, 2')
    a.e('s_add_u32 s17, s29, s30')
    a.e('s_and_b32 s27, s27, 1')
    a.e('s_lshl_b32 s27, s27, 2')
    a.e('s_and_b32 s28, s28, 3')
    a.e('s_add_u32 s18, s27, s28')
    a.e('s_and_b32 s19, s16, 1')
    a.e('s_lshr_b32 s22, s16, 1')
    a.e('v_lshrrev_b32 v3, 4, v0')
    a.e('v_and_b32 v4, 15, v0')
    a.e(f'v_lshlrev_b32 {v(vB0)}, 9, v3')
    a.e('v_lshlrev_b32 v4, 4, v4')
    a.e(f'v_add_u32 {v(vB0)}, {v(vB0)}, v4')
    a.e(f'v_lshlrev_b32 {v(vA0)}, 4, v0')
    a.e(f'v_add_u32 {v(vA1)}, 4096, {v(vA0)}')
    a.e('s_mul_i32 s27, s18, 348160')
    a.e(f's_mul_i32 s28, s22, {12*5120}')
    a.e('s_add_u32 s27, s27, s28')
    a.e(f's_add_u32 s27, s27, {WIMG}')
    a.e('s_lshl_b32 s28, s17, 1'); a.e('s_add_u32 s28, s28, s19')
    a.e('s_mul_i32 s28, s28, 98304')
    a.e(f's_mul_i32 s29, s22, {12*2048}')
    a.e('s_add_u32 s28, s28, s29')
    a.e(f's_add_u32 s28, s28, {HIMG}')
    a.e('s_mov_b32 s20, 0'); a.e('s_mov_b32 s21, 0')
    a.e('s_waitcnt lgkmcnt(0)')
    a.e('s_add_u32 s4, s34, s27'); a.e('s_addc_u32 s5, s35, 0'); a.e(f's_mov_b32 s6, {12*5120}'); a.e('s_mov_b32 s7, 0x00020000')
    a.e('s_add_u32 s8, s34, s28'); a.e('s_addc_u32 s9, s35, 0'); a.e(f's_mov_b32 s10, {12*2048}'); a.e('s_mov_b32 s11, 0x00020000')
    for b in range(NB):
        for u in range(2): loadB(a,b,u)
        for t in range(5): loadA(a,b,t)
        advance(a)
    n=12
    for j in range(n):
        b=j%NB
        issued=min(j+NB,n)
        a.e(f's_waitcnt vmcnt({7*(issued-j-1)})')
        if j==0: stamp(a,1)
        more=j+NB<n
        for t in range(5):
            for u in range(2):
                c=v(acc(u,t),4) if j>0 else '0'
                a.e(f'v_mfma_f32_16x16x32_bf16 {v(acc(u,t),4)}, {v(bufA(b,t),4)}, {v(bufB(b,u),4)}, {c}')
            if more and t>0: loadA(a,b,t-1)
        if more:
            loadA(a,b,4)
            for u in range(2): loadB(a,b,u)
            advance(a)
    stamp(a,2)
    a.e('s_lshl_b32 s23, s19, 1')
    for u in range(2):
        a.e(f's_add_u32 s27, s23, {u}')
        a.e('s_mul_i32 s27, s27, 3')
        a.e(f's_cmp_gt_u32 s22, {u}')
        a.e('s_cselect_b32 s28, 1, 0')
        a.e('s_sub_u32 s28, s22, s28')
        a.e('s_add_u32 s27, s27, s28')
        a.e('s_mul_i32 s27, s27, 5120')
        a.e(f'v_add_u32 {v(BUF+u)}, s27, {v(vA0)}')
    a.e('s_nop 7')
    for u in range(2):
        l=a.newlabel('fx')
        a.e(f's_cmp_eq_u32 s22, {u}')
        a.e(f's_cbranch_scc1 {l}')
        for t in range(5): a.e(f'ds_write_b128 {v(BUF+u)}, {v(acc(u,t),4)} offset:{t*1024}')
        a.label(l)
    a.e('s_waitcnt lgkmcnt(0)')
    a.e('s_barrier')
    if 'fuse' in FL: return fused_tail(a)
    a.e('s_cmp_ge_u32 s22, 2')
    a.e('s_cbranch_scc1 FFN_TAIL')
    a.e('s_add_u32 s23, s23, s22')
    a.e(f's_mul_i32 s27, s23, {3*5120}')
    a.e(f'v_add_u32 {v(vT)}, s27, {v(vA0)}')
    R=BUF
    for k in range(3):
        for t in range(5): a.e(f'ds_read_b128 {v(R+20*k+4*t,4)}, {v(vT)} offset:{(k*5+t)*1024}')
    a.e('s_cmp_eq_u32 s22, 0')
    a.e('s_cbranch_scc1 FFN_OWN0')
    for i in range(20): a.e(f'v_mov_b32 {v(ACC+i)}, {v(ACC+20+i)}')
    a.label('FFN_OWN0')
    G=ACC; E=ACC+20
    a.e('s_waitcnt lgkmcnt(10)')
    for i in range(20): a.e(f'v_add_f32 {v(G+i)}, {v(G+i)}, {v(R+i)}')
    a.e('s_waitcnt lgkmcnt(5)')
    for i in range(20): a.e(f'v_add_f32 {v(G+i)}, {v(G+i)}, {v(R+20+i)}')
    a.e('s_waitcnt lgkmcnt(0)')
    for i in range(20): a.e(f'v_add_f32 {v(G+i)}, {v(G+i)}, {v(R+40+i)}')
    for i in range(20): a.e(f'v_mul_f32 {v(E+i)}, 0xbfb8aa3b, {v(G+i)}')
    for i in range(20): a.e(f'v_exp_f32 {v(E+i)}, {v(E+i)}')
    for i in range(20): a.e(f'v_add_f32 {v(E+i)}, 1.0, {v(E+i)}')
    for i in range(20): a.e(f'v_rcp_f32 {v(E+i)}, {v(E+i)}')
    for i in range(20): a.e(f'v_mul_f32 {v(G+i)}, {v(G+i)}, {v(E+i)}')
    for i in range(10): a.e(f'v_cvt_pk_bf16_f32 {v(E+i)}, {v(G+2*i)}, {v(G+2*i+1)}')
    a.e('s_lshl_b32 s27, s17, 3'); a.e('s_add_u32 s27, s27, s18'); a.e('s_lshl_b32 s27, s27, 2'); a.e('s_add_u32 s27, s27, s23')
    a.e('s_mul_i32 s27, s27, 2560')
    a.e(f's_add_u32 s4, s34, {GIMG}'); a.e('s_addc_u32 s5, s35, 0'); a.e(f's_mov_b32 s6, {GIMG_BYTES}')
    a.e(f'v_lshrrev_b32 {v(vT)}, 1, {v(vA0)}')
    a.e(f'buffer_store_dwordx4 {v(E,4)}, {v(vA0)}, s[4:7], s27 offen {spol}')
    a.e(f'buffer_store_dwordx4 {v(E+4,4)}, {v(vA0)}, s[4:7], s27 offen offset:1024 {spol}')
    a.e(f'buffer_store_dwordx2 {v(E+8,2)}, {v(vT)}, s[4:7], s27 offen offset:2048 {spol}')
    a.e('s_waitcnt vmcnt(0)')
    stamp(a,3)
    stamp(a,4)
    stamp_store(a,5,34,'s16',8,1*1024*1024-256*8*128)
    a.e('s_endpgm')
    a.label('FFN_TAIL')
    if 'pfk3' in FL:
        pass
    stamp(a,3); stamp(a,4)
    stamp_store(a,5,34,'s16',8,1*1024*1024-256*8*128)
    a.e('s_endpgm')


def exch_addr(a,r0,r1):
    for u,r in ((0,r0),(1,r1)):
        a.e(f's_add_u32 s27, s23, {u}')
        a.e('s_mul_i32 s27, s27, 3')
        a.e(f's_cmp_gt_u32 s22, {u}')
        a.e('s_cselect_b32 s28, 1, 0')
        a.e('s_sub_u32 s28, s22, s28')
        a.e('s_add_u32 s27, s27, s28')
        a.e('s_mul_i32 s27, s27, 5120')
        a.e(f'v_add_u32 {v(r)}, s27, {v(vA0)}')

def lane_off(a,vXo,vXo2,vT):
    a.e(f'v_bfe_u32 {v(vXo)}, {v(vA0)}, 4, 4')
    a.e(f'v_lshrrev_b32 {v(vXo2)}, 8, {v(vA0)}')
    a.e(f'v_mul_u32_u24 {v(vXo)}, 1280, {v(vXo)}')
    a.e(f'v_lshlrev_b32 {v(vXo2)}, 3, {v(vXo2)}')
    a.e(f'v_add_u32 {v(vT)}, {v(vXo)}, {v(vXo2)}')
    a.e(f'v_add_u32 {v(vXo)}, {v(vT)}, {v(vXo2)}')
    a.e(f'v_add_u32 {v(vXo2)}, 128, {v(vT)}')

def fused_tail(a):
    spol=' '.join(x for x in ('sc0','sc1','nt') if 'k3st_'+x in FL)
    GP=108; X=118; A2=68; BB=4; AA=44; vXo=64; vXo2=65; vLA=66; vT=3
    R=BUF
    a.e('s_and_b32 s24, s22, 1')
    a.e('s_add_u32 s24, s23, s24')
    a.e('s_lshl_b32 s27, s17, 6'); a.e('s_lshl_b32 s28, s24, 4'); a.e('s_add_u32 s27, s27, s28')
    a.e('s_mul_i32 s27, s27, 1280'); a.e('s_mul_i32 s28, s18, 160'); a.e('s_add_u32 s26, s27, s28')
    a.e('s_mov_b32 s12, s36'); a.e('s_mov_b32 s13, s37'); a.e('s_mov_b32 s14, 2621440'); a.e('s_mov_b32 s15, 0x00020000')
    a.e('s_cmp_ge_u32 s22, 2')
    a.e('s_cbranch_scc1 FFN_NOG')
    a.e(f's_mul_i32 s27, s24, {3*5120}')
    a.e(f'v_add_u32 {v(vT)}, s27, {v(vA0)}')
    for k in range(3):
        for t in range(5): a.e(f'ds_read_b128 {v(R+20*k+4*t,4)}, {v(vT)} offset:{(k*5+t)*1024}')
    a.e('s_cmp_eq_u32 s22, 0')
    a.e('s_cbranch_scc1 FFN_OWN0')
    for i in range(20): a.e(f'v_mov_b32 {v(ACC+i)}, {v(ACC+20+i)}')
    a.label('FFN_OWN0')
    G=ACC; E=ACC+20
    a.e('s_waitcnt lgkmcnt(10)')
    for i in range(20): a.e(f'v_add_f32 {v(G+i)}, {v(G+i)}, {v(R+i)}')
    a.e('s_waitcnt lgkmcnt(5)')
    for i in range(20): a.e(f'v_add_f32 {v(G+i)}, {v(G+i)}, {v(R+20+i)}')
    a.e('s_waitcnt lgkmcnt(0)')
    for i in range(20): a.e(f'v_add_f32 {v(G+i)}, {v(G+i)}, {v(R+40+i)}')
    for i in range(20): a.e(f'v_mul_f32 {v(E+i)}, 0xbfb8aa3b, {v(G+i)}')
    for i in range(20): a.e(f'v_exp_f32 {v(E+i)}, {v(E+i)}')
    for i in range(20): a.e(f'v_add_f32 {v(E+i)}, 1.0, {v(E+i)}')
    for i in range(20): a.e(f'v_rcp_f32 {v(E+i)}, {v(E+i)}')
    for i in range(20): a.e(f'v_mul_f32 {v(G+i)}, {v(G+i)}, {v(E+i)}')
    assert GP==E
    for i in range(10): a.e(f'v_cvt_pk_bf16_f32 {v(GP+i)}, {v(G+2*i)}, {v(G+2*i+1)}')
    lane_off(a,vXo,vXo2,vT)
    a.e(f'buffer_load_dwordx4 {v(X,4)}, {v(vXo)}, s[12:15], s26 offen')
    a.e(f'buffer_load_dwordx4 {v(X+4,4)}, {v(vXo)}, s[12:15], s26 offen offset:64')
    a.e(f'buffer_load_dwordx2 {v(X+8,2)}, {v(vXo2)}, s[12:15], s26 offen')
    a.label('FFN_NOG')
    lane_off(a,vXo,vXo2,vT)
    a.e('s_mul_i32 s27, s18, 348160')
    a.e(f's_mul_i32 s28, s22, {5*5120}')
    a.e('s_add_u32 s27, s27, s28')
    a.e(f's_add_u32 s27, s27, {WIMG+48*5120}')
    a.e('s_add_u32 s4, s34, s27'); a.e('s_addc_u32 s5, s35, 0'); a.e(f's_mov_b32 s6, {5*5120}')
    for t in range(4): a.e(f'buffer_load_dwordx4 {v(AA+4*t,4)}, {v(vA0)}, s[4:7], 0 offen offset:{t*1024}')
    a.e(f'buffer_load_dwordx4 {v(AA+16,4)}, {v(vA1)}, s[4:7], 0 offen')
    a.e('s_mul_i32 s27, s22, 20480')
    a.e(f'v_add_u32 {v(vLA)}, s27, {v(vA0)}')
    a.e('s_mul_i32 s28, s19, 10240')
    a.e('s_add_u32 s27, s27, s28')
    a.e('s_add_u32 s28, s28, 5120')
    a.e('s_barrier')
    for i in range(10):
        a.e('s_mov_b32 m0, s27')
        a.e('s_add_u32 s27, s27, 1024')
        a.e(f'buffer_load_dwordx4 {v(vA0)}, s[4:7], s28 offen lds')
        a.e('s_add_u32 s28, s28, 1024')
    a.e('s_lshl_b32 s28, s17, 1'); a.e('s_add_u32 s28, s28, s19')
    a.e('s_mul_i32 s28, s28, 40960')
    a.e(f's_mul_i32 s29, s22, {5*2048}')
    a.e('s_add_u32 s28, s28, s29')
    a.e(f's_add_u32 s28, s28, {OIMG}')
    a.e('s_add_u32 s8, s34, s28'); a.e('s_addc_u32 s9, s35, 0'); a.e(f's_mov_b32 s10, {5*2048}')
    exch_addr(a,1,vT)
    a.e('s_waitcnt vmcnt(0)')
    stamp(a,3)
    a.e('s_cmp_eq_u32 s16, 0')
    a.e('s_cbranch_scc0 FFN_GO')
    a.e(f's_add_u32 s40, s34, {FLAGS}'); a.e('s_addc_u32 s41, s35, 0'); a.e(f's_mov_b32 s42, {FLAGS_BYTES}'); a.e('s_mov_b32 s43, 0x00020000')
    a.e('s_lshl_b32 s29, s17, 8')
    a.e(f'v_lshrrev_b32 {v(BB)}, 2, {v(vA0)}')
    a.e('s_mov_b32 s31, 0')
    a.label('FFN_POLL')
    a.e(f'buffer_load_dword {v(BB+1)}, {v(BB)}, s[40:43], s29 offen sc1')
    a.e('s_add_u32 s31, s31, 1')
    a.e('s_waitcnt vmcnt(0)')
    a.e(f'v_cmp_ne_u32 vcc, 1, {v(BB+1)}')
    a.e('s_cbranch_vccz FFN_GO')
    a.e('s_cmp_lt_u32 s31, 0x40000')
    a.e('s_cbranch_scc1 FFN_POLL')
    a.label('FFN_GO')
    a.e('s_barrier')
    stamp(a,5)
    for j in range(5):
        for u in range(2):
            off=j*2048+u*256
            a.e(f'buffer_load_dwordx4 {v(BB+8*j+4*u,4)}, {v(vB0)}, s[8:11], {"0" if off<4096 else "s29"} offen offset:{off%4096} sc1')
        if j==1: a.e('s_movk_i32 s29, 4096')
        if j==3: a.e('s_movk_i32 s29, 8192')
    for j in range(5):
        a.e(f's_waitcnt vmcnt({2*(4-j)})')
        if j==0: stamp(a,6)
        for t in range(5):
            if j>0: a.e(f's_waitcnt lgkmcnt({4 if j<4 else 4-t})')
            for u in range(2):
                d=A2+(u*5+t)*4
                c=v(d,4) if j>0 else '0'
                a.e(f'v_mfma_f32_16x16x32_bf16 {v(d,4)}, {v(AA+4*t,4)}, {v(BB+8*j+4*u,4)}, {c}')
            if j<4: a.e(f'ds_read_b128 {v(AA+4*t,4)}, {v(vLA)} offset:{j*5120+t*1024}')
    a.e('s_barrier')
    stamp(a,7)
    a.e('s_nop 7')
    for u,r in ((0,1),(1,vT)):
        l=a.newlabel('fy')
        a.e(f's_cmp_eq_u32 s22, {u}')
        a.e(f's_cbranch_scc1 {l}')
        for t in range(5): a.e(f'ds_write_b128 {v(r)}, {v(A2+(u*5+t)*4,4)} offset:{t*1024}')
        a.label(l)
    a.e('s_waitcnt lgkmcnt(0)')
    a.e('s_barrier')
    a.e('s_cmp_ge_u32 s22, 2')
    a.e('s_cbranch_scc1 FFN_TAIL')
    a.e(f's_mul_i32 s27, s24, {3*5120}')
    a.e(f'v_add_u32 {v(vT)}, s27, {v(vA0)}')
    for k in range(3):
        for t in range(5): a.e(f'ds_read_b128 {v(R+20*k+4*t,4)}, {v(vT)} offset:{(k*5+t)*1024}')
    a.e('s_cmp_eq_u32 s22, 0')
    a.e('s_cbranch_scc1 FFN_OWN1')
    for i in range(20): a.e(f'v_mov_b32 {v(A2+i)}, {v(A2+20+i)}')
    a.label('FFN_OWN1')
    S=A2; W=A2+20
    a.e('s_mov_b32 s12, s38'); a.e('s_mov_b32 s13, s39'); a.e('s_mov_b32 s14, 2621440'); a.e('s_mov_b32 s15, 0x00020000')
    a.e('s_waitcnt lgkmcnt(10)')
    for i in range(20): a.e(f'v_add_f32 {v(S+i)}, {v(S+i)}, {v(R+i)}')
    a.e('s_waitcnt lgkmcnt(5)')
    for i in range(20): a.e(f'v_add_f32 {v(S+i)}, {v(S+i)}, {v(R+20+i)}')
    for i in range(10):
        a.e(f'v_lshlrev_b32 {v(W+2*i)}, 16, {v(GP+i)}')
        a.e(f'v_and_b32 {v(W+2*i+1)}, 0xffff0000, {v(GP+i)}')
        a.e(f'v_lshlrev_b32 {v(R+2*i)}, 16, {v(X+i)}')
        a.e(f'v_and_b32 {v(R+2*i+1)}, 0xffff0000, {v(X+i)}')
    a.e('s_waitcnt lgkmcnt(0)')
    for i in range(20): a.e(f'v_add_f32 {v(S+i)}, {v(S+i)}, {v(R+40+i)}')
    for i in range(20): a.e(f'v_fma_f32 {v(S+i)}, {v(S+i)}, {v(W+i)}, {v(R+i)}')
    for i in range(10): a.e(f'v_cvt_pk_bf16_f32 {v(W+i)}, {v(S+2*i)}, {v(S+2*i+1)}')
    a.e(f'buffer_store_dwordx4 {v(W,4)}, {v(vXo)}, s[12:15], s26 offen {spol}')
    a.e(f'buffer_store_dwordx4 {v(W+4,4)}, {v(vXo)}, s[12:15], s26 offen offset:64 {spol}')
    a.e(f'buffer_store_dwordx2 {v(W+8,2)}, {v(vXo2)}, s[12:15], s26 offen {spol}')
    a.e('s_waitcnt vmcnt(0)')
    stamp(a,4)
    stamp_store(a,8,34,'s16',8,1*1024*1024-256*8*128)
    a.e('s_endpgm')
    a.label('FFN_TAIL')
    stamp(a,4)
    stamp_store(a,8,34,'s16',8,1*1024*1024-256*8*128)
    a.e('s_endpgm')
```

```python
from asmlib import *
from layouts import QIMG,KIMG,VIMG,HIMG,WIMG,WIMG_BYTES,FLAGS,FLAGS_BYTES
from stamps import stamp, stamp_store, stampc
import stamps
XS=16384; WBASE=49152; WP=20544
CS=WBASE+5*WP
CSP=CS+1280
NM=CSP+2560
RR=NM+512
ST2=RR+512
LDS=ST2+1024
WF=4
XF=24
XA=40
WA=44
SEL=48
vT=58; vT2=59; vT3=60; vT4=61
CSA=64
ACC=96
NV=256
FL=set()
def acc(i,t): return ACC+(i*5+t)*16
def mfma(d,a_,b_): return f'v_mfma_f32_32x32x16_bf16 {v(d,16)}, {v(a_,4)}, {v(b_,4)}, {v(d,16)}'

def wread(a,var,jl,t):
    if var=='ffn':
        reg=WA+2*jl; pitch=320; off=32*t
    else:
        reg=WA+2*jl+(t%2); pitch=640; off=64*t
    for p in range(2):
        a.e(f'ds_read_b64_tr_b16 {v(WF+4*t+2*p,2)}, {v(reg)} offset:{off+4*p*pitch}')
def xread(a,buf,j):
    for i in range(2):
        a.e(f'ds_read_b128 {v(XF+buf*8+i*4,4)}, {v(XA+j)} offset:{i*4096}')

def kstep(a,var,k):
    jl=k%2; xb=k%2
    a.c(f'kstep {k}')
    A=[[] for _ in range(5)]
    if jl==1 and 'nobar' not in FL: A[0].append('BAR')
    A[1]+=[f'ds_read_b128 {v(XF+(1-xb)*8+i*4,4)}, {v(XA+(k+1)%4)} offset:{i*4096}' for i in range(2)]
    regs=[WA+2*jl] if var=='ffn' else [WA+2*jl,WA+2*jl+1]
    A[2]+=[f'v_add_u32 {v(r)}, s22, {v(r)}' for r in regs]
    xs={1:[0,1],2:[2],3:[3]}.get(k,[])
    A[3]+=[f'v_add_u32 {v(XA+j)}, s24, {v(XA+j)}' for j in xs]
    if jl==1:
        A[3]+=['s_add_u32 s23, s23, 1','s_cmp_eq_u32 s23, 5']
        A[4]+=['s_cselect_b32 s22, s45, s44','s_cselect_b32 s23, 0, s23']
    if k==0:
        A[0]+=['s_add_u32 s25, s25, 1','s_cmp_eq_u32 s25, 3']
        A[0]+=['s_cselect_b32 s24, s47, s46']
        A[4]+=['s_cmp_eq_u32 s25, 3','s_cselect_b32 s25, 0, s25']
    if k==2:
        A[4]=['s_add_u32 s26, s26, 1']+A[4]
    if k==3:
        A[4]+=['s_cmp_lt_u32 s26, 10']
    for t in range(5):
        n=8 if t<2 else 10
        a.e(f's_waitcnt lgkmcnt({n})')
        if 'nocs' not in FL and ((jl==0 and t%2==0) or (jl==1 and t%2==1)):
            a.e(f'v_mfma_f32_16x16x32_bf16 {v(CSA+4*t,4)}, {v(SEL,4)}, {v(WF+4*t,4)}, {v(CSA+4*t,4)}')
        for i in range(2):
            X=XF+xb*8+i*4
            if var=='v': a.e(mfma(acc(i,t),X,WF+4*t))
            else:        a.e(mfma(acc(i,t),WF+4*t,X))
            if i==0:
                for f in A[t]:
                    a.e('s_barrier' if f=='BAR' else f)
        wread(a,var,1-jl,t)

def stats(a,i,P,Pc=None,mode='qk'):
    a.e(f'v_mul_f32 {v(P)}, 0x3acccccd, {v(P)}')
    a.e(f'v_mul_f32 {v(P+1)}, 0x3acccccd, {v(P+1)}')
    a.e(f'v_fma_f32 {v(P+1)}, -{v(P)}, {v(P)}, {v(P+1)}')
    a.e(f'v_max_f32 {v(P+1)}, 0, {v(P+1)}')
    a.e(f'v_cvt_pk_bf16_f32 {v(P)}, {v(P)}, {v(P+1)}')
    a.e(f'v_and_b32 {v(P+1)}, 0xffff0000, {v(P)}')
    a.e(f'v_lshlrev_b32 {v(P)}, 16, {v(P)}')
    a.e(f'v_add_f32 {v(P+1)}, 0x3727c5ac, {v(P+1)}')
    a.e(f'v_cvt_pk_bf16_f32 {v(P+1)}, {v(P+1)}, {v(P+1)}')
    a.e(f'v_and_b32 {v(P+1)}, 0xffff0000, {v(P+1)}')
    a.e(f'v_sqrt_f32 {v(P+1)}, {v(P+1)}')
    a.e(f'v_xor_b32 {v(P)}, 0x80000000, {v(P)}')
    a.e(f'v_cvt_pk_bf16_f32 {v(P+1)}, {v(P+1)}, {v(P+1)}')
    a.e(f'v_and_b32 {v(P+1)}, 0xffff0000, {v(P+1)}')
    a.e(f'v_rcp_f32 {v(P+1)}, {v(P+1)}')
    a.e('s_nop 0')

def pkfma(d,x,y,z,bx=None,by=None,bz=None):
    sel=[0 if b is None else b for b in (bx,by,bz)]
    hi=[1 if b is None else b for b in (bx,by,bz)]
    return f'v_pk_fma_f32 {v(d,2)}, {v(x,2)}, {v(y,2)}, {v(z,2)} op_sel:[{sel[0]},{sel[1]},{sel[2]}] op_sel_hi:[{hi[0]},{hi[1]},{hi[2]}]'
def pkmul(d,x,y,bx=None,by=None):
    sel=[0 if b is None else b for b in (bx,by)]
    hi=[1 if b is None else b for b in (bx,by)]
    return f'v_pk_mul_f32 {v(d,2)}, {v(x,2)}, {v(y,2)} op_sel:[{sel[0]},{sel[1]}] op_sel_hi:[{hi[0]},{hi[1]}]'

def main_loop(a,var):
    L=f'K1_{var.upper()}'
    a.e('s_barrier')
    stamp(a,1); stampc(a,8)
    wread(a,var,0,0)
    xread(a,0,0)
    for t in range(1,5): wread(a,var,0,t)
    a.e('s_mov_b32 s26, 0')
    a.e('s_mov_b32 s22, s44'); a.e('s_mov_b32 s23, 1')
    a.label(f'{L}_LOOP')
    for k in range(4): kstep(a,var,k)
    if stamps.STAMP:
        a.e('s_cmp_eq_u32 s26, 1')
        a.e(f's_cbranch_scc0 {L}_NS')
        stamp(a,7)
        a.label(f'{L}_NS')
        a.e('s_cmp_lt_u32 s26, 10')
    a.e(f's_cbranch_scc1 {L}_LOOP')
    stamp(a,2); stampc(a,9)
    step,r1=(64,640) if var=='ffn' else (128,64)
    a.e('s_nop 7')
    a.e('s_mov_b64 exec, 0xffff')
    for t in range(5):
        a.e(f'ds_write_b32 v62, {v(CSA+4*t)} offset:{t*step}')
        a.e(f'ds_write_b32 v62, {v(CSA+4*t+1)} offset:{t*step+r1}')
    a.e('s_mov_b64 exec, -1')
    a.e('s_waitcnt lgkmcnt(0)')
    stamp(a,5)
    a.e('s_barrier')
    if var!='v':
        a.e('ds_read_b64 v[64:65], v63 offset:0')
        a.e('ds_read_b64 v[66:67], v63 offset:256')
    a.e('s_barrier')
    stamp(a,6)

def k1_kernel(a,name):
    pol=' '.join(x for x in ('sc0','sc1','nt') if 'st_'+x in FL)
    if 'nost' in FL or pol:
        E0=a.e
        def e2(x):
            if x.startswith('buffer_store'):
                if 'nost' in FL: return
                x=x+' '+pol
            E0(x)
        a.e=e2
    a.lines.append(kernel_header(name))
    a.e('s_cmp_ge_u32 s2, 256')
    a.e('s_cbranch_scc1 K1_END')
    a.e('s_load_dwordx2 s[34:35], s[0:1], 72')
    a.e('s_load_dwordx2 s[36:37], s[0:1], 0')
    a.e('s_load_dwordx2 s[38:39], s[0:1], 8')
    a.e('s_load_dwordx4 s[40:43], s[0:1], 32')
    if 'wimg' in FL:
        a.e('s_load_dwordx2 s[50:51], s[0:1], 16')
        a.e('s_load_dwordx2 s[52:53], s[0:1], 48')
    stamp(a,0)
    a.e(f'v_lshrrev_b32 {v(vT)}, 6, v0')
    a.e('v_and_b32 v0, 63, v0')
    a.e(f'v_readfirstlane_b32 s16, {v(vT)}')
    a.e('s_and_b32 s27, s2, 7')
    a.e('s_lshr_b32 s29, s2, 3')
    a.e('s_and_b32 s17, s27, 1')
    a.e('s_lshl_b32 s17, s17, 3')
    a.e('s_and_b32 s30, s29, 7')
    a.e('s_add_u32 s17, s17, s30')
    a.e('s_lshr_b32 s18, s27, 1')
    a.e('s_lshl_b32 s18, s18, 2')
    a.e('s_lshr_b32 s30, s29, 3')
    a.e('s_add_u32 s18, s18, s30')
    if 'mix' in FL:
        perm=[0,1,6,7,2,3,8,9,4,10,11,12,5,13,14,15]
        lo=sum(perm[i]<<(4*i) for i in range(8)); hi=sum(perm[8+i]<<(4*i) for i in range(8))
        a.e(f's_mov_b32 s30, {lo}'); a.e(f's_mov_b32 s31, {hi}')
        a.e('s_lshl_b32 s18, s18, 2')
        a.e('s_lshr_b64 s[30:31], s[30:31], s18')
        a.e('s_and_b32 s18, s30, 15')
    a.e('s_cmp_ge_u32 s16, 4')
    a.e('s_cbranch_scc1 K1_LOADER')
    if 'pf' in FL:
        pol=' '.join(x for x in ('sc0','sc1','nt') if 'pf_'+x in FL)
        a.e('s_lshr_b32 s27, s2, 6')
        a.e('s_lshr_b32 s29, s2, 3'); a.e('s_and_b32 s29, s29, 7')
        a.e('s_lshl_b32 s30, s17, 7'); a.e('s_lshl_b32 s27, s27, 5'); a.e('s_add_u32 s30, s30, s27')
        a.e('v_and_b32 v52, 31, v0')
        a.e('v_add_u32 v52, s30, v52')
        a.e('v_mul_u32_u24 v52, 1280, v52')
        a.e('v_lshrrev_b32 v53, 5, v0')
        a.e('v_lshlrev_b32 v53, 7, v53')
        a.e('v_add_u32 v52, v52, v53')
        a.e('s_lshl_b32 s30, s16, 8')
        a.e('s_cmp_ge_u32 s18, 6')
        a.e('s_cbranch_scc1 K1_PF_FFN')
        a.e('s_lshl_b32 s27, s16, 6')
        for q in range(2):
            a.e(f'v_add_u32 v53, s27, v0')
            if q==1: a.e('v_add_u32 v53, 256, v53')
            a.e(f'v_mul_u32_u24 v54, 13108, v53')
            a.e('v_lshrrev_b32 v54, 16, v54')
            a.e('v_mul_u32_u24 v55, 5, v54')
            a.e('v_sub_u32 v55, v53, v55')
            a.e('v_lshlrev_b32 v54, 3, v54')
            a.e('v_add_u32 v54, s29, v54')
            a.e('v_mul_u32_u24 v54, 3840, v54')
            a.e('v_lshlrev_b32 v55, 7, v55')
            a.e(f'v_add_u32 v{55+q+1}, v54, v55')
        a.e('s_mul_i32 s31, s18, 640')
        a.e('s_waitcnt lgkmcnt(0)')
        a.e('s_mov_b32 s4, s38'); a.e('s_mov_b32 s5, s39'); a.e(f's_mov_b32 s6, {640*3840}')
        a.e('s_branch K1_PF_GO')
        a.label('K1_PF_FFN')
        a.e('s_and_b32 s27, s16, 1')
        a.e('s_lshl_b32 s27, s27, 6')
        for q in range(2):
            a.e(f'v_add_u32 v53, s27, v0')
            if q==1: a.e('v_add_u32 v53, 128, v53')
            a.e(f'v_mul_u32_u24 v54, 21846, v53')
            a.e('v_lshrrev_b32 v54, 16, v54')
            a.e('v_mul_u32_u24 v55, 3, v54')
            a.e('v_sub_u32 v55, v53, v55')
            a.e('v_lshlrev_b32 v54, 3, v54')
            a.e('v_add_u32 v54, s29, v54')
            a.e('v_mul_u32_u24 v54, 3072, v54')
            a.e('v_lshlrev_b32 v55, 7, v55')
            a.e(f'v_add_u32 v{55+q+1}, v54, v55')
        a.e('s_sub_u32 s31, s18, 6')
        a.e('s_mul_i32 s31, s31, 320')
        a.e('s_min_u32 s31, s31, 2752')
        a.e('s_andn2_b32 s31, s31, 127')
        a.e('s_waitcnt lgkmcnt(0)')
        a.e('s_cmp_lt_u32 s16, 2')
        a.e('s_cselect_b32 s4, s40, s42')
        a.e('s_cselect_b32 s5, s41, s43')
        a.e(f's_mov_b32 s6, {640*3072}')
        a.label('K1_PF_GO')
        a.e('s_mov_b32 s7, 0x00020000')
        a.e('s_mov_b32 s8, s36'); a.e('s_mov_b32 s9, s37'); a.e('s_mov_b32 s10, 2621440'); a.e('s_mov_b32 s11, 0x00020000')
        a.e(f'buffer_load_dword v95, v56, s[4:7], s31 offen {pol}')
        a.e(f'buffer_load_dword v95, v52, s[8:11], s30 offen {pol}')
        a.e(f'buffer_load_dword v95, v57, s[4:7], s31 offen {pol}')
        a.e('s_cmp_eq_u32 s16, 0')
        a.e('s_cbranch_scc0 K1_PF_END')
        a.e(f'buffer_load_dword v95, v52, s[8:11], 0 offen offset:1024 {pol}')
        a.label('K1_PF_END')
    if 'cp3' in FL: a.e('s_setprio 3')
    a.e('s_lshr_b32 s19, s16, 1')
    a.e('s_and_b32 s20, s16, 1')
    a.e('s_xor_b32 s21, s19, s20')
    a.e(f's_mov_b32 s44, {WP}'); a.e(f's_mov_b32 s45, {(-4*WP)&0xffffffff}'); a.e(f's_mov_b32 s46, {XS}'); a.e(f's_mov_b32 s47, {(-2*XS)&0xffffffff}')
    a.e(f'v_and_b32 {v(vT)}, 31, v0')
    a.e(f'v_lshrrev_b32 {v(vT2)}, 5, v0')
    a.e(f'v_bfe_u32 {v(vT3)}, v0, 1, 3')
    a.e(f'v_lshlrev_b32 {v(vT4)}, 7, {v(vT)}')
    a.e('s_lshl_b32 s27, s19, 13')
    a.e(f'v_add_u32 {v(vT4)}, s27, {v(vT4)}')
    for kk in range(4):
        a.e(f's_xor_b32 s27, s21, {kk%2}')
        a.e(f's_add_u32 s27, s27, {2*(kk//2)}')
        a.e('s_lshl_b32 s27, s27, 1')
        a.e(f'v_add_u32 {v(XA+kk)}, s27, {v(vT2)}')
        a.e(f'v_xor_b32 {v(XA+kk)}, {v(XA+kk)}, {v(vT3)}')
        a.e(f'v_lshlrev_b32 {v(XA+kk)}, 4, {v(XA+kk)}')
        a.e(f'v_add_u32 {v(XA+kk)}, {v(XA+kk)}, {v(vT4)}')
    a.e('s_lshl_b32 s27, s19, 9')
    a.e(f's_add_u32 s27, s27, {ST2}')
    a.e(f'v_lshlrev_b32 v63, 3, {v(vT)}')
    a.e('v_add_u32 v63, s27, v63')
    for k in range(20): a.e(f'v_mov_b32 {v(CSA+k)}, 0')
    a.e(f'v_and_b32 {v(vT2)}, 15, v0')
    a.e(f'v_bfe_u32 {v(vT3)}, v0, 4, 1')
    a.e(f'v_cmp_eq_u32 vcc, {v(vT2)}, {v(vT3)}')
    a.e(f'v_mov_b32 {v(vT2)}, 0')
    a.e(f'v_mov_b32 {v(vT3)}, 0x3f803f80')
    for k in range(4): a.e(f'v_cndmask_b32 {v(SEL+k)}, {v(vT2)}, {v(vT3)}, vcc')
    a.e('s_mov_b32 s25, 0')
    vH=84; vCh=85; vR=86; vC4=87; vRow=88
    a.e(f'v_lshrrev_b32 {v(vH)}, 5, v0')
    a.e(f'v_bfe_u32 {v(vCh)}, v0, 4, 1')
    a.e(f'v_bfe_u32 {v(vR)}, v0, 2, 2')
    a.e(f'v_and_b32 {v(vC4)}, 3, v0')
    a.e(f'v_lshlrev_b32 {v(vRow)}, 3, {v(vH)}')
    a.e(f'v_add_u32 {v(vRow)}, {v(vRow)}, {v(vR)}')
    a.e('s_cmp_ge_u32 s18, 6')
    a.e('s_cbranch_scc1 K1_FFN_SETUP')
    a.e(f'v_mul_u32_u24 {v(vT2)}, 640, {v(vRow)}')
    a.e(f'v_lshlrev_b32 {v(vT3)}, 5, {v(vCh)}')
    a.e(f'v_add_u32 {v(vT2)}, {v(vT2)}, {v(vT3)}')
    a.e(f'v_lshlrev_b32 {v(vT3)}, 3, {v(vC4)}')
    a.e(f'v_add_u32 {v(vT2)}, {v(vT2)}, {v(vT3)}')
    a.e('s_mul_i32 s27, s20, 320')
    a.e(f's_add_u32 s27, s27, {WBASE}')
    a.e(f'v_add_u32 {v(vT2)}, s27, {v(vT2)}')
    a.e(f'v_lshrrev_b32 {v(vT3)}, 1, {v(vR)}')
    a.e(f'v_lshlrev_b32 {v(vT3)}, 6, {v(vT3)}')
    a.e(f'v_sub_u32 {v(vT4)}, 0, {v(vT3)}')
    a.e('s_cmp_eq_u32 s20, 0')
    a.e('s_cselect_b64 vcc, -1, 0')
    a.e(f'v_cndmask_b32 v89, {v(vT4)}, {v(vT3)}, vcc')
    a.e(f'v_cndmask_b32 v90, {v(vT3)}, {v(vT4)}, vcc')
    for jl in range(2):
        a.e(f's_xor_b32 s27, s21, {jl}')
        a.e(f's_mul_i32 s27, s27, {16*640}')
        a.e(f'v_add_u32 {v(vT3)}, s27, {v(vT2)}')
        a.e(f'v_add_u32 {v(WA+2*jl)}, {v(vT3)}, v89')
        a.e(f'v_add_u32 {v(WA+2*jl+1)}, {v(vT3)}, v90')
    a.e('s_mul_i32 s27, s20, 640')
    a.e('s_mul_i32 s29, s19, 1280')
    a.e('s_add_u32 s27, s27, s29')
    a.e(f's_add_u32 s27, s27, {CSP}')
    a.e(f'v_and_b32 v62, 15, v0')
    a.e(f'v_lshlrev_b32 v62, 2, v62')
    a.e('v_add_u32 v62, s27, v62')
    for k in range(160): a.e(f'v_mov_b32 {v(ACC+k)}, 0')
    a.e('s_waitcnt lgkmcnt(0)')
    a.e('s_cmp_ge_u32 s18, 4')
    a.e('s_cbranch_scc1 K1_V_START')
    main_loop(a,'qk')
    a.e(f'v_lshrrev_b32 {v(vT)}, 5, v0')
    a.e(f'v_lshlrev_b32 {v(vT)}, 4, {v(vT)}')
    a.e('s_mul_i32 s27, s20, 640')
    a.e(f's_add_u32 s27, s27, {CS}')
    a.e(f'v_add_u32 {v(vT)}, s27, {v(vT)}')
    CQ=[4,20]
    for b in range(4): a.e(f'ds_read_b128 {v(CQ[0]+4*b,4)}, {v(vT)} offset:{b*32}')
    a.e('s_cmp_lt_u32 s18, 2')
    a.e(f's_cselect_b32 s27, {QIMG}, {KIMG}')
    a.e('s_add_u32 s4, s34, s27')
    a.e('s_addc_u32 s5, s35, 0')
    a.e('s_mov_b32 s6, 2621440')
    a.e('s_mov_b32 s7, 0x00020000')
    a.e('s_cmp_lt_u32 s18, 2')
    a.e('s_cselect_b32 s29, 0x3ea52b5c, 0x3f800000')
    a.e('s_and_b32 s27, s18, 1')
    a.e('s_lshl_b32 s27, s27, 4')
    a.e('s_lshl_b32 s30, s20, 3')
    a.e('s_add_u32 s27, s27, s30')
    a.e('s_mul_i32 s30, s27, 81920')
    a.e('s_lshl_b32 s31, s17, 2')
    a.e('s_lshl_b32 s27, s19, 1')
    a.e('s_add_u32 s31, s31, s27')
    a.e('s_mul_i32 s31, s31, 1280')
    a.e('s_add_u32 s30, s30, s31')
    vL16=71; vR8=72
    a.e(f'v_lshlrev_b32 {v(vL16)}, 4, v0')
    a.e(f'v_and_b32 {v(vR8)}, 31, v0')
    a.e(f'v_lshlrev_b32 {v(vR8)}, 3, {v(vR8)}')
    a.e(f'v_lshrrev_b32 {v(vT2)}, 5, v0')
    a.e(f'v_mul_u32_u24 {v(vT2)}, 81920, {v(vT2)}')
    a.e(f'v_add_u32 {v(vR8)}, {v(vR8)}, {v(vT2)}')
    a.e(f'v_add_u32 {v(vR8)}, 1024, {v(vR8)}')
    a.e('s_waitcnt lgkmcnt(4)')
    for i in range(2):
        a.e(f'v_mul_f32 {v(65+2*i)}, s29, {v(65+2*i)}')
    TMP=76
    for t in range(5):
        if t<4:
            for b in range(4): a.e(f'ds_read_b128 {v(CQ[(t+1)%2]+4*b,4)}, {v(vT)} offset:{(t+1)*128+b*32}')
            a.e('s_waitcnt lgkmcnt(4)')
        else:
            a.e('s_waitcnt lgkmcnt(0)')
        for b in range(4):
            j=4*t+b; m=j//5; jj=j%5
            dst={0:0,1:2,2:4,3:8,4:10}[jj]+20*m
            for i in range(2):
                A=acc(i,0)+4*j; P=64+2*i; C=CQ[t%2]+4*b; T_=TMP+4*i
                a.e(pkfma(T_,C,P,A,None,0,None))
                a.e(pkfma(T_+2,C+2,P,A+2,None,0,None))
                a.e(pkmul(T_,T_,P,None,1))
                a.e(pkmul(T_+2,T_+2,P,None,1))
            for i in range(2):
                T_=TMP+4*i; D=acc(i,0)+dst
                a.e(f'v_cvt_pk_bf16_f32 {v(D)}, {v(T_)}, {v(T_+1)}')
                a.e(f'v_cvt_pk_bf16_f32 {v(D+1)}, {v(T_+2)}, {v(T_+3)}')
            if jj==4:
                for i in range(2):
                    B=acc(i,0)+20*m
                    a.e(f's_add_u32 s27, s30, {2*m*81920+i*1280}')
                    a.e(f's_add_u32 s31, s27, 81920')
                    a.e(f'buffer_store_dwordx4 {v(B,4)}, {v(vL16)}, s[4:7], s27 offen')
                    a.e(f'buffer_store_dwordx4 {v(B+8,4)}, {v(vL16)}, s[4:7], s31 offen')
                    a.e(f'buffer_store_dwordx2 {v(B+4,2)}, {v(vR8)}, s[4:7], s27 offen')
    a.e('s_branch K1_DONE')
    a.label('K1_V_START')
    main_loop(a,'v')
    CB=76
    a.e('s_mul_i32 s27, s20, 640')
    a.e(f's_add_u32 s27, s27, {CS}')
    a.e(f'v_and_b32 v62, 31, v0')
    a.e(f'v_lshlrev_b32 v62, 2, v62')
    a.e('v_add_u32 v62, s27, v62')
    for t in range(5): a.e(f'ds_read_b32 {v(CB+2*t)}, v62 offset:{t*128}')
    a.e(f'v_lshrrev_b32 {v(vT2)}, 5, v0')
    a.e(f'v_lshlrev_b32 {v(vT2)}, 4, {v(vT2)}')
    a.e('s_lshl_b32 s27, s19, 8')
    a.e(f's_add_u32 s27, s27, {NM}')
    a.e(f'v_add_u32 {v(vT2)}, s27, {v(vT2)}')
    a.e(f's_add_u32 s4, s34, {VIMG}')
    a.e('s_addc_u32 s5, s35, 0')
    a.e('s_mov_b32 s6, 2621440')
    a.e('s_mov_b32 s7, 0x00020000')
    a.e('s_sub_u32 s27, s18, 4')
    a.e(f's_mul_i32 s30, s27, {16*81920}')
    a.e('s_lshl_b32 s31, s17, 2')
    a.e('s_lshl_b32 s27, s19, 1')
    a.e('s_add_u32 s31, s31, s27')
    a.e('s_mul_i32 s31, s31, 1280')
    a.e('s_add_u32 s30, s30, s31')
    VO=86
    a.e(f'v_and_b32 {v(vT3)}, 31, v0')
    a.e('s_mul_i32 s27, s20, 160')
    a.e(f'v_add_u32 {v(vT3)}, s27, {v(vT3)}')
    a.e(f'v_lshrrev_b32 {v(vT4)}, 5, v0')
    a.e(f'v_mul_u32_u24 {v(vT4)}, 320, {v(vT4)}')
    for t in range(5):
        a.e(f'v_add_u32 v91, {32*t}, {v(vT3)}')
        a.e(f'v_mul_u32_u24 v92, 3277, v91')
        a.e(f'v_lshrrev_b32 v92, 16, v92')
        a.e(f'v_mul_u32_u24 v93, 20, v92')
        a.e(f'v_sub_u32 v91, v91, v93')
        a.e(f'v_lshlrev_b32 v91, 4, v91')
        a.e(f'v_add_u32 v91, v91, {v(vT4)}')
        a.e(f's_mov_b32 s27, 81920')
        a.e(f'v_mul_lo_u32 v92, v92, s27')
        a.e(f'v_add_u32 {v(VO+t)}, v91, v92')
    qN=4; qR=20; TMP=36
    for i in range(2):
        a.e('s_waitcnt lgkmcnt(0)')
        for b in range(4):
            a.e(f'ds_read_b128 {v(qN+4*b,4)}, {v(vT2)} offset:{i*128+b*32}')
            a.e(f'ds_read_b128 {v(qR+4*b,4)}, {v(vT2)} offset:{512+i*128+b*32}')
        a.e(f's_add_u32 s27, s30, {i*1280}')
        a.e('s_waitcnt lgkmcnt(0)')
        for t in range(5):
            A=acc(i,t)
            for j in range(2):
                for q in range(4):
                    r_=8*j+2*q
                    a.e(pkfma(TMP+2*q,qN+r_,CB+2*t,A+r_,None,0,None))
                for q in range(4):
                    r_=8*j+2*q
                    a.e(pkmul(TMP+2*q,TMP+2*q,qR+r_))
                for q in range(4):
                    a.e(f'v_cvt_pk_bf16_f32 {v(A+8*j+q)}, {v(TMP+2*q)}, {v(TMP+2*q+1)}')
                a.e(f'buffer_store_dwordx4 {v(A+8*j,4)}, {v(VO+t)}, s[4:7], s27 offen offset:{j*640}')
    a.e('s_branch K1_DONE')
    a.label('K1_FFN_SETUP')
    a.e(f'v_mul_u32_u24 {v(vT2)}, 320, {v(vRow)}')
    a.e(f'v_mul_u32_u24 {v(vT3)}, 10272, {v(vCh)}')
    a.e(f'v_add_u32 {v(vT2)}, {v(vT2)}, {v(vT3)}')
    a.e(f'v_lshlrev_b32 {v(vT3)}, 3, {v(vC4)}')
    a.e(f'v_add_u32 {v(vT2)}, {v(vT2)}, {v(vT3)}')
    a.e('s_mul_i32 s27, s20, 160')
    a.e(f's_add_u32 s27, s27, {WBASE}')
    a.e(f'v_add_u32 {v(vT2)}, s27, {v(vT2)}')
    for jl in range(2):
        a.e(f's_xor_b32 s27, s21, {jl}')
        a.e(f's_mul_i32 s27, s27, {16*320}')
        a.e(f'v_add_u32 {v(WA+2*jl)}, s27, {v(vT2)}')
    a.e(f'v_and_b32 v62, 15, v0')
    a.e('v_lshlrev_b32 v62, 2, v62')
    a.e('s_mul_i32 s27, s20, 320')
    a.e('s_mul_i32 s29, s19, 1280')
    a.e('s_add_u32 s27, s27, s29')
    a.e(f's_add_u32 s27, s27, {CSP}')
    a.e('v_add_u32 v62, s27, v62')
    for k in range(160): a.e(f'v_mov_b32 {v(ACC+k)}, 0')
    a.e('s_waitcnt lgkmcnt(0)')
    main_loop(a,'ffn')
    a.e(f'v_lshrrev_b32 {v(vT)}, 5, v0')
    a.e(f'v_lshlrev_b32 {v(vT)}, 4, {v(vT)}')
    a.e('s_mul_i32 s27, s20, 320')
    a.e(f's_add_u32 s27, s27, {CS}')
    a.e(f'v_add_u32 {v(vT)}, s27, {v(vT)}')
    CQ=[4,20]
    def csread(t):
        C=CQ[t%2]
        for b in range(2):
            a.e(f'ds_read_b128 {v(C+4*b,4)}, {v(vT)} offset:{t*64+b*32}')
            a.e(f'ds_read_b128 {v(C+8+4*b,4)}, {v(vT)} offset:{640+t*64+b*32}')
    csread(0)
    a.e(f's_add_u32 s4, s34, {HIMG}')
    a.e('s_addc_u32 s5, s35, 0')
    a.e('s_mov_b32 s6, 6291456')
    a.e('s_mov_b32 s7, 0x00020000')
    a.e('s_sub_u32 s27, s18, 6')
    a.e('s_mul_i32 s27, s27, 10')
    a.e('s_min_u32 s27, s27, 86')
    a.e('s_mul_i32 s30, s20, 5')
    a.e('s_add_u32 s27, s27, s30')
    a.e('s_lshl_b32 s30, s27, 10')
    a.e('s_lshl_b32 s31, s17, 2')
    a.e('s_lshl_b32 s27, s19, 1')
    a.e('s_add_u32 s31, s31, s27')
    a.e('s_mul_i32 s31, s31, 98304')
    a.e('s_add_u32 s30, s30, s31')
    vL16=71
    a.e(f'v_lshlrev_b32 {v(vL16)}, 4, v0')
    a.e('s_waitcnt lgkmcnt(4)')
    for i in range(2):
        P=64+2*i
        a.e(f'v_mul_f32 {v(72+2*i)}, {v(P+1)}, {v(P+1)}')
        a.e(f'v_rcp_f32 {v(72+2*i)}, {v(72+2*i)}')
        a.e(f'v_mul_f32 {v(P+1)}, 0xbfb8aa3b, {v(P+1)}')
    E=76
    for t in range(5):
        if t<4:
            csread(t+1); a.e('s_waitcnt lgkmcnt(4)')
        else: a.e('s_waitcnt lgkmcnt(0)')
        C=CQ[t%2]
        for i in range(2):
            A=acc(i,t); P=64+2*i
            for q in range(4): a.e(pkfma(A+2*q,C+2*q,P,A+2*q,None,0,None))
        for i in range(2):
            A=acc(i,t); P=64+2*i
            for q in range(4): a.e(pkmul(E+8*i+2*q,A+2*q,P,None,1))
        for i in range(2):
            A=acc(i,t); P=64+2*i
            for q in range(4):
                a.e(f'v_exp_f32 {v(E+8*i+2*q)}, {v(E+8*i+2*q)}')
                a.e(f'v_exp_f32 {v(E+8*i+2*q+1)}, {v(E+8*i+2*q+1)}')
                a.e(pkfma(A+8+2*q,C+8+2*q,P,A+8+2*q,None,0,None))
        for i in range(2):
            A=acc(i,t); I=72+2*i
            for q in range(4):
                a.e(pkfma(E+8*i+2*q,E+8*i+2*q,I,I,None,0,0))
                a.e(pkmul(A+2*q,A+2*q,A+8+2*q))
        for i in range(2):
            for q in range(8): a.e(f'v_rcp_f32 {v(E+8*i+q)}, {v(E+8*i+q)}')
        for i in range(2):
            A=acc(i,t)
            for q in range(4): a.e(pkmul(A+2*q,A+2*q,E+8*i+2*q))
        for i in range(2):
            A=acc(i,t)
            for q in range(4): a.e(f'v_cvt_pk_bf16_f32 {v(A+8+q)}, {v(A+2*q)}, {v(A+2*q+1)}')
            a.e(f's_add_u32 s27, s30, {i*98304+t*1024}')
            a.e(f'buffer_store_dwordx4 {v(A+8,4)}, {v(vL16)}, s[4:7], s27 offen')
    a.label('K1_DONE')
    stamp(a,3)
    a.e('s_waitcnt vmcnt(0)')
    stamp(a,4)
    stamp_store(a,10,34,'s16',8,3*1024*1024)
    a.e('s_endpgm')
    a.label('K1_LOADER')
    a.e('s_sub_u32 s19, s16, 4')
    if 'lp0' not in FL: a.e('s_setprio 3')
    if 'lst' in FL: stamp(a,5)
    vX=4; vW=8
    a.e(f'v_lshrrev_b32 {v(vT)}, 3, v0')
    a.e(f'v_and_b32 {v(vT2)}, 7, v0')
    a.e(f'v_lshrrev_b32 {v(vT3)}, 4, v0')
    a.e('s_lshl_b32 s27, s17, 7')
    a.e('s_lshl_b32 s29, s19, 5')
    a.e('s_add_u32 s27, s27, s29')
    a.e(f'v_xor_b32 {v(vT4)}, {v(vT3)}, {v(vT2)}')
    a.e(f'v_lshlrev_b32 {v(vT4)}, 4, {v(vT4)}')
    a.e(f'v_add_u32 {v(vX)}, s27, {v(vT)}')
    a.e(f'v_mul_u32_u24 {v(vX)}, 1280, {v(vX)}')
    a.e(f'v_xor_b32 {v(vT3)}, 64, {v(vT4)}')
    a.e(f'v_add_u32 {v(vX+1)}, {v(vX)}, {v(vT3)}')
    a.e(f'v_add_u32 {v(vX)}, {v(vX)}, {v(vT4)}')
    a.e(f'v_add_u32 {v(vX+1)}, 10240, {v(vX+1)}')
    a.e(f'v_add_u32 {v(vX+2)}, 20480, {v(vX)}')
    a.e(f'v_add_u32 {v(vX+3)}, 20480, {v(vX+1)}')
    if 'lst' in FL: stamp(a,6)
    a.e('s_waitcnt lgkmcnt(0)')
    a.e('s_mov_b32 s8, s36'); a.e('s_mov_b32 s9, s37'); a.e('s_mov_b32 s10, 2621440'); a.e('s_mov_b32 s11, 0x00020000')
    a.e('s_lshl_b32 s21, s19, 12')
    a.e('s_mov_b32 s25, 0'); a.e('s_mov_b32 s26, s21')
    a.e(f's_add_u32 s30, s21, {3*XS}')
    def issueX(pro=False):
        for i in range(4):
            if 'nodma' in FL and not pro: break
            a.e(f's_add_u32 m0, s26, {i*1024}')
            a.e('s_nop 0')
            a.e(f'buffer_load_dwordx4 {v(vX+i)}, s[8:11], s25 offen lds')
        a.e('s_add_u32 s25, s25, 128')
        a.e(f's_add_u32 s26, s26, {XS}')
        a.e('s_cmp_eq_u32 s26, s30')
        a.e('s_cselect_b32 s26, s21, s26')
    issueX(True)
    if 'lst' in FL: stamp(a,4)
    a.e('s_cmp_ge_u32 s18, 6')
    a.e('s_cbranch_scc1 K1_LD_FFN')
    a.e('s_mul_i32 s27, s19, 320')
    for p in range(5):
        a.e(f's_add_u32 s29, s27, {64*p}')
        a.e(f'v_add_u32 {v(vT)}, s29, v0')
        a.e(f'v_mul_u32_u24 {v(vT2)}, 1639, {v(vT)}')
        a.e(f'v_lshrrev_b32 {v(vT2)}, 16, {v(vT2)}')
        a.e(f'v_mul_u32_u24 {v(vT3)}, 40, {v(vT2)}')
        a.e(f'v_sub_u32 {v(vT)}, {v(vT)}, {v(vT3)}')
        a.e(f'v_bfe_u32 {v(vT3)}, {v(vT2)}, 1, 1')
        a.e(f'v_lshlrev_b32 {v(vT3)}, 2, {v(vT3)}')
        a.e(f'v_xor_b32 {v(vT)}, {v(vT)}, {v(vT3)}')
        a.e(f'v_lshlrev_b32 {v(vT)}, 4, {v(vT)}')
        a.e(f'v_mul_u32_u24 {v(vT2)}, 3840, {v(vT2)}')
        a.e(f'v_add_u32 {v(vW+p)}, {v(vT)}, {v(vT2)}')
    a.e('s_mul_i32 s29, s18, 640')
    for p in range(5): a.e(f'v_add_u32 {v(vW+p)}, s29, {v(vW+p)}')
    a.e('s_waitcnt lgkmcnt(0)')
    a.e('s_mov_b32 s4, s38'); a.e('s_mov_b32 s5, s39'); a.e(f's_mov_b32 s6, {640*3840}')
    a.e(f's_mov_b32 s22, {32*3840}')
    a.e('s_mul_i32 s20, s19, 5120')
    a.e('s_branch K1_LD_GO')
    a.label('K1_LD_FFN')
    a.e('s_and_b32 s27, s19, 1')
    a.e('s_lshl_b32 s27, s27, 4')
    a.e('s_sub_u32 s29, s18, 6')
    a.e('s_mul_i32 s29, s29, 320')
    a.e('s_min_u32 s29, s29, 2752')
    for p in range(5):
        a.e(f'v_add_u32 {v(vT)}, {64*p}, v0')
        a.e(f'v_mul_u32_u24 {v(vT2)}, 3277, {v(vT)}')
        a.e(f'v_lshrrev_b32 {v(vT2)}, 16, {v(vT2)}')
        a.e(f'v_mul_u32_u24 {v(vT3)}, 20, {v(vT2)}')
        a.e(f'v_sub_u32 {v(vT)}, {v(vT)}, {v(vT3)}')
        a.e(f'v_lshlrev_b32 {v(vT)}, 4, {v(vT)}')
        a.e(f'v_add_u32 {v(vT2)}, s27, {v(vT2)}')
        a.e(f'v_mul_u32_u24 {v(vT2)}, 3072, {v(vT2)}')
        a.e(f'v_add_u32 {v(vW+p)}, {v(vT)}, {v(vT2)}')
        a.e(f'v_add_u32 {v(vW+p)}, s29, {v(vW+p)}')
    a.e('s_waitcnt lgkmcnt(0)')
    a.e('s_cmp_lt_u32 s19, 2')
    a.e('s_cselect_b32 s4, s40, s42')
    a.e('s_cselect_b32 s5, s41, s43')
    a.e(f's_mov_b32 s6, {640*3072}')
    a.e(f's_mov_b32 s22, {32*3072}')
    a.e('s_mul_i32 s20, s19, 5120')
    a.e('s_lshr_b32 s27, s19, 1')
    a.e('s_lshl_b32 s27, s27, 5')
    a.e('s_add_u32 s20, s20, s27')
    a.label('K1_LD_GO')
    if 'lst' in FL: stamp(a,7)
    a.e('s_mov_b32 s7, 0x00020000')
    a.e(f's_add_u32 s20, s20, {WBASE}')
    a.e('s_mov_b32 s23, 0'); a.e('s_mov_b32 s24, s20')
    a.e(f's_add_u32 s29, s20, {5*WP}')
    def issueW(pro=False):
        for p in range(5):
            if 'nodma' in FL and not pro: break
            a.e(f's_add_u32 m0, s24, {p*1024}')
            a.e('s_nop 0')
            a.e(f'buffer_load_dwordx4 {v(vW+p)}, s[4:7], s23 offen lds')
        a.e('s_add_u32 s23, s23, s22')
        a.e(f's_add_u32 s24, s24, {WP}')
        a.e('s_cmp_eq_u32 s24, s29')
        a.e('s_cselect_b32 s24, s20, s24')
    issueW(True); issueW(True); issueX(True)
    stamp(a,1)
    if 'lp0' in FL or 'lp30' in FL: a.e('s_setprio 0')
    vU=50
    if 'wimg' in FL:
        a.e('s_lshl_b32 s27, s2, 1'); a.e('s_add_u32 s27, s27, s19')
        a.e('s_add_u32 s28, s2, 512')
        a.e('s_cmp_eq_u32 s19, 2'); a.e('s_cselect_b32 s27, s28, s27')
        a.e('s_cmp_lt_u32 s27, 544'); a.e('s_cselect_b32 s33, 1, 0')
        a.e('s_cmp_eq_u32 s19, 3'); a.e('s_cselect_b32 s33, 0, s33')
        a.e('s_and_b32 s32, s27, 7')
        a.e('s_lshr_b32 s27, s27, 3')
        a.e('s_mul_i32 s54, s32, 68'); a.e('s_add_u32 s54, s54, s27'); a.e('s_mul_i32 s54, s54, 5120')
        a.e('s_mul_i32 s32, s32, 160')
        a.e('s_lshl_b32 s28, s27, 5'); a.e('s_mov_b32 s55, 16'); a.e('s_mov_b32 s48, 8'); a.e('s_mov_b32 s49, 4')
        a.e('s_mov_b32 s12, s52'); a.e('s_mov_b32 s13, s53'); a.e(f's_mov_b32 s14, {1536*1280}')
        a.e('s_cmp_lt_u32 s27, 48'); a.e('s_cbranch_scc1 K1_WI_SET')
        a.e('s_mov_b32 s12, s50'); a.e('s_mov_b32 s13, s51'); a.e(f's_mov_b32 s14, {640*1280}')
        a.e('s_sub_u32 s27, s27, 48')
        a.e('s_mul_i32 s28, s27, 40'); a.e('s_mov_b32 s55, 20')
        a.e('s_cmp_lt_u32 s27, 16'); a.e('s_cbranch_scc1 K1_WI_SET')
        a.e('s_sub_u32 s27, s27, 16')
        a.e('s_mul_i32 s28, s27, 160'); a.e('s_add_u32 s28, s28, 16')
        a.e('s_mov_b32 s55, 80'); a.e('s_mov_b32 s48, 20'); a.e('s_mov_b32 s49, 40')
        a.label('K1_WI_SET')
        a.e('s_mov_b32 s15, 0x00020000')
        a.e('s_cmp_eq_u32 s33, 0'); a.e('s_cselect_b32 s14, 0, s14')
        for p in range(5):
            a.e(f'v_add_u32 v56, {64*p}, v0')
            a.e('v_mul_u32_u24 v57, 6554, v56')
            a.e('v_lshrrev_b32 v57, 16, v57')
            a.e('v_mul_u32_u24 v58, 10, v57')
            a.e('v_sub_u32 v56, v56, v58')
            a.e('v_lshlrev_b32 v56, 4, v56')
            a.e('v_add_u32 v56, s32, v56')
            a.e('v_lshrrev_b32 v58, 4, v57')
            a.e('v_mul_u32_u24 v58, s55, v58')
            a.e('v_bfe_u32 v59, v57, 3, 1')
            a.e('v_mul_u32_u24 v59, s48, v59')
            a.e('v_add_u32 v58, v58, v59')
            a.e('v_bfe_u32 v59, v57, 2, 1')
            a.e('v_mul_u32_u24 v59, s49, v59')
            a.e('v_add_u32 v58, v58, v59')
            a.e('v_and_b32 v59, 3, v57')
            a.e('v_add_u32 v58, v58, v59')
            a.e('v_add_u32 v58, s28, v58')
            a.e('v_mul_u32_u24 v58, 1280, v58')
            a.e(f'v_add_u32 {v(vU+p)}, v56, v58')
    vSA=16
    D=20
    U=36
    sL,sH,qL,qH=40,41,42,43
    a.e(f'v_and_b32 {v(vT)}, 31, v0')
    a.e(f'v_lshrrev_b32 {v(vT2)}, 5, v0')
    a.e(f'v_lshlrev_b32 {v(vT2)}, 2, {v(vT2)}')
    a.e(f'v_bfe_u32 {v(vT3)}, v0, 1, 3')
    a.e(f'v_xor_b32 {v(vT2)}, {v(vT2)}, {v(vT3)}')
    a.e(f'v_lshlrev_b32 {v(vT2)}, 4, {v(vT2)}')
    a.e(f'v_lshlrev_b32 {v(vT3)}, 7, {v(vT)}')
    a.e(f'v_add_u32 {v(vT2)}, {v(vT2)}, {v(vT3)}')
    a.e(f'v_add_u32 {v(vSA)}, s21, {v(vT2)}')
    for i in range(1,4): a.e(f'v_xor_b32 {v(vSA+i)}, {16*i}, {v(vSA)}')
    for r in (sL,sH,qL,qH): a.e(f'v_mov_b32 {v(r)}, 0')
    a.e(f's_mov_b32 s27, 0')
    a.e(f's_mov_b32 s46, {XS}'); a.e(f's_mov_b32 s47, {(-2*XS)&0xffffffff}')
    def st_read():
        if 'nostat' in FL: return
        for i in range(4): a.e(f'ds_read_b128 {v(D+4*i,4)}, {v(vSA+i)}')
        a.e('s_add_u32 s27, s27, 1')
        a.e('s_cmp_eq_u32 s27, 3')
        a.e('s_cselect_b32 s28, s47, s46')
        a.e('s_cselect_b32 s27, 0, s27')
        for i in range(4): a.e(f'v_add_u32 {v(vSA+i)}, s28, {v(vSA+i)}')
    def st_acc(half):
        if 'nostat' in FL: return
        a.e(f's_waitcnt lgkmcnt({2 if half==0 else 0})')
        for d in range(8*half,8*half+8,2):
            a.e(f'v_lshlrev_b32 {v(U)}, 16, {v(D+d)}')
            a.e(f'v_and_b32 {v(U+1)}, 0xffff0000, {v(D+d)}')
            a.e(f'v_lshlrev_b32 {v(U+2)}, 16, {v(D+d+1)}')
            a.e(f'v_and_b32 {v(U+3)}, 0xffff0000, {v(D+d+1)}')
            a.e(f'v_add_f32 {v(sL)}, {v(sL)}, {v(U)}')
            a.e(f'v_add_f32 {v(sH)}, {v(sH)}, {v(U+1)}')
            a.e(f'v_fma_f32 {v(qL)}, {v(U)}, {v(U)}, {v(qL)}')
            a.e(f'v_fma_f32 {v(qH)}, {v(U+1)}, {v(U+1)}, {v(qH)}')
            a.e(f'v_add_f32 {v(sL)}, {v(sL)}, {v(U+2)}')
            a.e(f'v_add_f32 {v(sH)}, {v(sH)}, {v(U+3)}')
            a.e(f'v_fma_f32 {v(qL)}, {v(U+2)}, {v(U+2)}, {v(qL)}')
            a.e(f'v_fma_f32 {v(qH)}, {v(U+3)}, {v(U+3)}, {v(qH)}')
    a.e('s_waitcnt vmcnt(9)'); a.e('s_barrier'); issueW(True); st_read(); st_acc(0)
    a.e('s_waitcnt vmcnt(9)'); a.e('s_barrier'); issueW(True); issueX(True); st_acc(1)
    a.e('s_waitcnt vmcnt(9)'); a.e('s_barrier'); issueW(True); issueW(True); st_read(); st_acc(0)
    a.e('s_waitcnt vmcnt(14)'); a.e('s_barrier'); issueW(True); issueX(True); st_acc(1)
    a.e('s_mov_b32 s31, 2')
    a.label('K1_LD_LOOP')
    a.e('s_waitcnt vmcnt(14)'); a.e('s_barrier'); issueW(); st_read(); st_acc(0)
    a.e('s_waitcnt vmcnt(14)'); a.e('s_barrier'); issueW(); issueX(); st_acc(1)
    a.e('s_add_u32 s31, s31, 1')
    a.e('s_cmp_lt_u32 s31, 8')
    a.e('s_cbranch_scc1 K1_LD_LOOP')
    a.e('s_waitcnt vmcnt(14)'); a.e('s_barrier'); issueW(); st_read(); st_acc(0)
    wi=5 if 'wimg' in FL else 0
    a.e('s_waitcnt vmcnt(14)'); a.e('s_barrier')
    if wi:
        for p in range(5):
            a.e(f's_add_u32 m0, s20, {p*1024}')
            a.e('s_nop 0')
            a.e(f'buffer_load_dwordx4 {v(vU+p)}, s[12:15], 0 offen lds')
    st_acc(1)
    a.e(f's_waitcnt vmcnt({5+wi})'); a.e('s_barrier'); st_read(); st_acc(0)
    a.e(f's_waitcnt vmcnt({wi})'); a.e('s_barrier'); st_acc(1)
    a.e('s_barrier')
    stamp(a,2)
    P=44
    a.e(f'v_add_f32 {v(P)}, {v(sL)}, {v(sH)}')
    a.e(f'v_add_f32 {v(P+1)}, {v(qL)}, {v(qH)}')
    a.e(f'v_mov_b32 {v(U)}, {v(P)}')
    a.e(f'v_mov_b32 {v(U+1)}, {v(P+1)}')
    a.e('s_nop 1')
    a.e(f'v_permlane32_swap_b32 {v(U)}, {v(P)}')
    a.e(f'v_permlane32_swap_b32 {v(U+1)}, {v(P+1)}')
    a.e('s_nop 1')
    a.e(f'v_add_f32 {v(P)}, {v(U)}, {v(P)}')
    a.e(f'v_add_f32 {v(P+1)}, {v(U+1)}, {v(P+1)}')
    stats(a,0,P)
    a.e(f'v_and_b32 {v(vT)}, 31, v0')
    a.e('s_lshl_b32 s27, s19, 5')
    a.e(f'v_add_u32 {v(vT)}, s27, {v(vT)}')
    a.e(f'v_lshlrev_b32 {v(vT2)}, 2, {v(vT)}')
    a.e(f'v_lshlrev_b32 {v(vT3)}, 3, {v(vT)}')
    a.e('s_mov_b64 exec, 0xffffffff')
    a.e(f'ds_write_b32 {v(vT2)}, {v(P)} offset:{NM}' if NM<65536 else f'v_add_u32 {v(vT2)}, {NM}, {v(vT2)}')
    if NM>=65536:
        a.e(f'v_add_u32 {v(vT3)}, {ST2}, {v(vT3)}')
        a.e(f'ds_write_b32 {v(vT2)}, {v(P)}')
        a.e(f'ds_write_b32 {v(vT2)}, {v(P+1)} offset:512')
        a.e(f'ds_write_b64 {v(vT3)}, {v(P,2)}')
    a.e('s_mov_b64 exec, -1')
    a.e('s_lshl_b32 s27, s19, 6')
    a.e(f'v_add_u32 {v(vT)}, s27, v0')
    a.e(f'v_lshlrev_b32 {v(vT2)}, 3, {v(vT)}')
    a.e(f'v_add_u32 {v(vT2)}, {CS}, {v(vT2)}')
    a.e('s_waitcnt lgkmcnt(0)')
    stamp(a,3)
    a.e('s_barrier')
    a.e(f'v_cmp_gt_u32 vcc, 160, {v(vT)}')
    a.e('s_and_saveexec_b64 s[48:49], vcc')
    a.e(f'ds_read_b64 {v(D,2)}, {v(vT2)} offset:1280')
    a.e(f'ds_read_b64 {v(D+2,2)}, {v(vT2)} offset:2560')
    a.e('s_waitcnt lgkmcnt(0)')
    a.e(f'v_add_f32 {v(D)}, {v(D)}, {v(D+2)}')
    a.e(f'v_add_f32 {v(D+1)}, {v(D+1)}, {v(D+3)}')
    a.e(f'ds_write_b64 {v(vT2)}, {v(D,2)}')
    a.e('s_mov_b64 exec, -1')
    a.e('s_waitcnt lgkmcnt(0)')
    a.e('s_barrier')
    if 'wimg' in FL:
        a.e('s_cmp_eq_u32 s33, 0')
        a.e('s_cbranch_scc1 K1_WI_END')
        a.e('v_lshrrev_b32 v56, 5, v0')
        a.e('v_lshlrev_b32 v56, 4, v56')
        a.e('v_bfe_u32 v57, v0, 4, 1')
        a.e('v_lshlrev_b32 v57, 2, v57')
        a.e('v_add_u32 v56, v56, v57')
        a.e('v_bfe_u32 v57, v0, 2, 2')
        a.e('v_add_u32 v56, v56, v57')
        a.e('v_mul_u32_u24 v56, 160, v56')
        a.e('v_add_u32 v56, s20, v56')
        a.e('v_and_b32 v57, 3, v0')
        a.e('v_lshlrev_b32 v58, 4, v57')
        a.e('v_add_u32 v54, v56, v58')
        a.e('v_lshlrev_b32 v58, 3, v57')
        a.e('v_add_u32 v55, v56, v58')
        a.e('v_lshlrev_b32 v53, 4, v0')
        a.e(f's_add_u32 s12, s34, {WIMG}'); a.e('s_addc_u32 s13, s35, 0'); a.e(f's_mov_b32 s14, {WIMG_BYTES}')
        a.e('s_waitcnt vmcnt(0)')
        for t in range(5):
            reg,off=(54,[0,8,64,72][t]) if t<4 else (55,128)
            a.e(f'ds_read_b64_tr_b16 {v(56+4*t,2)}, {v(reg)} offset:{off}')
            a.e(f'ds_read_b64_tr_b16 {v(58+4*t,2)}, {v(reg)} offset:{off+1280}')
        a.e('s_waitcnt lgkmcnt(0)')
        for t in range(5):
            a.e(f's_add_u32 s27, s54, {t*1024}')
            a.e(f'buffer_store_dwordx4 {v(56+4*t,4)}, v53, s[12:15], s27 offen')
        a.e('s_waitcnt vmcnt(0)')
        a.label('K1_WI_END')
    if 'fuse' in FL:
        a.e('s_cmp_eq_u32 s19, 3'); a.e('s_cbranch_scc0 K1_FL_END')
        a.e('s_cmp_lt_u32 s2, 8'); a.e('s_cbranch_scc0 K1_FL_END')
        a.e(f's_add_u32 s12, s34, {FLAGS}'); a.e('s_addc_u32 s13, s35, 0'); a.e(f's_mov_b32 s14, {FLAGS_BYTES}'); a.e('s_mov_b32 s15, 0x00020000')
        a.e('s_lshl_b32 s27, s2, 10')
        a.e('v_lshlrev_b32 v53, 4, v0')
        for k in range(4): a.e(f'v_mov_b32 v{56+k}, 0')
        a.e('buffer_store_dwordx4 v[56:59], v53, s[12:15], s27 offen')
        a.e('s_waitcnt vmcnt(0)')
        a.label('K1_FL_END')
    if 'lst' not in FL:
        stamp(a,4); stamp(a,5); stamp(a,6); stamp(a,7)
    stamp_store(a,8,34,'s16',8,3*1024*1024)
    a.label('K1_END')
    a.e('s_endpgm')
    return NV
```

```python
import numpy as np
S=2048; D=640; H=32; DH=20; F=1536
QIMG=0; KIMG=2621440; VIMG=2*2621440; OIMG=3*2621440; HIMG=4*2621440
GBUF=HIMG+6291456
WS_USED=GBUF+2621440*2

def f2bf(a):
    a=np.ascontiguousarray(a,dtype=np.float32)
    u=a.view(np.uint32)
    r=((u>>16)&1)+0x7fff
    return ((u+r)>>16).astype(np.uint16)
def bf2f(u):
    return (u.astype(np.uint32)<<16).view(np.float32)

EVEN=[[0,1,2,3,8,9,10,11],[4,5,6,7,12,13,14,15],[16,17,18,19]]
ODD=[[4,5,6,7,12,13,14,15],[8,9,10,11,16,17,18,19],[0,1,2,3]]
def qk_img(q_u16):
    img=np.zeros((H,64,640),np.uint16)
    q=q_u16.reshape(64,32,H,DH)
    for h in range(H):
        o=EVEN if h%2==0 else ODD
        img[h,:,0:256]=q[:,:,h,:][:,:,o[0]].reshape(64,256)
        img[h,:,256:512]=q[:,:,h,:][:,:,o[1]].reshape(64,256)
        img[h,:,512:640]=q[:,:,h,:][:,:,o[2]].reshape(64,128)
    return img
def qk_unimg(img):
    q=np.zeros((64,32,H,DH),np.uint16)
    for h in range(H):
        o=EVEN if h%2==0 else ODD
        q[:,:,h,o[0]]=img[h,:,0:256].reshape(64,32,8)
        q[:,:,h,o[1]]=img[h,:,256:512].reshape(64,32,8)
        q[:,:,h,o[2]]=img[h,:,512:640].reshape(64,32,4)
    return q.reshape(S,640)
def v_tok(j,hp):
    return [16*j+4*hp+i for i in range(4)]+[16*j+8+4*hp+i for i in range(4)]
def v_img(v_u16):
    img=np.zeros((H,64,4,20,8),np.uint16)
    v=v_u16.reshape(64,32,H,DH)
    for j in range(2):
        for hp in range(2):
            t=v_tok(j,hp)
            img[:,:,2*j+hp]=v[:,t].transpose(2,0,3,1)
    return img.reshape(H,64,640)
def v_unimg(img):
    img=img.reshape(H,64,4,20,8)
    v=np.zeros((64,32,H,DH),np.uint16)
    for j in range(2):
        for hp in range(2):
            t=v_tok(j,hp)
            v[:,t]=img[:,:,2*j+hp].transpose(1,3,0,2)
    return v.reshape(S,640)
def kslot(hp):
    return [4*hp+i for i in range(4)]+[8+4*hp+i for i in range(4)]
def o_cols():
    c=np.zeros((40,2,8),np.int64)
    for k in range(32):
        for hp in range(2):
            c[k,hp]=[20*k+x for x in kslot(hp)]
    for m in range(8):
        for hp in range(2):
            for e in range(8):
                c[32+m,hp,e]=20*(4*m+2*hp+(e>=4))+16+e%4
    return c
def o_img(o_u16):
    c=o_cols()
    o=o_u16.reshape(64,32,640)
    return o[:,:,c].transpose(0,2,3,1,4).copy()
def o_unimg(img):
    img=img.reshape(64,40,2,32,8)
    c=o_cols()
    o=np.zeros((64,32,640),np.uint16)
    o[:,:,c]=img.transpose(0,3,1,2,4)
    return o.reshape(S,640)
def h_cols():
    c=np.zeros((96,2,8),np.int64)
    for k in range(96):
        for hp in range(2):
            c[k,hp]=[16*k+x for x in kslot(hp)]
    return c
def h_img(h_u16):
    c=h_cols()
    h=h_u16.reshape(64,32,F)
    return h[:,:,c].transpose(0,2,3,1,4).copy()
def h_unimg(img):
    img=img.reshape(64,96,2,32,8)
    c=h_cols()
    h=np.zeros((64,32,F),np.uint16)
    h[:,:,c]=img.transpose(0,3,1,2,4)
    return h.reshape(S,F)

WIMG=GBUF
WIMG_BYTES=8*68*5*1024
WS_USED=WIMG+WIMG_BYTES
def colmap(t,i):
    g,r=i//4,i%4
    return [8*g+r,8*g+4+r,32+8*g+r,32+8*g+4+r,64+4*g+r][t]
def w_img(w2_u16,wo_u16):
    hc=h_cols(); oc=o_cols()
    img=np.zeros((8,68,5,4,16,8),np.uint16)
    cols=np.array([[colmap(t,i) for i in range(16)] for t in range(5)])
    for s in range(68):
        for q in range(4):
            if s<48: rows=hc[2*s+q//2,q%2]; W=w2_u16
            else:    rows=oc[2*(s-48)+q//2,q%2]; W=wo_u16
            for cb in range(8):
                blk=W[rows][:,80*cb+cols]
                img[cb,s,:,q]=blk.transpose(1,2,0)
    return img
GIMG=WIMG+WIMG_BYTES
GIMG_BYTES=256*10240
WS_USED=GIMG+GIMG_BYTES
def g_unimg(img_u16):
    img=img_u16.reshape(32,8,4,1280)
    out=np.zeros((2048,640),np.uint16)
    a=img[...,:512].reshape(32,8,4,4,16,8); b=img[...,512:1024].reshape(32,8,4,4,16,8); c=img[...,1024:].reshape(32,8,4,4,16,4)
    o=out.reshape(32,4,16,8,80)
    for kg in range(4):
        o[:,:,:,:,8*kg:8*kg+8]=a[:,:,:,kg].transpose(0,2,3,1,4)
        o[:,:,:,:,32+8*kg:32+8*kg+8]=b[:,:,:,kg].transpose(0,2,3,1,4)
        o[:,:,:,:,64+4*kg:64+4*kg+4]=c[:,:,:,kg].transpose(0,2,3,1,4)
    return out
def g_img(g_u16):
    img=np.zeros((32,8,4,1280),np.uint16)
    o=g_u16.reshape(32,4,16,8,80)
    a=np.zeros((32,8,4,4,16,8),np.uint16); b=a.copy(); c=np.zeros((32,8,4,4,16,4),np.uint16)
    for kg in range(4):
        a[:,:,:,kg]=o[:,:,:,:,8*kg:8*kg+8].transpose(0,3,1,2,4)
        b[:,:,:,kg]=o[:,:,:,:,32+8*kg:32+8*kg+8].transpose(0,3,1,2,4)
        c[:,:,:,kg]=o[:,:,:,:,64+4*kg:64+4*kg+4].transpose(0,3,1,2,4)
    img[...,:512]=a.reshape(32,8,4,512); img[...,512:1024]=b.reshape(32,8,4,512); img[...,1024:]=c.reshape(32,8,4,256)
    return img

FLAGS=GIMG+GIMG_BYTES
FLAGS_BYTES=32768
WS_USED=FLAGS+FLAGS_BYTES
```

```python
import sys
from asmlib import *
import gen_att, gen_g64, gen_k1, gen_k3, gen_k3p, stamps
HDR=open('recurrent_scan__mha_block__glu_gated_swiglu__prompt.s.ref').read().split('\n')
def build(kernels):
    out=[]
    for ln in HDR:
        if ln.startswith('; Override launch'): break
        out.append(ln)
    for (name,fn,grid,block,lds) in kernels:
        out.append(f'; @launch kernel={name} grid=({grid},1,1) block=({block},1,1) lds={lds}')
    out.append('.amdgcn_target "amdgcn-amd-amdhsa--gfx950"')
    out.append('.text')
    descs=[]
    done=set()
    for (name,fn,grid,block,lds) in kernels:
        if name in done: continue
        done.add(name)
        a=Asm()
        nv=fn(a,name)
        out.append(a.text())
        descs.append(kernel_desc(name,nv))
    out.append('.section .rodata,"a"')
    out.append('.p2align 6')
    out+=descs
    return '\n'.join(out)+'\n'
if __name__=='__main__':
    which=sys.argv[1]; path=sys.argv[2]
    ks=[]
    if len(sys.argv)>3 and sys.argv[3] in('stamp','real'): stamps.STAMP=True
    if len(sys.argv)>3 and sys.argv[3]=='real': stamps.REAL=True
    if len(sys.argv)>4: gen_att.FL=set(sys.argv[4].split(',')); gen_k1.FL=set(sys.argv[4].split(',')); gen_k3.FL=set(sys.argv[4].split(',')); gen_k3p.FL=set(sys.argv[4].split(','))
    if which=='att': ks=[('att_kernel',gen_att.att_kernel,512 if ('dup' in gen_att.FL or 'ffn2' in gen_att.FL) else 256,512,61440)]
    if which=='g64': ks=[('w2_kernel',gen_g64.w2_kernel,256,256,102400),('wo_kernel',gen_g64.wo_kernel,256,256,102400)]
    if which=='k1': ks=[('k1_kernel',gen_k1.k1_kernel,256,512,gen_k1.LDS)]
    if which=='all': ks=[('k1_kernel',gen_k1.k1_kernel,256,512,gen_k1.LDS),('att_kernel',gen_att.att_kernel,256,512,61440),('w2_kernel',gen_g64.w2_kernel,256,256,102400),('wo_kernel',gen_g64.wo_kernel,256,256,102400)]
    if which=='k3': ks=[('k3_kernel',gen_k3.k3_kernel,256,256,61440)]
    if which=='all3': ks=[('k1_kernel',gen_k1.k1_kernel,256,512,gen_k1.LDS),('att_kernel',gen_att.att_kernel,256,512,61440),('k3_kernel',gen_k3.k3_kernel,256,256,61440)]
    if which=='ally': ks=[('k1_kernel',gen_k1.k1_kernel,256,512,gen_k1.LDS),('att_kernel',gen_att.att_kernel,512,512,61440),('k3_kernel',gen_k3p.k3p_kernel,256,256,61440)]
    if which=='allf': ks=[('k1_kernel',gen_k1.k1_kernel,256,512,gen_k1.lds_size()),('att_kernel',gen_att.att_kernel,512,512,81920)]
    open(path,'w').write(build(ks))
```

```python
from asmlib import *
from layouts import QIMG,KIMG,VIMG,HIMG,WIMG,WIMG_BYTES,FLAGS,FLAGS_BYTES
from stamps import stamp, stamp_store, stampc
import stamps
XS=16384; WBASE=49152; WP=20544
CS=WBASE+5*WP
CSP=CS+1280
NM=CSP+2560
RR=NM+512
ST2=RR+512
LDS=ST2+1024
WF=4
XF=24
XA=40
WA=44
SEL=48
vT=58; vT2=59; vT3=60; vT4=61
CSA=64
ACC=96
NV=256
FL=set()
def acc(i,t): return ACC+(i*5+t)*16
def mfma(d,a_,b_): return f'v_mfma_f32_32x32x16_bf16 {v(d,16)}, {v(a_,4)}, {v(b_,4)}, {v(d,16)}'

def wread(a,var,jl,t):
    if var=='ffn':
        reg=WA+2*jl; pitch=320; off=32*t
    else:
        reg=WA+2*jl+(t%2); pitch=640; off=64*t
    for p in range(2):
        a.e(f'ds_read_b64_tr_b16 {v(WF+4*t+2*p,2)}, {v(reg)} offset:{off+4*p*pitch}')
def xread(a,buf,j):
    for i in range(2):
        a.e(f'ds_read_b128 {v(XF+buf*8+i*4,4)}, {v(XA+j)} offset:{i*4096}')

def kstep(a,var,k):
    jl=k%2; xb=k%2
    a.c(f'kstep {k}')
    A=[[] for _ in range(5)]
    if jl==1 and 'nobar' not in FL: A[0].append('BAR')
    A[1]+=[f'ds_read_b128 {v(XF+(1-xb)*8+i*4,4)}, {v(XA+(k+1)%4)} offset:{i*4096}' for i in range(2)]
    regs=[WA+2*jl] if var=='ffn' else [WA+2*jl,WA+2*jl+1]
    A[2]+=[f'v_add_u32 {v(r)}, s22, {v(r)}' for r in regs]
    xs={1:[0,1],2:[2],3:[3]}.get(k,[])
    A[3]+=[f'v_add_u32 {v(XA+j)}, s24, {v(XA+j)}' for j in xs]
    if jl==1:
        A[3]+=['s_add_u32 s23, s23, 1','s_cmp_eq_u32 s23, 5']
        A[4]+=['s_cselect_b32 s22, s45, s44','s_cselect_b32 s23, 0, s23']
    if k==0:
        A[0]+=['s_add_u32 s25, s25, 1','s_cmp_eq_u32 s25, 3']
        A[0]+=['s_cselect_b32 s24, s47, s46']
        A[4]+=['s_cmp_eq_u32 s25, 3','s_cselect_b32 s25, 0, s25']
    if k==2:
        A[4]=['s_add_u32 s26, s26, 1']+A[4]
    if k==1 and 'ppf' in FL:
        A[1]+=['s_cmp_le_u32 s26, %d'%PPF_LAST(),'s_cselect_b32 s6, s6, 0']
        A[2]+=['buffer_load_dword v95, v94, s[4:7], 0 offen']
        A[3]=['v_add_u32 v94, s28, v94']+A[3]
    if k==3:
        A[4]+=['s_cmp_lt_u32 s26, 10']
    for t in range(5):
        n=8 if t<2 else 10
        a.e(f's_waitcnt lgkmcnt({n})')
        if 'nocs' not in FL and ((jl==0 and t%2==0) or (jl==1 and t%2==1)):
            a.e(f'v_mfma_f32_16x16x32_bf16 {v(CSA+4*t,4)}, {v(SEL,4)}, {v(WF+4*t,4)}, {v(CSA+4*t,4)}')
        for i in range(2):
            X=XF+xb*8+i*4
            if var=='v': a.e(mfma(acc(i,t),X,WF+4*t))
            else:        a.e(mfma(acc(i,t),WF+4*t,X))
            if i==0:
                for f in A[t]:
                    a.e('s_barrier' if f=='BAR' else f)
        wread(a,var,1-jl,t)

def stats(a,i,P,Pc=None,mode='qk'):
    a.e(f'v_mul_f32 {v(P)}, 0x3acccccd, {v(P)}')
    a.e(f'v_mul_f32 {v(P+1)}, 0x3acccccd, {v(P+1)}')
    a.e(f'v_fma_f32 {v(P+1)}, -{v(P)}, {v(P)}, {v(P+1)}')
    a.e(f'v_max_f32 {v(P+1)}, 0, {v(P+1)}')
    a.e(f'v_cvt_pk_bf16_f32 {v(P)}, {v(P)}, {v(P+1)}')
    a.e(f'v_and_b32 {v(P+1)}, 0xffff0000, {v(P)}')
    a.e(f'v_lshlrev_b32 {v(P)}, 16, {v(P)}')
    a.e(f'v_add_f32 {v(P+1)}, 0x3727c5ac, {v(P+1)}')
    a.e(f'v_cvt_pk_bf16_f32 {v(P+1)}, {v(P+1)}, {v(P+1)}')
    a.e(f'v_and_b32 {v(P+1)}, 0xffff0000, {v(P+1)}')
    a.e(f'v_sqrt_f32 {v(P+1)}, {v(P+1)}')
    a.e(f'v_xor_b32 {v(P)}, 0x80000000, {v(P)}')
    a.e(f'v_cvt_pk_bf16_f32 {v(P+1)}, {v(P+1)}, {v(P+1)}')
    a.e(f'v_and_b32 {v(P+1)}, 0xffff0000, {v(P+1)}')
    a.e(f'v_rcp_f32 {v(P+1)}, {v(P+1)}')
    a.e('s_nop 0')

def pkfma(d,x,y,z,bx=None,by=None,bz=None):
    sel=[0 if b is None else b for b in (bx,by,bz)]
    hi=[1 if b is None else b for b in (bx,by,bz)]
    return f'v_pk_fma_f32 {v(d,2)}, {v(x,2)}, {v(y,2)}, {v(z,2)} op_sel:[{sel[0]},{sel[1]},{sel[2]}] op_sel_hi:[{hi[0]},{hi[1]},{hi[2]}]'
def pkmul(d,x,y,bx=None,by=None):
    sel=[0 if b is None else b for b in (bx,by)]
    hi=[1 if b is None else b for b in (bx,by)]
    return f'v_pk_mul_f32 {v(d,2)}, {v(x,2)}, {v(y,2)} op_sel:[{sel[0]},{sel[1]}] op_sel_hi:[{hi[0]},{hi[1]}]'

def PPF_N():
    for n in (1,2,3,4,5):
        if f'ppf{n}' in FL: return n
    return 3
def PPF_LAST():
    return 8-PPF_N()
def ppf_setup(a,var):
    a.e('s_lshr_b32 s29, s2, 3'); a.e('s_and_b32 s29, s29, 7')
    if var=='ffn':
        L,mul,pitch,nw=3,21846,3072,2
        a.e('s_sub_u32 s31, s18, 6'); a.e('s_mul_i32 s31, s31, 320'); a.e('s_min_u32 s31, s31, 2752'); a.e('s_andn2_b32 s31, s31, 127')
        a.e('s_cmp_eq_u32 s16, 0'); a.e('s_cselect_b32 s4, s40, s42'); a.e('s_cselect_b32 s5, s41, s43')
    else:
        L,mul,pitch,nw=5,13108,3840,1
        a.e('s_mul_i32 s31, s18, 640')
        a.e('s_mov_b32 s4, s38'); a.e('s_mov_b32 s5, s39')
    a.e(f's_add_u32 s29, s29, 64')
    a.e(f'v_mul_u32_u24 v92, {mul}, v0')
    a.e('v_lshrrev_b32 v92, 16, v92')
    a.e(f'v_mul_u32_u24 v93, {L}, v92')
    a.e('v_sub_u32 v93, v0, v93')
    a.e('v_lshlrev_b32 v92, 3, v92')
    a.e('v_add_u32 v92, s29, v92')
    a.e(f'v_mul_u32_u24 v92, {pitch}, v92')
    a.e('v_lshlrev_b32 v93, 7, v93')
    a.e('v_add_u32 v92, v92, v93')
    a.e('v_add_u32 v92, s31, v92')
    a.e('v_bfrev_b32 v93, 1')
    a.e(f'v_cmp_gt_u32 vcc, {8*L}, v0')
    a.e('v_cndmask_b32 v94, v93, v92, vcc')
    a.e(f's_mov_b32 s28, {64*pitch}')
    a.e(f's_cmp_lt_u32 s16, {nw}'); a.e(f's_cselect_b32 s6, {640*pitch}, 0')
    a.e('s_mov_b32 s7, 0x00020000')
    a.e('s_cmp_eq_u32 s16, 2')
    a.e(f's_cbranch_scc0 K1_PPF_{var}')
    a.e('s_lshr_b32 s29, s2, 6'); a.e('s_lshl_b32 s29, s29, 5'); a.e('s_lshl_b32 s31, s17, 7'); a.e('s_add_u32 s29, s29, s31')
    a.e('v_add_u32 v92, s29, v0')
    a.e('v_mul_u32_u24 v92, 1280, v92')
    a.e('v_add_u32 v92, 256, v92')
    a.e('v_cmp_gt_u32 vcc, 32, v0')
    a.e('v_cndmask_b32 v94, v93, v92, vcc')
    a.e('s_mov_b32 s4, s36'); a.e('s_mov_b32 s5, s37'); a.e('s_mov_b32 s6, 2621440'); a.e('s_mov_b32 s28, 128')
    a.label(f'K1_PPF_{var}')
    for j in range(PPF_N()):
        a.e('buffer_load_dword v95, v94, s[4:7], 0 offen')
        a.e('v_add_u32 v94, s28, v94')

def main_loop(a,var):
    L=f'K1_{var.upper()}'
    if 'ppf' in FL: ppf_setup(a,var)
    a.e('s_barrier')
    stamp(a,1); stampc(a,8)
    wread(a,var,0,0)
    xread(a,0,0)
    for t in range(1,5): wread(a,var,0,t)
    a.e('s_mov_b32 s26, 0')
    a.e('s_mov_b32 s22, s44'); a.e('s_mov_b32 s23, 1')
    a.label(f'{L}_LOOP')
    for k in range(4): kstep(a,var,k)
    if stamps.STAMP:
        a.e('s_cmp_eq_u32 s26, 1')
        a.e(f's_cbranch_scc0 {L}_NS')
        stamp(a,7)
        a.label(f'{L}_NS')
        a.e('s_cmp_lt_u32 s26, 10')
    a.e(f's_cbranch_scc1 {L}_LOOP')
    stamp(a,2); stampc(a,9)
    step,r1=(64,640) if var=='ffn' else (128,64)
    a.e('s_nop 7')
    a.e('s_mov_b64 exec, 0xffff')
    for t in range(5):
        a.e(f'ds_write_b32 v62, {v(CSA+4*t)} offset:{t*step}')
        a.e(f'ds_write_b32 v62, {v(CSA+4*t+1)} offset:{t*step+r1}')
    a.e('s_mov_b64 exec, -1')
    a.e('s_waitcnt lgkmcnt(0)')
    stamp(a,5)
    a.e('s_barrier')
    if var!='v':
        a.e('ds_read_b64 v[64:65], v63 offset:0')
        a.e('ds_read_b64 v[66:67], v63 offset:256')
    a.e('s_barrier')
    stamp(a,6)

def k1_kernel(a,name):
    pol=' '.join(x for x in ('sc0','sc1','nt') if 'st_'+x in FL)
    if 'nost' in FL or pol:
        E0=a.e
        def e2(x):
            if x.startswith('buffer_store'):
                if 'nost' in FL: return
                x=x+' '+pol
            E0(x)
        a.e=e2
    a.lines.append(kernel_header(name))
    a.e('s_cmp_ge_u32 s2, 256')
    a.e('s_cbranch_scc1 K1_END')
    a.e('s_load_dwordx2 s[34:35], s[0:1], 72')
    a.e('s_load_dwordx2 s[36:37], s[0:1], 0')
    a.e('s_load_dwordx2 s[38:39], s[0:1], 8')
    a.e('s_load_dwordx4 s[40:43], s[0:1], 32')
    if 'wimg' in FL:
        a.e('s_load_dwordx2 s[50:51], s[0:1], 16')
        a.e('s_load_dwordx2 s[52:53], s[0:1], 48')
    stamp(a,0)
    a.e(f'v_lshrrev_b32 {v(vT)}, 6, v0')
    a.e('v_and_b32 v0, 63, v0')
    a.e(f'v_readfirstlane_b32 s16, {v(vT)}')
    a.e('s_and_b32 s27, s2, 7')
    a.e('s_lshr_b32 s29, s2, 3')
    a.e('s_and_b32 s17, s27, 1')
    a.e('s_lshl_b32 s17, s17, 3')
    a.e('s_and_b32 s30, s29, 7')
    a.e('s_add_u32 s17, s17, s30')
    a.e('s_lshr_b32 s18, s27, 1')
    a.e('s_lshl_b32 s18, s18, 2')
    a.e('s_lshr_b32 s30, s29, 3')
    a.e('s_add_u32 s18, s18, s30')
    if 'mix' in FL:
        perm=[0,1,6,7,2,3,8,9,4,10,11,12,5,13,14,15]
        lo=sum(perm[i]<<(4*i) for i in range(8)); hi=sum(perm[8+i]<<(4*i) for i in range(8))
        a.e(f's_mov_b32 s30, {lo}'); a.e(f's_mov_b32 s31, {hi}')
        a.e('s_lshl_b32 s18, s18, 2')
        a.e('s_lshr_b64 s[30:31], s[30:31], s18')
        a.e('s_and_b32 s18, s30, 15')
    a.e('s_cmp_ge_u32 s16, 4')
    a.e('s_cbranch_scc1 K1_LOADER')
    if 'pf' in FL:
        pol=' '.join(x for x in ('sc0','sc1','nt') if 'pf_'+x in FL)
        a.e('s_lshr_b32 s27, s2, 6')
        a.e('s_lshr_b32 s29, s2, 3'); a.e('s_and_b32 s29, s29, 7')
        a.e('s_lshl_b32 s30, s17, 7'); a.e('s_lshl_b32 s27, s27, 5'); a.e('s_add_u32 s30, s30, s27')
        a.e('v_and_b32 v52, 31, v0')
        a.e('v_add_u32 v52, s30, v52')
        a.e('v_mul_u32_u24 v52, 1280, v52')
        a.e('v_lshrrev_b32 v53, 5, v0')
        a.e('v_lshlrev_b32 v53, 7, v53')
        a.e('v_add_u32 v52, v52, v53')
        a.e('s_lshl_b32 s30, s16, 8')
        a.e('s_cmp_ge_u32 s18, 6')
        a.e('s_cbranch_scc1 K1_PF_FFN')
        a.e('s_lshl_b32 s27, s16, 6')
        for q in range(2):
            a.e(f'v_add_u32 v53, s27, v0')
            if q==1: a.e('v_add_u32 v53, 256, v53')
            a.e(f'v_mul_u32_u24 v54, 13108, v53')
            a.e('v_lshrrev_b32 v54, 16, v54')
            a.e('v_mul_u32_u24 v55, 5, v54')
            a.e('v_sub_u32 v55, v53, v55')
            a.e('v_lshlrev_b32 v54, 3, v54')
            a.e('v_add_u32 v54, s29, v54')
            a.e('v_mul_u32_u24 v54, 3840, v54')
            a.e('v_lshlrev_b32 v55, 7, v55')
            a.e(f'v_add_u32 v{55+q+1}, v54, v55')
        a.e('s_mul_i32 s31, s18, 640')
        a.e('s_waitcnt lgkmcnt(0)')
        a.e('s_mov_b32 s4, s38'); a.e('s_mov_b32 s5, s39'); a.e(f's_mov_b32 s6, {640*3840}')
        a.e('s_branch K1_PF_GO')
        a.label('K1_PF_FFN')
        a.e('s_and_b32 s27, s16, 1')
        a.e('s_lshl_b32 s27, s27, 6')
        for q in range(2):
            a.e(f'v_add_u32 v53, s27, v0')
            if q==1: a.e('v_add_u32 v53, 128, v53')
            a.e(f'v_mul_u32_u24 v54, 21846, v53')
            a.e('v_lshrrev_b32 v54, 16, v54')
            a.e('v_mul_u32_u24 v55, 3, v54')
            a.e('v_sub_u32 v55, v53, v55')
            a.e('v_lshlrev_b32 v54, 3, v54')
            a.e('v_add_u32 v54, s29, v54')
            a.e('v_mul_u32_u24 v54, 3072, v54')
            a.e('v_lshlrev_b32 v55, 7, v55')
            a.e(f'v_add_u32 v{55+q+1}, v54, v55')
        a.e('s_sub_u32 s31, s18, 6')
        a.e('s_mul_i32 s31, s31, 320')
        a.e('s_min_u32 s31, s31, 2752')
        a.e('s_andn2_b32 s31, s31, 127')
        a.e('s_waitcnt lgkmcnt(0)')
        a.e('s_cmp_lt_u32 s16, 2')
        a.e('s_cselect_b32 s4, s40, s42')
        a.e('s_cselect_b32 s5, s41, s43')
        a.e(f's_mov_b32 s6, {640*3072}')
        a.label('K1_PF_GO')
        a.e('s_mov_b32 s7, 0x00020000')
        a.e('s_mov_b32 s8, s36'); a.e('s_mov_b32 s9, s37'); a.e('s_mov_b32 s10, 2621440'); a.e('s_mov_b32 s11, 0x00020000')
        a.e(f'buffer_load_dword v95, v56, s[4:7], s31 offen {pol}')
        a.e(f'buffer_load_dword v95, v52, s[8:11], s30 offen {pol}')
        a.e(f'buffer_load_dword v95, v57, s[4:7], s31 offen {pol}')
        a.e('s_cmp_eq_u32 s16, 0')
        a.e('s_cbranch_scc0 K1_PF_END')
        a.e(f'buffer_load_dword v95, v52, s[8:11], 0 offen offset:1024 {pol}')
        a.label('K1_PF_END')
    if 'cp3' in FL: a.e('s_setprio 3')
    a.e('s_lshr_b32 s19, s16, 1')
    a.e('s_and_b32 s20, s16, 1')
    a.e('s_xor_b32 s21, s19, s20')
    a.e(f's_mov_b32 s44, {WP}'); a.e(f's_mov_b32 s45, {(-4*WP)&0xffffffff}'); a.e(f's_mov_b32 s46, {XS}'); a.e(f's_mov_b32 s47, {(-2*XS)&0xffffffff}')
    a.e(f'v_and_b32 {v(vT)}, 31, v0')
    a.e(f'v_lshrrev_b32 {v(vT2)}, 5, v0')
    a.e(f'v_bfe_u32 {v(vT3)}, v0, 1, 3')
    a.e(f'v_lshlrev_b32 {v(vT4)}, 7, {v(vT)}')
    a.e('s_lshl_b32 s27, s19, 13')
    a.e(f'v_add_u32 {v(vT4)}, s27, {v(vT4)}')
    for kk in range(4):
        a.e(f's_xor_b32 s27, s21, {kk%2}')
        a.e(f's_add_u32 s27, s27, {2*(kk//2)}')
        a.e('s_lshl_b32 s27, s27, 1')
        a.e(f'v_add_u32 {v(XA+kk)}, s27, {v(vT2)}')
        a.e(f'v_xor_b32 {v(XA+kk)}, {v(XA+kk)}, {v(vT3)}')
        a.e(f'v_lshlrev_b32 {v(XA+kk)}, 4, {v(XA+kk)}')
        a.e(f'v_add_u32 {v(XA+kk)}, {v(XA+kk)}, {v(vT4)}')
    a.e('s_lshl_b32 s27, s19, 9')
    a.e(f's_add_u32 s27, s27, {ST2}')
    a.e(f'v_lshlrev_b32 v63, 3, {v(vT)}')
    a.e('v_add_u32 v63, s27, v63')
    for k in range(20): a.e(f'v_mov_b32 {v(CSA+k)}, 0')
    a.e(f'v_and_b32 {v(vT2)}, 15, v0')
    a.e(f'v_bfe_u32 {v(vT3)}, v0, 4, 1')
    a.e(f'v_cmp_eq_u32 vcc, {v(vT2)}, {v(vT3)}')
    a.e(f'v_mov_b32 {v(vT2)}, 0')
    a.e(f'v_mov_b32 {v(vT3)}, 0x3f803f80')
    for k in range(4): a.e(f'v_cndmask_b32 {v(SEL+k)}, {v(vT2)}, {v(vT3)}, vcc')
    a.e('s_mov_b32 s25, 0')
    vH=84; vCh=85; vR=86; vC4=87; vRow=88
    a.e(f'v_lshrrev_b32 {v(vH)}, 5, v0')
    a.e(f'v_bfe_u32 {v(vCh)}, v0, 4, 1')
    a.e(f'v_bfe_u32 {v(vR)}, v0, 2, 2')
    a.e(f'v_and_b32 {v(vC4)}, 3, v0')
    a.e(f'v_lshlrev_b32 {v(vRow)}, 3, {v(vH)}')
    a.e(f'v_add_u32 {v(vRow)}, {v(vRow)}, {v(vR)}')
    a.e('s_cmp_ge_u32 s18, 6')
    a.e('s_cbranch_scc1 K1_FFN_SETUP')
    a.e(f'v_mul_u32_u24 {v(vT2)}, 640, {v(vRow)}')
    a.e(f'v_lshlrev_b32 {v(vT3)}, 5, {v(vCh)}')
    a.e(f'v_add_u32 {v(vT2)}, {v(vT2)}, {v(vT3)}')
    a.e(f'v_lshlrev_b32 {v(vT3)}, 3, {v(vC4)}')
    a.e(f'v_add_u32 {v(vT2)}, {v(vT2)}, {v(vT3)}')
    a.e('s_mul_i32 s27, s20, 320')
    a.e(f's_add_u32 s27, s27, {WBASE}')
    a.e(f'v_add_u32 {v(vT2)}, s27, {v(vT2)}')
    a.e(f'v_lshrrev_b32 {v(vT3)}, 1, {v(vR)}')
    a.e(f'v_lshlrev_b32 {v(vT3)}, 6, {v(vT3)}')
    a.e(f'v_sub_u32 {v(vT4)}, 0, {v(vT3)}')
    a.e('s_cmp_eq_u32 s20, 0')
    a.e('s_cselect_b64 vcc, -1, 0')
    a.e(f'v_cndmask_b32 v89, {v(vT4)}, {v(vT3)}, vcc')
    a.e(f'v_cndmask_b32 v90, {v(vT3)}, {v(vT4)}, vcc')
    for jl in range(2):
        a.e(f's_xor_b32 s27, s21, {jl}')
        a.e(f's_mul_i32 s27, s27, {16*640}')
        a.e(f'v_add_u32 {v(vT3)}, s27, {v(vT2)}')
        a.e(f'v_add_u32 {v(WA+2*jl)}, {v(vT3)}, v89')
        a.e(f'v_add_u32 {v(WA+2*jl+1)}, {v(vT3)}, v90')
    a.e('s_mul_i32 s27, s20, 640')
    a.e('s_mul_i32 s29, s19, 1280')
    a.e('s_add_u32 s27, s27, s29')
    a.e(f's_add_u32 s27, s27, {CSP}')
    a.e(f'v_and_b32 v62, 15, v0')
    a.e(f'v_lshlrev_b32 v62, 2, v62')
    a.e('v_add_u32 v62, s27, v62')
    for k in range(160): a.e(f'v_mov_b32 {v(ACC+k)}, 0')
    a.e('s_waitcnt lgkmcnt(0)')
    a.e('s_cmp_ge_u32 s18, 4')
    a.e('s_cbranch_scc1 K1_V_START')
    main_loop(a,'qk')
    a.e(f'v_lshrrev_b32 {v(vT)}, 5, v0')
    a.e(f'v_lshlrev_b32 {v(vT)}, 4, {v(vT)}')
    a.e('s_mul_i32 s27, s20, 640')
    a.e(f's_add_u32 s27, s27, {CS}')
    a.e(f'v_add_u32 {v(vT)}, s27, {v(vT)}')
    CQ=[4,20]
    for b in range(4): a.e(f'ds_read_b128 {v(CQ[0]+4*b,4)}, {v(vT)} offset:{b*32}')
    a.e('s_cmp_lt_u32 s18, 2')
    a.e(f's_cselect_b32 s27, {QIMG}, {KIMG}')
    a.e('s_add_u32 s4, s34, s27')
    a.e('s_addc_u32 s5, s35, 0')
    a.e('s_mov_b32 s6, 2621440')
    a.e('s_mov_b32 s7, 0x00020000')
    a.e('s_cmp_lt_u32 s18, 2')
    a.e('s_cselect_b32 s29, 0x3ea52b5c, 0x3f800000')
    a.e('s_and_b32 s27, s18, 1')
    a.e('s_lshl_b32 s27, s27, 4')
    a.e('s_lshl_b32 s30, s20, 3')
    a.e('s_add_u32 s27, s27, s30')
    a.e('s_mul_i32 s30, s27, 81920')
    a.e('s_lshl_b32 s31, s17, 2')
    a.e('s_lshl_b32 s27, s19, 1')
    a.e('s_add_u32 s31, s31, s27')
    a.e('s_mul_i32 s31, s31, 1280')
    a.e('s_add_u32 s30, s30, s31')
    vL16=71; vR8=72
    a.e(f'v_lshlrev_b32 {v(vL16)}, 4, v0')
    a.e(f'v_and_b32 {v(vR8)}, 31, v0')
    a.e(f'v_lshlrev_b32 {v(vR8)}, 3, {v(vR8)}')
    a.e(f'v_lshrrev_b32 {v(vT2)}, 5, v0')
    a.e(f'v_mul_u32_u24 {v(vT2)}, 81920, {v(vT2)}')
    a.e(f'v_add_u32 {v(vR8)}, {v(vR8)}, {v(vT2)}')
    a.e(f'v_add_u32 {v(vR8)}, 1024, {v(vR8)}')
    a.e('s_waitcnt lgkmcnt(4)')
    for i in range(2):
        a.e(f'v_mul_f32 {v(65+2*i)}, s29, {v(65+2*i)}')
    TMP=76
    for t in range(5):
        if t<4:
            for b in range(4): a.e(f'ds_read_b128 {v(CQ[(t+1)%2]+4*b,4)}, {v(vT)} offset:{(t+1)*128+b*32}')
            a.e('s_waitcnt lgkmcnt(4)')
        else:
            a.e('s_waitcnt lgkmcnt(0)')
        for b in range(4):
            j=4*t+b; m=j//5; jj=j%5
            dst={0:0,1:2,2:4,3:8,4:10}[jj]+20*m
            for i in range(2):
                A=acc(i,0)+4*j; P=64+2*i; C=CQ[t%2]+4*b; T_=TMP+4*i
                a.e(pkfma(T_,C,P,A,None,0,None))
                a.e(pkfma(T_+2,C+2,P,A+2,None,0,None))
                a.e(pkmul(T_,T_,P,None,1))
                a.e(pkmul(T_+2,T_+2,P,None,1))
            for i in range(2):
                T_=TMP+4*i; D=acc(i,0)+dst
                a.e(f'v_cvt_pk_bf16_f32 {v(D)}, {v(T_)}, {v(T_+1)}')
                a.e(f'v_cvt_pk_bf16_f32 {v(D+1)}, {v(T_+2)}, {v(T_+3)}')
            if jj==4:
                for i in range(2):
                    B=acc(i,0)+20*m
                    a.e(f's_add_u32 s27, s30, {2*m*81920+i*1280}')
                    a.e(f's_add_u32 s31, s27, 81920')
                    a.e(f'buffer_store_dwordx4 {v(B,4)}, {v(vL16)}, s[4:7], s27 offen')
                    a.e(f'buffer_store_dwordx4 {v(B+8,4)}, {v(vL16)}, s[4:7], s31 offen')
                    a.e(f'buffer_store_dwordx2 {v(B+4,2)}, {v(vR8)}, s[4:7], s27 offen')
    a.e('s_branch K1_DONE')
    a.label('K1_V_START')
    main_loop(a,'v')
    CB=76
    a.e('s_mul_i32 s27, s20, 640')
    a.e(f's_add_u32 s27, s27, {CS}')
    a.e(f'v_and_b32 v62, 31, v0')
    a.e(f'v_lshlrev_b32 v62, 2, v62')
    a.e('v_add_u32 v62, s27, v62')
    for t in range(5): a.e(f'ds_read_b32 {v(CB+2*t)}, v62 offset:{t*128}')
    a.e(f'v_lshrrev_b32 {v(vT2)}, 5, v0')
    a.e(f'v_lshlrev_b32 {v(vT2)}, 4, {v(vT2)}')
    a.e('s_lshl_b32 s27, s19, 8')
    a.e(f's_add_u32 s27, s27, {NM}')
    a.e(f'v_add_u32 {v(vT2)}, s27, {v(vT2)}')
    a.e(f's_add_u32 s4, s34, {VIMG}')
    a.e('s_addc_u32 s5, s35, 0')
    a.e('s_mov_b32 s6, 2621440')
    a.e('s_mov_b32 s7, 0x00020000')
    a.e('s_sub_u32 s27, s18, 4')
    a.e(f's_mul_i32 s30, s27, {16*81920}')
    a.e('s_lshl_b32 s31, s17, 2')
    a.e('s_lshl_b32 s27, s19, 1')
    a.e('s_add_u32 s31, s31, s27')
    a.e('s_mul_i32 s31, s31, 1280')
    a.e('s_add_u32 s30, s30, s31')
    VO=86
    a.e(f'v_and_b32 {v(vT3)}, 31, v0')
    a.e('s_mul_i32 s27, s20, 160')
    a.e(f'v_add_u32 {v(vT3)}, s27, {v(vT3)}')
    a.e(f'v_lshrrev_b32 {v(vT4)}, 5, v0')
    a.e(f'v_mul_u32_u24 {v(vT4)}, 320, {v(vT4)}')
    for t in range(5):
        a.e(f'v_add_u32 v91, {32*t}, {v(vT3)}')
        a.e(f'v_mul_u32_u24 v92, 3277, v91')
        a.e(f'v_lshrrev_b32 v92, 16, v92')
        a.e(f'v_mul_u32_u24 v93, 20, v92')
        a.e(f'v_sub_u32 v91, v91, v93')
        a.e(f'v_lshlrev_b32 v91, 4, v91')
        a.e(f'v_add_u32 v91, v91, {v(vT4)}')
        a.e(f's_mov_b32 s27, 81920')
        a.e(f'v_mul_lo_u32 v92, v92, s27')
        a.e(f'v_add_u32 {v(VO+t)}, v91, v92')
    qN=4; qR=20; TMP=36
    for i in range(2):
        a.e('s_waitcnt lgkmcnt(0)')
        for b in range(4):
            a.e(f'ds_read_b128 {v(qN+4*b,4)}, {v(vT2)} offset:{i*128+b*32}')
            a.e(f'ds_read_b128 {v(qR+4*b,4)}, {v(vT2)} offset:{512+i*128+b*32}')
        a.e(f's_add_u32 s27, s30, {i*1280}')
        a.e('s_waitcnt lgkmcnt(0)')
        for t in range(5):
            A=acc(i,t)
            for j in range(2):
                for q in range(4):
                    r_=8*j+2*q
                    a.e(pkfma(TMP+2*q,qN+r_,CB+2*t,A+r_,None,0,None))
                for q in range(4):
                    r_=8*j+2*q
                    a.e(pkmul(TMP+2*q,TMP+2*q,qR+r_))
                for q in range(4):
                    a.e(f'v_cvt_pk_bf16_f32 {v(A+8*j+q)}, {v(TMP+2*q)}, {v(TMP+2*q+1)}')
                a.e(f'buffer_store_dwordx4 {v(A+8*j,4)}, {v(VO+t)}, s[4:7], s27 offen offset:{j*640}')
    a.e('s_branch K1_DONE')
    a.label('K1_FFN_SETUP')
    a.e(f'v_mul_u32_u24 {v(vT2)}, 320, {v(vRow)}')
    a.e(f'v_mul_u32_u24 {v(vT3)}, 10272, {v(vCh)}')
    a.e(f'v_add_u32 {v(vT2)}, {v(vT2)}, {v(vT3)}')
    a.e(f'v_lshlrev_b32 {v(vT3)}, 3, {v(vC4)}')
    a.e(f'v_add_u32 {v(vT2)}, {v(vT2)}, {v(vT3)}')
    a.e('s_mul_i32 s27, s20, 160')
    a.e(f's_add_u32 s27, s27, {WBASE}')
    a.e(f'v_add_u32 {v(vT2)}, s27, {v(vT2)}')
    for jl in range(2):
        a.e(f's_xor_b32 s27, s21, {jl}')
        a.e(f's_mul_i32 s27, s27, {16*320}')
        a.e(f'v_add_u32 {v(WA+2*jl)}, s27, {v(vT2)}')
    a.e(f'v_and_b32 v62, 15, v0')
    a.e('v_lshlrev_b32 v62, 2, v62')
    a.e('s_mul_i32 s27, s20, 320')
    a.e('s_mul_i32 s29, s19, 1280')
    a.e('s_add_u32 s27, s27, s29')
    a.e(f's_add_u32 s27, s27, {CSP}')
    a.e('v_add_u32 v62, s27, v62')
    for k in range(160): a.e(f'v_mov_b32 {v(ACC+k)}, 0')
    a.e('s_waitcnt lgkmcnt(0)')
    main_loop(a,'ffn')
    a.e(f'v_lshrrev_b32 {v(vT)}, 5, v0')
    a.e(f'v_lshlrev_b32 {v(vT)}, 4, {v(vT)}')
    a.e('s_mul_i32 s27, s20, 320')
    a.e(f's_add_u32 s27, s27, {CS}')
    a.e(f'v_add_u32 {v(vT)}, s27, {v(vT)}')
    CQ=[4,20]
    def csread(t):
        C=CQ[t%2]
        for b in range(2):
            a.e(f'ds_read_b128 {v(C+4*b,4)}, {v(vT)} offset:{t*64+b*32}')
            a.e(f'ds_read_b128 {v(C+8+4*b,4)}, {v(vT)} offset:{640+t*64+b*32}')
    csread(0)
    a.e(f's_add_u32 s4, s34, {HIMG}')
    a.e('s_addc_u32 s5, s35, 0')
    a.e('s_cmp_eq_u32 s18, 15'); a.e('s_cselect_b32 s27, 1, 0')
    a.e('s_cmp_eq_u32 s20, 0'); a.e('s_cselect_b32 s27, s27, 0')
    a.e('s_cmp_eq_u32 s27, 1'); a.e('s_cselect_b32 s6, 0, 6291456')
    a.e('s_mov_b32 s7, 0x00020000')
    a.e('s_sub_u32 s27, s18, 6')
    a.e('s_mul_i32 s27, s27, 10')
    a.e('s_min_u32 s27, s27, 86')
    a.e('s_mul_i32 s30, s20, 5')
    a.e('s_add_u32 s27, s27, s30')
    a.e('s_lshl_b32 s30, s27, 10')
    a.e('s_lshl_b32 s31, s17, 2')
    a.e('s_lshl_b32 s27, s19, 1')
    a.e('s_add_u32 s31, s31, s27')
    a.e('s_mul_i32 s31, s31, 98304')
    a.e('s_add_u32 s30, s30, s31')
    vL16=71
    a.e(f'v_lshlrev_b32 {v(vL16)}, 4, v0')
    a.e('s_waitcnt lgkmcnt(4)')
    for i in range(2):
        P=64+2*i
        a.e(f'v_mul_f32 {v(72+2*i)}, {v(P+1)}, {v(P+1)}')
        a.e(f'v_rcp_f32 {v(72+2*i)}, {v(72+2*i)}')
        a.e(f'v_mul_f32 {v(P+1)}, 0xbfb8aa3b, {v(P+1)}')
    E=76
    for t in range(5):
        if t<4:
            csread(t+1); a.e('s_waitcnt lgkmcnt(4)')
        else: a.e('s_waitcnt lgkmcnt(0)')
        C=CQ[t%2]
        for i in range(2):
            A=acc(i,t); P=64+2*i
            for q in range(4): a.e(pkfma(A+2*q,C+2*q,P,A+2*q,None,0,None))
        for i in range(2):
            A=acc(i,t); P=64+2*i
            for q in range(4): a.e(pkmul(E+8*i+2*q,A+2*q,P,None,1))
        for i in range(2):
            A=acc(i,t); P=64+2*i
            for q in range(4):
                a.e(f'v_exp_f32 {v(E+8*i+2*q)}, {v(E+8*i+2*q)}')
                a.e(f'v_exp_f32 {v(E+8*i+2*q+1)}, {v(E+8*i+2*q+1)}')
                a.e(pkfma(A+8+2*q,C+8+2*q,P,A+8+2*q,None,0,None))
        for i in range(2):
            A=acc(i,t); I=72+2*i
            for q in range(4):
                a.e(pkfma(E+8*i+2*q,E+8*i+2*q,I,I,None,0,0))
                a.e(pkmul(A+2*q,A+2*q,A+8+2*q))
        for i in range(2):
            for q in range(8): a.e(f'v_rcp_f32 {v(E+8*i+q)}, {v(E+8*i+q)}')
        for i in range(2):
            A=acc(i,t)
            for q in range(4): a.e(pkmul(A+2*q,A+2*q,E+8*i+2*q))
        if t==4: a.e('s_mov_b32 s6, 6291456')
        for i in range(2):
            A=acc(i,t)
            for q in range(4): a.e(f'v_cvt_pk_bf16_f32 {v(A+8+q)}, {v(A+2*q)}, {v(A+2*q+1)}')
            a.e(f's_add_u32 s27, s30, {i*98304+t*1024}')
            a.e(f'buffer_store_dwordx4 {v(A+8,4)}, {v(vL16)}, s[4:7], s27 offen')
    a.label('K1_DONE')
    stamp(a,3)
    a.e('s_waitcnt vmcnt(0)')
    stamp(a,4)
    stamp_store(a,10,34,'s16',8,3*1024*1024)
    a.e('s_endpgm')
    a.label('K1_LOADER')
    a.e('s_sub_u32 s19, s16, 4')
    if 'lp0' not in FL: a.e('s_setprio 3')
    if 'lst' in FL: stamp(a,5)
    vX=4; vW=8
    a.e(f'v_lshrrev_b32 {v(vT)}, 3, v0')
    a.e(f'v_and_b32 {v(vT2)}, 7, v0')
    a.e(f'v_lshrrev_b32 {v(vT3)}, 4, v0')
    a.e('s_lshl_b32 s27, s17, 7')
    a.e('s_lshl_b32 s29, s19, 5')
    a.e('s_add_u32 s27, s27, s29')
    a.e(f'v_xor_b32 {v(vT4)}, {v(vT3)}, {v(vT2)}')
    a.e(f'v_lshlrev_b32 {v(vT4)}, 4, {v(vT4)}')
    a.e(f'v_add_u32 {v(vX)}, s27, {v(vT)}')
    a.e(f'v_mul_u32_u24 {v(vX)}, 1280, {v(vX)}')
    a.e(f'v_xor_b32 {v(vT3)}, 64, {v(vT4)}')
    a.e(f'v_add_u32 {v(vX+1)}, {v(vX)}, {v(vT3)}')
    a.e(f'v_add_u32 {v(vX)}, {v(vX)}, {v(vT4)}')
    a.e(f'v_add_u32 {v(vX+1)}, 10240, {v(vX+1)}')
    a.e(f'v_add_u32 {v(vX+2)}, 20480, {v(vX)}')
    a.e(f'v_add_u32 {v(vX+3)}, 20480, {v(vX+1)}')
    if 'lst' in FL: stamp(a,6)
    a.e('s_waitcnt lgkmcnt(0)')
    a.e('s_mov_b32 s8, s36'); a.e('s_mov_b32 s9, s37'); a.e('s_mov_b32 s10, 2621440'); a.e('s_mov_b32 s11, 0x00020000')
    a.e('s_lshl_b32 s21, s19, 12')
    a.e('s_mov_b32 s25, 0'); a.e('s_mov_b32 s26, s21')
    a.e(f's_add_u32 s30, s21, {3*XS}')
    def issueX(pro=False):
        for i in range(4):
            if 'nodma' in FL and not pro: break
            a.e(f's_add_u32 m0, s26, {i*1024}')
            a.e('s_nop 0')
            a.e(f'buffer_load_dwordx4 {v(vX+i)}, s[8:11], s25 offen lds')
        a.e('s_add_u32 s25, s25, 128')
        a.e(f's_add_u32 s26, s26, {XS}')
        a.e('s_cmp_eq_u32 s26, s30')
        a.e('s_cselect_b32 s26, s21, s26')
    issueX(True)
    if 'lst' in FL: stamp(a,4)
    a.e('s_cmp_ge_u32 s18, 6')
    a.e('s_cbranch_scc1 K1_LD_FFN')
    a.e('s_mul_i32 s27, s19, 320')
    for p in range(5):
        a.e(f's_add_u32 s29, s27, {64*p}')
        a.e(f'v_add_u32 {v(vT)}, s29, v0')
        a.e(f'v_mul_u32_u24 {v(vT2)}, 1639, {v(vT)}')
        a.e(f'v_lshrrev_b32 {v(vT2)}, 16, {v(vT2)}')
        a.e(f'v_mul_u32_u24 {v(vT3)}, 40, {v(vT2)}')
        a.e(f'v_sub_u32 {v(vT)}, {v(vT)}, {v(vT3)}')
        a.e(f'v_bfe_u32 {v(vT3)}, {v(vT2)}, 1, 1')
        a.e(f'v_lshlrev_b32 {v(vT3)}, 2, {v(vT3)}')
        a.e(f'v_xor_b32 {v(vT)}, {v(vT)}, {v(vT3)}')
        a.e(f'v_lshlrev_b32 {v(vT)}, 4, {v(vT)}')
        a.e(f'v_mul_u32_u24 {v(vT2)}, 3840, {v(vT2)}')
        a.e(f'v_add_u32 {v(vW+p)}, {v(vT)}, {v(vT2)}')
    a.e('s_mul_i32 s29, s18, 640')
    for p in range(5): a.e(f'v_add_u32 {v(vW+p)}, s29, {v(vW+p)}')
    a.e('s_waitcnt lgkmcnt(0)')
    a.e('s_mov_b32 s4, s38'); a.e('s_mov_b32 s5, s39'); a.e(f's_mov_b32 s6, {640*3840}')
    a.e(f's_mov_b32 s22, {32*3840}')
    a.e('s_mul_i32 s20, s19, 5120')
    a.e('s_branch K1_LD_GO')
    a.label('K1_LD_FFN')
    a.e('s_and_b32 s27, s19, 1')
    a.e('s_lshl_b32 s27, s27, 4')
    a.e('s_sub_u32 s29, s18, 6')
    a.e('s_mul_i32 s29, s29, 320')
    a.e('s_min_u32 s29, s29, 2752')
    for p in range(5):
        a.e(f'v_add_u32 {v(vT)}, {64*p}, v0')
        a.e(f'v_mul_u32_u24 {v(vT2)}, 3277, {v(vT)}')
        a.e(f'v_lshrrev_b32 {v(vT2)}, 16, {v(vT2)}')
        a.e(f'v_mul_u32_u24 {v(vT3)}, 20, {v(vT2)}')
        a.e(f'v_sub_u32 {v(vT)}, {v(vT)}, {v(vT3)}')
        a.e(f'v_lshlrev_b32 {v(vT)}, 4, {v(vT)}')
        a.e(f'v_add_u32 {v(vT2)}, s27, {v(vT2)}')
        a.e(f'v_mul_u32_u24 {v(vT2)}, 3072, {v(vT2)}')
        a.e(f'v_add_u32 {v(vW+p)}, {v(vT)}, {v(vT2)}')
        a.e(f'v_add_u32 {v(vW+p)}, s29, {v(vW+p)}')
    a.e('s_waitcnt lgkmcnt(0)')
    a.e('s_cmp_lt_u32 s19, 2')
    a.e('s_cselect_b32 s4, s40, s42')
    a.e('s_cselect_b32 s5, s41, s43')
    a.e(f's_mov_b32 s6, {640*3072}')
    a.e(f's_mov_b32 s22, {32*3072}')
    a.e('s_mul_i32 s20, s19, 5120')
    a.e('s_lshr_b32 s27, s19, 1')
    a.e('s_lshl_b32 s27, s27, 5')
    a.e('s_add_u32 s20, s20, s27')
    a.label('K1_LD_GO')
    if 'lst' in FL: stamp(a,7)
    a.e('s_mov_b32 s7, 0x00020000')
    a.e(f's_add_u32 s20, s20, {WBASE}')
    a.e('s_mov_b32 s23, 0'); a.e('s_mov_b32 s24, s20')
    a.e(f's_add_u32 s29, s20, {5*WP}')
    def issueW(pro=False):
        for p in range(5):
            if 'nodma' in FL and not pro: break
            a.e(f's_add_u32 m0, s24, {p*1024}')
            a.e('s_nop 0')
            a.e(f'buffer_load_dwordx4 {v(vW+p)}, s[4:7], s23 offen lds')
        a.e('s_add_u32 s23, s23, s22')
        a.e(f's_add_u32 s24, s24, {WP}')
        a.e('s_cmp_eq_u32 s24, s29')
        a.e('s_cselect_b32 s24, s20, s24')
    issueW(True); issueW(True); issueX(True)
    stamp(a,1)
    if 'lp0' in FL or 'lp30' in FL: a.e('s_setprio 0')
    vU=50
    if 'wimg' in FL:
        a.e('s_lshl_b32 s27, s2, 1'); a.e('s_add_u32 s27, s27, s19')
        a.e('s_add_u32 s28, s2, 512')
        a.e('s_cmp_eq_u32 s19, 2'); a.e('s_cselect_b32 s27, s28, s27')
        a.e('s_cmp_lt_u32 s27, 544'); a.e('s_cselect_b32 s33, 1, 0')
        a.e('s_cmp_eq_u32 s19, 3'); a.e('s_cselect_b32 s33, 0, s33')
        a.e('s_and_b32 s32, s27, 7')
        a.e('s_lshr_b32 s27, s27, 3')
        a.e('s_mul_i32 s54, s32, 68'); a.e('s_add_u32 s54, s54, s27'); a.e('s_mul_i32 s54, s54, 5120')
        a.e('s_mul_i32 s32, s32, 160')
        a.e('s_lshl_b32 s28, s27, 5'); a.e('s_mov_b32 s55, 16'); a.e('s_mov_b32 s48, 8'); a.e('s_mov_b32 s49, 4')
        a.e('s_mov_b32 s12, s52'); a.e('s_mov_b32 s13, s53'); a.e(f's_mov_b32 s14, {1536*1280}')
        a.e('s_cmp_lt_u32 s27, 48'); a.e('s_cbranch_scc1 K1_WI_SET')
        a.e('s_mov_b32 s12, s50'); a.e('s_mov_b32 s13, s51'); a.e(f's_mov_b32 s14, {640*1280}')
        a.e('s_sub_u32 s27, s27, 48')
        a.e('s_mul_i32 s28, s27, 40'); a.e('s_mov_b32 s55, 20')
        a.e('s_cmp_lt_u32 s27, 16'); a.e('s_cbranch_scc1 K1_WI_SET')
        a.e('s_sub_u32 s27, s27, 16')
        a.e('s_mul_i32 s28, s27, 160'); a.e('s_add_u32 s28, s28, 16')
        a.e('s_mov_b32 s55, 80'); a.e('s_mov_b32 s48, 20'); a.e('s_mov_b32 s49, 40')
        a.label('K1_WI_SET')
        a.e('s_mov_b32 s15, 0x00020000')
        a.e('s_cmp_eq_u32 s33, 0'); a.e('s_cselect_b32 s14, 0, s14')
        for p in range(5):
            a.e(f'v_add_u32 v56, {64*p}, v0')
            a.e('v_mul_u32_u24 v57, 6554, v56')
            a.e('v_lshrrev_b32 v57, 16, v57')
            a.e('v_mul_u32_u24 v58, 10, v57')
            a.e('v_sub_u32 v56, v56, v58')
            a.e('v_lshlrev_b32 v56, 4, v56')
            a.e('v_add_u32 v56, s32, v56')
            a.e('v_lshrrev_b32 v58, 4, v57')
            a.e('v_mul_u32_u24 v58, s55, v58')
            a.e('v_bfe_u32 v59, v57, 3, 1')
            a.e('v_mul_u32_u24 v59, s48, v59')
            a.e('v_add_u32 v58, v58, v59')
            a.e('v_bfe_u32 v59, v57, 2, 1')
            a.e('v_mul_u32_u24 v59, s49, v59')
            a.e('v_add_u32 v58, v58, v59')
            a.e('v_and_b32 v59, 3, v57')
            a.e('v_add_u32 v58, v58, v59')
            a.e('v_add_u32 v58, s28, v58')
            a.e('v_mul_u32_u24 v58, 1280, v58')
            a.e(f'v_add_u32 {v(vU+p)}, v56, v58')
    vSA=16
    D=20
    U=36
    sL,sH,qL,qH=40,41,42,43
    a.e(f'v_and_b32 {v(vT)}, 31, v0')
    a.e(f'v_lshrrev_b32 {v(vT2)}, 5, v0')
    a.e(f'v_lshlrev_b32 {v(vT2)}, 2, {v(vT2)}')
    a.e(f'v_bfe_u32 {v(vT3)}, v0, 1, 3')
    a.e(f'v_xor_b32 {v(vT2)}, {v(vT2)}, {v(vT3)}')
    a.e(f'v_lshlrev_b32 {v(vT2)}, 4, {v(vT2)}')
    a.e(f'v_lshlrev_b32 {v(vT3)}, 7, {v(vT)}')
    a.e(f'v_add_u32 {v(vT2)}, {v(vT2)}, {v(vT3)}')
    a.e(f'v_add_u32 {v(vSA)}, s21, {v(vT2)}')
    for i in range(1,4): a.e(f'v_xor_b32 {v(vSA+i)}, {16*i}, {v(vSA)}')
    for r in (sL,sH,qL,qH): a.e(f'v_mov_b32 {v(r)}, 0')
    a.e(f's_mov_b32 s27, 0')
    a.e(f's_mov_b32 s46, {XS}'); a.e(f's_mov_b32 s47, {(-2*XS)&0xffffffff}')
    def st_read():
        if 'nostat' in FL: return
        for i in range(4): a.e(f'ds_read_b128 {v(D+4*i,4)}, {v(vSA+i)}')
        a.e('s_add_u32 s27, s27, 1')
        a.e('s_cmp_eq_u32 s27, 3')
        a.e('s_cselect_b32 s28, s47, s46')
        a.e('s_cselect_b32 s27, 0, s27')
        for i in range(4): a.e(f'v_add_u32 {v(vSA+i)}, s28, {v(vSA+i)}')
    def st_acc(half):
        if 'nostat' in FL: return
        a.e(f's_waitcnt lgkmcnt({2 if half==0 else 0})')
        for d in range(8*half,8*half+8,2):
            a.e(f'v_lshlrev_b32 {v(U)}, 16, {v(D+d)}')
            a.e(f'v_and_b32 {v(U+1)}, 0xffff0000, {v(D+d)}')
            a.e(f'v_lshlrev_b32 {v(U+2)}, 16, {v(D+d+1)}')
            a.e(f'v_and_b32 {v(U+3)}, 0xffff0000, {v(D+d+1)}')
            a.e(f'v_add_f32 {v(sL)}, {v(sL)}, {v(U)}')
            a.e(f'v_add_f32 {v(sH)}, {v(sH)}, {v(U+1)}')
            a.e(f'v_fma_f32 {v(qL)}, {v(U)}, {v(U)}, {v(qL)}')
            a.e(f'v_fma_f32 {v(qH)}, {v(U+1)}, {v(U+1)}, {v(qH)}')
            a.e(f'v_add_f32 {v(sL)}, {v(sL)}, {v(U+2)}')
            a.e(f'v_add_f32 {v(sH)}, {v(sH)}, {v(U+3)}')
            a.e(f'v_fma_f32 {v(qL)}, {v(U+2)}, {v(U+2)}, {v(qL)}')
            a.e(f'v_fma_f32 {v(qH)}, {v(U+3)}, {v(U+3)}, {v(qH)}')
    a.e('s_waitcnt vmcnt(9)'); a.e('s_barrier'); issueW(True); st_read(); st_acc(0)
    a.e('s_waitcnt vmcnt(9)'); a.e('s_barrier'); issueW(True); issueX(True); st_acc(1)
    a.e('s_waitcnt vmcnt(9)'); a.e('s_barrier'); issueW(True); issueW(True); st_read(); st_acc(0)
    a.e('s_waitcnt vmcnt(14)'); a.e('s_barrier'); issueW(True); issueX(True); st_acc(1)
    a.e('s_mov_b32 s31, 2')
    a.label('K1_LD_LOOP')
    a.e('s_waitcnt vmcnt(14)'); a.e('s_barrier'); issueW(); st_read(); st_acc(0)
    a.e('s_waitcnt vmcnt(14)'); a.e('s_barrier'); issueW(); issueX(); st_acc(1)
    a.e('s_add_u32 s31, s31, 1')
    a.e('s_cmp_lt_u32 s31, 8')
    a.e('s_cbranch_scc1 K1_LD_LOOP')
    a.e('s_waitcnt vmcnt(14)'); a.e('s_barrier'); issueW(); st_read(); st_acc(0)
    wi=5 if 'wimg' in FL else 0
    a.e('s_waitcnt vmcnt(14)'); a.e('s_barrier')
    if wi:
        for p in range(5):
            a.e(f's_add_u32 m0, s20, {p*1024}')
            a.e('s_nop 0')
            a.e(f'buffer_load_dwordx4 {v(vU+p)}, s[12:15], 0 offen lds')
    st_acc(1)
    a.e(f's_waitcnt vmcnt({5+wi})'); a.e('s_barrier'); st_read(); st_acc(0)
    a.e(f's_waitcnt vmcnt({wi})'); a.e('s_barrier'); st_acc(1)
    a.e('s_barrier')
    stamp(a,2)
    P=44
    a.e(f'v_add_f32 {v(P)}, {v(sL)}, {v(sH)}')
    a.e(f'v_add_f32 {v(P+1)}, {v(qL)}, {v(qH)}')
    a.e(f'v_mov_b32 {v(U)}, {v(P)}')
    a.e(f'v_mov_b32 {v(U+1)}, {v(P+1)}')
    a.e('s_nop 1')
    a.e(f'v_permlane32_swap_b32 {v(U)}, {v(P)}')
    a.e(f'v_permlane32_swap_b32 {v(U+1)}, {v(P+1)}')
    a.e('s_nop 1')
    a.e(f'v_add_f32 {v(P)}, {v(U)}, {v(P)}')
    a.e(f'v_add_f32 {v(P+1)}, {v(U+1)}, {v(P+1)}')
    stats(a,0,P)
    a.e(f'v_and_b32 {v(vT)}, 31, v0')
    a.e('s_lshl_b32 s27, s19, 5')
    a.e(f'v_add_u32 {v(vT)}, s27, {v(vT)}')
    a.e(f'v_lshlrev_b32 {v(vT2)}, 2, {v(vT)}')
    a.e(f'v_lshlrev_b32 {v(vT3)}, 3, {v(vT)}')
    a.e('s_mov_b64 exec, 0xffffffff')
    a.e(f'ds_write_b32 {v(vT2)}, {v(P)} offset:{NM}' if NM<65536 else f'v_add_u32 {v(vT2)}, {NM}, {v(vT2)}')
    if NM>=65536:
        a.e(f'v_add_u32 {v(vT3)}, {ST2}, {v(vT3)}')
        a.e(f'ds_write_b32 {v(vT2)}, {v(P)}')
        a.e(f'ds_write_b32 {v(vT2)}, {v(P+1)} offset:512')
        a.e(f'ds_write_b64 {v(vT3)}, {v(P,2)}')
    a.e('s_mov_b64 exec, -1')
    a.e('s_lshl_b32 s27, s19, 6')
    a.e(f'v_add_u32 {v(vT)}, s27, v0')
    a.e(f'v_lshlrev_b32 {v(vT2)}, 3, {v(vT)}')
    a.e(f'v_add_u32 {v(vT2)}, {CS}, {v(vT2)}')
    a.e('s_waitcnt lgkmcnt(0)')
    stamp(a,3)
    a.e('s_barrier')
    a.e(f'v_cmp_gt_u32 vcc, 160, {v(vT)}')
    a.e('s_and_saveexec_b64 s[48:49], vcc')
    a.e(f'ds_read_b64 {v(D,2)}, {v(vT2)} offset:1280')
    a.e(f'ds_read_b64 {v(D+2,2)}, {v(vT2)} offset:2560')
    a.e('s_waitcnt lgkmcnt(0)')
    a.e(f'v_add_f32 {v(D)}, {v(D)}, {v(D+2)}')
    a.e(f'v_add_f32 {v(D+1)}, {v(D+1)}, {v(D+3)}')
    a.e(f'ds_write_b64 {v(vT2)}, {v(D,2)}')
    a.e('s_mov_b64 exec, -1')
    a.e('s_waitcnt lgkmcnt(0)')
    a.e('s_barrier')
    if 'wimg' in FL:
        a.e('s_cmp_eq_u32 s33, 0')
        a.e('s_cbranch_scc1 K1_WI_END')
        a.e('v_lshrrev_b32 v56, 5, v0')
        a.e('v_lshlrev_b32 v56, 4, v56')
        a.e('v_bfe_u32 v57, v0, 4, 1')
        a.e('v_lshlrev_b32 v57, 2, v57')
        a.e('v_add_u32 v56, v56, v57')
        a.e('v_bfe_u32 v57, v0, 2, 2')
        a.e('v_add_u32 v56, v56, v57')
        a.e('v_mul_u32_u24 v56, 160, v56')
        a.e('v_add_u32 v56, s20, v56')
        a.e('v_and_b32 v57, 3, v0')
        a.e('v_lshlrev_b32 v58, 4, v57')
        a.e('v_add_u32 v54, v56, v58')
        a.e('v_lshlrev_b32 v58, 3, v57')
        a.e('v_add_u32 v55, v56, v58')
        a.e('v_lshlrev_b32 v53, 4, v0')
        a.e(f's_add_u32 s12, s34, {WIMG}'); a.e('s_addc_u32 s13, s35, 0'); a.e(f's_mov_b32 s14, {WIMG_BYTES}')
        a.e('s_waitcnt vmcnt(0)')
        for t in range(5):
            reg,off=(54,[0,8,64,72][t]) if t<4 else (55,128)
            a.e(f'ds_read_b64_tr_b16 {v(56+4*t,2)}, {v(reg)} offset:{off}')
            a.e(f'ds_read_b64_tr_b16 {v(58+4*t,2)}, {v(reg)} offset:{off+1280}')
        a.e('s_waitcnt lgkmcnt(0)')
        for t in range(5):
            a.e(f's_add_u32 s27, s54, {t*1024}')
            a.e(f'buffer_store_dwordx4 {v(56+4*t,4)}, v53, s[12:15], s27 offen')
        a.e('s_waitcnt vmcnt(0)')
        a.label('K1_WI_END')
    if 'fuse' in FL:
        a.e('s_cmp_eq_u32 s19, 3'); a.e('s_cbranch_scc0 K1_FL_END')
        a.e('s_cmp_lt_u32 s2, 8'); a.e('s_cbranch_scc0 K1_FL_END')
        a.e(f's_add_u32 s12, s34, {FLAGS}'); a.e('s_addc_u32 s13, s35, 0'); a.e(f's_mov_b32 s14, {FLAGS_BYTES}'); a.e('s_mov_b32 s15, 0x00020000')
        a.e('s_lshl_b32 s27, s2, 10')
        a.e('v_lshlrev_b32 v53, 4, v0')
        for k in range(4): a.e(f'v_mov_b32 v{56+k}, 0')
        a.e('buffer_store_dwordx4 v[56:59], v53, s[12:15], s27 offen')
        a.e('s_waitcnt vmcnt(0)')
        a.label('K1_FL_END')
    if 'lst' not in FL:
        stamp(a,4); stamp(a,5); stamp(a,6); stamp(a,7)
    stamp_store(a,8,34,'s16',8,3*1024*1024)
    a.label('K1_END')
    a.e('s_endpgm')
    return NV
```

```python
from asmlib import *
from layouts import QIMG,KIMG,VIMG,OIMG,FLAGS,FLAGS_BYTES
import gen_ffn2
NAME='att_kernel'
SLOT=20480
Q1=0+8
Q2=12
K1=16
K2=20
V0=24; V1=28
P0=32; P1=36
E=40
SA=48; SB=64
O=80
vKc=96; vK2c=97; vVc=98; vKn=99; vK2n=100; vVn=101
vL16=0
vT=1; vT2=2; vT3=3; vLaneK=4; vLaneK2=5; vLaneV=6; vMx=7
NV=102
M16=[False]
def mfma(d,a,b,c):
    cs = '0' if c is None else v(c,16)
    if M16[0]:
        if c is None or d in (SA,SB):
            o=0 if c is None else 8
            b=Q1
            return f'v_mfma_f32_16x16x32_bf16 {v(d+o,4)}, {v(a,4)}, {v(b,4)}, 0\n    v_mfma_f32_16x16x32_bf16 {v(d+o+4,4)}, {v(a,4)}, {v(b,4)}, 0'
        return f'v_mfma_f32_16x16x32_bf16 {v(d,4)}, {v(a,4)}, {v(b,4)}, {v(d,4)}\n    v_mfma_f32_16x16x32_bf16 {v(d+4,4)}, {v(a,4)}, {v(b,4)}, {v(d+4,4)}'
    return f'v_mfma_f32_32x32x16_bf16 {v(d,16)}, {v(a,4)}, {v(b,4)}, {cs}'

def emit_dma(a, soff_chunk, sslot):
    a.e(f's_add_u32 s30, s17, {soff_chunk}')
    a.e(f's_add_u32 m0, s20, {sslot}')
    a.e(f's_add_u32 s31, s18, {soff_chunk}')
    a.e(f'buffer_load_dwordx4 {v(vL16)}, s[4:7], s30 offen lds')
    a.e(f's_add_u32 m0, m0, 8192')
    a.e(f's_add_u32 s30, s19, {soff_chunk}')
    a.e(f'buffer_load_dwordx4 {v(vL16)}, s[4:7], s31 offen lds')
    l=a.newlabel('nodma3')
    a.e(f's_cmp_ge_u32 s16, 4')
    a.e(f's_cbranch_scc1 {l}')
    a.e(f's_add_u32 m0, m0, 8192')
    a.e('s_nop 0')
    a.e(f'buffer_load_dwordx4 {v(vL16)}, s[4:7], s30 offen lds')
    a.label(l)

def set_m_pieces(a, add):
    a.e(f'v_mov_b32 {v(vT)}, {v(vMx)}')
    a.e('s_nop 1')
    a.e(f'v_permlane32_swap_b32 {v(vT)}, {v(vMx)}')
    a.e('s_nop 1')
    a.e(f'v_max_f32 {v(vMx)}, {v(vT)}, {v(vMx)}')
    a.e(f'v_ceil_f32 {v(vMx)}, {v(vMx)}')
    a.e(f'v_mov_b32 {v(vT)}, {add}')
    a.e(f'v_add_f32 {v(vMx)}, {v(vT)}, {v(vMx)}')
    a.e(f'v_sub_f32 {v(vMx)}, 0, {v(vMx)}')
    a.e(f'v_and_b32 {v(vT)}, 0xffff0000, {v(vMx)}')
    a.e(f'v_sub_f32 {v(vT2)}, {v(vMx)}, {v(vT)}')
    a.e(f'v_and_b32 {v(vT3)}, 0xffff0000, {v(vT2)}')
    a.e(f'v_sub_f32 {v(vT2)}, {v(vT2)}, {v(vT3)}')
    a.e(f'v_lshrrev_b32 {v(vT)}, 16, {v(vT)}')
    a.e(f'v_or_b32 {v(vT)}, {v(vT)}, {v(vT3)}')
    a.e(f'v_lshrrev_b32 {v(vT2)}, 16, {v(vT2)}')
    a.e('s_mov_b64 exec, 0xffffffff')
    a.e(f'v_mov_b32 {v(Q2+2)}, {v(vT)}')
    a.e(f'v_mov_b32 {v(Q2+3)}, {v(vT2)}')
    a.e('s_mov_b64 exec, -1')

def max16(a, S, first):
    for i in range(0,16,2):
        if first and i==0:
            a.e(f'v_max_f32 {v(vMx)}, {v(S)}, {v(S+1)}')
        else:
            a.e(f'v_max3_f32 {v(vMx)}, {v(vMx)}, {v(S+i)}, {v(S+i+1)}')

FL=set()
def tile(a,i):
    S,N=(SA,SB) if i%2==0 else (SB,SA)
    def addr(kind,ti):
        cur={'k':vKc,'k2':vK2c,'v':vVc}[kind]; nxt={'k':vKn,'k2':vK2n,'v':vVn}[kind]
        return (cur,ti*1280) if ti<8 else (nxt,(ti-8)*1280)
    a.c(f'---- tile {i}')
    if i==6 and 'nodma' not in FL:
        a.e('s_waitcnt vmcnt(0)')
        a.e('s_barrier')
        l=a.newlabel('nodma')
        a.e('s_cmp_ge_u32 s24, 6')
        a.e(f's_cbranch_scc1 {l}')
        emit_dma(a,'s25','s26')
        a.label(l)
    if 'nolds' in FL:
        E_=a.e
        class A2:
            def e(self,s):
                if s.startswith('ds_read') or s.startswith('s_waitcnt lgkm') or s.startswith('s_mov_b64 exec'): return
                E_(s)
        a=A2()
    ex=lambda dst,src: a.e(f'v_exp_f32 {v(dst)}, {v(src)}')
    cv=lambda dst,x: a.e(f'v_cvt_pk_bf16_f32 {v(dst)}, {v(x)}, {v(x+1)}')
    a.e('s_waitcnt lgkmcnt(3)')
    a.e(mfma(N,K1,Q1,None))
    r,o=addr('k',i+2); a.e(f'ds_read_b128 {v(K1,4)}, {v(r)} offset:{o}')
    cv(P1+2,E+4); cv(P1+3,E+6)
    for k in range(4): ex(E+k,S+k)
    a.e('s_waitcnt lgkmcnt(3)')
    a.e(mfma(N,K2,Q2,N))
    r,o=addr('k2',i+2); a.e(f'ds_read_b64 {v(K2,2)}, {v(r)} offset:{o}')
    for k in range(4): ex(E+4+k,S+4+k)
    cv(P0,E); cv(P0+1,E+2)
    a.e('s_waitcnt lgkmcnt(3)')
    a.e(mfma(O,V1,P1,O))
    cv(P0+2,E+4); cv(P0+3,E+6)
    for k in range(4): ex(E+k,S+8+k)
    a.e('s_waitcnt lgkmcnt(2)')
    a.e(mfma(O,V0,P0,O))
    if 'noexec' not in FL: a.e('s_mov_b64 exec, s[22:23]')
    r,o=addr('v',i);   a.e(f'ds_read_b128 {v(V1,4)}, {v(r)} offset:{o+640}')
    r,o=addr('v',i+1); a.e(f'ds_read_b128 {v(V0,4)}, {v(r)} offset:{o}')
    if 'noexec' not in FL: a.e('s_mov_b64 exec, -1')
    for k in range(4): ex(E+4+k,S+12+k)
    cv(P1,E); cv(P1+1,E+2)

from stamps import stamp, stamp_store, stampc
import stamps
def att_kernel(a, name=NAME):
    a.lines.append(kernel_header(name))
    a.e(f's_cmp_ge_u32 s2, {512 if ("dup" in FL or "ffn2" in FL) else 256}')
    a.e('s_cbranch_scc1 ATT_END')
    if 'dup' in FL: a.e('s_and_b32 s2, s2, 255')
    a.e('s_load_dwordx2 s[34:35], s[0:1], 72')
    if 'ffn2' in FL:
        a.e('s_cmp_ge_u32 s2, 256')
        a.e('s_cbranch_scc1 ATT_FFN2')
        if 'aprio' in FL: a.e('s_setprio 2')
    stamp(a,0)
    a.e(f'v_lshrrev_b32 {v(vT)}, 6, v0')
    a.e(f'v_and_b32 v0, 63, v0')
    a.e(f'v_readfirstlane_b32 s16, {v(vT)}')
    a.e('s_and_b32 s27, s2, 7')
    a.e('s_lshr_b32 s28, s2, 3')
    a.e('s_and_b32 s29, s28, 0x18')
    a.e('s_add_u32 s27, s27, s29')
    a.e('s_and_b32 s28, s28, 7')
    a.e('s_lshl_b32 s28, s28, 3')
    a.e('s_add_u32 s28, s28, s16')
    a.e('s_mul_i32 s29, s27, 81920')
    a.e(f'v_and_b32 {v(vT)}, 31, v0')
    a.e(f'v_lshrrev_b32 {v(vT2)}, 5, v0')
    a.e(f'v_lshlrev_b32 {v(vLaneK2)}, 3, {v(vT)}')
    a.e(f'v_add_u32 {v(vLaneK2)}, 1024, {v(vLaneK2)}')
    a.e(f'v_mul_u32_u24 {v(vLaneV)}, 320, {v(vT2)}')
    a.e(f'v_lshlrev_b32 {v(vT)}, 4, {v(vT)}')
    a.e(f'v_add_u32 {v(vLaneV)}, {v(vLaneV)}, {v(vT)}')
    a.e(f'v_lshlrev_b32 {v(vL16)}, 4, v0')
    a.e('s_lshl_b32 s20, s16, 10')
    a.e('s_mov_b32 s17, s20')
    a.e(f's_add_u32 s18, s20, 8192')
    a.e(f's_add_u32 s19, s20, {VIMG-KIMG-2048}')
    a.e('s_cmp_lt_u32 s16, 2')
    a.e('s_cselect_b32 s18, s18, s19')
    a.e(f's_add_u32 s19, s20, {VIMG-KIMG+6144}')
    a.e('s_mov_b32 s22, 0x000fffff')
    a.e('s_mov_b32 s23, 0x000fffff')
    a.e('s_waitcnt lgkmcnt(0)')
    a.e(f's_add_u32 s4, s34, {KIMG}')
    a.e('s_addc_u32 s5, s35, 0')
    a.e('s_add_u32 s4, s4, s29')
    a.e('s_addc_u32 s5, s5, 0')
    a.e(f's_sub_u32 s6, {VIMG+2621440-KIMG}, s29')
    a.e('s_mov_b32 s7, 0x00020000')
    a.e(f's_add_u32 s8, s34, {QIMG}')
    a.e('s_addc_u32 s9, s35, 0')
    a.e('s_mov_b32 s10, 2621440')
    a.e('s_mov_b32 s11, 0x00020000')
    a.e(f's_add_u32 s12, s34, {OIMG}')
    a.e('s_addc_u32 s13, s35, 0')
    a.e('s_mov_b32 s14, 2621440')
    a.e('s_mov_b32 s15, 0x00020000')
    a.e('s_mov_b32 s25, 0'); a.e('s_mov_b32 s26, 0')
    emit_dma(a,'s25','s26')
    a.e('s_mov_b32 s25, 10240'); a.e(f's_mov_b32 s26, {SLOT}')
    emit_dma(a,'s25','s26')
    a.e('s_mul_i32 s33, s28, 1280')
    a.e('s_add_u32 s33, s33, s29')
    for k in range(4): a.e(f'v_mov_b32 {v(Q2+k)}, 0')
    a.e(f'buffer_load_dwordx4 {v(Q1,4)}, {v(vL16)}, s[8:11], s33 offen')
    a.e('s_mov_b64 exec, 0xffffffff')
    a.e(f'buffer_load_dwordx2 {v(Q2,2)}, {v(vLaneK2)}, s[8:11], s33 offen')
    a.e('s_mov_b64 exec, -1')
    a.e(f'v_mov_b32 {v(K2+2)}, 0x3f803f80')
    a.e(f'v_mov_b32 {v(K2+3)}, 0x00003f80')
    for k in range(4):
        a.e(f'v_mov_b32 {v(V0+k)}, 0x3f803f80')
        a.e(f'v_mov_b32 {v(V1+k)}, 0x3f803f80')
    a.e(f'v_mov_b32 {v(vKc)}, {v(vL16)}')
    a.e(f'v_mov_b32 {v(vK2c)}, {v(vLaneK2)}')
    a.e(f'v_add_u32 {v(vLaneV)}, 10240, {v(vLaneV)}')
    a.e(f'v_mov_b32 {v(vVc)}, {v(vLaneV)}')
    a.e(f'v_add_u32 {v(vKn)}, {SLOT}, {v(vL16)}')
    a.e(f'v_add_u32 {v(vK2n)}, {SLOT}, {v(vLaneK2)}')
    a.e(f'v_add_u32 {v(vVn)}, {SLOT}, {v(vLaneV)}')
    T2=[P0,P1,E,E+4]
    for t in T2:
        a.e(f'v_mov_b32 {v(t+2)}, 0'); a.e(f'v_mov_b32 {v(t+3)}, 0')
    a.e('s_waitcnt vmcnt(0)')
    a.e('s_barrier')
    stamp(a,1)
    for t in range(4):
        a.e(f'ds_read_b128 {v(O+4*t,4)}, {v(vKc)} offset:{t*1280}')
        a.e(f'ds_read_b64 {v(T2[t],2)}, {v(vK2c)} offset:{t*1280}')
    a.e('s_waitcnt lgkmcnt(4)')
    a.e(mfma(SA,O,Q1,None)); a.e(mfma(SB,O+4,Q1,None))
    a.e(mfma(SA,T2[0],Q2,SA)); a.e(mfma(SB,T2[1],Q2,SB))
    a.e('s_waitcnt lgkmcnt(0)')
    a.e('s_nop 7'); a.e('s_nop 7')
    max16(a,SA,True)
    a.e(mfma(SA,O+8,Q1,None))
    max16(a,SB,False)
    a.e(mfma(SB,O+12,Q1,None))
    a.e(mfma(SA,T2[2],Q2,SA)); a.e(mfma(SB,T2[3],Q2,SB))
    a.e(f'ds_read_b128 {v(K1,4)}, {v(vKc)} offset:0')
    a.e(f'ds_read_b64 {v(K2,2)}, {v(vK2c)} offset:0')
    a.e('s_nop 7'); a.e('s_nop 7')
    max16(a,SA,False)
    max16(a,SB,False)
    set_m_pieces(a,'0x42c00000')
    for k in range(16): a.e(f'v_mov_b32 {v(O+k)}, 0')
    for k in range(4): a.e(f'v_mov_b32 {v(P1+k)}, 0')
    for k in range(4,8): a.e(f'v_mov_b32 {v(E+k)}, 0')
    a.e('s_waitcnt lgkmcnt(0)')
    a.e(mfma(SA,K1,Q1,None))
    a.e(mfma(SA,K2,Q2,SA))
    a.e(f'ds_read_b128 {v(K1,4)}, {v(vKc)} offset:1280')
    a.e(f'ds_read_b64 {v(K2,2)}, {v(vK2c)} offset:1280')
    a.e('s_mov_b64 exec, s[22:23]')
    a.e(f'ds_read_b128 {v(V1,4)}, {v(vVc)} offset:640')
    a.e(f'ds_read_b128 {v(V0,4)}, {v(vVc)} offset:0')
    a.e('s_mov_b64 exec, -1')
    a.e('s_waitcnt lgkmcnt(0)')
    a.e('s_nop 7'); a.e('s_nop 7')
    a.e('s_mov_b32 s24, 0')
    a.e('s_mov_b32 s25, 20480')
    a.e(f's_mov_b32 s26, {2*SLOT}')
    a.e(f's_mov_b32 s21, {SLOT}')
    stamp(a,2); stampc(a,5)
    a.label('ATT_LOOP')
    M16[0]=('am16' in FL)
    for i in range(8): tile(a,i)
    M16[0]=False
    a.e(f'v_mov_b32 {v(vKc)}, {v(vKn)}')
    a.e(f'v_mov_b32 {v(vK2c)}, {v(vK2n)}')
    a.e(f'v_mov_b32 {v(vVc)}, {v(vVn)}')
    a.e('s_mov_b32 s21, s26')
    a.e(f's_add_u32 s26, s26, {SLOT}')
    a.e(f's_cmp_eq_u32 s26, {3*SLOT}')
    a.e('s_cselect_b32 s26, 0, s26')
    a.e(f'v_add_u32 {v(vKn)}, s21, {v(vL16)}')
    a.e(f'v_add_u32 {v(vK2n)}, s21, {v(vLaneK2)}')
    a.e(f'v_add_u32 {v(vVn)}, s21, {v(vLaneV)}')
    a.e('s_add_u32 s25, s25, 10240')
    a.e('s_add_u32 s24, s24, 1')
    a.e('s_cmp_lt_u32 s24, 8')
    a.e('s_cbranch_scc1 ATT_LOOP')
    stamp(a,3); stampc(a,6)
    a.e(f'v_cvt_pk_bf16_f32 {v(P1+2)}, {v(E+4)}, {v(E+5)}')
    a.e(f'v_cvt_pk_bf16_f32 {v(P1+3)}, {v(E+6)}, {v(E+7)}')
    a.e('s_waitcnt lgkmcnt(0)')
    a.e('s_nop 1')
    a.e(mfma(O,V1,P1,O))
    a.e('s_nop 7'); a.e('s_nop 7')
    a.e(f'v_mov_b32 {v(vT)}, 0')
    for k in range(13): a.e(f'v_fma_f32 {v(vT)}, {v(O+k)}, 0, {v(vT)}')
    a.e(f'v_cmp_u_f32 vcc, {v(vT)}, {v(vT)}')
    a.e('s_mov_b64 s[36:37], vcc')
    a.e(f'v_mov_b32 {v(vT)}, 0x7b800000')
    a.e(f'v_cmp_nlt_f32 vcc, {v(O+12)}, {v(vT)}')
    a.e('s_or_b64 vcc, vcc, s[36:37]')
    if 'am16' not in FL: a.e('s_cbranch_vccnz ATT_FALLBACK')
    a.label('ATT_EPI')
    a.e(f'v_rcp_f32 {v(vT)}, {v(O+12)}')
    a.e('s_nop 0')
    for k in range(12): a.e(f'v_mul_f32 {v(O+k)}, {v(O+k)}, {v(vT)}')
    for k in range(6): a.e(f'v_cvt_pk_bf16_f32 {v(E+k)}, {v(O+2*k)}, {v(O+2*k+1)}')
    a.e('s_mul_i32 s33, s28, 40960')
    a.e('s_lshl_b32 s30, s27, 10')
    a.e('s_add_u32 s30, s30, s33')
    opol=' '.join(x for x in ('sc0','sc1','nt') if 'ost_'+x in FL)
    a.e(f'buffer_store_dwordx4 {v(E,4)}, {v(vL16)}, s[12:15], s30 offen {opol}')
    a.e('s_lshr_b32 s30, s27, 2')
    a.e('s_add_u32 s30, s30, 32')
    a.e('s_lshl_b32 s30, s30, 10')
    a.e('s_add_u32 s30, s30, s33')
    a.e('s_and_b32 s31, s27, 2')
    a.e('s_lshl_b32 s31, s31, 8')
    a.e('s_add_u32 s30, s30, s31')
    a.e('s_and_b32 s31, s27, 1')
    a.e('s_lshl_b32 s31, s31, 3')
    a.e('s_add_u32 s30, s30, s31')
    a.e('s_mov_b64 exec, 0xffffffff')
    a.e(f'buffer_store_dwordx2 {v(E+4,2)}, {v(vL16)}, s[12:15], s30 offen {opol}')
    a.e('s_waitcnt vmcnt(0)')
    if 'fuse' in FL:
        a.e(f's_add_u32 s8, s34, {FLAGS}'); a.e('s_addc_u32 s9, s35, 0'); a.e(f's_mov_b32 s10, {FLAGS_BYTES}')
        a.e('s_lshl_b32 s30, s28, 5'); a.e('s_add_u32 s30, s30, s27'); a.e('s_lshl_b32 s30, s30, 2')
        a.e(f'v_mov_b32 {v(vT)}, 1')
        a.e('s_mov_b64 exec, 1')
        a.e(f'buffer_store_dword {v(vT)}, off, s[8:11], s30 sc1')
        a.e('s_waitcnt vmcnt(0)')
    stamp(a,4)
    stamp_store(a,7,34,'s16',8,0)
    a.label('ATT_END')
    a.e('s_endpgm')
    a.label('ATT_FALLBACK')
    a.e(f'v_mov_b32 {v(Q2+2)}, 0'); a.e(f'v_mov_b32 {v(Q2+3)}, 0')
    a.e(f'v_mov_b32 {v(vMx)}, 0xff800000')
    a.e('s_mov_b32 s30, 0')
    a.label('ATT_FB1')
    a.e(f'buffer_load_dwordx4 {v(K1,4)}, {v(vL16)}, s[4:7], s30 offen')
    a.e(f'buffer_load_dwordx2 {v(K2,2)}, {v(vLaneK2)}, s[4:7], s30 offen')
    a.e('s_waitcnt vmcnt(0)')
    a.e(mfma(SA,K1,Q1,None)); a.e(mfma(SA,K2,Q2,SA))
    a.e('s_nop 7'); a.e('s_nop 7')
    max16(a,SA,False)
    a.e('s_add_u32 s30, s30, 1280')
    a.e('s_cmp_lt_u32 s30, 81920')
    a.e('s_cbranch_scc1 ATT_FB1')
    set_m_pieces(a,'0')
    for k in range(16): a.e(f'v_mov_b32 {v(O+k)}, 0')
    a.e(f'v_add_u32 {v(vVc)}, {VIMG-KIMG-10240}, {v(vLaneV)}')
    a.e('s_mov_b32 s30, 0')
    a.label('ATT_FB2')
    a.e(f'buffer_load_dwordx4 {v(K1,4)}, {v(vL16)}, s[4:7], s30 offen')
    a.e(f'buffer_load_dwordx2 {v(K2,2)}, {v(vLaneK2)}, s[4:7], s30 offen')
    a.e('s_mov_b64 exec, s[22:23]')
    a.e(f'buffer_load_dwordx4 {v(V0,4)}, {v(vVc)}, s[4:7], s30 offen')
    a.e(f'buffer_load_dwordx4 {v(V1,4)}, {v(vVc)}, s[4:7], s30 offen offset:640')
    a.e('s_mov_b64 exec, -1')
    a.e('s_waitcnt vmcnt(0)')
    a.e(mfma(SA,K1,Q1,None)); a.e(mfma(SA,K2,Q2,SA))
    a.e('s_nop 7'); a.e('s_nop 7')
    for k in range(16): a.e(f'v_exp_f32 {v(SB+k)}, {v(SA+k)}')
    a.e('s_nop 0')
    for k in range(4): a.e(f'v_cvt_pk_bf16_f32 {v(P0+k)}, {v(SB+2*k)}, {v(SB+2*k+1)}')
    for k in range(4): a.e(f'v_cvt_pk_bf16_f32 {v(P1+k)}, {v(SB+8+2*k)}, {v(SB+8+2*k+1)}')
    a.e('s_nop 1')
    a.e(mfma(O,V0,P0,O)); a.e(mfma(O,V1,P1,O))
    a.e('s_add_u32 s30, s30, 1280')
    a.e('s_cmp_lt_u32 s30, 81920')
    a.e('s_cbranch_scc1 ATT_FB2')
    a.e('s_nop 7'); a.e('s_nop 7')
    a.e('s_branch ATT_EPI')
    if 'ffn2' in FL:
        a.label('ATT_FFN2')
        gen_ffn2.FL=FL
        gen_ffn2.ffn2_role(a)
        return 128
    return NV
```

```python
from asmlib import *
from layouts import QIMG,KIMG,VIMG,HIMG,WIMG,WIMG_BYTES,FLAGS,FLAGS_BYTES
from stamps import stamp, stamp_store, stampc
import stamps
XS=16384; WBASE=49152; WP=20544
CS=WBASE+5*WP
CSP=CS+1280
NM=CSP+2560
RR=NM+512
ST2=RR+512
LDS=ST2+1024
SP=LDS
def lds_size(): return LDS+(5120 if 'wearly' in FL else 0)
WF=4
XF=24
XA=40
WA=44
SEL=48
vT=58; vT2=59; vT3=60; vT4=61
CSA=64
ACC=96
NV=256
FL=set()
def acc(i,t): return ACC+(i*5+t)*16
def mfma(d,a_,b_):
    if 'm16' in FL:
        return f'v_mfma_f32_16x16x32_bf16 {v(d,4)}, {v(a_,4)}, {v(b_,4)}, {v(d,4)}\n    v_mfma_f32_16x16x32_bf16 {v(d+4,4)}, {v(a_,4)}, {v(b_,4)}, {v(d+4,4)}'
    return f'v_mfma_f32_32x32x16_bf16 {v(d,16)}, {v(a_,4)}, {v(b_,4)}, {v(d,16)}'

def wread(a,var,jl,t):
    if var=='ffn':
        reg=WA+2*jl; pitch=320; off=32*t
    else:
        reg=WA+2*jl+(t%2); pitch=640; off=64*t
    for p in range(2):
        a.e(f'ds_read_b64_tr_b16 {v(WF+4*t+2*p,2)}, {v(reg)} offset:{off+4*p*pitch}')
def xread(a,buf,j):
    for i in range(2):
        a.e(f'ds_read_b128 {v(XF+buf*8+i*4,4)}, {v(XA+j)} offset:{i*4096}')

def kstep(a,var,k):
    jl=k%2; xb=k%2
    a.c(f'kstep {k}')
    A=[[] for _ in range(5)]
    if jl==1 and 'nobar' not in FL: A[0].append('BAR')
    A[1]+=[f'ds_read_b128 {v(XF+(1-xb)*8+i*4,4)}, {v(XA+(k+1)%4)} offset:{i*4096}' for i in range(2)]
    regs=[WA+2*jl] if var=='ffn' else [WA+2*jl,WA+2*jl+1]
    A[2]+=[f'v_add_u32 {v(r)}, s22, {v(r)}' for r in regs]
    xs={1:[0,1],2:[2],3:[3]}.get(k,[])
    A[3]+=[f'v_add_u32 {v(XA+j)}, s24, {v(XA+j)}' for j in xs]
    if jl==1:
        A[3]+=['s_add_u32 s23, s23, 1','s_cmp_eq_u32 s23, 5']
        A[4]+=['s_cselect_b32 s22, s45, s44','s_cselect_b32 s23, 0, s23']
    if k==0:
        A[0]+=['s_add_u32 s25, s25, 1','s_cmp_eq_u32 s25, 3']
        A[0]+=['s_cselect_b32 s24, s47, s46']
        A[4]+=['s_cmp_eq_u32 s25, 3','s_cselect_b32 s25, 0, s25']
    if k==2:
        A[4]=['s_add_u32 s26, s26, 1']+A[4]
    if k==1 and 'ppf' in FL:
        A[1]+=['s_cmp_le_u32 s26, %d'%PPF_LAST(),'s_cselect_b32 s6, s6, 0']
        A[2]+=['buffer_load_dword v95, v94, s[4:7], 0 offen']
        A[3]=['v_add_u32 v94, s28, v94']+A[3]
    if k==3:
        A[4]+=['s_cmp_lt_u32 s26, 10']
    for t in range(5):
        n=8 if t<2 else 10
        a.e(f's_waitcnt lgkmcnt({n})')
        if 'nocs' not in FL and ((jl==0 and t%2==0) or (jl==1 and t%2==1)):
            a.e(f'v_mfma_f32_16x16x32_bf16 {v(CSA+4*t,4)}, {v(SEL,4)}, {v(WF+4*t,4)}, {v(CSA+4*t,4)}')
        for i in range(2):
            X=XF+xb*8+i*4
            if var=='v': a.e(mfma(acc(i,t),X,WF+4*t))
            else:        a.e(mfma(acc(i,t),WF+4*t,X))
            if i==0:
                for f in A[t]:
                    a.e('s_barrier' if f=='BAR' else f)
        wread(a,var,1-jl,t)

def stats(a,i,P,Pc=None,mode='qk'):
    a.e(f'v_mul_f32 {v(P)}, 0x3acccccd, {v(P)}')
    a.e(f'v_mul_f32 {v(P+1)}, 0x3acccccd, {v(P+1)}')
    a.e(f'v_fma_f32 {v(P+1)}, -{v(P)}, {v(P)}, {v(P+1)}')
    a.e(f'v_max_f32 {v(P+1)}, 0, {v(P+1)}')
    a.e(f'v_cvt_pk_bf16_f32 {v(P)}, {v(P)}, {v(P+1)}')
    a.e(f'v_and_b32 {v(P+1)}, 0xffff0000, {v(P)}')
    a.e(f'v_lshlrev_b32 {v(P)}, 16, {v(P)}')
    a.e(f'v_add_f32 {v(P+1)}, 0x3727c5ac, {v(P+1)}')
    a.e(f'v_cvt_pk_bf16_f32 {v(P+1)}, {v(P+1)}, {v(P+1)}')
    a.e(f'v_and_b32 {v(P+1)}, 0xffff0000, {v(P+1)}')
    a.e(f'v_sqrt_f32 {v(P+1)}, {v(P+1)}')
    a.e(f'v_xor_b32 {v(P)}, 0x80000000, {v(P)}')
    a.e(f'v_cvt_pk_bf16_f32 {v(P+1)}, {v(P+1)}, {v(P+1)}')
    a.e(f'v_and_b32 {v(P+1)}, 0xffff0000, {v(P+1)}')
    a.e(f'v_rcp_f32 {v(P+1)}, {v(P+1)}')
    a.e('s_nop 0')

def pkfma(d,x,y,z,bx=None,by=None,bz=None):
    sel=[0 if b is None else b for b in (bx,by,bz)]
    hi=[1 if b is None else b for b in (bx,by,bz)]
    return f'v_pk_fma_f32 {v(d,2)}, {v(x,2)}, {v(y,2)}, {v(z,2)} op_sel:[{sel[0]},{sel[1]},{sel[2]}] op_sel_hi:[{hi[0]},{hi[1]},{hi[2]}]'
def pkmul(d,x,y,bx=None,by=None):
    sel=[0 if b is None else b for b in (bx,by)]
    hi=[1 if b is None else b for b in (bx,by)]
    return f'v_pk_mul_f32 {v(d,2)}, {v(x,2)}, {v(y,2)} op_sel:[{sel[0]},{sel[1]}] op_sel_hi:[{hi[0]},{hi[1]}]'

def PPF_N():
    for n in (1,2,3,4,5):
        if f'ppf{n}' in FL: return n
    return 3
def PPF_LAST():
    return 8-PPF_N()
def ppf_setup(a,var):
    a.e('s_lshr_b32 s29, s2, 3'); a.e('s_and_b32 s29, s29, 7')
    if var=='ffn':
        L,mul,pitch,nw=3,21846,3072,2
        a.e('s_sub_u32 s31, s18, 6'); a.e('s_mul_i32 s31, s31, 320'); a.e('s_min_u32 s31, s31, 2752'); a.e('s_andn2_b32 s31, s31, 127')
        a.e('s_cmp_eq_u32 s16, 0'); a.e('s_cselect_b32 s4, s40, s42'); a.e('s_cselect_b32 s5, s41, s43')
    else:
        L,mul,pitch,nw=5,13108,3840,1
        a.e('s_mul_i32 s31, s18, 640')
        a.e('s_mov_b32 s4, s38'); a.e('s_mov_b32 s5, s39')
    a.e(f's_add_u32 s29, s29, 64')
    a.e(f'v_mul_u32_u24 v92, {mul}, v0')
    a.e('v_lshrrev_b32 v92, 16, v92')
    a.e(f'v_mul_u32_u24 v93, {L}, v92')
    a.e('v_sub_u32 v93, v0, v93')
    a.e('v_lshlrev_b32 v92, 3, v92')
    a.e('v_add_u32 v92, s29, v92')
    a.e(f'v_mul_u32_u24 v92, {pitch}, v92')
    a.e('v_lshlrev_b32 v93, 7, v93')
    a.e('v_add_u32 v92, v92, v93')
    a.e('v_add_u32 v92, s31, v92')
    a.e('v_bfrev_b32 v93, 1')
    a.e(f'v_cmp_gt_u32 vcc, {8*L}, v0')
    a.e('v_cndmask_b32 v94, v93, v92, vcc')
    a.e(f's_mov_b32 s28, {64*pitch}')
    a.e(f's_cmp_lt_u32 s16, {nw}'); a.e(f's_cselect_b32 s6, {640*pitch}, 0')
    a.e('s_mov_b32 s7, 0x00020000')
    a.e('s_cmp_eq_u32 s16, 2')
    a.e(f's_cbranch_scc0 K1_PPF_{var}')
    a.e('s_lshr_b32 s29, s2, 6'); a.e('s_lshl_b32 s29, s29, 5'); a.e('s_lshl_b32 s31, s17, 7'); a.e('s_add_u32 s29, s29, s31')
    a.e('v_add_u32 v92, s29, v0')
    a.e('v_mul_u32_u24 v92, 1280, v92')
    a.e('v_add_u32 v92, 256, v92')
    a.e('v_cmp_gt_u32 vcc, 32, v0')
    a.e('v_cndmask_b32 v94, v93, v92, vcc')
    a.e('s_mov_b32 s4, s36'); a.e('s_mov_b32 s5, s37'); a.e('s_mov_b32 s6, 2621440'); a.e('s_mov_b32 s28, 128')
    a.label(f'K1_PPF_{var}')
    for j in range(PPF_PRE()):
        a.e('buffer_load_dword v95, v94, s[4:7], 0 offen')
        a.e('v_add_u32 v94, s28, v94')
def PPF_PRE():
    for n in (0,1,2,3,4):
        if f'pre{n}' in FL: return n
    return PPF_N()

def main_loop(a,var):
    L=f'K1_{var.upper()}'
    if 'ppf' in FL: ppf_setup(a,var)
    a.e('s_barrier')
    stamp(a,1); stampc(a,8)
    if 'ppf' in FL:
        for j in range(PPF_N()-PPF_PRE()):
            a.e('buffer_load_dword v95, v94, s[4:7], 0 offen')
            a.e('v_add_u32 v94, s28, v94')
    wread(a,var,0,0)
    xread(a,0,0)
    for t in range(1,5): wread(a,var,0,t)
    a.e('s_mov_b32 s26, 0')
    a.e('s_mov_b32 s22, s44'); a.e('s_mov_b32 s23, 1')
    a.label(f'{L}_LOOP')
    for k in range(4): kstep(a,var,k)
    if stamps.STAMP:
        a.e('s_cmp_eq_u32 s26, 1')
        a.e(f's_cbranch_scc0 {L}_NS')
        stamp(a,7)
        a.label(f'{L}_NS')
        a.e('s_cmp_lt_u32 s26, 10')
    a.e(f's_cbranch_scc1 {L}_LOOP')
    stamp(a,2); stampc(a,9)
    step,r1=(64,640) if var=='ffn' else (128,64)
    a.e('s_nop 7')
    a.e('s_mov_b64 exec, 0xffff')
    for t in range(5):
        a.e(f'ds_write_b32 v62, {v(CSA+4*t)} offset:{t*step}')
        a.e(f'ds_write_b32 v62, {v(CSA+4*t+1)} offset:{t*step+r1}')
    a.e('s_mov_b64 exec, -1')
    a.e('s_waitcnt lgkmcnt(0)')
    stamp(a,5)
    a.e('s_barrier')
    if var!='v':
        a.e('ds_read_b64 v[64:65], v63 offset:0')
        a.e('ds_read_b64 v[66:67], v63 offset:256')
    a.e('s_barrier')
    stamp(a,6)

def k1_kernel(a,name):
    pol=' '.join(x for x in ('sc0','sc1','nt') if 'st_'+x in FL)
    if 'nost' in FL or pol:
        E0=a.e
        def e2(x):
            if x.startswith('buffer_store'):
                if 'nost' in FL: return
                x=x+' '+pol
            E0(x)
        a.e=e2
    a.lines.append(kernel_header(name))
    a.e('s_cmp_ge_u32 s2, 256')
    a.e('s_cbranch_scc1 K1_END')
    a.e('s_load_dwordx2 s[34:35], s[0:1], 72')
    a.e('s_load_dwordx2 s[36:37], s[0:1], 0')
    a.e('s_load_dwordx2 s[38:39], s[0:1], 8')
    a.e('s_load_dwordx4 s[40:43], s[0:1], 32')
    if 'wimg' in FL:
        a.e('s_load_dwordx2 s[50:51], s[0:1], 16')
        a.e('s_load_dwordx2 s[52:53], s[0:1], 48')
    stamp(a,0)
    a.e(f'v_lshrrev_b32 {v(vT)}, 6, v0')
    a.e('v_and_b32 v0, 63, v0')
    a.e(f'v_readfirstlane_b32 s16, {v(vT)}')
    a.e('s_and_b32 s27, s2, 7')
    a.e('s_lshr_b32 s29, s2, 3')
    a.e('s_and_b32 s17, s27, 1')
    a.e('s_lshl_b32 s17, s17, 3')
    a.e('s_and_b32 s30, s29, 7')
    a.e('s_add_u32 s17, s17, s30')
    a.e('s_lshr_b32 s18, s27, 1')
    a.e('s_lshl_b32 s18, s18, 2')
    a.e('s_lshr_b32 s30, s29, 3')
    a.e('s_add_u32 s18, s18, s30')
    if 'mix' in FL:
        perm=[0,1,6,7,2,3,8,9,4,10,11,12,5,13,14,15]
        lo=sum(perm[i]<<(4*i) for i in range(8)); hi=sum(perm[8+i]<<(4*i) for i in range(8))
        a.e(f's_mov_b32 s30, {lo}'); a.e(f's_mov_b32 s31, {hi}')
        a.e('s_lshl_b32 s18, s18, 2')
        a.e('s_lshr_b64 s[30:31], s[30:31], s18')
        a.e('s_and_b32 s18, s30, 15')
    a.e('s_cmp_ge_u32 s16, 4')
    a.e('s_cbranch_scc1 K1_LOADER')
    if 'pf' in FL:
        pol=' '.join(x for x in ('sc0','sc1','nt') if 'pf_'+x in FL)
        a.e('s_lshr_b32 s27, s2, 6')
        a.e('s_lshr_b32 s29, s2, 3'); a.e('s_and_b32 s29, s29, 7')
        a.e('s_lshl_b32 s30, s17, 7'); a.e('s_lshl_b32 s27, s27, 5'); a.e('s_add_u32 s30, s30, s27')
        a.e('v_and_b32 v52, 31, v0')
        a.e('v_add_u32 v52, s30, v52')
        a.e('v_mul_u32_u24 v52, 1280, v52')
        a.e('v_lshrrev_b32 v53, 5, v0')
        a.e('v_lshlrev_b32 v53, 7, v53')
        a.e('v_add_u32 v52, v52, v53')
        a.e('s_lshl_b32 s30, s16, 8')
        a.e('s_cmp_ge_u32 s18, 6')
        a.e('s_cbranch_scc1 K1_PF_FFN')
        a.e('s_lshl_b32 s27, s16, 6')
        for q in range(2):
            a.e(f'v_add_u32 v53, s27, v0')
            if q==1: a.e('v_add_u32 v53, 256, v53')
            a.e(f'v_mul_u32_u24 v54, 13108, v53')
            a.e('v_lshrrev_b32 v54, 16, v54')
            a.e('v_mul_u32_u24 v55, 5, v54')
            a.e('v_sub_u32 v55, v53, v55')
            a.e('v_lshlrev_b32 v54, 3, v54')
            a.e('v_add_u32 v54, s29, v54')
            a.e('v_mul_u32_u24 v54, 3840, v54')
            a.e('v_lshlrev_b32 v55, 7, v55')
            a.e(f'v_add_u32 v{55+q+1}, v54, v55')
        a.e('s_mul_i32 s31, s18, 640')
        a.e('s_waitcnt lgkmcnt(0)')
        a.e('s_mov_b32 s4, s38'); a.e('s_mov_b32 s5, s39'); a.e(f's_mov_b32 s6, {640*3840}')
        a.e('s_branch K1_PF_GO')
        a.label('K1_PF_FFN')
        a.e('s_and_b32 s27, s16, 1')
        a.e('s_lshl_b32 s27, s27, 6')
        for q in range(2):
            a.e(f'v_add_u32 v53, s27, v0')
            if q==1: a.e('v_add_u32 v53, 128, v53')
            a.e(f'v_mul_u32_u24 v54, 21846, v53')
            a.e('v_lshrrev_b32 v54, 16, v54')
            a.e('v_mul_u32_u24 v55, 3, v54')
            a.e('v_sub_u32 v55, v53, v55')
            a.e('v_lshlrev_b32 v54, 3, v54')
            a.e('v_add_u32 v54, s29, v54')
            a.e('v_mul_u32_u24 v54, 3072, v54')
            a.e('v_lshlrev_b32 v55, 7, v55')
            a.e(f'v_add_u32 v{55+q+1}, v54, v55')
        a.e('s_sub_u32 s31, s18, 6')
        a.e('s_mul_i32 s31, s31, 320')
        a.e('s_min_u32 s31, s31, 2752')
        a.e('s_andn2_b32 s31, s31, 127')
        a.e('s_waitcnt lgkmcnt(0)')
        a.e('s_cmp_lt_u32 s16, 2')
        a.e('s_cselect_b32 s4, s40, s42')
        a.e('s_cselect_b32 s5, s41, s43')
        a.e(f's_mov_b32 s6, {640*3072}')
        a.label('K1_PF_GO')
        a.e('s_mov_b32 s7, 0x00020000')
        a.e('s_mov_b32 s8, s36'); a.e('s_mov_b32 s9, s37'); a.e('s_mov_b32 s10, 2621440'); a.e('s_mov_b32 s11, 0x00020000')
        a.e(f'buffer_load_dword v95, v56, s[4:7], s31 offen {pol}')
        a.e(f'buffer_load_dword v95, v52, s[8:11], s30 offen {pol}')
        a.e(f'buffer_load_dword v95, v57, s[4:7], s31 offen {pol}')
        a.e('s_cmp_eq_u32 s16, 0')
        a.e('s_cbranch_scc0 K1_PF_END')
        a.e(f'buffer_load_dword v95, v52, s[8:11], 0 offen offset:1024 {pol}')
        a.label('K1_PF_END')
    if 'cp3' in FL: a.e('s_setprio 3')
    a.e('s_lshr_b32 s19, s16, 1')
    a.e('s_and_b32 s20, s16, 1')
    a.e('s_xor_b32 s21, s19, s20')
    a.e(f's_mov_b32 s44, {WP}'); a.e(f's_mov_b32 s45, {(-4*WP)&0xffffffff}'); a.e(f's_mov_b32 s46, {XS}'); a.e(f's_mov_b32 s47, {(-2*XS)&0xffffffff}')
    a.e(f'v_and_b32 {v(vT)}, 31, v0')
    a.e(f'v_lshrrev_b32 {v(vT2)}, 5, v0')
    a.e(f'v_bfe_u32 {v(vT3)}, v0, 1, 3')
    a.e(f'v_lshlrev_b32 {v(vT4)}, 7, {v(vT)}')
    a.e('s_lshl_b32 s27, s19, 13')
    a.e(f'v_add_u32 {v(vT4)}, s27, {v(vT4)}')
    for kk in range(4):
        a.e(f's_xor_b32 s27, s21, {kk%2}')
        a.e(f's_add_u32 s27, s27, {2*(kk//2)}')
        a.e('s_lshl_b32 s27, s27, 1')
        a.e(f'v_add_u32 {v(XA+kk)}, s27, {v(vT2)}')
        a.e(f'v_xor_b32 {v(XA+kk)}, {v(XA+kk)}, {v(vT3)}')
        a.e(f'v_lshlrev_b32 {v(XA+kk)}, 4, {v(XA+kk)}')
        a.e(f'v_add_u32 {v(XA+kk)}, {v(XA+kk)}, {v(vT4)}')
    a.e('s_lshl_b32 s27, s19, 9')
    a.e(f's_add_u32 s27, s27, {ST2}')
    a.e(f'v_lshlrev_b32 v63, 3, {v(vT)}')
    a.e('v_add_u32 v63, s27, v63')
    for k in range(20): a.e(f'v_mov_b32 {v(CSA+k)}, 0')
    a.e(f'v_and_b32 {v(vT2)}, 15, v0')
    a.e(f'v_bfe_u32 {v(vT3)}, v0, 4, 1')
    a.e(f'v_cmp_eq_u32 vcc, {v(vT2)}, {v(vT3)}')
    a.e(f'v_mov_b32 {v(vT2)}, 0')
    a.e(f'v_mov_b32 {v(vT3)}, 0x3f803f80')
    for k in range(4): a.e(f'v_cndmask_b32 {v(SEL+k)}, {v(vT2)}, {v(vT3)}, vcc')
    a.e('s_mov_b32 s25, 0')
    vH=84; vCh=85; vR=86; vC4=87; vRow=88
    a.e(f'v_lshrrev_b32 {v(vH)}, 5, v0')
    a.e(f'v_bfe_u32 {v(vCh)}, v0, 4, 1')
    a.e(f'v_bfe_u32 {v(vR)}, v0, 2, 2')
    a.e(f'v_and_b32 {v(vC4)}, 3, v0')
    a.e(f'v_lshlrev_b32 {v(vRow)}, 3, {v(vH)}')
    a.e(f'v_add_u32 {v(vRow)}, {v(vRow)}, {v(vR)}')
    a.e('s_cmp_ge_u32 s18, 6')
    a.e('s_cbranch_scc1 K1_FFN_SETUP')
    a.e(f'v_mul_u32_u24 {v(vT2)}, 640, {v(vRow)}')
    a.e(f'v_lshlrev_b32 {v(vT3)}, 5, {v(vCh)}')
    a.e(f'v_add_u32 {v(vT2)}, {v(vT2)}, {v(vT3)}')
    a.e(f'v_lshlrev_b32 {v(vT3)}, 3, {v(vC4)}')
    a.e(f'v_add_u32 {v(vT2)}, {v(vT2)}, {v(vT3)}')
    a.e('s_mul_i32 s27, s20, 320')
    a.e(f's_add_u32 s27, s27, {WBASE}')
    a.e(f'v_add_u32 {v(vT2)}, s27, {v(vT2)}')
    a.e(f'v_lshrrev_b32 {v(vT3)}, 1, {v(vR)}')
    a.e(f'v_lshlrev_b32 {v(vT3)}, 6, {v(vT3)}')
    a.e(f'v_sub_u32 {v(vT4)}, 0, {v(vT3)}')
    a.e('s_cmp_eq_u32 s20, 0')
    a.e('s_cselect_b64 vcc, -1, 0')
    a.e(f'v_cndmask_b32 v89, {v(vT4)}, {v(vT3)}, vcc')
    a.e(f'v_cndmask_b32 v90, {v(vT3)}, {v(vT4)}, vcc')
    for jl in range(2):
        a.e(f's_xor_b32 s27, s21, {jl}')
        a.e(f's_mul_i32 s27, s27, {16*640}')
        a.e(f'v_add_u32 {v(vT3)}, s27, {v(vT2)}')
        a.e(f'v_add_u32 {v(WA+2*jl)}, {v(vT3)}, v89')
        a.e(f'v_add_u32 {v(WA+2*jl+1)}, {v(vT3)}, v90')
    a.e('s_mul_i32 s27, s20, 640')
    a.e('s_mul_i32 s29, s19, 1280')
    a.e('s_add_u32 s27, s27, s29')
    a.e(f's_add_u32 s27, s27, {CSP}')
    a.e(f'v_and_b32 v62, 15, v0')
    a.e(f'v_lshlrev_b32 v62, 2, v62')
    a.e('v_add_u32 v62, s27, v62')
    for k in range(160): a.e(f'v_mov_b32 {v(ACC+k)}, 0')
    a.e('s_waitcnt lgkmcnt(0)')
    a.e('s_cmp_ge_u32 s18, 4')
    a.e('s_cbranch_scc1 K1_V_START')
    main_loop(a,'qk')
    a.e(f'v_lshrrev_b32 {v(vT)}, 5, v0')
    a.e(f'v_lshlrev_b32 {v(vT)}, 4, {v(vT)}')
    a.e('s_mul_i32 s27, s20, 640')
    a.e(f's_add_u32 s27, s27, {CS}')
    a.e(f'v_add_u32 {v(vT)}, s27, {v(vT)}')
    CQ=[4,20]
    for b in range(4): a.e(f'ds_read_b128 {v(CQ[0]+4*b,4)}, {v(vT)} offset:{b*32}')
    a.e('s_cmp_lt_u32 s18, 2')
    a.e(f's_cselect_b32 s27, {QIMG}, {KIMG}')
    a.e('s_add_u32 s4, s34, s27')
    a.e('s_addc_u32 s5, s35, 0')
    a.e('s_mov_b32 s6, 2621440')
    a.e('s_mov_b32 s7, 0x00020000')
    a.e('s_cmp_lt_u32 s18, 2')
    a.e('s_cselect_b32 s29, 0x3ea52b5c, 0x3f800000')
    a.e('s_and_b32 s27, s18, 1')
    a.e('s_lshl_b32 s27, s27, 4')
    a.e('s_lshl_b32 s30, s20, 3')
    a.e('s_add_u32 s27, s27, s30')
    a.e('s_mul_i32 s30, s27, 81920')
    a.e('s_lshl_b32 s31, s17, 2')
    a.e('s_lshl_b32 s27, s19, 1')
    a.e('s_add_u32 s31, s31, s27')
    a.e('s_mul_i32 s31, s31, 1280')
    a.e('s_add_u32 s30, s30, s31')
    vL16=71; vR8=72
    a.e(f'v_lshlrev_b32 {v(vL16)}, 4, v0')
    a.e(f'v_and_b32 {v(vR8)}, 31, v0')
    a.e(f'v_lshlrev_b32 {v(vR8)}, 3, {v(vR8)}')
    a.e(f'v_lshrrev_b32 {v(vT2)}, 5, v0')
    a.e(f'v_mul_u32_u24 {v(vT2)}, 81920, {v(vT2)}')
    a.e(f'v_add_u32 {v(vR8)}, {v(vR8)}, {v(vT2)}')
    a.e(f'v_add_u32 {v(vR8)}, 1024, {v(vR8)}')
    a.e('s_waitcnt lgkmcnt(4)')
    for i in range(2):
        a.e(f'v_mul_f32 {v(65+2*i)}, s29, {v(65+2*i)}')
    TMP=76
    for t in range(5):
        if t<4:
            for b in range(4): a.e(f'ds_read_b128 {v(CQ[(t+1)%2]+4*b,4)}, {v(vT)} offset:{(t+1)*128+b*32}')
            a.e('s_waitcnt lgkmcnt(4)')
        else:
            a.e('s_waitcnt lgkmcnt(0)')
        for b in range(4):
            j=4*t+b; m=j//5; jj=j%5
            dst={0:0,1:2,2:4,3:8,4:10}[jj]+20*m
            for i in range(2):
                A=acc(i,0)+4*j; P=64+2*i; C=CQ[t%2]+4*b; T_=TMP+4*i
                a.e(pkfma(T_,C,P,A,None,0,None))
                a.e(pkfma(T_+2,C+2,P,A+2,None,0,None))
                a.e(pkmul(T_,T_,P,None,1))
                a.e(pkmul(T_+2,T_+2,P,None,1))
            for i in range(2):
                T_=TMP+4*i; D=acc(i,0)+dst
                a.e(f'v_cvt_pk_bf16_f32 {v(D)}, {v(T_)}, {v(T_+1)}')
                a.e(f'v_cvt_pk_bf16_f32 {v(D+1)}, {v(T_+2)}, {v(T_+3)}')
            if jj==4:
                for i in range(2):
                    B=acc(i,0)+20*m
                    a.e(f's_add_u32 s27, s30, {2*m*81920+i*1280}')
                    a.e(f's_add_u32 s31, s27, 81920')
                    a.e(f'buffer_store_dwordx4 {v(B,4)}, {v(vL16)}, s[4:7], s27 offen')
                    a.e(f'buffer_store_dwordx4 {v(B+8,4)}, {v(vL16)}, s[4:7], s31 offen')
                    a.e(f'buffer_store_dwordx2 {v(B+4,2)}, {v(vR8)}, s[4:7], s27 offen')
    a.e('s_branch K1_DONE')
    a.label('K1_V_START')
    main_loop(a,'v')
    CB=76
    a.e('s_mul_i32 s27, s20, 640')
    a.e(f's_add_u32 s27, s27, {CS}')
    a.e(f'v_and_b32 v62, 31, v0')
    a.e(f'v_lshlrev_b32 v62, 2, v62')
    a.e('v_add_u32 v62, s27, v62')
    for t in range(5): a.e(f'ds_read_b32 {v(CB+2*t)}, v62 offset:{t*128}')
    a.e(f'v_lshrrev_b32 {v(vT2)}, 5, v0')
    a.e(f'v_lshlrev_b32 {v(vT2)}, 4, {v(vT2)}')
    a.e('s_lshl_b32 s27, s19, 8')
    a.e(f's_add_u32 s27, s27, {NM}')
    a.e(f'v_add_u32 {v(vT2)}, s27, {v(vT2)}')
    a.e(f's_add_u32 s4, s34, {VIMG}')
    a.e('s_addc_u32 s5, s35, 0')
    a.e('s_mov_b32 s6, 2621440')
    a.e('s_mov_b32 s7, 0x00020000')
    a.e('s_sub_u32 s27, s18, 4')
    a.e(f's_mul_i32 s30, s27, {16*81920}')
    a.e('s_lshl_b32 s31, s17, 2')
    a.e('s_lshl_b32 s27, s19, 1')
    a.e('s_add_u32 s31, s31, s27')
    a.e('s_mul_i32 s31, s31, 1280')
    a.e('s_add_u32 s30, s30, s31')
    VO=86
    a.e(f'v_and_b32 {v(vT3)}, 31, v0')
    a.e('s_mul_i32 s27, s20, 160')
    a.e(f'v_add_u32 {v(vT3)}, s27, {v(vT3)}')
    a.e(f'v_lshrrev_b32 {v(vT4)}, 5, v0')
    a.e(f'v_mul_u32_u24 {v(vT4)}, 320, {v(vT4)}')
    for t in range(5):
        a.e(f'v_add_u32 v91, {32*t}, {v(vT3)}')
        a.e(f'v_mul_u32_u24 v92, 3277, v91')
        a.e(f'v_lshrrev_b32 v92, 16, v92')
        a.e(f'v_mul_u32_u24 v93, 20, v92')
        a.e(f'v_sub_u32 v91, v91, v93')
        a.e(f'v_lshlrev_b32 v91, 4, v91')
        a.e(f'v_add_u32 v91, v91, {v(vT4)}')
        a.e(f's_mov_b32 s27, 81920')
        a.e(f'v_mul_lo_u32 v92, v92, s27')
        a.e(f'v_add_u32 {v(VO+t)}, v91, v92')
    qN=4; qR=20; TMP=36
    for i in range(2):
        a.e('s_waitcnt lgkmcnt(0)')
        for b in range(4):
            a.e(f'ds_read_b128 {v(qN+4*b,4)}, {v(vT2)} offset:{i*128+b*32}')
            a.e(f'ds_read_b128 {v(qR+4*b,4)}, {v(vT2)} offset:{512+i*128+b*32}')
        a.e(f's_add_u32 s27, s30, {i*1280}')
        a.e('s_waitcnt lgkmcnt(0)')
        for t in range(5):
            A=acc(i,t)
            for j in range(2):
                for q in range(4):
                    r_=8*j+2*q
                    a.e(pkfma(TMP+2*q,qN+r_,CB+2*t,A+r_,None,0,None))
                for q in range(4):
                    r_=8*j+2*q
                    a.e(pkmul(TMP+2*q,TMP+2*q,qR+r_))
                for q in range(4):
                    a.e(f'v_cvt_pk_bf16_f32 {v(A+8*j+q)}, {v(TMP+2*q)}, {v(TMP+2*q+1)}')
                a.e(f'buffer_store_dwordx4 {v(A+8*j,4)}, {v(VO+t)}, s[4:7], s27 offen offset:{j*640}')
    a.e('s_branch K1_DONE')
    a.label('K1_FFN_SETUP')
    a.e(f'v_mul_u32_u24 {v(vT2)}, 320, {v(vRow)}')
    a.e(f'v_mul_u32_u24 {v(vT3)}, 10272, {v(vCh)}')
    a.e(f'v_add_u32 {v(vT2)}, {v(vT2)}, {v(vT3)}')
    a.e(f'v_lshlrev_b32 {v(vT3)}, 3, {v(vC4)}')
    a.e(f'v_add_u32 {v(vT2)}, {v(vT2)}, {v(vT3)}')
    a.e('s_mul_i32 s27, s20, 160')
    a.e(f's_add_u32 s27, s27, {WBASE}')
    a.e(f'v_add_u32 {v(vT2)}, s27, {v(vT2)}')
    for jl in range(2):
        a.e(f's_xor_b32 s27, s21, {jl}')
        a.e(f's_mul_i32 s27, s27, {16*320}')
        a.e(f'v_add_u32 {v(WA+2*jl)}, s27, {v(vT2)}')
    a.e(f'v_and_b32 v62, 15, v0')
    a.e('v_lshlrev_b32 v62, 2, v62')
    a.e('s_mul_i32 s27, s20, 320')
    a.e('s_mul_i32 s29, s19, 1280')
    a.e('s_add_u32 s27, s27, s29')
    a.e(f's_add_u32 s27, s27, {CSP}')
    a.e('v_add_u32 v62, s27, v62')
    for k in range(160): a.e(f'v_mov_b32 {v(ACC+k)}, 0')
    a.e('s_waitcnt lgkmcnt(0)')
    main_loop(a,'ffn')
    a.e(f'v_lshrrev_b32 {v(vT)}, 5, v0')
    a.e(f'v_lshlrev_b32 {v(vT)}, 4, {v(vT)}')
    a.e('s_mul_i32 s27, s20, 320')
    a.e(f's_add_u32 s27, s27, {CS}')
    a.e(f'v_add_u32 {v(vT)}, s27, {v(vT)}')
    CQ=[4,20]
    def csread(t):
        C=CQ[t%2]
        for b in range(2):
            a.e(f'ds_read_b128 {v(C+4*b,4)}, {v(vT)} offset:{t*64+b*32}')
            a.e(f'ds_read_b128 {v(C+8+4*b,4)}, {v(vT)} offset:{640+t*64+b*32}')
    csread(0)
    a.e(f's_add_u32 s4, s34, {HIMG}')
    a.e('s_addc_u32 s5, s35, 0')
    a.e('s_cmp_eq_u32 s18, 15'); a.e('s_cselect_b32 s27, 1, 0')
    a.e('s_cmp_eq_u32 s20, 0'); a.e('s_cselect_b32 s27, s27, 0')
    a.e('s_cmp_eq_u32 s27, 1'); a.e('s_cselect_b32 s6, 0, 6291456')
    a.e('s_mov_b32 s7, 0x00020000')
    a.e('s_sub_u32 s27, s18, 6')
    a.e('s_mul_i32 s27, s27, 10')
    a.e('s_min_u32 s27, s27, 86')
    a.e('s_mul_i32 s30, s20, 5')
    a.e('s_add_u32 s27, s27, s30')
    a.e('s_lshl_b32 s30, s27, 10')
    a.e('s_lshl_b32 s31, s17, 2')
    a.e('s_lshl_b32 s27, s19, 1')
    a.e('s_add_u32 s31, s31, s27')
    a.e('s_mul_i32 s31, s31, 98304')
    a.e('s_add_u32 s30, s30, s31')
    vL16=71
    a.e(f'v_lshlrev_b32 {v(vL16)}, 4, v0')
    a.e('s_waitcnt lgkmcnt(4)')
    for i in range(2):
        P=64+2*i
        a.e(f'v_mul_f32 {v(72+2*i)}, {v(P+1)}, {v(P+1)}')
        a.e(f'v_rcp_f32 {v(72+2*i)}, {v(72+2*i)}')
        a.e(f'v_mul_f32 {v(P+1)}, 0xbfb8aa3b, {v(P+1)}')
    E=76
    for t in range(5):
        if t<4:
            csread(t+1); a.e('s_waitcnt lgkmcnt(4)')
        else: a.e('s_waitcnt lgkmcnt(0)')
        C=CQ[t%2]
        for i in range(2):
            A=acc(i,t); P=64+2*i
            for q in range(4): a.e(pkfma(A+2*q,C+2*q,P,A+2*q,None,0,None))
        for i in range(2):
            A=acc(i,t); P=64+2*i
            for q in range(4): a.e(pkmul(E+8*i+2*q,A+2*q,P,None,1))
        for i in range(2):
            A=acc(i,t); P=64+2*i
            for q in range(4):
                a.e(f'v_exp_f32 {v(E+8*i+2*q)}, {v(E+8*i+2*q)}')
                a.e(f'v_exp_f32 {v(E+8*i+2*q+1)}, {v(E+8*i+2*q+1)}')
                a.e(pkfma(A+8+2*q,C+8+2*q,P,A+8+2*q,None,0,None))
        for i in range(2):
            A=acc(i,t); I=72+2*i
            for q in range(4):
                a.e(pkfma(E+8*i+2*q,E+8*i+2*q,I,I,None,0,0))
                a.e(pkmul(A+2*q,A+2*q,A+8+2*q))
        for i in range(2):
            for q in range(8): a.e(f'v_rcp_f32 {v(E+8*i+q)}, {v(E+8*i+q)}')
        for i in range(2):
            A=acc(i,t)
            for q in range(4): a.e(pkmul(A+2*q,A+2*q,E+8*i+2*q))
        if t==4: a.e('s_mov_b32 s6, 6291456')
        for i in range(2):
            A=acc(i,t)
            for q in range(4): a.e(f'v_cvt_pk_bf16_f32 {v(A+8+q)}, {v(A+2*q)}, {v(A+2*q+1)}')
            a.e(f's_add_u32 s27, s30, {i*98304+t*1024}')
            a.e(f'buffer_store_dwordx4 {v(A+8,4)}, {v(vL16)}, s[4:7], s27 offen')
    a.label('K1_DONE')
    stamp(a,3)
    a.e('s_waitcnt vmcnt(0)')
    stamp(a,4)
    stamp_store(a,10,34,'s16',8,3*1024*1024)
    a.e('s_endpgm')
    a.label('K1_LOADER')
    a.e('s_sub_u32 s19, s16, 4')
    if 'lp0' not in FL: a.e('s_setprio 3')
    if 'lst' in FL: stamp(a,5)
    vX=4; vW=8
    a.e(f'v_lshrrev_b32 {v(vT)}, 3, v0')
    a.e(f'v_and_b32 {v(vT2)}, 7, v0')
    a.e(f'v_lshrrev_b32 {v(vT3)}, 4, v0')
    a.e('s_lshl_b32 s27, s17, 7')
    a.e('s_lshl_b32 s29, s19, 5')
    a.e('s_add_u32 s27, s27, s29')
    a.e(f'v_xor_b32 {v(vT4)}, {v(vT3)}, {v(vT2)}')
    a.e(f'v_lshlrev_b32 {v(vT4)}, 4, {v(vT4)}')
    a.e(f'v_add_u32 {v(vX)}, s27, {v(vT)}')
    a.e(f'v_mul_u32_u24 {v(vX)}, 1280, {v(vX)}')
    a.e(f'v_xor_b32 {v(vT3)}, 64, {v(vT4)}')
    a.e(f'v_add_u32 {v(vX+1)}, {v(vX)}, {v(vT3)}')
    a.e(f'v_add_u32 {v(vX)}, {v(vX)}, {v(vT4)}')
    a.e(f'v_add_u32 {v(vX+1)}, 10240, {v(vX+1)}')
    a.e(f'v_add_u32 {v(vX+2)}, 20480, {v(vX)}')
    a.e(f'v_add_u32 {v(vX+3)}, 20480, {v(vX+1)}')
    if 'lst' in FL: stamp(a,6)
    a.e('s_waitcnt lgkmcnt(0)')
    a.e('s_mov_b32 s8, s36'); a.e('s_mov_b32 s9, s37'); a.e('s_mov_b32 s10, 2621440'); a.e('s_mov_b32 s11, 0x00020000')
    a.e('s_lshl_b32 s21, s19, 12')
    a.e('s_mov_b32 s25, 0'); a.e('s_mov_b32 s26, s21')
    a.e(f's_add_u32 s30, s21, {3*XS}')
    def issueX(pro=False):
        for i in range(4):
            if 'nodma' in FL and not pro: break
            a.e(f's_add_u32 m0, s26, {i*1024}')
            a.e('s_nop 0')
            a.e(f'buffer_load_dwordx4 {v(vX+i)}, s[8:11], s25 offen lds')
        a.e('s_add_u32 s25, s25, 128')
        a.e(f's_add_u32 s26, s26, {XS}')
        a.e('s_cmp_eq_u32 s26, s30')
        a.e('s_cselect_b32 s26, s21, s26')
    issueX(True)
    if 'lst' in FL: stamp(a,4)
    a.e('s_cmp_ge_u32 s18, 6')
    a.e('s_cbranch_scc1 K1_LD_FFN')
    a.e('s_mul_i32 s27, s19, 320')
    for p in range(5):
        a.e(f's_add_u32 s29, s27, {64*p}')
        a.e(f'v_add_u32 {v(vT)}, s29, v0')
        a.e(f'v_mul_u32_u24 {v(vT2)}, 1639, {v(vT)}')
        a.e(f'v_lshrrev_b32 {v(vT2)}, 16, {v(vT2)}')
        a.e(f'v_mul_u32_u24 {v(vT3)}, 40, {v(vT2)}')
        a.e(f'v_sub_u32 {v(vT)}, {v(vT)}, {v(vT3)}')
        a.e(f'v_bfe_u32 {v(vT3)}, {v(vT2)}, 1, 1')
        a.e(f'v_lshlrev_b32 {v(vT3)}, 2, {v(vT3)}')
        a.e(f'v_xor_b32 {v(vT)}, {v(vT)}, {v(vT3)}')
        a.e(f'v_lshlrev_b32 {v(vT)}, 4, {v(vT)}')
        a.e(f'v_mul_u32_u24 {v(vT2)}, 3840, {v(vT2)}')
        a.e(f'v_add_u32 {v(vW+p)}, {v(vT)}, {v(vT2)}')
    a.e('s_mul_i32 s29, s18, 640')
    for p in range(5): a.e(f'v_add_u32 {v(vW+p)}, s29, {v(vW+p)}')
    a.e('s_waitcnt lgkmcnt(0)')
    a.e('s_mov_b32 s4, s38'); a.e('s_mov_b32 s5, s39'); a.e(f's_mov_b32 s6, {640*3840}')
    a.e(f's_mov_b32 s22, {32*3840}')
    a.e('s_mul_i32 s20, s19, 5120')
    a.e('s_branch K1_LD_GO')
    a.label('K1_LD_FFN')
    a.e('s_and_b32 s27, s19, 1')
    a.e('s_lshl_b32 s27, s27, 4')
    a.e('s_sub_u32 s29, s18, 6')
    a.e('s_mul_i32 s29, s29, 320')
    a.e('s_min_u32 s29, s29, 2752')
    for p in range(5):
        a.e(f'v_add_u32 {v(vT)}, {64*p}, v0')
        a.e(f'v_mul_u32_u24 {v(vT2)}, 3277, {v(vT)}')
        a.e(f'v_lshrrev_b32 {v(vT2)}, 16, {v(vT2)}')
        a.e(f'v_mul_u32_u24 {v(vT3)}, 20, {v(vT2)}')
        a.e(f'v_sub_u32 {v(vT)}, {v(vT)}, {v(vT3)}')
        a.e(f'v_lshlrev_b32 {v(vT)}, 4, {v(vT)}')
        a.e(f'v_add_u32 {v(vT2)}, s27, {v(vT2)}')
        a.e(f'v_mul_u32_u24 {v(vT2)}, 3072, {v(vT2)}')
        a.e(f'v_add_u32 {v(vW+p)}, {v(vT)}, {v(vT2)}')
        a.e(f'v_add_u32 {v(vW+p)}, s29, {v(vW+p)}')
    a.e('s_waitcnt lgkmcnt(0)')
    a.e('s_cmp_lt_u32 s19, 2')
    a.e('s_cselect_b32 s4, s40, s42')
    a.e('s_cselect_b32 s5, s41, s43')
    a.e(f's_mov_b32 s6, {640*3072}')
    a.e(f's_mov_b32 s22, {32*3072}')
    a.e('s_mul_i32 s20, s19, 5120')
    a.e('s_lshr_b32 s27, s19, 1')
    a.e('s_lshl_b32 s27, s27, 5')
    a.e('s_add_u32 s20, s20, s27')
    a.label('K1_LD_GO')
    if 'lst' in FL: stamp(a,7)
    a.e('s_mov_b32 s7, 0x00020000')
    a.e(f's_add_u32 s20, s20, {WBASE}')
    a.e('s_mov_b32 s23, 0'); a.e('s_mov_b32 s24, s20')
    a.e(f's_add_u32 s29, s20, {5*WP}')
    def issueW(pro=False):
        for p in range(5):
            if 'nodma' in FL and not pro: break
            a.e(f's_add_u32 m0, s24, {p*1024}')
            a.e('s_nop 0')
            a.e(f'buffer_load_dwordx4 {v(vW+p)}, s[4:7], s23 offen lds')
        a.e('s_add_u32 s23, s23, s22')
        a.e(f's_add_u32 s24, s24, {WP}')
        a.e('s_cmp_eq_u32 s24, s29')
        a.e('s_cselect_b32 s24, s20, s24')
    issueW(True); issueW(True); issueX(True)
    stamp(a,1)
    if 'lp0' in FL or 'lp30' in FL: a.e('s_setprio 0')
    vU=50
    if 'wimg' in FL:
        a.e('s_lshl_b32 s27, s2, 1'); a.e('s_add_u32 s27, s27, s19')
        a.e('s_add_u32 s28, s2, 512')
        a.e('s_cmp_eq_u32 s19, 2'); a.e('s_cselect_b32 s27, s28, s27')
        a.e('s_cmp_lt_u32 s27, 544'); a.e('s_cselect_b32 s33, 1, 0')
        a.e('s_cmp_eq_u32 s19, 3'); a.e('s_cselect_b32 s33, 0, s33')
        a.e('s_and_b32 s32, s27, 7')
        a.e('s_lshr_b32 s27, s27, 3')
        a.e('s_mul_i32 s54, s32, 68'); a.e('s_add_u32 s54, s54, s27'); a.e('s_mul_i32 s54, s54, 5120')
        a.e('s_mul_i32 s32, s32, 160')
        a.e('s_lshl_b32 s28, s27, 5'); a.e('s_mov_b32 s55, 16'); a.e('s_mov_b32 s48, 8'); a.e('s_mov_b32 s49, 4')
        a.e('s_mov_b32 s12, s52'); a.e('s_mov_b32 s13, s53'); a.e(f's_mov_b32 s14, {1536*1280}')
        a.e('s_cmp_lt_u32 s27, 48'); a.e('s_cbranch_scc1 K1_WI_SET')
        a.e('s_mov_b32 s12, s50'); a.e('s_mov_b32 s13, s51'); a.e(f's_mov_b32 s14, {640*1280}')
        a.e('s_sub_u32 s27, s27, 48')
        a.e('s_mul_i32 s28, s27, 40'); a.e('s_mov_b32 s55, 20')
        a.e('s_cmp_lt_u32 s27, 16'); a.e('s_cbranch_scc1 K1_WI_SET')
        a.e('s_sub_u32 s27, s27, 16')
        a.e('s_mul_i32 s28, s27, 160'); a.e('s_add_u32 s28, s28, 16')
        a.e('s_mov_b32 s55, 80'); a.e('s_mov_b32 s48, 20'); a.e('s_mov_b32 s49, 40')
        a.label('K1_WI_SET')
        a.e('s_mov_b32 s15, 0x00020000')
        a.e('s_cmp_eq_u32 s33, 0'); a.e('s_cselect_b32 s14, 0, s14')
        for p in range(5):
            a.e(f'v_add_u32 v56, {64*p}, v0')
            a.e('v_mul_u32_u24 v57, 6554, v56')
            a.e('v_lshrrev_b32 v57, 16, v57')
            a.e('v_mul_u32_u24 v58, 10, v57')
            a.e('v_sub_u32 v56, v56, v58')
            a.e('v_lshlrev_b32 v56, 4, v56')
            a.e('v_add_u32 v56, s32, v56')
            a.e('v_lshrrev_b32 v58, 4, v57')
            a.e('v_mul_u32_u24 v58, s55, v58')
            a.e('v_bfe_u32 v59, v57, 3, 1')
            a.e('v_mul_u32_u24 v59, s48, v59')
            a.e('v_add_u32 v58, v58, v59')
            a.e('v_bfe_u32 v59, v57, 2, 1')
            a.e('v_mul_u32_u24 v59, s49, v59')
            a.e('v_add_u32 v58, v58, v59')
            a.e('v_and_b32 v59, 3, v57')
            a.e('v_add_u32 v58, v58, v59')
            a.e('v_add_u32 v58, s28, v58')
            a.e('v_mul_u32_u24 v58, 1280, v58')
            a.e(f'v_add_u32 {v(vU+p)}, v56, v58')
        if 'wearly' in FL:
            a.e('v_lshrrev_b32 v56, 5, v0'); a.e('v_lshlrev_b32 v56, 4, v56')
            a.e('v_bfe_u32 v57, v0, 4, 1'); a.e('v_lshlrev_b32 v57, 2, v57'); a.e('v_add_u32 v56, v56, v57')
            a.e('v_bfe_u32 v57, v0, 2, 2'); a.e('v_add_u32 v56, v56, v57')
            a.e('v_mul_u32_u24 v56, 160, v56'); a.e(f'v_add_u32 v56, {SP}, v56')
            a.e('v_and_b32 v57, 3, v0'); a.e('v_lshlrev_b32 v58, 4, v57'); a.e('v_add_u32 v76, v56, v58')
            a.e('v_lshlrev_b32 v58, 3, v57'); a.e('v_add_u32 v77, v56, v58')
            a.e('v_lshlrev_b32 v78, 4, v0')
            a.e(f's_add_u32 s88, s34, {WIMG}'); a.e('s_addc_u32 s89, s35, 0')
            a.e('s_cmp_eq_u32 s33, 0'); a.e(f's_cselect_b32 s90, 0, {WIMG_BYTES}'); a.e('s_mov_b32 s91, 0x00020000')
    vSA=16
    D=20
    U=36
    sL,sH,qL,qH=40,41,42,43
    a.e(f'v_and_b32 {v(vT)}, 31, v0')
    a.e(f'v_lshrrev_b32 {v(vT2)}, 5, v0')
    a.e(f'v_lshlrev_b32 {v(vT2)}, 2, {v(vT2)}')
    a.e(f'v_bfe_u32 {v(vT3)}, v0, 1, 3')
    a.e(f'v_xor_b32 {v(vT2)}, {v(vT2)}, {v(vT3)}')
    a.e(f'v_lshlrev_b32 {v(vT2)}, 4, {v(vT2)}')
    a.e(f'v_lshlrev_b32 {v(vT3)}, 7, {v(vT)}')
    a.e(f'v_add_u32 {v(vT2)}, {v(vT2)}, {v(vT3)}')
    a.e(f'v_add_u32 {v(vSA)}, s21, {v(vT2)}')
    for i in range(1,4): a.e(f'v_xor_b32 {v(vSA+i)}, {16*i}, {v(vSA)}')
    for r in (sL,sH,qL,qH): a.e(f'v_mov_b32 {v(r)}, 0')
    if 'dot2' in FL: a.e('s_mov_b32 s56, 0x3f803f80')
    a.e(f's_mov_b32 s27, 0')
    a.e(f's_mov_b32 s46, {XS}'); a.e(f's_mov_b32 s47, {(-2*XS)&0xffffffff}')
    def st_read():
        if 'nostat' in FL: return
        for i in range(4): a.e(f'ds_read_b128 {v(D+4*i,4)}, {v(vSA+i)}')
        a.e('s_add_u32 s27, s27, 1')
        a.e('s_cmp_eq_u32 s27, 3')
        a.e('s_cselect_b32 s28, s47, s46')
        a.e('s_cselect_b32 s27, 0, s27')
        for i in range(4): a.e(f'v_add_u32 {v(vSA+i)}, s28, {v(vSA+i)}')
    def st_acc(half):
        if 'nostat' in FL: return
        a.e(f's_waitcnt lgkmcnt({2 if half==0 else 0})')
        if 'dot2' in FL:
            for d in range(8*half,8*half+8,2):
                a.e(f'v_dot2c_f32_bf16 {v(qL)}, {v(D+d)}, {v(D+d)}')
                a.e(f'v_dot2c_f32_bf16 {v(sL)}, s56, {v(D+d)}')
                a.e(f'v_dot2c_f32_bf16 {v(qH)}, {v(D+d+1)}, {v(D+d+1)}')
                a.e(f'v_dot2c_f32_bf16 {v(sH)}, s56, {v(D+d+1)}')
            return
        for d in range(8*half,8*half+8,2):
            a.e(f'v_lshlrev_b32 {v(U)}, 16, {v(D+d)}')
            a.e(f'v_and_b32 {v(U+1)}, 0xffff0000, {v(D+d)}')
            a.e(f'v_lshlrev_b32 {v(U+2)}, 16, {v(D+d+1)}')
            a.e(f'v_and_b32 {v(U+3)}, 0xffff0000, {v(D+d+1)}')
            a.e(f'v_add_f32 {v(sL)}, {v(sL)}, {v(U)}')
            a.e(f'v_add_f32 {v(sH)}, {v(sH)}, {v(U+1)}')
            a.e(f'v_fma_f32 {v(qL)}, {v(U)}, {v(U)}, {v(qL)}')
            a.e(f'v_fma_f32 {v(qH)}, {v(U+1)}, {v(U+1)}, {v(qH)}')
            a.e(f'v_add_f32 {v(sL)}, {v(sL)}, {v(U+2)}')
            a.e(f'v_add_f32 {v(sH)}, {v(sH)}, {v(U+3)}')
            a.e(f'v_fma_f32 {v(qL)}, {v(U+2)}, {v(U+2)}, {v(qL)}')
            a.e(f'v_fma_f32 {v(qH)}, {v(U+3)}, {v(U+3)}, {v(qH)}')
    bst=('bst' in FL)
    we=('wearly' in FL)
    def bs(i):
        if bst:
            (stampc if 'bstc' in FL else stamp)(a,i)
    def wave_only(w,fn):
        l=a.newlabel('K1_WO')
        a.e(f's_cmp_eq_u32 s19, {w}'); a.e(f's_cbranch_scc0 {l}')
        fn(); a.label(l)
    def unit_dma():
        for p in range(5):
            a.e(f's_mov_b32 m0, {SP+p*1024}')
            a.e('s_nop 0')
            a.e(f'buffer_load_dwordx4 {v(vU+p)}, s[12:15], 0 offen lds')
    def unit_tr():
        for t in range(5):
            reg,off=(76,[0,8,64,72][t]) if t<4 else (77,128)
            a.e(f'ds_read_b64_tr_b16 {v(56+4*t,2)}, {v(reg)} offset:{off}')
            a.e(f'ds_read_b64_tr_b16 {v(58+4*t,2)}, {v(reg)} offset:{off+1280}')
    def unit_store():
        a.e('s_waitcnt lgkmcnt(0)')
        for t in range(5):
            a.e(f's_add_u32 s28, s54, {t*1024}')
            a.e(f'buffer_store_dwordx4 {v(56+4*t,4)}, v78, s[88:91], s28 offen')
    U0={0:-1,1:4,2:9}; T0={0:2,1:7,2:12}; S0={0:3,1:8,2:13}
    WIDE={0:{0,1,4,5,6},1:{5,6,9,10,11},2:{10,11,14,15,16}}
    late=('wlate' in FL)
    if late:
        S0={}
        WIDE={0:{0,1,17,18,19},1:{5,6,17,18,19},2:{10,11,17,18,19}}
    def ldwait(s_,n):
        ws=[w for w in WIDE if s_ in WIDE[w]] if we else []
        if not ws:
            a.e(f's_waitcnt vmcnt({n})'); return
        l1=a.newlabel('K1_LW'); l2=a.newlabel('K1_LW')
        if len(ws)==1:
            a.e(f's_cmp_eq_u32 s19, {ws[0]}')
        elif len(ws)==3:
            a.e('s_cmp_lt_u32 s19, 3')
        else:
            assert ws[1]==ws[0]+1
            a.e(f's_sub_u32 s28, s19, {ws[0]}'); a.e('s_cmp_lt_u32 s28, 2')
        a.e(f's_cbranch_scc1 {l1}')
        a.e(f's_waitcnt vmcnt({n})'); a.e(f's_branch {l2}')
        a.label(l1); a.e(f's_waitcnt vmcnt({n+5})'); a.label(l2)
    def hook(tab,fn,s_):
        if we:
            for w in tab:
                if tab[w]==s_: wave_only(w,fn)
    pre=lambda s_: hook(U0,unit_dma,s_)
    mid=lambda s_: hook(T0,unit_tr,s_)
    post=lambda s_: hook(S0,unit_store,s_)
    pre(-1)
    ldwait(0,9); a.e('s_barrier'); bs(4); issueW(True); st_read(); st_acc(0)
    ldwait(1,9); a.e('s_barrier'); issueW(True); issueX(True); st_acc(1)
    ldwait(2,9); a.e('s_barrier'); bs(5); issueW(True); issueW(True); st_read(); st_acc(0); mid(2)
    ldwait(3,14); a.e('s_barrier'); issueW(True); issueX(True); st_acc(1); post(3)
    if bst or we:
        for it in range(2,8):
            ldwait(2*it,14); a.e('s_barrier'); bs(4+it); pre(2*it); issueW(); st_read(); st_acc(0); mid(2*it); post(2*it)
            ldwait(2*it+1,14); a.e('s_barrier'); pre(2*it+1); issueW(); issueX(); st_acc(1); mid(2*it+1); post(2*it+1)
    else:
        a.e('s_mov_b32 s31, 2')
        a.label('K1_LD_LOOP')
        a.e('s_waitcnt vmcnt(14)'); a.e('s_barrier'); issueW(); st_read(); st_acc(0)
        a.e('s_waitcnt vmcnt(14)'); a.e('s_barrier'); issueW(); issueX(); st_acc(1)
        a.e('s_add_u32 s31, s31, 1')
        a.e('s_cmp_lt_u32 s31, 8')
        a.e('s_cbranch_scc1 K1_LD_LOOP')
    ldwait(16,14); a.e('s_barrier'); bs(12); issueW(); st_read(); st_acc(0)
    if we and late:
        l=a.newlabel('K1_WS')
        a.e('s_cmp_lt_u32 s19, 3'); a.e(f's_cbranch_scc0 {l}')
        unit_store(); a.label(l)
    wi=5 if ('wimg' in FL and not we) else 0
    ldwait(17,14); a.e('s_barrier')
    if wi:
        for p in range(5):
            a.e(f's_add_u32 m0, s20, {p*1024}')
            a.e('s_nop 0')
            a.e(f'buffer_load_dwordx4 {v(vU+p)}, s[12:15], 0 offen lds')
    st_acc(1)
    ldwait(18,5+wi); a.e('s_barrier'); bs(13); st_read(); st_acc(0)
    ldwait(19,wi); a.e('s_barrier'); st_acc(1)
    a.e('s_barrier')
    stamp(a,2)
    P=44
    a.e(f'v_add_f32 {v(P)}, {v(sL)}, {v(sH)}')
    a.e(f'v_add_f32 {v(P+1)}, {v(qL)}, {v(qH)}')
    a.e(f'v_mov_b32 {v(U)}, {v(P)}')
    a.e(f'v_mov_b32 {v(U+1)}, {v(P+1)}')
    a.e('s_nop 1')
    a.e(f'v_permlane32_swap_b32 {v(U)}, {v(P)}')
    a.e(f'v_permlane32_swap_b32 {v(U+1)}, {v(P+1)}')
    a.e('s_nop 1')
    a.e(f'v_add_f32 {v(P)}, {v(U)}, {v(P)}')
    a.e(f'v_add_f32 {v(P+1)}, {v(U+1)}, {v(P+1)}')
    stats(a,0,P)
    a.e(f'v_and_b32 {v(vT)}, 31, v0')
    a.e('s_lshl_b32 s27, s19, 5')
    a.e(f'v_add_u32 {v(vT)}, s27, {v(vT)}')
    a.e(f'v_lshlrev_b32 {v(vT2)}, 2, {v(vT)}')
    a.e(f'v_lshlrev_b32 {v(vT3)}, 3, {v(vT)}')
    a.e('s_mov_b64 exec, 0xffffffff')
    a.e(f'ds_write_b32 {v(vT2)}, {v(P)} offset:{NM}' if NM<65536 else f'v_add_u32 {v(vT2)}, {NM}, {v(vT2)}')
    if NM>=65536:
        a.e(f'v_add_u32 {v(vT3)}, {ST2}, {v(vT3)}')
        a.e(f'ds_write_b32 {v(vT2)}, {v(P)}')
        a.e(f'ds_write_b32 {v(vT2)}, {v(P+1)} offset:512')
        a.e(f'ds_write_b64 {v(vT3)}, {v(P,2)}')
    a.e('s_mov_b64 exec, -1')
    a.e('s_lshl_b32 s27, s19, 6')
    a.e(f'v_add_u32 {v(vT)}, s27, v0')
    a.e(f'v_lshlrev_b32 {v(vT2)}, 3, {v(vT)}')
    a.e(f'v_add_u32 {v(vT2)}, {CS}, {v(vT2)}')
    a.e('s_waitcnt lgkmcnt(0)')
    stamp(a,3)
    a.e('s_barrier')
    a.e(f'v_cmp_gt_u32 vcc, 160, {v(vT)}')
    a.e('s_and_saveexec_b64 s[48:49], vcc')
    a.e(f'ds_read_b64 {v(D,2)}, {v(vT2)} offset:1280')
    a.e(f'ds_read_b64 {v(D+2,2)}, {v(vT2)} offset:2560')
    a.e('s_waitcnt lgkmcnt(0)')
    a.e(f'v_add_f32 {v(D)}, {v(D)}, {v(D+2)}')
    a.e(f'v_add_f32 {v(D+1)}, {v(D+1)}, {v(D+3)}')
    a.e(f'ds_write_b64 {v(vT2)}, {v(D,2)}')
    a.e('s_mov_b64 exec, -1')
    a.e('s_waitcnt lgkmcnt(0)')
    a.e('s_barrier')
    if 'wimg' in FL and 'wearly' not in FL:
        a.e('s_cmp_eq_u32 s33, 0')
        a.e('s_cbranch_scc1 K1_WI_END')
        a.e('v_lshrrev_b32 v56, 5, v0')
        a.e('v_lshlrev_b32 v56, 4, v56')
        a.e('v_bfe_u32 v57, v0, 4, 1')
        a.e('v_lshlrev_b32 v57, 2, v57')
        a.e('v_add_u32 v56, v56, v57')
        a.e('v_bfe_u32 v57, v0, 2, 2')
        a.e('v_add_u32 v56, v56, v57')
        a.e('v_mul_u32_u24 v56, 160, v56')
        a.e('v_add_u32 v56, s20, v56')
        a.e('v_and_b32 v57, 3, v0')
        a.e('v_lshlrev_b32 v58, 4, v57')
        a.e('v_add_u32 v54, v56, v58')
        a.e('v_lshlrev_b32 v58, 3, v57')
        a.e('v_add_u32 v55, v56, v58')
        a.e('v_lshlrev_b32 v53, 4, v0')
        a.e(f's_add_u32 s12, s34, {WIMG}'); a.e('s_addc_u32 s13, s35, 0'); a.e(f's_mov_b32 s14, {WIMG_BYTES}')
        a.e('s_waitcnt vmcnt(0)')
        for t in range(5):
            reg,off=(54,[0,8,64,72][t]) if t<4 else (55,128)
            a.e(f'ds_read_b64_tr_b16 {v(56+4*t,2)}, {v(reg)} offset:{off}')
            a.e(f'ds_read_b64_tr_b16 {v(58+4*t,2)}, {v(reg)} offset:{off+1280}')
        a.e('s_waitcnt lgkmcnt(0)')
        for t in range(5):
            a.e(f's_add_u32 s27, s54, {t*1024}')
            a.e(f'buffer_store_dwordx4 {v(56+4*t,4)}, v53, s[12:15], s27 offen')
        a.e('s_waitcnt vmcnt(0)')
        a.label('K1_WI_END')
    if 'fuse' in FL:
        a.e('s_cmp_eq_u32 s19, 3'); a.e('s_cbranch_scc0 K1_FL_END')
        a.e('s_cmp_lt_u32 s2, 8'); a.e('s_cbranch_scc0 K1_FL_END')
        a.e(f's_add_u32 s12, s34, {FLAGS}'); a.e('s_addc_u32 s13, s35, 0'); a.e(f's_mov_b32 s14, {FLAGS_BYTES}'); a.e('s_mov_b32 s15, 0x00020000')
        a.e('s_lshl_b32 s27, s2, 10')
        a.e('v_lshlrev_b32 v53, 4, v0')
        for k in range(4): a.e(f'v_mov_b32 v{56+k}, 0')
        a.e('buffer_store_dwordx4 v[56:59], v53, s[12:15], s27 offen')
        a.e('s_waitcnt vmcnt(0)')
        a.label('K1_FL_END')
    if 'wearly' in FL: a.e('s_waitcnt vmcnt(0)')
    if 'lst' not in FL and 'bst' not in FL:
        stamp(a,4); stamp(a,5); stamp(a,6); stamp(a,7)
    stamp_store(a,14 if 'bst' in FL else 8,34,'s16',8,3*1024*1024)
    a.label('K1_END')
    a.e('s_endpgm')
    return NV
```

```python
from asmlib import *
from layouts import QIMG,KIMG,VIMG,OIMG,FLAGS,FLAGS_BYTES
import gen_ffn2
NAME='att_kernel'
SLOT=20480
Q1=0+8
Q2=12
K1=16
K2=20
V0=24; V1=28
P0=32; P1=36
E=40
SA=48; SB=64
O=80
vKc=96; vK2c=97; vVc=98; vKn=99; vK2n=100; vVn=101
vL16=0
vT=1; vT2=2; vT3=3; vLaneK=4; vLaneK2=5; vLaneV=6; vMx=7
NV=102
M16=[False]
def mfma(d,a,b,c):
    cs = '0' if c is None else v(c,16)
    if M16[0]:
        if c is None or d in (SA,SB):
            o=0 if c is None else 8
            b=Q1
            return f'v_mfma_f32_16x16x32_bf16 {v(d+o,4)}, {v(a,4)}, {v(b,4)}, 0\n    v_mfma_f32_16x16x32_bf16 {v(d+o+4,4)}, {v(a,4)}, {v(b,4)}, 0'
        return f'v_mfma_f32_16x16x32_bf16 {v(d,4)}, {v(a,4)}, {v(b,4)}, {v(d,4)}\n    v_mfma_f32_16x16x32_bf16 {v(d+4,4)}, {v(a,4)}, {v(b,4)}, {v(d+4,4)}'
    return f'v_mfma_f32_32x32x16_bf16 {v(d,16)}, {v(a,4)}, {v(b,4)}, {cs}'

def emit_dma(a, soff_chunk, sslot):
    a.e(f's_add_u32 s30, s17, {soff_chunk}')
    a.e(f's_add_u32 m0, s20, {sslot}')
    a.e(f's_add_u32 s31, s18, {soff_chunk}')
    a.e(f'buffer_load_dwordx4 {v(vL16)}, s[4:7], s30 offen lds')
    a.e(f's_add_u32 m0, m0, 8192')
    a.e(f's_add_u32 s30, s19, {soff_chunk}')
    a.e(f'buffer_load_dwordx4 {v(vL16)}, s[4:7], s31 offen lds')
    l=a.newlabel('nodma3')
    a.e(f's_cmp_ge_u32 s16, 4')
    a.e(f's_cbranch_scc1 {l}')
    a.e(f's_add_u32 m0, m0, 8192')
    a.e('s_nop 0')
    a.e(f'buffer_load_dwordx4 {v(vL16)}, s[4:7], s30 offen lds')
    a.label(l)

def set_m_pieces(a, add):
    a.e(f'v_mov_b32 {v(vT)}, {v(vMx)}')
    a.e('s_nop 1')
    a.e(f'v_permlane32_swap_b32 {v(vT)}, {v(vMx)}')
    a.e('s_nop 1')
    a.e(f'v_max_f32 {v(vMx)}, {v(vT)}, {v(vMx)}')
    a.e(f'v_ceil_f32 {v(vMx)}, {v(vMx)}')
    a.e(f'v_mov_b32 {v(vT)}, {add}')
    a.e(f'v_add_f32 {v(vMx)}, {v(vT)}, {v(vMx)}')
    a.e(f'v_sub_f32 {v(vMx)}, 0, {v(vMx)}')
    a.e(f'v_and_b32 {v(vT)}, 0xffff0000, {v(vMx)}')
    a.e(f'v_sub_f32 {v(vT2)}, {v(vMx)}, {v(vT)}')
    a.e(f'v_and_b32 {v(vT3)}, 0xffff0000, {v(vT2)}')
    a.e(f'v_sub_f32 {v(vT2)}, {v(vT2)}, {v(vT3)}')
    a.e(f'v_lshrrev_b32 {v(vT)}, 16, {v(vT)}')
    a.e(f'v_or_b32 {v(vT)}, {v(vT)}, {v(vT3)}')
    a.e(f'v_lshrrev_b32 {v(vT2)}, 16, {v(vT2)}')
    a.e('s_mov_b64 exec, 0xffffffff')
    a.e(f'v_mov_b32 {v(Q2+2)}, {v(vT)}')
    a.e(f'v_mov_b32 {v(Q2+3)}, {v(vT2)}')
    a.e('s_mov_b64 exec, -1')

def max16(a, S, first):
    for i in range(0,16,2):
        if first and i==0:
            a.e(f'v_max_f32 {v(vMx)}, {v(S)}, {v(S+1)}')
        else:
            a.e(f'v_max3_f32 {v(vMx)}, {v(vMx)}, {v(S+i)}, {v(S+i+1)}')

FL=set()
def tile(a,i):
    S,N=(SA,SB) if i%2==0 else (SB,SA)
    def addr(kind,ti):
        cur={'k':vKc,'k2':vK2c,'v':vVc}[kind]; nxt={'k':vKn,'k2':vK2n,'v':vVn}[kind]
        return (cur,ti*1280) if ti<8 else (nxt,(ti-8)*1280)
    a.c(f'---- tile {i}')
    if i==6 and 'nodma' not in FL:
        a.e('s_waitcnt vmcnt(0)')
        a.e('s_barrier')
        l=a.newlabel('nodma')
        a.e('s_cmp_ge_u32 s24, 6')
        a.e(f's_cbranch_scc1 {l}')
        emit_dma(a,'s25','s26')
        a.label(l)
    if (i==6 and 'hint6' in FL) or (i==7 and 'hint7' in FL) or (i==5 and 'hint5' in FL):
        l=a.newlabel('hint')
        a.e('s_cmp_eq_u32 s24, 7')
        a.e(f's_cbranch_scc0 {l}')
        a.e('s_mov_b64 exec, 1')
        a.e('buffer_store_dword v102, off, s[40:43], s44 sc1')
        a.e('s_mov_b64 exec, -1')
        a.label(l)
    if 'nolds' in FL:
        E_=a.e
        class A2:
            def e(self,s):
                if s.startswith('ds_read') or s.startswith('s_waitcnt lgkm') or s.startswith('s_mov_b64 exec'): return
                E_(s)
        a=A2()
    ex=lambda dst,src: a.e(f'v_exp_f32 {v(dst)}, {v(src)}')
    cv=lambda dst,x: a.e(f'v_cvt_pk_bf16_f32 {v(dst)}, {v(x)}, {v(x+1)}')
    a.e('s_waitcnt lgkmcnt(3)')
    a.e(mfma(N,K1,Q1,None))
    r,o=addr('k',i+2); a.e(f'ds_read_b128 {v(K1,4)}, {v(r)} offset:{o}')
    cv(P1+2,E+4); cv(P1+3,E+6)
    for k in range(4): ex(E+k,S+k)
    a.e('s_waitcnt lgkmcnt(3)')
    a.e(mfma(N,K2,Q2,N))
    r,o=addr('k2',i+2); a.e(f'ds_read_b64 {v(K2,2)}, {v(r)} offset:{o}')
    for k in range(4): ex(E+4+k,S+4+k)
    cv(P0,E); cv(P0+1,E+2)
    a.e('s_waitcnt lgkmcnt(3)')
    a.e(mfma(O,V1,P1,O))
    cv(P0+2,E+4); cv(P0+3,E+6)
    for k in range(4): ex(E+k,S+8+k)
    a.e('s_waitcnt lgkmcnt(2)')
    a.e(mfma(O,V0,P0,O))
    if 'noexec' not in FL: a.e('s_mov_b64 exec, s[22:23]')
    r,o=addr('v',i);   a.e(f'ds_read_b128 {v(V1,4)}, {v(r)} offset:{o+640}')
    r,o=addr('v',i+1); a.e(f'ds_read_b128 {v(V0,4)}, {v(r)} offset:{o}')
    if 'noexec' not in FL: a.e('s_mov_b64 exec, -1')
    for k in range(4): ex(E+4+k,S+12+k)
    cv(P1,E); cv(P1+1,E+2)

from stamps import stamp, stamp_store, stampc
import stamps
def att_kernel(a, name=NAME):
    a.lines.append(kernel_header(name))
    a.e(f's_cmp_ge_u32 s2, {512 if ("dup" in FL or "ffn2" in FL) else 256}')
    a.e('s_cbranch_scc1 ATT_END')
    if 'dup' in FL: a.e('s_and_b32 s2, s2, 255')
    a.e('s_load_dwordx2 s[34:35], s[0:1], 72')
    if 'ffn2' in FL:
        a.e('s_cmp_ge_u32 s2, 256')
        a.e('s_cbranch_scc1 ATT_FFN2')
        if 'aprio' in FL: a.e('s_setprio 2')
    stamp(a,0)
    a.e(f'v_lshrrev_b32 {v(vT)}, 6, v0')
    a.e(f'v_and_b32 v0, 63, v0')
    a.e(f'v_readfirstlane_b32 s16, {v(vT)}')
    a.e('s_and_b32 s27, s2, 7')
    a.e('s_lshr_b32 s28, s2, 3')
    a.e('s_and_b32 s29, s28, 0x18')
    a.e('s_add_u32 s27, s27, s29')
    a.e('s_and_b32 s28, s28, 7')
    a.e('s_lshl_b32 s28, s28, 3')
    a.e('s_add_u32 s28, s28, s16')
    a.e('s_mul_i32 s29, s27, 81920')
    a.e(f'v_and_b32 {v(vT)}, 31, v0')
    a.e(f'v_lshrrev_b32 {v(vT2)}, 5, v0')
    a.e(f'v_lshlrev_b32 {v(vLaneK2)}, 3, {v(vT)}')
    a.e(f'v_add_u32 {v(vLaneK2)}, 1024, {v(vLaneK2)}')
    a.e(f'v_mul_u32_u24 {v(vLaneV)}, 320, {v(vT2)}')
    a.e(f'v_lshlrev_b32 {v(vT)}, 4, {v(vT)}')
    a.e(f'v_add_u32 {v(vLaneV)}, {v(vLaneV)}, {v(vT)}')
    a.e(f'v_lshlrev_b32 {v(vL16)}, 4, v0')
    a.e('s_lshl_b32 s20, s16, 10')
    a.e('s_mov_b32 s17, s20')
    a.e(f's_add_u32 s18, s20, 8192')
    a.e(f's_add_u32 s19, s20, {VIMG-KIMG-2048}')
    a.e('s_cmp_lt_u32 s16, 2')
    a.e('s_cselect_b32 s18, s18, s19')
    a.e(f's_add_u32 s19, s20, {VIMG-KIMG+6144}')
    a.e('s_mov_b32 s22, 0x000fffff')
    a.e('s_mov_b32 s23, 0x000fffff')
    a.e('s_waitcnt lgkmcnt(0)')
    a.e(f's_add_u32 s4, s34, {KIMG}')
    a.e('s_addc_u32 s5, s35, 0')
    a.e('s_add_u32 s4, s4, s29')
    a.e('s_addc_u32 s5, s5, 0')
    a.e(f's_sub_u32 s6, {VIMG+2621440-KIMG}, s29')
    a.e('s_mov_b32 s7, 0x00020000')
    a.e(f's_add_u32 s8, s34, {QIMG}')
    a.e('s_addc_u32 s9, s35, 0')
    a.e('s_mov_b32 s10, 2621440')
    a.e('s_mov_b32 s11, 0x00020000')
    a.e(f's_add_u32 s12, s34, {OIMG}')
    a.e('s_addc_u32 s13, s35, 0')
    a.e('s_mov_b32 s14, 2621440')
    a.e('s_mov_b32 s15, 0x00020000')
    if 'sent' in FL and 'can' not in FL:
        a.e(f's_add_u32 s40, s34, {FLAGS}'); a.e('s_addc_u32 s41, s35, 0'); a.e(f's_mov_b32 s42, {FLAGS_BYTES}'); a.e('s_mov_b32 s43, 0x00020000')
        a.e('s_lshl_b32 s44, s28, 5'); a.e('s_add_u32 s44, s44, s27'); a.e('s_lshl_b32 s44, s44, 2')
        a.e('v_mov_b32 v102, 1')
    a.e('s_mov_b32 s25, 0'); a.e('s_mov_b32 s26, 0')
    emit_dma(a,'s25','s26')
    a.e('s_mov_b32 s25, 10240'); a.e(f's_mov_b32 s26, {SLOT}')
    emit_dma(a,'s25','s26')
    a.e('s_mul_i32 s33, s28, 1280')
    a.e('s_add_u32 s33, s33, s29')
    for k in range(4): a.e(f'v_mov_b32 {v(Q2+k)}, 0')
    a.e(f'buffer_load_dwordx4 {v(Q1,4)}, {v(vL16)}, s[8:11], s33 offen')
    a.e('s_mov_b64 exec, 0xffffffff')
    a.e(f'buffer_load_dwordx2 {v(Q2,2)}, {v(vLaneK2)}, s[8:11], s33 offen')
    a.e('s_mov_b64 exec, -1')
    a.e(f'v_mov_b32 {v(K2+2)}, 0x3f803f80')
    a.e(f'v_mov_b32 {v(K2+3)}, 0x00003f80')
    for k in range(4):
        a.e(f'v_mov_b32 {v(V0+k)}, 0x3f803f80')
        a.e(f'v_mov_b32 {v(V1+k)}, 0x3f803f80')
    a.e(f'v_mov_b32 {v(vKc)}, {v(vL16)}')
    a.e(f'v_mov_b32 {v(vK2c)}, {v(vLaneK2)}')
    a.e(f'v_add_u32 {v(vLaneV)}, 10240, {v(vLaneV)}')
    a.e(f'v_mov_b32 {v(vVc)}, {v(vLaneV)}')
    a.e(f'v_add_u32 {v(vKn)}, {SLOT}, {v(vL16)}')
    a.e(f'v_add_u32 {v(vK2n)}, {SLOT}, {v(vLaneK2)}')
    a.e(f'v_add_u32 {v(vVn)}, {SLOT}, {v(vLaneV)}')
    T2=[P0,P1,E,E+4]
    for t in T2:
        a.e(f'v_mov_b32 {v(t+2)}, 0'); a.e(f'v_mov_b32 {v(t+3)}, 0')
    a.e('s_waitcnt vmcnt(0)')
    a.e('s_barrier')
    stamp(a,1)
    for t in range(4):
        a.e(f'ds_read_b128 {v(O+4*t,4)}, {v(vKc)} offset:{t*1280}')
        a.e(f'ds_read_b64 {v(T2[t],2)}, {v(vK2c)} offset:{t*1280}')
    a.e('s_waitcnt lgkmcnt(4)')
    a.e(mfma(SA,O,Q1,None)); a.e(mfma(SB,O+4,Q1,None))
    a.e(mfma(SA,T2[0],Q2,SA)); a.e(mfma(SB,T2[1],Q2,SB))
    a.e('s_waitcnt lgkmcnt(0)')
    a.e('s_nop 7'); a.e('s_nop 7')
    max16(a,SA,True)
    a.e(mfma(SA,O+8,Q1,None))
    max16(a,SB,False)
    a.e(mfma(SB,O+12,Q1,None))
    a.e(mfma(SA,T2[2],Q2,SA)); a.e(mfma(SB,T2[3],Q2,SB))
    a.e(f'ds_read_b128 {v(K1,4)}, {v(vKc)} offset:0')
    a.e(f'ds_read_b64 {v(K2,2)}, {v(vK2c)} offset:0')
    a.e('s_nop 7'); a.e('s_nop 7')
    max16(a,SA,False)
    max16(a,SB,False)
    set_m_pieces(a,'0x42c00000')
    for k in range(16): a.e(f'v_mov_b32 {v(O+k)}, 0')
    for k in range(4): a.e(f'v_mov_b32 {v(P1+k)}, 0')
    for k in range(4,8): a.e(f'v_mov_b32 {v(E+k)}, 0')
    a.e('s_waitcnt lgkmcnt(0)')
    a.e(mfma(SA,K1,Q1,None))
    a.e(mfma(SA,K2,Q2,SA))
    a.e(f'ds_read_b128 {v(K1,4)}, {v(vKc)} offset:1280')
    a.e(f'ds_read_b64 {v(K2,2)}, {v(vK2c)} offset:1280')
    a.e('s_mov_b64 exec, s[22:23]')
    a.e(f'ds_read_b128 {v(V1,4)}, {v(vVc)} offset:640')
    a.e(f'ds_read_b128 {v(V0,4)}, {v(vVc)} offset:0')
    a.e('s_mov_b64 exec, -1')
    a.e('s_waitcnt lgkmcnt(0)')
    a.e('s_nop 7'); a.e('s_nop 7')
    a.e('s_mov_b32 s24, 0')
    a.e('s_mov_b32 s25, 20480')
    a.e(f's_mov_b32 s26, {2*SLOT}')
    a.e(f's_mov_b32 s21, {SLOT}')
    stamp(a,2); stampc(a,5)
    a.label('ATT_LOOP')
    M16[0]=('am16' in FL)
    for i in range(8): tile(a,i)
    M16[0]=False
    a.e(f'v_mov_b32 {v(vKc)}, {v(vKn)}')
    a.e(f'v_mov_b32 {v(vK2c)}, {v(vK2n)}')
    a.e(f'v_mov_b32 {v(vVc)}, {v(vVn)}')
    a.e('s_mov_b32 s21, s26')
    a.e(f's_add_u32 s26, s26, {SLOT}')
    a.e(f's_cmp_eq_u32 s26, {3*SLOT}')
    a.e('s_cselect_b32 s26, 0, s26')
    a.e(f'v_add_u32 {v(vKn)}, s21, {v(vL16)}')
    a.e(f'v_add_u32 {v(vK2n)}, s21, {v(vLaneK2)}')
    a.e(f'v_add_u32 {v(vVn)}, s21, {v(vLaneV)}')
    a.e('s_add_u32 s25, s25, 10240')
    a.e('s_add_u32 s24, s24, 1')
    a.e('s_cmp_lt_u32 s24, 8')
    a.e('s_cbranch_scc1 ATT_LOOP')
    stamp(a,3); stampc(a,6)
    if 'eprio' in FL: a.e('s_setprio 3')
    a.e(f'v_cvt_pk_bf16_f32 {v(P1+2)}, {v(E+4)}, {v(E+5)}')
    a.e(f'v_cvt_pk_bf16_f32 {v(P1+3)}, {v(E+6)}, {v(E+7)}')
    a.e('s_waitcnt lgkmcnt(0)')
    a.e('s_nop 1')
    a.e(mfma(O,V1,P1,O))
    a.e('s_nop 7'); a.e('s_nop 7')
    a.e(f'v_mov_b32 {v(vT)}, 0')
    for k in range(13): a.e(f'v_fma_f32 {v(vT)}, {v(O+k)}, 0, {v(vT)}')
    a.e(f'v_cmp_u_f32 vcc, {v(vT)}, {v(vT)}')
    a.e('s_mov_b64 s[36:37], vcc')
    a.e(f'v_mov_b32 {v(vT)}, 0x7b800000')
    a.e(f'v_cmp_nlt_f32 vcc, {v(O+12)}, {v(vT)}')
    a.e('s_or_b64 vcc, vcc, s[36:37]')
    if 'am16' not in FL: a.e('s_cbranch_vccnz ATT_FALLBACK')
    a.label('ATT_EPI')
    a.e(f'v_rcp_f32 {v(vT)}, {v(O+12)}')
    a.e('s_nop 0')
    for k in range(12): a.e(f'v_mul_f32 {v(O+k)}, {v(O+k)}, {v(vT)}')
    for k in range(6): a.e(f'v_cvt_pk_bf16_f32 {v(E+k)}, {v(O+2*k)}, {v(O+2*k+1)}')
    if 'sent' in FL:
        for k in range(6): a.e(f'v_min_u32 {v(E+k)}, -2, {v(E+k)}')
    a.e('s_mul_i32 s33, s28, 40960')
    a.e('s_lshl_b32 s30, s27, 10')
    a.e('s_add_u32 s30, s30, s33')
    opol=' '.join(x for x in ('sc0','sc1','nt') if 'ost_'+x in FL)
    a.e(f'buffer_store_dwordx4 {v(E,4)}, {v(vL16)}, s[12:15], s30 offen {opol}')
    if 'lat' in FL:
        stamp(a,0); a.e('s_waitcnt vmcnt(0)'); stamp(a,1)
    if 'can' in FL:
        a.e('s_lshl_b32 s30, s27, 8')
        a.e('s_add_u32 s30, s30, s33')
        a.e(f's_add_u32 s30, s30, {32768-1024}')
        a.e('s_mov_b64 exec, 0xffffffff')
        a.e(f'buffer_store_dwordx2 {v(E+4,2)}, {v(vLaneK2)}, s[12:15], s30 offen {opol}')
    else:
        a.e('s_lshr_b32 s30, s27, 2')
        a.e('s_add_u32 s30, s30, 32')
        a.e('s_lshl_b32 s30, s30, 10')
        a.e('s_add_u32 s30, s30, s33')
        a.e('s_and_b32 s31, s27, 2')
        a.e('s_lshl_b32 s31, s31, 8')
        a.e('s_add_u32 s30, s30, s31')
        a.e('s_and_b32 s31, s27, 1')
        a.e('s_lshl_b32 s31, s31, 3')
        a.e('s_add_u32 s30, s30, s31')
        a.e('s_mov_b64 exec, 0xffffffff')
        a.e(f'buffer_store_dwordx2 {v(E+4,2)}, {v(vL16)}, s[12:15], s30 offen {opol}')
    if 'lat' in FL:
        a.e('s_waitcnt vmcnt(0)'); stamp(a,2)
    if 'sent' in FL:
        if 'hint8' in FL:
            a.e('s_mov_b64 exec, 1')
            a.e('buffer_store_dword v102, off, s[40:43], s44 sc1')
        a.e('s_waitcnt vmcnt(0)')
    else: a.e('s_waitcnt vmcnt(0)')
    if 'fuse' in FL and 'sent' not in FL:
        a.e(f's_add_u32 s8, s34, {FLAGS}'); a.e('s_addc_u32 s9, s35, 0'); a.e(f's_mov_b32 s10, {FLAGS_BYTES}')
        a.e('s_lshl_b32 s30, s28, 5'); a.e('s_add_u32 s30, s30, s27'); a.e('s_lshl_b32 s30, s30, 2')
        a.e(f'v_mov_b32 {v(vT)}, 1')
        a.e('s_mov_b64 exec, 1')
        a.e(f'buffer_store_dword {v(vT)}, off, s[8:11], s30 sc1')
        a.e('s_waitcnt vmcnt(0)')
    stamp(a,4)
    stamp_store(a,7,34,'s16',8,0)
    a.label('ATT_END')
    a.e('s_endpgm')
    a.label('ATT_FALLBACK')
    a.e(f'v_mov_b32 {v(Q2+2)}, 0'); a.e(f'v_mov_b32 {v(Q2+3)}, 0')
    a.e(f'v_mov_b32 {v(vMx)}, 0xff800000')
    a.e('s_mov_b32 s30, 0')
    a.label('ATT_FB1')
    a.e(f'buffer_load_dwordx4 {v(K1,4)}, {v(vL16)}, s[4:7], s30 offen')
    a.e(f'buffer_load_dwordx2 {v(K2,2)}, {v(vLaneK2)}, s[4:7], s30 offen')
    a.e('s_waitcnt vmcnt(0)')
    a.e(mfma(SA,K1,Q1,None)); a.e(mfma(SA,K2,Q2,SA))
    a.e('s_nop 7'); a.e('s_nop 7')
    max16(a,SA,False)
    a.e('s_add_u32 s30, s30, 1280')
    a.e('s_cmp_lt_u32 s30, 81920')
    a.e('s_cbranch_scc1 ATT_FB1')
    set_m_pieces(a,'0')
    for k in range(16): a.e(f'v_mov_b32 {v(O+k)}, 0')
    a.e(f'v_add_u32 {v(vVc)}, {VIMG-KIMG-10240}, {v(vLaneV)}')
    a.e('s_mov_b32 s30, 0')
    a.label('ATT_FB2')
    a.e(f'buffer_load_dwordx4 {v(K1,4)}, {v(vL16)}, s[4:7], s30 offen')
    a.e(f'buffer_load_dwordx2 {v(K2,2)}, {v(vLaneK2)}, s[4:7], s30 offen')
    a.e('s_mov_b64 exec, s[22:23]')
    a.e(f'buffer_load_dwordx4 {v(V0,4)}, {v(vVc)}, s[4:7], s30 offen')
    a.e(f'buffer_load_dwordx4 {v(V1,4)}, {v(vVc)}, s[4:7], s30 offen offset:640')
    a.e('s_mov_b64 exec, -1')
    a.e('s_waitcnt vmcnt(0)')
    a.e(mfma(SA,K1,Q1,None)); a.e(mfma(SA,K2,Q2,SA))
    a.e('s_nop 7'); a.e('s_nop 7')
    for k in range(16): a.e(f'v_exp_f32 {v(SB+k)}, {v(SA+k)}')
    a.e('s_nop 0')
    for k in range(4): a.e(f'v_cvt_pk_bf16_f32 {v(P0+k)}, {v(SB+2*k)}, {v(SB+2*k+1)}')
    for k in range(4): a.e(f'v_cvt_pk_bf16_f32 {v(P1+k)}, {v(SB+8+2*k)}, {v(SB+8+2*k+1)}')
    a.e('s_nop 1')
    a.e(mfma(O,V0,P0,O)); a.e(mfma(O,V1,P1,O))
    a.e('s_add_u32 s30, s30, 1280')
    a.e('s_cmp_lt_u32 s30, 81920')
    a.e('s_cbranch_scc1 ATT_FB2')
    a.e('s_nop 7'); a.e('s_nop 7')
    a.e('s_branch ATT_EPI')
    if 'ffn2' in FL:
        a.label('ATT_FFN2')
        gen_ffn2.FL=FL
        gen_ffn2.ffn2_role(a)
        return 128
    return NV
```

```python
from asmlib import *
from layouts import HIMG,WIMG,GIMG,GIMG_BYTES,OIMG,FLAGS,FLAGS_BYTES
from stamps import stamp, stamp_store, stampc
FL=set()
NB=3
BUF=4; ACC=88
vA0=0; vA1=1; vB0=2; vT=3
def acc(u,t): return ACC+(u*5+t)*4
def bufA(b,t): return BUF+28*b+4*t
def bufB(b,u): return BUF+28*b+20+4*u
def loadA(a,b,t):
    if t<4: a.e(f'buffer_load_dwordx4 {v(bufA(b,t),4)}, {v(vA0)}, s[4:7], s20 offen offset:{t*1024}')
    else:   a.e(f'buffer_load_dwordx4 {v(bufA(b,t),4)}, {v(vA1)}, s[4:7], s20 offen')
def loadB(a,b,u):
    a.e(f'buffer_load_dwordx4 {v(bufB(b,u),4)}, {v(vB0)}, s[8:11], s21 offen offset:{u*256}')
def advance(a):
    a.e('s_add_u32 s20, s20, 5120'); a.e('s_add_u32 s21, s21, 2048')

def ffn2_role(a):
    spol=' '.join(x for x in ('sc0','sc1','nt') if 'gst_'+x in FL)
    if 'fuse' in FL:
        a.e('s_load_dwordx2 s[36:37], s[0:1], 0')
        a.e('s_load_dwordx2 s[38:39], s[0:1], 56')
    stamp(a,0)
    a.e('v_lshrrev_b32 v3, 6, v0')
    a.e('v_and_b32 v0, 63, v0')
    a.e('v_readfirstlane_b32 s16, v3')
    a.e('s_and_b32 s27, s2, 7')
    a.e('s_lshr_b32 s28, s2, 3'); a.e('s_and_b32 s28, s28, 31')
    a.e('s_lshr_b32 s29, s27, 1')
    a.e('s_lshl_b32 s29, s29, 3')
    a.e('s_lshr_b32 s30, s28, 2')
    a.e('s_add_u32 s17, s29, s30')
    a.e('s_and_b32 s27, s27, 1')
    a.e('s_lshl_b32 s27, s27, 2')
    a.e('s_and_b32 s28, s28, 3')
    a.e('s_add_u32 s18, s27, s28')
    a.e('s_and_b32 s19, s16, 1')
    a.e('s_lshr_b32 s22, s16, 1')
    a.e('v_lshrrev_b32 v3, 4, v0')
    a.e('v_and_b32 v4, 15, v0')
    a.e(f'v_lshlrev_b32 {v(vB0)}, 9, v3')
    a.e('v_lshlrev_b32 v4, 4, v4')
    a.e(f'v_add_u32 {v(vB0)}, {v(vB0)}, v4')
    a.e(f'v_lshlrev_b32 {v(vA0)}, 4, v0')
    a.e(f'v_add_u32 {v(vA1)}, 4096, {v(vA0)}')
    a.e('s_mul_i32 s27, s18, 348160')
    a.e(f's_mul_i32 s28, s22, {12*5120}')
    a.e('s_add_u32 s27, s27, s28')
    a.e(f's_add_u32 s27, s27, {WIMG}')
    a.e('s_lshl_b32 s28, s17, 1'); a.e('s_add_u32 s28, s28, s19')
    a.e('s_mul_i32 s28, s28, 98304')
    a.e(f's_mul_i32 s29, s22, {12*2048}')
    a.e('s_add_u32 s28, s28, s29')
    a.e(f's_add_u32 s28, s28, {HIMG}')
    a.e('s_mov_b32 s20, 0'); a.e('s_mov_b32 s21, 0')
    a.e('s_waitcnt lgkmcnt(0)')
    a.e('s_add_u32 s4, s34, s27'); a.e('s_addc_u32 s5, s35, 0'); a.e(f's_mov_b32 s6, {12*5120}'); a.e('s_mov_b32 s7, 0x00020000')
    a.e('s_add_u32 s8, s34, s28'); a.e('s_addc_u32 s9, s35, 0'); a.e(f's_mov_b32 s10, {12*2048}'); a.e('s_mov_b32 s11, 0x00020000')
    for b in range(NB):
        for u in range(2): loadB(a,b,u)
        for t in range(5): loadA(a,b,t)
        advance(a)
    n=12
    for j in range(n):
        b=j%NB
        issued=min(j+NB,n)
        a.e(f's_waitcnt vmcnt({7*(issued-j-1)})')
        if j==0: stamp(a,1)
        more=j+NB<n
        for t in range(5):
            for u in range(2):
                c=v(acc(u,t),4) if j>0 else '0'
                a.e(f'v_mfma_f32_16x16x32_bf16 {v(acc(u,t),4)}, {v(bufA(b,t),4)}, {v(bufB(b,u),4)}, {c}')
            if more and t>0: loadA(a,b,t-1)
        if more:
            loadA(a,b,4)
            for u in range(2): loadB(a,b,u)
            advance(a)
    stamp(a,2)
    a.e('s_lshl_b32 s23, s19, 1')
    for u in range(2):
        a.e(f's_add_u32 s27, s23, {u}')
        a.e('s_mul_i32 s27, s27, 3')
        a.e(f's_cmp_gt_u32 s22, {u}')
        a.e('s_cselect_b32 s28, 1, 0')
        a.e('s_sub_u32 s28, s22, s28')
        a.e('s_add_u32 s27, s27, s28')
        a.e('s_mul_i32 s27, s27, 5120')
        a.e(f'v_add_u32 {v(BUF+u)}, s27, {v(vA0)}')
    a.e('s_nop 7')
    for u in range(2):
        l=a.newlabel('fx')
        a.e(f's_cmp_eq_u32 s22, {u}')
        a.e(f's_cbranch_scc1 {l}')
        for t in range(5): a.e(f'ds_write_b128 {v(BUF+u)}, {v(acc(u,t),4)} offset:{t*1024}')
        a.label(l)
    a.e('s_waitcnt lgkmcnt(0)')
    a.e('s_barrier')
    if 'fuse' in FL: return fused_tail(a)
    a.e('s_cmp_ge_u32 s22, 2')
    a.e('s_cbranch_scc1 FFN_TAIL')
    a.e('s_add_u32 s23, s23, s22')
    a.e(f's_mul_i32 s27, s23, {3*5120}')
    a.e(f'v_add_u32 {v(vT)}, s27, {v(vA0)}')
    R=BUF
    for k in range(3):
        for t in range(5): a.e(f'ds_read_b128 {v(R+20*k+4*t,4)}, {v(vT)} offset:{(k*5+t)*1024}')
    a.e('s_cmp_eq_u32 s22, 0')
    a.e('s_cbranch_scc1 FFN_OWN0')
    for i in range(20): a.e(f'v_mov_b32 {v(ACC+i)}, {v(ACC+20+i)}')
    a.label('FFN_OWN0')
    G=ACC; E=ACC+20
    a.e('s_waitcnt lgkmcnt(10)')
    for i in range(20): a.e(f'v_add_f32 {v(G+i)}, {v(G+i)}, {v(R+i)}')
    a.e('s_waitcnt lgkmcnt(5)')
    for i in range(20): a.e(f'v_add_f32 {v(G+i)}, {v(G+i)}, {v(R+20+i)}')
    a.e('s_waitcnt lgkmcnt(0)')
    for i in range(20): a.e(f'v_add_f32 {v(G+i)}, {v(G+i)}, {v(R+40+i)}')
    for i in range(20): a.e(f'v_mul_f32 {v(E+i)}, 0xbfb8aa3b, {v(G+i)}')
    for i in range(20): a.e(f'v_exp_f32 {v(E+i)}, {v(E+i)}')
    for i in range(20): a.e(f'v_add_f32 {v(E+i)}, 1.0, {v(E+i)}')
    for i in range(20): a.e(f'v_rcp_f32 {v(E+i)}, {v(E+i)}')
    for i in range(20): a.e(f'v_mul_f32 {v(G+i)}, {v(G+i)}, {v(E+i)}')
    for i in range(10): a.e(f'v_cvt_pk_bf16_f32 {v(E+i)}, {v(G+2*i)}, {v(G+2*i+1)}')
    a.e('s_lshl_b32 s27, s17, 3'); a.e('s_add_u32 s27, s27, s18'); a.e('s_lshl_b32 s27, s27, 2'); a.e('s_add_u32 s27, s27, s23')
    a.e('s_mul_i32 s27, s27, 2560')
    a.e(f's_add_u32 s4, s34, {GIMG}'); a.e('s_addc_u32 s5, s35, 0'); a.e(f's_mov_b32 s6, {GIMG_BYTES}')
    a.e(f'v_lshrrev_b32 {v(vT)}, 1, {v(vA0)}')
    a.e(f'buffer_store_dwordx4 {v(E,4)}, {v(vA0)}, s[4:7], s27 offen {spol}')
    a.e(f'buffer_store_dwordx4 {v(E+4,4)}, {v(vA0)}, s[4:7], s27 offen offset:1024 {spol}')
    a.e(f'buffer_store_dwordx2 {v(E+8,2)}, {v(vT)}, s[4:7], s27 offen offset:2048 {spol}')
    a.e('s_waitcnt vmcnt(0)')
    stamp(a,3)
    stamp(a,4)
    stamp_store(a,5,34,'s16',8,1*1024*1024-256*8*128)
    a.e('s_endpgm')
    a.label('FFN_TAIL')
    if 'pfk3' in FL:
        pass
    stamp(a,3); stamp(a,4)
    stamp_store(a,5,34,'s16',8,1*1024*1024-256*8*128)
    a.e('s_endpgm')


def exch_addr(a,r0,r1):
    for u,r in ((0,r0),(1,r1)):
        a.e(f's_add_u32 s27, s23, {u}')
        a.e('s_mul_i32 s27, s27, 3')
        a.e(f's_cmp_gt_u32 s22, {u}')
        a.e('s_cselect_b32 s28, 1, 0')
        a.e('s_sub_u32 s28, s22, s28')
        a.e('s_add_u32 s27, s27, s28')
        a.e('s_mul_i32 s27, s27, 5120')
        a.e(f'v_add_u32 {v(r)}, s27, {v(vA0)}')

def lane_off(a,vXo,vXo2,vT):
    a.e(f'v_bfe_u32 {v(vXo)}, {v(vA0)}, 4, 4')
    a.e(f'v_lshrrev_b32 {v(vXo2)}, 8, {v(vA0)}')
    a.e(f'v_mul_u32_u24 {v(vXo)}, 1280, {v(vXo)}')
    a.e(f'v_lshlrev_b32 {v(vXo2)}, 3, {v(vXo2)}')
    a.e(f'v_add_u32 {v(vT)}, {v(vXo)}, {v(vXo2)}')
    a.e(f'v_add_u32 {v(vXo)}, {v(vT)}, {v(vXo2)}')
    a.e(f'v_add_u32 {v(vXo2)}, 128, {v(vT)}')

def tail_can(a,AA,BB,A2,vLA,vB1,vT):
    a.e('s_mul_i32 s27, s18, 348160')
    a.e(f's_mul_i32 s28, s22, {4*5120}')
    a.e('s_add_u32 s27, s27, s28')
    a.e(f's_add_u32 s27, s27, {WIMG+48*5120}')
    a.e('s_add_u32 s4, s34, s27'); a.e('s_addc_u32 s5, s35, 0'); a.e(f's_sub_u32 s6, {20*5120}, s28')
    for t in range(4): a.e(f'buffer_load_dwordx4 {v(AA+4*t,4)}, {v(vA0)}, s[4:7], 0 offen offset:{t*1024}')
    a.e(f'buffer_load_dwordx4 {v(AA+16,4)}, {v(vA1)}, s[4:7], 0 offen')
    a.e('s_mul_i32 s27, s22, 20480')
    a.e(f'v_add_u32 {v(vLA)}, s27, {v(vA0)}')
    a.e('s_mul_i32 s28, s19, 10240')
    a.e('s_add_u32 s27, s27, s28')
    a.e('s_add_u32 s28, s28, 5120')
    a.e(f's_mul_i32 s33, s22, {3*5120}')
    a.e(f's_sub_u32 s33, {16*5120}, s33')
    a.e('s_cmp_eq_u32 s19, 0')
    a.e('s_cselect_b32 s33, 10240, s33')
    a.e('s_barrier')
    for i in range(10):
        if i==5: a.e('s_mov_b32 s28, s33')
        a.e('s_mov_b32 m0, s27')
        a.e('s_add_u32 s27, s27, 1024')
        a.e(f'buffer_load_dwordx4 {v(vA0)}, s[4:7], s28 offen lds')
        a.e('s_add_u32 s28, s28, 1024')
    a.e('s_lshl_b32 s28, s17, 1'); a.e('s_add_u32 s28, s28, s19')
    a.e('s_mul_i32 s28, s28, 40960')
    a.e('s_lshl_b32 s29, s22, 13')
    a.e('s_add_u32 s28, s28, s29')
    a.e(f's_add_u32 s28, s28, {OIMG}')
    a.e('s_add_u32 s8, s34, s28'); a.e('s_addc_u32 s9, s35, 0'); a.e('s_sub_u32 s10, 40960, s29')
    a.e('s_mul_i32 s33, s22, 6144')
    a.e('s_sub_u32 s33, 32768, s33')
    exch_addr(a,1,vT)
    a.e(f'v_and_b32 {v(vB1)}, 0xf0, {v(vA0)}')
    a.e(f'v_lshrrev_b32 {v(vB1)}, 1, {v(vB1)}')
    a.e(f'v_sub_u32 {v(vB1)}, {v(vB0)}, {v(vB1)}')
    a.e(f'v_lshlrev_b32 v67, 4, {v(vA0)}')
    a.e('s_waitcnt vmcnt(0)')
    a.e('s_barrier')
    stamp(a,3)
    a.e('s_mov_b32 s31, 0')
    slp=[int(x[3:]) for x in FL if x.startswith('slp')]
    slp=slp[0] if slp else 6
    a.e('s_mov_b64 exec, 1')
    a.label('FFN_P1')
    if slp: a.e(f's_sleep {slp}')
    a.e(f'buffer_load_dword {v(BB)}, v67, s[8:11], s33 offen sc1')
    a.e('s_add_u32 s31, s31, 1')
    a.e('s_waitcnt vmcnt(0)')
    a.e(f'v_cmp_eq_u32 vcc, -1, {v(BB)}')
    a.e('s_cbranch_vccz FFN_P2')
    a.e('s_cmp_lt_u32 s31, 0x40000')
    a.e('s_cbranch_scc1 FFN_P1')
    a.label('FFN_P2')
    a.e('s_mov_b64 exec, 0xff')
    a.label('FFN_P3')
    a.e(f'buffer_load_dword {v(BB)}, v67, s[8:11], s33 offen sc1')
    a.e('s_add_u32 s31, s31, 1')
    a.e('s_waitcnt vmcnt(0)')
    a.e(f'v_cmp_eq_u32 vcc, -1, {v(BB)}')
    a.e('s_cbranch_vccz FFN_GO')
    a.e('s_cmp_lt_u32 s31, 0x80000')
    a.e('s_cbranch_scc1 FFN_P3')
    a.label('FFN_GO')
    a.e('s_mov_b64 exec, -1')
    if 'fprio' in FL: a.e('s_setprio 3')
    stamp(a,5)
    def loads(j,pol,first):
        b=BB+8*j
        if j<4:
            so='0' if j<2 else 's29'
            if j>=2 and not (first and j==3): a.e('s_movk_i32 s29, 4096')
            for u in range(2): a.e(f'buffer_load_dwordx4 {v(b+4*u,4)}, {v(vB0)}, s[8:11], {so} offen offset:{(j*2048+u*256)%4096} {pol}')
        else:
            for u in range(2):
                for h in range(2): a.e(f'buffer_load_dwordx2 {v(b+4*u+2*h,2)}, {v(vB1)}, s[8:11], s33 offen offset:{u*128+h*256} {pol}')
    for j in range(5): loads(j,'' if 'opl' in FL else 'sc1',True)
    for j in range(5):
        a.e(f's_waitcnt vmcnt({2*(3-j)+4 if j<4 else 0})')
        lc=a.newlabel('oc'); lo=a.newlabel('oo'); b=BB+8*j
        a.label(lc)
        a.e(f'v_max3_u32 v67, {v(b)}, {v(b+1)}, {v(b+2)}')
        a.e(f'v_max3_u32 v67, v67, {v(b+3)}, {v(b+4)}')
        a.e(f'v_max3_u32 v67, v67, {v(b+5)}, {v(b+6)}')
        a.e(f'v_max_u32 v67, v67, {v(b+7)}')
        a.e('v_cmp_eq_u32 vcc, -1, v67')
        a.e(f's_cbranch_vccz {lo}')
        a.e('s_add_u32 s31, s31, 1')
        a.e('s_cmp_ge_u32 s31, 0xc0000')
        a.e(f's_cbranch_scc1 {lo}')
        loads(j,'sc1',False)
        a.e('s_waitcnt vmcnt(0)')
        a.e(f's_branch {lc}')
        a.label(lo)
        if j==0: stamp(a,6)
        for t in range(5):
            if j>0: a.e(f's_waitcnt lgkmcnt({4 if j<4 else 4-t})')
            for u in range(2):
                d=A2+(u*5+t)*4
                c=v(d,4) if j>0 else '0'
                a.e(f'v_mfma_f32_16x16x32_bf16 {v(d,4)}, {v(AA+4*t,4)}, {v(BB+8*j+4*u,4)}, {c}')
            if j<4: a.e(f'ds_read_b128 {v(AA+4*t,4)}, {v(vLA)} offset:{j*5120+t*1024}')

def fused_tail(a):
    spol=' '.join(x for x in ('sc0','sc1','nt') if 'k3st_'+x in FL)
    GP=108; X=118; A2=68; BB=4; AA=44; vXo=64; vXo2=65; vLA=66; vT=3
    R=BUF
    a.e('s_and_b32 s24, s22, 1')
    a.e('s_add_u32 s24, s23, s24')
    a.e('s_lshl_b32 s27, s17, 6'); a.e('s_lshl_b32 s28, s24, 4'); a.e('s_add_u32 s27, s27, s28')
    a.e('s_mul_i32 s27, s27, 1280'); a.e('s_mul_i32 s28, s18, 160'); a.e('s_add_u32 s26, s27, s28')
    a.e('s_mov_b32 s12, s36'); a.e('s_mov_b32 s13, s37'); a.e('s_mov_b32 s14, 2621440'); a.e('s_mov_b32 s15, 0x00020000')
    a.e('s_cmp_ge_u32 s22, 2')
    a.e('s_cbranch_scc1 FFN_NOG')
    a.e(f's_mul_i32 s27, s24, {3*5120}')
    a.e(f'v_add_u32 {v(vT)}, s27, {v(vA0)}')
    for k in range(3):
        for t in range(5): a.e(f'ds_read_b128 {v(R+20*k+4*t,4)}, {v(vT)} offset:{(k*5+t)*1024}')
    a.e('s_cmp_eq_u32 s22, 0')
    a.e('s_cbranch_scc1 FFN_OWN0')
    for i in range(20): a.e(f'v_mov_b32 {v(ACC+i)}, {v(ACC+20+i)}')
    a.label('FFN_OWN0')
    G=ACC; E=ACC+20
    a.e('s_waitcnt lgkmcnt(10)')
    for i in range(20): a.e(f'v_add_f32 {v(G+i)}, {v(G+i)}, {v(R+i)}')
    a.e('s_waitcnt lgkmcnt(5)')
    for i in range(20): a.e(f'v_add_f32 {v(G+i)}, {v(G+i)}, {v(R+20+i)}')
    a.e('s_waitcnt lgkmcnt(0)')
    for i in range(20): a.e(f'v_add_f32 {v(G+i)}, {v(G+i)}, {v(R+40+i)}')
    for i in range(20): a.e(f'v_mul_f32 {v(E+i)}, 0xbfb8aa3b, {v(G+i)}')
    for i in range(20): a.e(f'v_exp_f32 {v(E+i)}, {v(E+i)}')
    for i in range(20): a.e(f'v_add_f32 {v(E+i)}, 1.0, {v(E+i)}')
    for i in range(20): a.e(f'v_rcp_f32 {v(E+i)}, {v(E+i)}')
    for i in range(20): a.e(f'v_mul_f32 {v(G+i)}, {v(G+i)}, {v(E+i)}')
    assert GP==E
    for i in range(10): a.e(f'v_cvt_pk_bf16_f32 {v(GP+i)}, {v(G+2*i)}, {v(G+2*i+1)}')
    lane_off(a,vXo,vXo2,vT)
    a.e(f'buffer_load_dwordx4 {v(X,4)}, {v(vXo)}, s[12:15], s26 offen')
    a.e(f'buffer_load_dwordx4 {v(X+4,4)}, {v(vXo)}, s[12:15], s26 offen offset:64')
    a.e(f'buffer_load_dwordx2 {v(X+8,2)}, {v(vXo2)}, s[12:15], s26 offen')
    a.label('FFN_NOG')
    lane_off(a,vXo,vXo2,vT)
    if 'can' in FL:
        tail_can(a,AA,BB,A2,vLA,vXo2,vT)
    else:
        a.e('s_mul_i32 s27, s18, 348160')
        a.e(f's_mul_i32 s28, s22, {5*5120}')
        a.e('s_add_u32 s27, s27, s28')
        a.e(f's_add_u32 s27, s27, {WIMG+48*5120}')
        a.e('s_add_u32 s4, s34, s27'); a.e('s_addc_u32 s5, s35, 0'); a.e(f's_mov_b32 s6, {5*5120}')
        for t in range(4): a.e(f'buffer_load_dwordx4 {v(AA+4*t,4)}, {v(vA0)}, s[4:7], 0 offen offset:{t*1024}')
        a.e(f'buffer_load_dwordx4 {v(AA+16,4)}, {v(vA1)}, s[4:7], 0 offen')
        a.e('s_mul_i32 s27, s22, 20480')
        a.e(f'v_add_u32 {v(vLA)}, s27, {v(vA0)}')
        a.e('s_mul_i32 s28, s19, 10240')
        a.e('s_add_u32 s27, s27, s28')
        a.e('s_add_u32 s28, s28, 5120')
        a.e('s_barrier')
        for i in range(10):
            a.e('s_mov_b32 m0, s27')
            a.e('s_add_u32 s27, s27, 1024')
            a.e(f'buffer_load_dwordx4 {v(vA0)}, s[4:7], s28 offen lds')
            a.e('s_add_u32 s28, s28, 1024')
        a.e('s_lshl_b32 s28, s17, 1'); a.e('s_add_u32 s28, s28, s19')
        a.e('s_mul_i32 s28, s28, 40960')
        a.e(f's_mul_i32 s29, s22, {5*2048}')
        a.e('s_add_u32 s28, s28, s29')
        a.e(f's_add_u32 s28, s28, {OIMG}')
        a.e('s_add_u32 s8, s34, s28'); a.e('s_addc_u32 s9, s35, 0'); a.e(f's_mov_b32 s10, {5*2048}')
        exch_addr(a,1,vT)
        a.e('s_waitcnt vmcnt(0)')
        stamp(a,3)
        a.e('s_mov_b32 s31, 0')
        a.e('s_cmp_eq_u32 s16, 0')
        a.e('s_cbranch_scc0 FFN_GO')
        a.e(f's_add_u32 s40, s34, {FLAGS}'); a.e('s_addc_u32 s41, s35, 0'); a.e(f's_mov_b32 s42, {FLAGS_BYTES}'); a.e('s_mov_b32 s43, 0x00020000')
        a.e('s_lshl_b32 s29, s17, 8')
        a.e(f'v_lshrrev_b32 {v(BB)}, 2, {v(vA0)}')
        a.label('FFN_POLL')
        a.e(f'buffer_load_dword {v(BB+1)}, {v(BB)}, s[40:43], s29 offen sc1')
        a.e('s_add_u32 s31, s31, 1')
        a.e('s_waitcnt vmcnt(0)')
        a.e(f'v_cmp_ne_u32 vcc, 1, {v(BB+1)}')
        a.e('s_cbranch_vccz FFN_GO')
        a.e('s_cmp_lt_u32 s31, 0x40000')
        a.e('s_cbranch_scc1 FFN_POLL')
        a.label('FFN_GO')
        a.e('s_barrier')
        stamp(a,5)
        for j in range(5):
            for u in range(2):
                off=j*2048+u*256
                a.e(f'buffer_load_dwordx4 {v(BB+8*j+4*u,4)}, {v(vB0)}, s[8:11], {"0" if off<4096 else "s29"} offen offset:{off%4096} {"" if "opl" in FL else "sc1"}')
            if j==1: a.e('s_movk_i32 s29, 4096')
            if j==3: a.e('s_movk_i32 s29, 8192')
        for j in range(5):
            a.e(f's_waitcnt vmcnt({2*(4-j)})')
            if 'sent' in FL:
                lc=a.newlabel('oc'); lo=a.newlabel('oo'); b=BB+8*j
                a.label(lc)
                a.e(f'v_max3_u32 v67, {v(b)}, {v(b+1)}, {v(b+2)}')
                a.e(f'v_max3_u32 v67, v67, {v(b+3)}, {v(b+4)}')
                a.e(f'v_max3_u32 v67, v67, {v(b+5)}, {v(b+6)}')
                a.e(f'v_max_u32 v67, v67, {v(b+7)}')
                a.e('v_cmp_eq_u32 vcc, -1, v67')
                a.e(f's_cbranch_vccz {lo}')
                a.e('s_add_u32 s31, s31, 1')
                a.e('s_cmp_ge_u32 s31, 0x80000')
                a.e(f's_cbranch_scc1 {lo}')
                a.e(f's_movk_i32 s30, {(j*2048)&~4095}')
                for u in range(2):
                    off=j*2048+u*256
                    a.e(f'buffer_load_dwordx4 {v(b+4*u,4)}, {v(vB0)}, s[8:11], s30 offen offset:{off%4096} sc1')
                a.e('s_waitcnt vmcnt(0)')
                a.e(f's_branch {lc}')
                a.label(lo)
            if j==0: stamp(a,6)
            for t in range(5):
                if j>0: a.e(f's_waitcnt lgkmcnt({4 if j<4 else 4-t})')
                for u in range(2):
                    d=A2+(u*5+t)*4
                    c=v(d,4) if j>0 else '0'
                    a.e(f'v_mfma_f32_16x16x32_bf16 {v(d,4)}, {v(AA+4*t,4)}, {v(BB+8*j+4*u,4)}, {c}')
                if j<4: a.e(f'ds_read_b128 {v(AA+4*t,4)}, {v(vLA)} offset:{j*5120+t*1024}')
    a.e('s_barrier')
    stamp(a,7)
    a.e('s_nop 7')
    for u,r in ((0,1),(1,vT)):
        l=a.newlabel('fy')
        a.e(f's_cmp_eq_u32 s22, {u}')
        a.e(f's_cbranch_scc1 {l}')
        for t in range(5): a.e(f'ds_write_b128 {v(r)}, {v(A2+(u*5+t)*4,4)} offset:{t*1024}')
        a.label(l)
    a.e('s_waitcnt lgkmcnt(0)')
    a.e('s_barrier')
    a.e('s_cmp_ge_u32 s22, 2')
    a.e('s_cbranch_scc1 FFN_TAIL')
    a.e(f's_mul_i32 s27, s24, {3*5120}')
    a.e(f'v_add_u32 {v(vT)}, s27, {v(vA0)}')
    for k in range(3):
        for t in range(5): a.e(f'ds_read_b128 {v(R+20*k+4*t,4)}, {v(vT)} offset:{(k*5+t)*1024}')
    a.e('s_cmp_eq_u32 s22, 0')
    a.e('s_cbranch_scc1 FFN_OWN1')
    for i in range(20): a.e(f'v_mov_b32 {v(A2+i)}, {v(A2+20+i)}')
    a.label('FFN_OWN1')
    S=A2; W=A2+20
    a.e('s_mov_b32 s12, s38'); a.e('s_mov_b32 s13, s39'); a.e('s_mov_b32 s14, 2621440'); a.e('s_mov_b32 s15, 0x00020000')
    a.e('s_waitcnt lgkmcnt(10)')
    for i in range(20): a.e(f'v_add_f32 {v(S+i)}, {v(S+i)}, {v(R+i)}')
    a.e('s_waitcnt lgkmcnt(5)')
    for i in range(20): a.e(f'v_add_f32 {v(S+i)}, {v(S+i)}, {v(R+20+i)}')
    for i in range(10):
        a.e(f'v_lshlrev_b32 {v(W+2*i)}, 16, {v(GP+i)}')
        a.e(f'v_and_b32 {v(W+2*i+1)}, 0xffff0000, {v(GP+i)}')
        a.e(f'v_lshlrev_b32 {v(R+2*i)}, 16, {v(X+i)}')
        a.e(f'v_and_b32 {v(R+2*i+1)}, 0xffff0000, {v(X+i)}')
    a.e('s_waitcnt lgkmcnt(0)')
    for i in range(20): a.e(f'v_add_f32 {v(S+i)}, {v(S+i)}, {v(R+40+i)}')
    if 'can' in FL: lane_off(a,vXo,vXo2,vT)
    for i in range(20): a.e(f'v_fma_f32 {v(S+i)}, {v(S+i)}, {v(W+i)}, {v(R+i)}')
    for i in range(10): a.e(f'v_cvt_pk_bf16_f32 {v(W+i)}, {v(S+2*i)}, {v(S+2*i+1)}')
    a.e(f'buffer_store_dwordx4 {v(W,4)}, {v(vXo)}, s[12:15], s26 offen {spol}')
    a.e(f'buffer_store_dwordx4 {v(W+4,4)}, {v(vXo)}, s[12:15], s26 offen offset:64 {spol}')
    a.e(f'buffer_store_dwordx2 {v(W+8,2)}, {v(vXo2)}, s[12:15], s26 offen {spol}')
    a.e('s_waitcnt vmcnt(0)')
    stamp(a,4)
    stamp_store(a,8,34,'s16',8,1*1024*1024-256*8*128)
    a.e('s_endpgm')
    a.label('FFN_TAIL')
    stamp(a,4)
    stamp_store(a,8,34,'s16',8,1*1024*1024-256*8*128)
    a.e('s_endpgm')
```

```python
from asmlib import *
from layouts import QIMG,KIMG,VIMG,HIMG,WIMG,WIMG_BYTES,FLAGS,FLAGS_BYTES,OIMG
from stamps import stamp, stamp_store, stampc
import stamps
XS=16384; WBASE=49152; WP=20544
CS=WBASE+5*WP
CSP=CS+1280
NM=CSP+2560
RR=NM+512
ST2=RR+512
LDS=ST2+1024
SP=LDS
def lds_size(): return LDS+(5120 if 'wearly' in FL else 0)
WF=4
XF=24
XA=40
WA=44
SEL=48
vT=58; vT2=59; vT3=60; vT4=61
CSA=64
ACC=96
NV=256
FL=set()
def acc(i,t): return ACC+(i*5+t)*16
def mfma(d,a_,b_):
    if 'm16' in FL:
        return f'v_mfma_f32_16x16x32_bf16 {v(d,4)}, {v(a_,4)}, {v(b_,4)}, {v(d,4)}\n    v_mfma_f32_16x16x32_bf16 {v(d+4,4)}, {v(a_,4)}, {v(b_,4)}, {v(d+4,4)}'
    return f'v_mfma_f32_32x32x16_bf16 {v(d,16)}, {v(a_,4)}, {v(b_,4)}, {v(d,16)}'

def wread(a,var,jl,t):
    if var=='ffn':
        reg=WA+2*jl; pitch=320; off=32*t
    else:
        reg=WA+2*jl+(t%2); pitch=640; off=64*t
    for p in range(2):
        a.e(f'ds_read_b64_tr_b16 {v(WF+4*t+2*p,2)}, {v(reg)} offset:{off+4*p*pitch}')
def xread(a,buf,j):
    for i in range(2):
        a.e(f'ds_read_b128 {v(XF+buf*8+i*4,4)}, {v(XA+j)} offset:{i*4096}')

def kstep(a,var,k):
    jl=k%2; xb=k%2
    a.c(f'kstep {k}')
    A=[[] for _ in range(5)]
    if jl==1 and 'nobar' not in FL: A[0].append('BAR')
    A[1]+=[f'ds_read_b128 {v(XF+(1-xb)*8+i*4,4)}, {v(XA+(k+1)%4)} offset:{i*4096}' for i in range(2)]
    regs=[WA+2*jl] if var=='ffn' else [WA+2*jl,WA+2*jl+1]
    A[2]+=[f'v_add_u32 {v(r)}, s22, {v(r)}' for r in regs]
    xs={1:[0,1],2:[2],3:[3]}.get(k,[])
    A[3]+=[f'v_add_u32 {v(XA+j)}, s24, {v(XA+j)}' for j in xs]
    if jl==1:
        A[3]+=['s_add_u32 s23, s23, 1','s_cmp_eq_u32 s23, 5']
        A[4]+=['s_cselect_b32 s22, s45, s44','s_cselect_b32 s23, 0, s23']
    if k==0:
        A[0]+=['s_add_u32 s25, s25, 1','s_cmp_eq_u32 s25, 3']
        A[0]+=['s_cselect_b32 s24, s47, s46']
        A[4]+=['s_cmp_eq_u32 s25, 3','s_cselect_b32 s25, 0, s25']
    if k==2:
        A[4]=['s_add_u32 s26, s26, 1']+A[4]
    if k==1 and 'ppf' in FL:
        A[1]+=['s_cmp_le_u32 s26, %d'%PPF_LAST(),'s_cselect_b32 s6, s6, 0']
        A[2]+=['buffer_load_dword v95, v94, s[4:7], 0 offen']
        A[3]=['v_add_u32 v94, s28, v94']+A[3]
    if k==3:
        A[4]+=['s_cmp_lt_u32 s26, 10']
    for t in range(5):
        n=8 if t<2 else 10
        a.e(f's_waitcnt lgkmcnt({n})')
        if 'nocs' not in FL and ((jl==0 and t%2==0) or (jl==1 and t%2==1)):
            a.e(f'v_mfma_f32_16x16x32_bf16 {v(CSA+4*t,4)}, {v(SEL,4)}, {v(WF+4*t,4)}, {v(CSA+4*t,4)}')
        for i in range(2):
            X=XF+xb*8+i*4
            if var=='v': a.e(mfma(acc(i,t),X,WF+4*t))
            else:        a.e(mfma(acc(i,t),WF+4*t,X))
            if i==0:
                for f in A[t]:
                    a.e('s_barrier' if f=='BAR' else f)
        wread(a,var,1-jl,t)

def stats(a,i,P,Pc=None,mode='qk'):
    a.e(f'v_mul_f32 {v(P)}, 0x3acccccd, {v(P)}')
    a.e(f'v_mul_f32 {v(P+1)}, 0x3acccccd, {v(P+1)}')
    a.e(f'v_fma_f32 {v(P+1)}, -{v(P)}, {v(P)}, {v(P+1)}')
    a.e(f'v_max_f32 {v(P+1)}, 0, {v(P+1)}')
    a.e(f'v_cvt_pk_bf16_f32 {v(P)}, {v(P)}, {v(P+1)}')
    a.e(f'v_and_b32 {v(P+1)}, 0xffff0000, {v(P)}')
    a.e(f'v_lshlrev_b32 {v(P)}, 16, {v(P)}')
    a.e(f'v_add_f32 {v(P+1)}, 0x3727c5ac, {v(P+1)}')
    a.e(f'v_cvt_pk_bf16_f32 {v(P+1)}, {v(P+1)}, {v(P+1)}')
    a.e(f'v_and_b32 {v(P+1)}, 0xffff0000, {v(P+1)}')
    a.e(f'v_sqrt_f32 {v(P+1)}, {v(P+1)}')
    a.e(f'v_xor_b32 {v(P)}, 0x80000000, {v(P)}')
    a.e(f'v_cvt_pk_bf16_f32 {v(P+1)}, {v(P+1)}, {v(P+1)}')
    a.e(f'v_and_b32 {v(P+1)}, 0xffff0000, {v(P+1)}')
    a.e(f'v_rcp_f32 {v(P+1)}, {v(P+1)}')
    a.e('s_nop 0')

def pkfma(d,x,y,z,bx=None,by=None,bz=None):
    sel=[0 if b is None else b for b in (bx,by,bz)]
    hi=[1 if b is None else b for b in (bx,by,bz)]
    return f'v_pk_fma_f32 {v(d,2)}, {v(x,2)}, {v(y,2)}, {v(z,2)} op_sel:[{sel[0]},{sel[1]},{sel[2]}] op_sel_hi:[{hi[0]},{hi[1]},{hi[2]}]'
def pkmul(d,x,y,bx=None,by=None):
    sel=[0 if b is None else b for b in (bx,by)]
    hi=[1 if b is None else b for b in (bx,by)]
    return f'v_pk_mul_f32 {v(d,2)}, {v(x,2)}, {v(y,2)} op_sel:[{sel[0]},{sel[1]}] op_sel_hi:[{hi[0]},{hi[1]}]'

def PPF_N():
    for n in (1,2,3,4,5):
        if f'ppf{n}' in FL: return n
    return 3
def PPF_LAST():
    return 8-PPF_N()
def ppf_setup(a,var):
    a.e('s_lshr_b32 s29, s2, 3'); a.e('s_and_b32 s29, s29, 7')
    if var=='ffn':
        L,mul,pitch,nw=3,21846,3072,2
        a.e('s_sub_u32 s31, s18, 6'); a.e('s_mul_i32 s31, s31, 320'); a.e('s_min_u32 s31, s31, 2752'); a.e('s_andn2_b32 s31, s31, 127')
        a.e('s_cmp_eq_u32 s16, 0'); a.e('s_cselect_b32 s4, s40, s42'); a.e('s_cselect_b32 s5, s41, s43')
    else:
        L,mul,pitch,nw=5,13108,3840,1
        a.e('s_mul_i32 s31, s18, 640')
        a.e('s_mov_b32 s4, s38'); a.e('s_mov_b32 s5, s39')
    a.e(f's_add_u32 s29, s29, 64')
    a.e(f'v_mul_u32_u24 v92, {mul}, v0')
    a.e('v_lshrrev_b32 v92, 16, v92')
    a.e(f'v_mul_u32_u24 v93, {L}, v92')
    a.e('v_sub_u32 v93, v0, v93')
    a.e('v_lshlrev_b32 v92, 3, v92')
    a.e('v_add_u32 v92, s29, v92')
    a.e(f'v_mul_u32_u24 v92, {pitch}, v92')
    a.e('v_lshlrev_b32 v93, 7, v93')
    a.e('v_add_u32 v92, v92, v93')
    a.e('v_add_u32 v92, s31, v92')
    a.e('v_bfrev_b32 v93, 1')
    a.e(f'v_cmp_gt_u32 vcc, {8*L}, v0')
    a.e('v_cndmask_b32 v94, v93, v92, vcc')
    a.e(f's_mov_b32 s28, {64*pitch}')
    a.e(f's_cmp_lt_u32 s16, {nw}'); a.e(f's_cselect_b32 s6, {640*pitch}, 0')
    a.e('s_mov_b32 s7, 0x00020000')
    a.e('s_cmp_eq_u32 s16, 2')
    a.e(f's_cbranch_scc0 K1_PPF_{var}')
    a.e('s_lshr_b32 s29, s2, 6'); a.e('s_lshl_b32 s29, s29, 5'); a.e('s_lshl_b32 s31, s17, 7'); a.e('s_add_u32 s29, s29, s31')
    a.e('v_add_u32 v92, s29, v0')
    a.e('v_mul_u32_u24 v92, 1280, v92')
    a.e('v_add_u32 v92, 256, v92')
    a.e('v_cmp_gt_u32 vcc, 32, v0')
    a.e('v_cndmask_b32 v94, v93, v92, vcc')
    a.e('s_mov_b32 s4, s36'); a.e('s_mov_b32 s5, s37'); a.e('s_mov_b32 s6, 2621440'); a.e('s_mov_b32 s28, 128')
    a.label(f'K1_PPF_{var}')
    for j in range(PPF_PRE()):
        a.e('buffer_load_dword v95, v94, s[4:7], 0 offen')
        a.e('v_add_u32 v94, s28, v94')
def PPF_PRE():
    for n in (0,1,2,3,4):
        if f'pre{n}' in FL: return n
    return PPF_N()

def main_loop(a,var):
    L=f'K1_{var.upper()}'
    if 'ppf' in FL: ppf_setup(a,var)
    a.e('s_barrier')
    stamp(a,1); stampc(a,8)
    if 'ppf' in FL:
        for j in range(PPF_N()-PPF_PRE()):
            a.e('buffer_load_dword v95, v94, s[4:7], 0 offen')
            a.e('v_add_u32 v94, s28, v94')
    wread(a,var,0,0)
    xread(a,0,0)
    for t in range(1,5): wread(a,var,0,t)
    a.e('s_mov_b32 s26, 0')
    a.e('s_mov_b32 s22, s44'); a.e('s_mov_b32 s23, 1')
    a.label(f'{L}_LOOP')
    for k in range(4): kstep(a,var,k)
    if stamps.STAMP:
        a.e('s_cmp_eq_u32 s26, 1')
        a.e(f's_cbranch_scc0 {L}_NS')
        stamp(a,7)
        a.label(f'{L}_NS')
        a.e('s_cmp_lt_u32 s26, 10')
    a.e(f's_cbranch_scc1 {L}_LOOP')
    stamp(a,2); stampc(a,9)
    step,r1=(64,640) if var=='ffn' else (128,64)
    a.e('s_nop 7')
    a.e('s_mov_b64 exec, 0xffff')
    for t in range(5):
        a.e(f'ds_write_b32 v62, {v(CSA+4*t)} offset:{t*step}')
        a.e(f'ds_write_b32 v62, {v(CSA+4*t+1)} offset:{t*step+r1}')
    a.e('s_mov_b64 exec, -1')
    a.e('s_waitcnt lgkmcnt(0)')
    stamp(a,5)
    a.e('s_barrier')
    if var!='v':
        a.e('ds_read_b64 v[64:65], v63 offset:0')
        a.e('ds_read_b64 v[66:67], v63 offset:256')
    a.e('s_barrier')
    stamp(a,6)

def k1_kernel(a,name):
    pol=' '.join(x for x in ('sc0','sc1','nt') if 'st_'+x in FL)
    if 'nost' in FL or pol:
        E0=a.e
        def e2(x):
            if x.startswith('buffer_store'):
                if 'nost' in FL: return
                x=x+' '+pol
            E0(x)
        a.e=e2
    a.lines.append(kernel_header(name))
    a.e('s_cmp_ge_u32 s2, 256')
    a.e('s_cbranch_scc1 K1_END')
    a.e('s_load_dwordx2 s[34:35], s[0:1], 72')
    a.e('s_load_dwordx2 s[36:37], s[0:1], 0')
    a.e('s_load_dwordx2 s[38:39], s[0:1], 8')
    a.e('s_load_dwordx4 s[40:43], s[0:1], 32')
    if 'wimg' in FL:
        a.e('s_load_dwordx2 s[50:51], s[0:1], 16')
        a.e('s_load_dwordx2 s[52:53], s[0:1], 48')
    stamp(a,0)
    a.e(f'v_lshrrev_b32 {v(vT)}, 6, v0')
    a.e('v_and_b32 v0, 63, v0')
    a.e(f'v_readfirstlane_b32 s16, {v(vT)}')
    a.e('s_and_b32 s27, s2, 7')
    a.e('s_lshr_b32 s29, s2, 3')
    a.e('s_and_b32 s17, s27, 1')
    a.e('s_lshl_b32 s17, s17, 3')
    a.e('s_and_b32 s30, s29, 7')
    a.e('s_add_u32 s17, s17, s30')
    a.e('s_lshr_b32 s18, s27, 1')
    a.e('s_lshl_b32 s18, s18, 2')
    a.e('s_lshr_b32 s30, s29, 3')
    a.e('s_add_u32 s18, s18, s30')
    if 'mix' in FL:
        perm=[0,1,6,7,2,3,8,9,4,10,11,12,5,13,14,15]
        lo=sum(perm[i]<<(4*i) for i in range(8)); hi=sum(perm[8+i]<<(4*i) for i in range(8))
        a.e(f's_mov_b32 s30, {lo}'); a.e(f's_mov_b32 s31, {hi}')
        a.e('s_lshl_b32 s18, s18, 2')
        a.e('s_lshr_b64 s[30:31], s[30:31], s18')
        a.e('s_and_b32 s18, s30, 15')
    a.e('s_cmp_ge_u32 s16, 4')
    a.e('s_cbranch_scc1 K1_LOADER')
    if 'sent' in FL:
        a.e('s_mul_i32 s27, s2, 10240')
        a.e(f's_add_u32 s27, s27, {OIMG}')
        a.e('v_lshlrev_b32 v59, 4, v0')
        for k in range(4): a.e(f'v_mov_b32 v{60+k}, -1')
        a.e('s_lshl_b32 s28, s16, 10')
        a.e('s_waitcnt lgkmcnt(0)')
        a.e('s_add_u32 s4, s34, s27'); a.e('s_addc_u32 s5, s35, 0'); a.e('s_mov_b32 s6, 10240'); a.e('s_mov_b32 s7, 0x00020000')
        a.e('buffer_store_dwordx4 v[60:63], v59, s[4:7], s28 offen')
        a.e('s_add_u32 s28, s28, 4096')
        a.e('buffer_store_dwordx4 v[60:63], v59, s[4:7], s28 offen')
        a.e('s_add_u32 s28, s28, 4096')
        a.e('buffer_store_dwordx4 v[60:63], v59, s[4:7], s28 offen')
        a.e('s_nop 3')
    if 'pf' in FL:
        pol=' '.join(x for x in ('sc0','sc1','nt') if 'pf_'+x in FL)
        a.e('s_lshr_b32 s27, s2, 6')
        a.e('s_lshr_b32 s29, s2, 3'); a.e('s_and_b32 s29, s29, 7')
        a.e('s_lshl_b32 s30, s17, 7'); a.e('s_lshl_b32 s27, s27, 5'); a.e('s_add_u32 s30, s30, s27')
        a.e('v_and_b32 v52, 31, v0')
        a.e('v_add_u32 v52, s30, v52')
        a.e('v_mul_u32_u24 v52, 1280, v52')
        a.e('v_lshrrev_b32 v53, 5, v0')
        a.e('v_lshlrev_b32 v53, 7, v53')
        a.e('v_add_u32 v52, v52, v53')
        a.e('s_lshl_b32 s30, s16, 8')
        a.e('s_cmp_ge_u32 s18, 6')
        a.e('s_cbranch_scc1 K1_PF_FFN')
        a.e('s_lshl_b32 s27, s16, 6')
        for q in range(2):
            a.e(f'v_add_u32 v53, s27, v0')
            if q==1: a.e('v_add_u32 v53, 256, v53')
            a.e(f'v_mul_u32_u24 v54, 13108, v53')
            a.e('v_lshrrev_b32 v54, 16, v54')
            a.e('v_mul_u32_u24 v55, 5, v54')
            a.e('v_sub_u32 v55, v53, v55')
            a.e('v_lshlrev_b32 v54, 3, v54')
            a.e('v_add_u32 v54, s29, v54')
            a.e('v_mul_u32_u24 v54, 3840, v54')
            a.e('v_lshlrev_b32 v55, 7, v55')
            a.e(f'v_add_u32 v{55+q+1}, v54, v55')
        a.e('s_mul_i32 s31, s18, 640')
        a.e('s_waitcnt lgkmcnt(0)')
        a.e('s_mov_b32 s4, s38'); a.e('s_mov_b32 s5, s39'); a.e(f's_mov_b32 s6, {640*3840}')
        a.e('s_branch K1_PF_GO')
        a.label('K1_PF_FFN')
        a.e('s_and_b32 s27, s16, 1')
        a.e('s_lshl_b32 s27, s27, 6')
        for q in range(2):
            a.e(f'v_add_u32 v53, s27, v0')
            if q==1: a.e('v_add_u32 v53, 128, v53')
            a.e(f'v_mul_u32_u24 v54, 21846, v53')
            a.e('v_lshrrev_b32 v54, 16, v54')
            a.e('v_mul_u32_u24 v55, 3, v54')
            a.e('v_sub_u32 v55, v53, v55')
            a.e('v_lshlrev_b32 v54, 3, v54')
            a.e('v_add_u32 v54, s29, v54')
            a.e('v_mul_u32_u24 v54, 3072, v54')
            a.e('v_lshlrev_b32 v55, 7, v55')
            a.e(f'v_add_u32 v{55+q+1}, v54, v55')
        a.e('s_sub_u32 s31, s18, 6')
        a.e('s_mul_i32 s31, s31, 320')
        a.e('s_min_u32 s31, s31, 2752')
        a.e('s_andn2_b32 s31, s31, 127')
        a.e('s_waitcnt lgkmcnt(0)')
        a.e('s_cmp_lt_u32 s16, 2')
        a.e('s_cselect_b32 s4, s40, s42')
        a.e('s_cselect_b32 s5, s41, s43')
        a.e(f's_mov_b32 s6, {640*3072}')
        a.label('K1_PF_GO')
        a.e('s_mov_b32 s7, 0x00020000')
        a.e('s_mov_b32 s8, s36'); a.e('s_mov_b32 s9, s37'); a.e('s_mov_b32 s10, 2621440'); a.e('s_mov_b32 s11, 0x00020000')
        a.e(f'buffer_load_dword v95, v56, s[4:7], s31 offen {pol}')
        a.e(f'buffer_load_dword v95, v52, s[8:11], s30 offen {pol}')
        a.e(f'buffer_load_dword v95, v57, s[4:7], s31 offen {pol}')
        a.e('s_cmp_eq_u32 s16, 0')
        a.e('s_cbranch_scc0 K1_PF_END')
        a.e(f'buffer_load_dword v95, v52, s[8:11], 0 offen offset:1024 {pol}')
        a.label('K1_PF_END')
    if 'cp3' in FL: a.e('s_setprio 3')
    a.e('s_lshr_b32 s19, s16, 1')
    a.e('s_and_b32 s20, s16, 1')
    a.e('s_xor_b32 s21, s19, s20')
    a.e(f's_mov_b32 s44, {WP}'); a.e(f's_mov_b32 s45, {(-4*WP)&0xffffffff}'); a.e(f's_mov_b32 s46, {XS}'); a.e(f's_mov_b32 s47, {(-2*XS)&0xffffffff}')
    a.e(f'v_and_b32 {v(vT)}, 31, v0')
    a.e(f'v_lshrrev_b32 {v(vT2)}, 5, v0')
    a.e(f'v_bfe_u32 {v(vT3)}, v0, 1, 3')
    a.e(f'v_lshlrev_b32 {v(vT4)}, 7, {v(vT)}')
    a.e('s_lshl_b32 s27, s19, 13')
    a.e(f'v_add_u32 {v(vT4)}, s27, {v(vT4)}')
    for kk in range(4):
        a.e(f's_xor_b32 s27, s21, {kk%2}')
        a.e(f's_add_u32 s27, s27, {2*(kk//2)}')
        a.e('s_lshl_b32 s27, s27, 1')
        a.e(f'v_add_u32 {v(XA+kk)}, s27, {v(vT2)}')
        a.e(f'v_xor_b32 {v(XA+kk)}, {v(XA+kk)}, {v(vT3)}')
        a.e(f'v_lshlrev_b32 {v(XA+kk)}, 4, {v(XA+kk)}')
        a.e(f'v_add_u32 {v(XA+kk)}, {v(XA+kk)}, {v(vT4)}')
    a.e('s_lshl_b32 s27, s19, 9')
    a.e(f's_add_u32 s27, s27, {ST2}')
    a.e(f'v_lshlrev_b32 v63, 3, {v(vT)}')
    a.e('v_add_u32 v63, s27, v63')
    for k in range(20): a.e(f'v_mov_b32 {v(CSA+k)}, 0')
    a.e(f'v_and_b32 {v(vT2)}, 15, v0')
    a.e(f'v_bfe_u32 {v(vT3)}, v0, 4, 1')
    a.e(f'v_cmp_eq_u32 vcc, {v(vT2)}, {v(vT3)}')
    a.e(f'v_mov_b32 {v(vT2)}, 0')
    a.e(f'v_mov_b32 {v(vT3)}, 0x3f803f80')
    for k in range(4): a.e(f'v_cndmask_b32 {v(SEL+k)}, {v(vT2)}, {v(vT3)}, vcc')
    a.e('s_mov_b32 s25, 0')
    vH=84; vCh=85; vR=86; vC4=87; vRow=88
    a.e(f'v_lshrrev_b32 {v(vH)}, 5, v0')
    a.e(f'v_bfe_u32 {v(vCh)}, v0, 4, 1')
    a.e(f'v_bfe_u32 {v(vR)}, v0, 2, 2')
    a.e(f'v_and_b32 {v(vC4)}, 3, v0')
    a.e(f'v_lshlrev_b32 {v(vRow)}, 3, {v(vH)}')
    a.e(f'v_add_u32 {v(vRow)}, {v(vRow)}, {v(vR)}')
    a.e('s_cmp_ge_u32 s18, 6')
    a.e('s_cbranch_scc1 K1_FFN_SETUP')
    a.e(f'v_mul_u32_u24 {v(vT2)}, 640, {v(vRow)}')
    a.e(f'v_lshlrev_b32 {v(vT3)}, 5, {v(vCh)}')
    a.e(f'v_add_u32 {v(vT2)}, {v(vT2)}, {v(vT3)}')
    a.e(f'v_lshlrev_b32 {v(vT3)}, 3, {v(vC4)}')
    a.e(f'v_add_u32 {v(vT2)}, {v(vT2)}, {v(vT3)}')
    a.e('s_mul_i32 s27, s20, 320')
    a.e(f's_add_u32 s27, s27, {WBASE}')
    a.e(f'v_add_u32 {v(vT2)}, s27, {v(vT2)}')
    a.e(f'v_lshrrev_b32 {v(vT3)}, 1, {v(vR)}')
    a.e(f'v_lshlrev_b32 {v(vT3)}, 6, {v(vT3)}')
    a.e(f'v_sub_u32 {v(vT4)}, 0, {v(vT3)}')
    a.e('s_cmp_eq_u32 s20, 0')
    a.e('s_cselect_b64 vcc, -1, 0')
    a.e(f'v_cndmask_b32 v89, {v(vT4)}, {v(vT3)}, vcc')
    a.e(f'v_cndmask_b32 v90, {v(vT3)}, {v(vT4)}, vcc')
    for jl in range(2):
        a.e(f's_xor_b32 s27, s21, {jl}')
        a.e(f's_mul_i32 s27, s27, {16*640}')
        a.e(f'v_add_u32 {v(vT3)}, s27, {v(vT2)}')
        a.e(f'v_add_u32 {v(WA+2*jl)}, {v(vT3)}, v89')
        a.e(f'v_add_u32 {v(WA+2*jl+1)}, {v(vT3)}, v90')
    a.e('s_mul_i32 s27, s20, 640')
    a.e('s_mul_i32 s29, s19, 1280')
    a.e('s_add_u32 s27, s27, s29')
    a.e(f's_add_u32 s27, s27, {CSP}')
    a.e(f'v_and_b32 v62, 15, v0')
    a.e(f'v_lshlrev_b32 v62, 2, v62')
    a.e('v_add_u32 v62, s27, v62')
    for k in range(160): a.e(f'v_mov_b32 {v(ACC+k)}, 0')
    a.e('s_waitcnt lgkmcnt(0)')
    a.e('s_cmp_ge_u32 s18, 4')
    a.e('s_cbranch_scc1 K1_V_START')
    main_loop(a,'qk')
    a.e(f'v_lshrrev_b32 {v(vT)}, 5, v0')
    a.e(f'v_lshlrev_b32 {v(vT)}, 4, {v(vT)}')
    a.e('s_mul_i32 s27, s20, 640')
    a.e(f's_add_u32 s27, s27, {CS}')
    a.e(f'v_add_u32 {v(vT)}, s27, {v(vT)}')
    CQ=[4,20]
    for b in range(4): a.e(f'ds_read_b128 {v(CQ[0]+4*b,4)}, {v(vT)} offset:{b*32}')
    a.e('s_cmp_lt_u32 s18, 2')
    a.e(f's_cselect_b32 s27, {QIMG}, {KIMG}')
    a.e('s_add_u32 s4, s34, s27')
    a.e('s_addc_u32 s5, s35, 0')
    a.e('s_mov_b32 s6, 2621440')
    a.e('s_mov_b32 s7, 0x00020000')
    a.e('s_cmp_lt_u32 s18, 2')
    a.e('s_cselect_b32 s29, 0x3ea52b5c, 0x3f800000')
    a.e('s_and_b32 s27, s18, 1')
    a.e('s_lshl_b32 s27, s27, 4')
    a.e('s_lshl_b32 s30, s20, 3')
    a.e('s_add_u32 s27, s27, s30')
    a.e('s_mul_i32 s30, s27, 81920')
    a.e('s_lshl_b32 s31, s17, 2')
    a.e('s_lshl_b32 s27, s19, 1')
    a.e('s_add_u32 s31, s31, s27')
    a.e('s_mul_i32 s31, s31, 1280')
    a.e('s_add_u32 s30, s30, s31')
    vL16=71; vR8=72
    a.e(f'v_lshlrev_b32 {v(vL16)}, 4, v0')
    a.e(f'v_and_b32 {v(vR8)}, 31, v0')
    a.e(f'v_lshlrev_b32 {v(vR8)}, 3, {v(vR8)}')
    a.e(f'v_lshrrev_b32 {v(vT2)}, 5, v0')
    a.e(f'v_mul_u32_u24 {v(vT2)}, 81920, {v(vT2)}')
    a.e(f'v_add_u32 {v(vR8)}, {v(vR8)}, {v(vT2)}')
    a.e(f'v_add_u32 {v(vR8)}, 1024, {v(vR8)}')
    a.e('s_waitcnt lgkmcnt(4)')
    for i in range(2):
        a.e(f'v_mul_f32 {v(65+2*i)}, s29, {v(65+2*i)}')
    TMP=76
    for t in range(5):
        if t<4:
            for b in range(4): a.e(f'ds_read_b128 {v(CQ[(t+1)%2]+4*b,4)}, {v(vT)} offset:{(t+1)*128+b*32}')
            a.e('s_waitcnt lgkmcnt(4)')
        else:
            a.e('s_waitcnt lgkmcnt(0)')
        for b in range(4):
            j=4*t+b; m=j//5; jj=j%5
            dst={0:0,1:2,2:4,3:8,4:10}[jj]+20*m
            for i in range(2):
                A=acc(i,0)+4*j; P=64+2*i; C=CQ[t%2]+4*b; T_=TMP+4*i
                a.e(pkfma(T_,C,P,A,None,0,None))
                a.e(pkfma(T_+2,C+2,P,A+2,None,0,None))
                a.e(pkmul(T_,T_,P,None,1))
                a.e(pkmul(T_+2,T_+2,P,None,1))
            for i in range(2):
                T_=TMP+4*i; D=acc(i,0)+dst
                a.e(f'v_cvt_pk_bf16_f32 {v(D)}, {v(T_)}, {v(T_+1)}')
                a.e(f'v_cvt_pk_bf16_f32 {v(D+1)}, {v(T_+2)}, {v(T_+3)}')
            if jj==4:
                for i in range(2):
                    B=acc(i,0)+20*m
                    a.e(f's_add_u32 s27, s30, {2*m*81920+i*1280}')
                    a.e(f's_add_u32 s31, s27, 81920')
                    a.e(f'buffer_store_dwordx4 {v(B,4)}, {v(vL16)}, s[4:7], s27 offen')
                    a.e(f'buffer_store_dwordx4 {v(B+8,4)}, {v(vL16)}, s[4:7], s31 offen')
                    a.e(f'buffer_store_dwordx2 {v(B+4,2)}, {v(vR8)}, s[4:7], s27 offen')
    a.e('s_branch K1_DONE')
    a.label('K1_V_START')
    main_loop(a,'v')
    CB=76
    a.e('s_mul_i32 s27, s20, 640')
    a.e(f's_add_u32 s27, s27, {CS}')
    a.e(f'v_and_b32 v62, 31, v0')
    a.e(f'v_lshlrev_b32 v62, 2, v62')
    a.e('v_add_u32 v62, s27, v62')
    for t in range(5): a.e(f'ds_read_b32 {v(CB+2*t)}, v62 offset:{t*128}')
    a.e(f'v_lshrrev_b32 {v(vT2)}, 5, v0')
    a.e(f'v_lshlrev_b32 {v(vT2)}, 4, {v(vT2)}')
    a.e('s_lshl_b32 s27, s19, 8')
    a.e(f's_add_u32 s27, s27, {NM}')
    a.e(f'v_add_u32 {v(vT2)}, s27, {v(vT2)}')
    a.e(f's_add_u32 s4, s34, {VIMG}')
    a.e('s_addc_u32 s5, s35, 0')
    a.e('s_mov_b32 s6, 2621440')
    a.e('s_mov_b32 s7, 0x00020000')
    a.e('s_sub_u32 s27, s18, 4')
    a.e(f's_mul_i32 s30, s27, {16*81920}')
    a.e('s_lshl_b32 s31, s17, 2')
    a.e('s_lshl_b32 s27, s19, 1')
    a.e('s_add_u32 s31, s31, s27')
    a.e('s_mul_i32 s31, s31, 1280')
    a.e('s_add_u32 s30, s30, s31')
    VO=86
    a.e(f'v_and_b32 {v(vT3)}, 31, v0')
    a.e('s_mul_i32 s27, s20, 160')
    a.e(f'v_add_u32 {v(vT3)}, s27, {v(vT3)}')
    a.e(f'v_lshrrev_b32 {v(vT4)}, 5, v0')
    a.e(f'v_mul_u32_u24 {v(vT4)}, 320, {v(vT4)}')
    for t in range(5):
        a.e(f'v_add_u32 v91, {32*t}, {v(vT3)}')
        a.e(f'v_mul_u32_u24 v92, 3277, v91')
        a.e(f'v_lshrrev_b32 v92, 16, v92')
        a.e(f'v_mul_u32_u24 v93, 20, v92')
        a.e(f'v_sub_u32 v91, v91, v93')
        a.e(f'v_lshlrev_b32 v91, 4, v91')
        a.e(f'v_add_u32 v91, v91, {v(vT4)}')
        a.e(f's_mov_b32 s27, 81920')
        a.e(f'v_mul_lo_u32 v92, v92, s27')
        a.e(f'v_add_u32 {v(VO+t)}, v91, v92')
    qN=4; qR=20; TMP=36
    for i in range(2):
        a.e('s_waitcnt lgkmcnt(0)')
        for b in range(4):
            a.e(f'ds_read_b128 {v(qN+4*b,4)}, {v(vT2)} offset:{i*128+b*32}')
            a.e(f'ds_read_b128 {v(qR+4*b,4)}, {v(vT2)} offset:{512+i*128+b*32}')
        a.e(f's_add_u32 s27, s30, {i*1280}')
        a.e('s_waitcnt lgkmcnt(0)')
        for t in range(5):
            A=acc(i,t)
            for j in range(2):
                for q in range(4):
                    r_=8*j+2*q
                    a.e(pkfma(TMP+2*q,qN+r_,CB+2*t,A+r_,None,0,None))
                for q in range(4):
                    r_=8*j+2*q
                    a.e(pkmul(TMP+2*q,TMP+2*q,qR+r_))
                for q in range(4):
                    a.e(f'v_cvt_pk_bf16_f32 {v(A+8*j+q)}, {v(TMP+2*q)}, {v(TMP+2*q+1)}')
                a.e(f'buffer_store_dwordx4 {v(A+8*j,4)}, {v(VO+t)}, s[4:7], s27 offen offset:{j*640}')
    a.e('s_branch K1_DONE')
    a.label('K1_FFN_SETUP')
    a.e(f'v_mul_u32_u24 {v(vT2)}, 320, {v(vRow)}')
    a.e(f'v_mul_u32_u24 {v(vT3)}, 10272, {v(vCh)}')
    a.e(f'v_add_u32 {v(vT2)}, {v(vT2)}, {v(vT3)}')
    a.e(f'v_lshlrev_b32 {v(vT3)}, 3, {v(vC4)}')
    a.e(f'v_add_u32 {v(vT2)}, {v(vT2)}, {v(vT3)}')
    a.e('s_mul_i32 s27, s20, 160')
    a.e(f's_add_u32 s27, s27, {WBASE}')
    a.e(f'v_add_u32 {v(vT2)}, s27, {v(vT2)}')
    for jl in range(2):
        a.e(f's_xor_b32 s27, s21, {jl}')
        a.e(f's_mul_i32 s27, s27, {16*320}')
        a.e(f'v_add_u32 {v(WA+2*jl)}, s27, {v(vT2)}')
    a.e(f'v_and_b32 v62, 15, v0')
    a.e('v_lshlrev_b32 v62, 2, v62')
    a.e('s_mul_i32 s27, s20, 320')
    a.e('s_mul_i32 s29, s19, 1280')
    a.e('s_add_u32 s27, s27, s29')
    a.e(f's_add_u32 s27, s27, {CSP}')
    a.e('v_add_u32 v62, s27, v62')
    for k in range(160): a.e(f'v_mov_b32 {v(ACC+k)}, 0')
    a.e('s_waitcnt lgkmcnt(0)')
    main_loop(a,'ffn')
    a.e(f'v_lshrrev_b32 {v(vT)}, 5, v0')
    a.e(f'v_lshlrev_b32 {v(vT)}, 4, {v(vT)}')
    a.e('s_mul_i32 s27, s20, 320')
    a.e(f's_add_u32 s27, s27, {CS}')
    a.e(f'v_add_u32 {v(vT)}, s27, {v(vT)}')
    CQ=[4,20]
    def csread(t):
        C=CQ[t%2]
        for b in range(2):
            a.e(f'ds_read_b128 {v(C+4*b,4)}, {v(vT)} offset:{t*64+b*32}')
            a.e(f'ds_read_b128 {v(C+8+4*b,4)}, {v(vT)} offset:{640+t*64+b*32}')
    csread(0)
    a.e(f's_add_u32 s4, s34, {HIMG}')
    a.e('s_addc_u32 s5, s35, 0')
    a.e('s_cmp_eq_u32 s18, 15'); a.e('s_cselect_b32 s27, 1, 0')
    a.e('s_cmp_eq_u32 s20, 0'); a.e('s_cselect_b32 s27, s27, 0')
    a.e('s_cmp_eq_u32 s27, 1'); a.e('s_cselect_b32 s6, 0, 6291456')
    a.e('s_mov_b32 s7, 0x00020000')
    a.e('s_sub_u32 s27, s18, 6')
    a.e('s_mul_i32 s27, s27, 10')
    a.e('s_min_u32 s27, s27, 86')
    a.e('s_mul_i32 s30, s20, 5')
    a.e('s_add_u32 s27, s27, s30')
    a.e('s_lshl_b32 s30, s27, 10')
    a.e('s_lshl_b32 s31, s17, 2')
    a.e('s_lshl_b32 s27, s19, 1')
    a.e('s_add_u32 s31, s31, s27')
    a.e('s_mul_i32 s31, s31, 98304')
    a.e('s_add_u32 s30, s30, s31')
    vL16=71
    a.e(f'v_lshlrev_b32 {v(vL16)}, 4, v0')
    a.e('s_waitcnt lgkmcnt(4)')
    for i in range(2):
        P=64+2*i
        a.e(f'v_mul_f32 {v(72+2*i)}, {v(P+1)}, {v(P+1)}')
        a.e(f'v_rcp_f32 {v(72+2*i)}, {v(72+2*i)}')
        a.e(f'v_mul_f32 {v(P+1)}, 0xbfb8aa3b, {v(P+1)}')
    E=76
    for t in range(5):
        if t<4:
            csread(t+1); a.e('s_waitcnt lgkmcnt(4)')
        else: a.e('s_waitcnt lgkmcnt(0)')
        C=CQ[t%2]
        for i in range(2):
            A=acc(i,t); P=64+2*i
            for q in range(4): a.e(pkfma(A+2*q,C+2*q,P,A+2*q,None,0,None))
        for i in range(2):
            A=acc(i,t); P=64+2*i
            for q in range(4): a.e(pkmul(E+8*i+2*q,A+2*q,P,None,1))
        for i in range(2):
            A=acc(i,t); P=64+2*i
            for q in range(4):
                a.e(f'v_exp_f32 {v(E+8*i+2*q)}, {v(E+8*i+2*q)}')
                a.e(f'v_exp_f32 {v(E+8*i+2*q+1)}, {v(E+8*i+2*q+1)}')
                a.e(pkfma(A+8+2*q,C+8+2*q,P,A+8+2*q,None,0,None))
        for i in range(2):
            A=acc(i,t); I=72+2*i
            for q in range(4):
                a.e(pkfma(E+8*i+2*q,E+8*i+2*q,I,I,None,0,0))
                a.e(pkmul(A+2*q,A+2*q,A+8+2*q))
        for i in range(2):
            for q in range(8): a.e(f'v_rcp_f32 {v(E+8*i+q)}, {v(E+8*i+q)}')
        for i in range(2):
            A=acc(i,t)
            for q in range(4): a.e(pkmul(A+2*q,A+2*q,E+8*i+2*q))
        if t==4: a.e('s_mov_b32 s6, 6291456')
        for i in range(2):
            A=acc(i,t)
            for q in range(4): a.e(f'v_cvt_pk_bf16_f32 {v(A+8+q)}, {v(A+2*q)}, {v(A+2*q+1)}')
            a.e(f's_add_u32 s27, s30, {i*98304+t*1024}')
            a.e(f'buffer_store_dwordx4 {v(A+8,4)}, {v(vL16)}, s[4:7], s27 offen')
    a.label('K1_DONE')
    stamp(a,3)
    a.e('s_waitcnt vmcnt(0)')
    stamp(a,4)
    stamp_store(a,10,34,'s16',8,3*1024*1024)
    a.e('s_endpgm')
    a.label('K1_LOADER')
    a.e('s_sub_u32 s19, s16, 4')
    if 'lp0' not in FL: a.e('s_setprio 3')
    if 'lst' in FL: stamp(a,5)
    vX=4; vW=8
    a.e(f'v_lshrrev_b32 {v(vT)}, 3, v0')
    a.e(f'v_and_b32 {v(vT2)}, 7, v0')
    a.e(f'v_lshrrev_b32 {v(vT3)}, 4, v0')
    a.e('s_lshl_b32 s27, s17, 7')
    a.e('s_lshl_b32 s29, s19, 5')
    a.e('s_add_u32 s27, s27, s29')
    a.e(f'v_xor_b32 {v(vT4)}, {v(vT3)}, {v(vT2)}')
    a.e(f'v_lshlrev_b32 {v(vT4)}, 4, {v(vT4)}')
    a.e(f'v_add_u32 {v(vX)}, s27, {v(vT)}')
    a.e(f'v_mul_u32_u24 {v(vX)}, 1280, {v(vX)}')
    a.e(f'v_xor_b32 {v(vT3)}, 64, {v(vT4)}')
    a.e(f'v_add_u32 {v(vX+1)}, {v(vX)}, {v(vT3)}')
    a.e(f'v_add_u32 {v(vX)}, {v(vX)}, {v(vT4)}')
    a.e(f'v_add_u32 {v(vX+1)}, 10240, {v(vX+1)}')
    a.e(f'v_add_u32 {v(vX+2)}, 20480, {v(vX)}')
    a.e(f'v_add_u32 {v(vX+3)}, 20480, {v(vX+1)}')
    if 'lst' in FL: stamp(a,6)
    a.e('s_waitcnt lgkmcnt(0)')
    a.e('s_mov_b32 s8, s36'); a.e('s_mov_b32 s9, s37'); a.e('s_mov_b32 s10, 2621440'); a.e('s_mov_b32 s11, 0x00020000')
    a.e('s_lshl_b32 s21, s19, 12')
    a.e('s_mov_b32 s25, 0'); a.e('s_mov_b32 s26, s21')
    a.e(f's_add_u32 s30, s21, {3*XS}')
    def issueX(pro=False):
        for i in range(4):
            if 'nodma' in FL and not pro: break
            a.e(f's_add_u32 m0, s26, {i*1024}')
            a.e('s_nop 0')
            a.e(f'buffer_load_dwordx4 {v(vX+i)}, s[8:11], s25 offen lds')
        a.e('s_add_u32 s25, s25, 128')
        a.e(f's_add_u32 s26, s26, {XS}')
        a.e('s_cmp_eq_u32 s26, s30')
        a.e('s_cselect_b32 s26, s21, s26')
    issueX(True)
    if 'lst' in FL: stamp(a,4)
    a.e('s_cmp_ge_u32 s18, 6')
    a.e('s_cbranch_scc1 K1_LD_FFN')
    a.e('s_mul_i32 s27, s19, 320')
    for p in range(5):
        a.e(f's_add_u32 s29, s27, {64*p}')
        a.e(f'v_add_u32 {v(vT)}, s29, v0')
        a.e(f'v_mul_u32_u24 {v(vT2)}, 1639, {v(vT)}')
        a.e(f'v_lshrrev_b32 {v(vT2)}, 16, {v(vT2)}')
        a.e(f'v_mul_u32_u24 {v(vT3)}, 40, {v(vT2)}')
        a.e(f'v_sub_u32 {v(vT)}, {v(vT)}, {v(vT3)}')
        a.e(f'v_bfe_u32 {v(vT3)}, {v(vT2)}, 1, 1')
        a.e(f'v_lshlrev_b32 {v(vT3)}, 2, {v(vT3)}')
        a.e(f'v_xor_b32 {v(vT)}, {v(vT)}, {v(vT3)}')
        a.e(f'v_lshlrev_b32 {v(vT)}, 4, {v(vT)}')
        a.e(f'v_mul_u32_u24 {v(vT2)}, 3840, {v(vT2)}')
        a.e(f'v_add_u32 {v(vW+p)}, {v(vT)}, {v(vT2)}')
    a.e('s_mul_i32 s29, s18, 640')
    for p in range(5): a.e(f'v_add_u32 {v(vW+p)}, s29, {v(vW+p)}')
    a.e('s_waitcnt lgkmcnt(0)')
    a.e('s_mov_b32 s4, s38'); a.e('s_mov_b32 s5, s39'); a.e(f's_mov_b32 s6, {640*3840}')
    a.e(f's_mov_b32 s22, {32*3840}')
    a.e('s_mul_i32 s20, s19, 5120')
    a.e('s_branch K1_LD_GO')
    a.label('K1_LD_FFN')
    a.e('s_and_b32 s27, s19, 1')
    a.e('s_lshl_b32 s27, s27, 4')
    a.e('s_sub_u32 s29, s18, 6')
    a.e('s_mul_i32 s29, s29, 320')
    a.e('s_min_u32 s29, s29, 2752')
    for p in range(5):
        a.e(f'v_add_u32 {v(vT)}, {64*p}, v0')
        a.e(f'v_mul_u32_u24 {v(vT2)}, 3277, {v(vT)}')
        a.e(f'v_lshrrev_b32 {v(vT2)}, 16, {v(vT2)}')
        a.e(f'v_mul_u32_u24 {v(vT3)}, 20, {v(vT2)}')
        a.e(f'v_sub_u32 {v(vT)}, {v(vT)}, {v(vT3)}')
        a.e(f'v_lshlrev_b32 {v(vT)}, 4, {v(vT)}')
        a.e(f'v_add_u32 {v(vT2)}, s27, {v(vT2)}')
        a.e(f'v_mul_u32_u24 {v(vT2)}, 3072, {v(vT2)}')
        a.e(f'v_add_u32 {v(vW+p)}, {v(vT)}, {v(vT2)}')
        a.e(f'v_add_u32 {v(vW+p)}, s29, {v(vW+p)}')
    a.e('s_waitcnt lgkmcnt(0)')
    a.e('s_cmp_lt_u32 s19, 2')
    a.e('s_cselect_b32 s4, s40, s42')
    a.e('s_cselect_b32 s5, s41, s43')
    a.e(f's_mov_b32 s6, {640*3072}')
    a.e(f's_mov_b32 s22, {32*3072}')
    a.e('s_mul_i32 s20, s19, 5120')
    a.e('s_lshr_b32 s27, s19, 1')
    a.e('s_lshl_b32 s27, s27, 5')
    a.e('s_add_u32 s20, s20, s27')
    a.label('K1_LD_GO')
    if 'lst' in FL: stamp(a,7)
    a.e('s_mov_b32 s7, 0x00020000')
    a.e(f's_add_u32 s20, s20, {WBASE}')
    a.e('s_mov_b32 s23, 0'); a.e('s_mov_b32 s24, s20')
    a.e(f's_add_u32 s29, s20, {5*WP}')
    def issueW(pro=False):
        for p in range(5):
            if 'nodma' in FL and not pro: break
            a.e(f's_add_u32 m0, s24, {p*1024}')
            a.e('s_nop 0')
            a.e(f'buffer_load_dwordx4 {v(vW+p)}, s[4:7], s23 offen lds')
        a.e('s_add_u32 s23, s23, s22')
        a.e(f's_add_u32 s24, s24, {WP}')
        a.e('s_cmp_eq_u32 s24, s29')
        a.e('s_cselect_b32 s24, s20, s24')
    issueW(True); issueW(True); issueX(True)
    stamp(a,1)
    if 'lp0' in FL or 'lp30' in FL: a.e('s_setprio 0')
    vU=50
    if 'wimg' in FL:
        a.e('s_lshl_b32 s27, s2, 1'); a.e('s_add_u32 s27, s27, s19')
        a.e('s_add_u32 s28, s2, 512')
        a.e('s_cmp_eq_u32 s19, 2'); a.e('s_cselect_b32 s27, s28, s27')
        a.e('s_cmp_lt_u32 s27, 544'); a.e('s_cselect_b32 s33, 1, 0')
        a.e('s_cmp_eq_u32 s19, 3'); a.e('s_cselect_b32 s33, 0, s33')
        a.e('s_and_b32 s32, s27, 7')
        a.e('s_lshr_b32 s27, s27, 3')
        a.e('s_mul_i32 s54, s32, 68'); a.e('s_add_u32 s54, s54, s27'); a.e('s_mul_i32 s54, s54, 5120')
        a.e('s_mul_i32 s32, s32, 160')
        a.e('s_lshl_b32 s28, s27, 5'); a.e('s_mov_b32 s55, 16'); a.e('s_mov_b32 s48, 8'); a.e('s_mov_b32 s49, 4')
        a.e('s_mov_b32 s12, s52'); a.e('s_mov_b32 s13, s53'); a.e(f's_mov_b32 s14, {1536*1280}')
        a.e('s_cmp_lt_u32 s27, 48'); a.e('s_cbranch_scc1 K1_WI_SET')
        a.e('s_mov_b32 s12, s50'); a.e('s_mov_b32 s13, s51'); a.e(f's_mov_b32 s14, {640*1280}')
        a.e('s_sub_u32 s27, s27, 48')
        a.e('s_mul_i32 s28, s27, 40'); a.e('s_mov_b32 s55, 20')
        a.e('s_cmp_lt_u32 s27, 16'); a.e('s_cbranch_scc1 K1_WI_SET')
        a.e('s_sub_u32 s27, s27, 16')
        a.e('s_mul_i32 s28, s27, 160'); a.e('s_add_u32 s28, s28, 16')
        a.e('s_mov_b32 s55, 80'); a.e('s_mov_b32 s48, 20'); a.e('s_mov_b32 s49, 40')
        a.label('K1_WI_SET')
        a.e('s_mov_b32 s15, 0x00020000')
        a.e('s_cmp_eq_u32 s33, 0'); a.e('s_cselect_b32 s14, 0, s14')
        for p in range(5):
            a.e(f'v_add_u32 v56, {64*p}, v0')
            a.e('v_mul_u32_u24 v57, 6554, v56')
            a.e('v_lshrrev_b32 v57, 16, v57')
            a.e('v_mul_u32_u24 v58, 10, v57')
            a.e('v_sub_u32 v56, v56, v58')
            a.e('v_lshlrev_b32 v56, 4, v56')
            a.e('v_add_u32 v56, s32, v56')
            a.e('v_lshrrev_b32 v58, 4, v57')
            a.e('v_mul_u32_u24 v58, s55, v58')
            a.e('v_bfe_u32 v59, v57, 3, 1')
            a.e('v_mul_u32_u24 v59, s48, v59')
            a.e('v_add_u32 v58, v58, v59')
            a.e('v_bfe_u32 v59, v57, 2, 1')
            a.e('v_mul_u32_u24 v59, s49, v59')
            a.e('v_add_u32 v58, v58, v59')
            a.e('v_and_b32 v59, 3, v57')
            a.e('v_add_u32 v58, v58, v59')
            a.e('v_add_u32 v58, s28, v58')
            a.e('v_mul_u32_u24 v58, 1280, v58')
            a.e(f'v_add_u32 {v(vU+p)}, v56, v58')
        if 'wearly' in FL:
            a.e('v_lshrrev_b32 v56, 5, v0'); a.e('v_lshlrev_b32 v56, 4, v56')
            a.e('v_bfe_u32 v57, v0, 4, 1'); a.e('v_lshlrev_b32 v57, 2, v57'); a.e('v_add_u32 v56, v56, v57')
            a.e('v_bfe_u32 v57, v0, 2, 2'); a.e('v_add_u32 v56, v56, v57')
            a.e('v_mul_u32_u24 v56, 160, v56'); a.e(f'v_add_u32 v56, {SP}, v56')
            a.e('v_and_b32 v57, 3, v0'); a.e('v_lshlrev_b32 v58, 4, v57'); a.e('v_add_u32 v76, v56, v58')
            a.e('v_lshlrev_b32 v58, 3, v57'); a.e('v_add_u32 v77, v56, v58')
            a.e('v_lshlrev_b32 v78, 4, v0')
            a.e(f's_add_u32 s88, s34, {WIMG}'); a.e('s_addc_u32 s89, s35, 0')
            a.e('s_cmp_eq_u32 s33, 0'); a.e(f's_cselect_b32 s90, 0, {WIMG_BYTES}'); a.e('s_mov_b32 s91, 0x00020000')
    vSA=16
    D=20
    U=36
    sL,sH,qL,qH=40,41,42,43
    a.e(f'v_and_b32 {v(vT)}, 31, v0')
    a.e(f'v_lshrrev_b32 {v(vT2)}, 5, v0')
    a.e(f'v_lshlrev_b32 {v(vT2)}, 2, {v(vT2)}')
    a.e(f'v_bfe_u32 {v(vT3)}, v0, 1, 3')
    a.e(f'v_xor_b32 {v(vT2)}, {v(vT2)}, {v(vT3)}')
    a.e(f'v_lshlrev_b32 {v(vT2)}, 4, {v(vT2)}')
    a.e(f'v_lshlrev_b32 {v(vT3)}, 7, {v(vT)}')
    a.e(f'v_add_u32 {v(vT2)}, {v(vT2)}, {v(vT3)}')
    a.e(f'v_add_u32 {v(vSA)}, s21, {v(vT2)}')
    for i in range(1,4): a.e(f'v_xor_b32 {v(vSA+i)}, {16*i}, {v(vSA)}')
    for r in (sL,sH,qL,qH): a.e(f'v_mov_b32 {v(r)}, 0')
    if 'dot2' in FL: a.e('s_mov_b32 s56, 0x3f803f80')
    a.e(f's_mov_b32 s27, 0')
    a.e(f's_mov_b32 s46, {XS}'); a.e(f's_mov_b32 s47, {(-2*XS)&0xffffffff}')
    def st_read():
        if 'nostat' in FL: return
        for i in range(4): a.e(f'ds_read_b128 {v(D+4*i,4)}, {v(vSA+i)}')
        a.e('s_add_u32 s27, s27, 1')
        a.e('s_cmp_eq_u32 s27, 3')
        a.e('s_cselect_b32 s28, s47, s46')
        a.e('s_cselect_b32 s27, 0, s27')
        for i in range(4): a.e(f'v_add_u32 {v(vSA+i)}, s28, {v(vSA+i)}')
    def st_acc(half):
        if 'nostat' in FL: return
        a.e(f's_waitcnt lgkmcnt({2 if half==0 else 0})')
        if 'dot2' in FL:
            for d in range(8*half,8*half+8,2):
                a.e(f'v_dot2c_f32_bf16 {v(qL)}, {v(D+d)}, {v(D+d)}')
                a.e(f'v_dot2c_f32_bf16 {v(sL)}, s56, {v(D+d)}')
                a.e(f'v_dot2c_f32_bf16 {v(qH)}, {v(D+d+1)}, {v(D+d+1)}')
                a.e(f'v_dot2c_f32_bf16 {v(sH)}, s56, {v(D+d+1)}')
            return
        for d in range(8*half,8*half+8,2):
            a.e(f'v_lshlrev_b32 {v(U)}, 16, {v(D+d)}')
            a.e(f'v_and_b32 {v(U+1)}, 0xffff0000, {v(D+d)}')
            a.e(f'v_lshlrev_b32 {v(U+2)}, 16, {v(D+d+1)}')
            a.e(f'v_and_b32 {v(U+3)}, 0xffff0000, {v(D+d+1)}')
            a.e(f'v_add_f32 {v(sL)}, {v(sL)}, {v(U)}')
            a.e(f'v_add_f32 {v(sH)}, {v(sH)}, {v(U+1)}')
            a.e(f'v_fma_f32 {v(qL)}, {v(U)}, {v(U)}, {v(qL)}')
            a.e(f'v_fma_f32 {v(qH)}, {v(U+1)}, {v(U+1)}, {v(qH)}')
            a.e(f'v_add_f32 {v(sL)}, {v(sL)}, {v(U+2)}')
            a.e(f'v_add_f32 {v(sH)}, {v(sH)}, {v(U+3)}')
            a.e(f'v_fma_f32 {v(qL)}, {v(U+2)}, {v(U+2)}, {v(qL)}')
            a.e(f'v_fma_f32 {v(qH)}, {v(U+3)}, {v(U+3)}, {v(qH)}')
    bst=('bst' in FL)
    we=('wearly' in FL)
    def bs(i):
        if bst:
            (stampc if 'bstc' in FL else stamp)(a,i)
    def wave_only(w,fn):
        l=a.newlabel('K1_WO')
        a.e(f's_cmp_eq_u32 s19, {w}'); a.e(f's_cbranch_scc0 {l}')
        fn(); a.label(l)
    def unit_dma():
        for p in range(5):
            a.e(f's_mov_b32 m0, {SP+p*1024}')
            a.e('s_nop 0')
            a.e(f'buffer_load_dwordx4 {v(vU+p)}, s[12:15], 0 offen lds')
    def unit_tr():
        for t in range(5):
            reg,off=(76,[0,8,64,72][t]) if t<4 else (77,128)
            a.e(f'ds_read_b64_tr_b16 {v(56+4*t,2)}, {v(reg)} offset:{off}')
            a.e(f'ds_read_b64_tr_b16 {v(58+4*t,2)}, {v(reg)} offset:{off+1280}')
    def unit_store():
        a.e('s_waitcnt lgkmcnt(0)')
        for t in range(5):
            a.e(f's_add_u32 s28, s54, {t*1024}')
            a.e(f'buffer_store_dwordx4 {v(56+4*t,4)}, v78, s[88:91], s28 offen')
    U0={0:-1,1:4,2:9}; T0={0:2,1:7,2:12}; S0={0:3,1:8,2:13}
    WIDE={0:{0,1,4,5,6},1:{5,6,9,10,11},2:{10,11,14,15,16}}
    late=('wlate' in FL)
    if late:
        S0={}
        WIDE={0:{0,1,17,18,19},1:{5,6,17,18,19},2:{10,11,17,18,19}}
    def ldwait(s_,n):
        ws=[w for w in WIDE if s_ in WIDE[w]] if we else []
        if not ws:
            a.e(f's_waitcnt vmcnt({n})'); return
        l1=a.newlabel('K1_LW'); l2=a.newlabel('K1_LW')
        if len(ws)==1:
            a.e(f's_cmp_eq_u32 s19, {ws[0]}')
        elif len(ws)==3:
            a.e('s_cmp_lt_u32 s19, 3')
        else:
            assert ws[1]==ws[0]+1
            a.e(f's_sub_u32 s28, s19, {ws[0]}'); a.e('s_cmp_lt_u32 s28, 2')
        a.e(f's_cbranch_scc1 {l1}')
        a.e(f's_waitcnt vmcnt({n})'); a.e(f's_branch {l2}')
        a.label(l1); a.e(f's_waitcnt vmcnt({n+5})'); a.label(l2)
    def hook(tab,fn,s_):
        if we:
            for w in tab:
                if tab[w]==s_: wave_only(w,fn)
    pre=lambda s_: hook(U0,unit_dma,s_)
    mid=lambda s_: hook(T0,unit_tr,s_)
    post=lambda s_: hook(S0,unit_store,s_)
    pre(-1)
    ldwait(0,9); a.e('s_barrier'); bs(4); issueW(True); st_read(); st_acc(0)
    ldwait(1,9); a.e('s_barrier'); issueW(True); issueX(True); st_acc(1)
    ldwait(2,9); a.e('s_barrier'); bs(5); issueW(True); issueW(True); st_read(); st_acc(0); mid(2)
    ldwait(3,14); a.e('s_barrier'); issueW(True); issueX(True); st_acc(1); post(3)
    if bst or we:
        for it in range(2,8):
            ldwait(2*it,14); a.e('s_barrier'); bs(4+it); pre(2*it); issueW(); st_read(); st_acc(0); mid(2*it); post(2*it)
            ldwait(2*it+1,14); a.e('s_barrier'); pre(2*it+1); issueW(); issueX(); st_acc(1); mid(2*it+1); post(2*it+1)
    else:
        a.e('s_mov_b32 s31, 2')
        a.label('K1_LD_LOOP')
        a.e('s_waitcnt vmcnt(14)'); a.e('s_barrier'); issueW(); st_read(); st_acc(0)
        a.e('s_waitcnt vmcnt(14)'); a.e('s_barrier'); issueW(); issueX(); st_acc(1)
        a.e('s_add_u32 s31, s31, 1')
        a.e('s_cmp_lt_u32 s31, 8')
        a.e('s_cbranch_scc1 K1_LD_LOOP')
    ldwait(16,14); a.e('s_barrier'); bs(12); issueW(); st_read(); st_acc(0)
    if we and late:
        l=a.newlabel('K1_WS')
        a.e('s_cmp_lt_u32 s19, 3'); a.e(f's_cbranch_scc0 {l}')
        unit_store(); a.label(l)
    wi=5 if ('wimg' in FL and not we) else 0
    ldwait(17,14); a.e('s_barrier')
    if wi:
        for p in range(5):
            a.e(f's_add_u32 m0, s20, {p*1024}')
            a.e('s_nop 0')
            a.e(f'buffer_load_dwordx4 {v(vU+p)}, s[12:15], 0 offen lds')
    st_acc(1)
    ldwait(18,5+wi); a.e('s_barrier'); bs(13); st_read(); st_acc(0)
    ldwait(19,wi); a.e('s_barrier'); st_acc(1)
    a.e('s_barrier')
    stamp(a,2)
    P=44
    a.e(f'v_add_f32 {v(P)}, {v(sL)}, {v(sH)}')
    a.e(f'v_add_f32 {v(P+1)}, {v(qL)}, {v(qH)}')
    a.e(f'v_mov_b32 {v(U)}, {v(P)}')
    a.e(f'v_mov_b32 {v(U+1)}, {v(P+1)}')
    a.e('s_nop 1')
    a.e(f'v_permlane32_swap_b32 {v(U)}, {v(P)}')
    a.e(f'v_permlane32_swap_b32 {v(U+1)}, {v(P+1)}')
    a.e('s_nop 1')
    a.e(f'v_add_f32 {v(P)}, {v(U)}, {v(P)}')
    a.e(f'v_add_f32 {v(P+1)}, {v(U+1)}, {v(P+1)}')
    stats(a,0,P)
    a.e(f'v_and_b32 {v(vT)}, 31, v0')
    a.e('s_lshl_b32 s27, s19, 5')
    a.e(f'v_add_u32 {v(vT)}, s27, {v(vT)}')
    a.e(f'v_lshlrev_b32 {v(vT2)}, 2, {v(vT)}')
    a.e(f'v_lshlrev_b32 {v(vT3)}, 3, {v(vT)}')
    a.e('s_mov_b64 exec, 0xffffffff')
    a.e(f'ds_write_b32 {v(vT2)}, {v(P)} offset:{NM}' if NM<65536 else f'v_add_u32 {v(vT2)}, {NM}, {v(vT2)}')
    if NM>=65536:
        a.e(f'v_add_u32 {v(vT3)}, {ST2}, {v(vT3)}')
        a.e(f'ds_write_b32 {v(vT2)}, {v(P)}')
        a.e(f'ds_write_b32 {v(vT2)}, {v(P+1)} offset:512')
        a.e(f'ds_write_b64 {v(vT3)}, {v(P,2)}')
    a.e('s_mov_b64 exec, -1')
    a.e('s_lshl_b32 s27, s19, 6')
    a.e(f'v_add_u32 {v(vT)}, s27, v0')
    a.e(f'v_lshlrev_b32 {v(vT2)}, 3, {v(vT)}')
    a.e(f'v_add_u32 {v(vT2)}, {CS}, {v(vT2)}')
    a.e('s_waitcnt lgkmcnt(0)')
    stamp(a,3)
    a.e('s_barrier')
    a.e(f'v_cmp_gt_u32 vcc, 160, {v(vT)}')
    a.e('s_and_saveexec_b64 s[48:49], vcc')
    a.e(f'ds_read_b64 {v(D,2)}, {v(vT2)} offset:1280')
    a.e(f'ds_read_b64 {v(D+2,2)}, {v(vT2)} offset:2560')
    a.e('s_waitcnt lgkmcnt(0)')
    a.e(f'v_add_f32 {v(D)}, {v(D)}, {v(D+2)}')
    a.e(f'v_add_f32 {v(D+1)}, {v(D+1)}, {v(D+3)}')
    a.e(f'ds_write_b64 {v(vT2)}, {v(D,2)}')
    a.e('s_mov_b64 exec, -1')
    a.e('s_waitcnt lgkmcnt(0)')
    a.e('s_barrier')
    if 'wimg' in FL and 'wearly' not in FL:
        a.e('s_cmp_eq_u32 s33, 0')
        a.e('s_cbranch_scc1 K1_WI_END')
        a.e('v_lshrrev_b32 v56, 5, v0')
        a.e('v_lshlrev_b32 v56, 4, v56')
        a.e('v_bfe_u32 v57, v0, 4, 1')
        a.e('v_lshlrev_b32 v57, 2, v57')
        a.e('v_add_u32 v56, v56, v57')
        a.e('v_bfe_u32 v57, v0, 2, 2')
        a.e('v_add_u32 v56, v56, v57')
        a.e('v_mul_u32_u24 v56, 160, v56')
        a.e('v_add_u32 v56, s20, v56')
        a.e('v_and_b32 v57, 3, v0')
        a.e('v_lshlrev_b32 v58, 4, v57')
        a.e('v_add_u32 v54, v56, v58')
        a.e('v_lshlrev_b32 v58, 3, v57')
        a.e('v_add_u32 v55, v56, v58')
        a.e('v_lshlrev_b32 v53, 4, v0')
        a.e(f's_add_u32 s12, s34, {WIMG}'); a.e('s_addc_u32 s13, s35, 0'); a.e(f's_mov_b32 s14, {WIMG_BYTES}')
        a.e('s_waitcnt vmcnt(0)')
        for t in range(5):
            reg,off=(54,[0,8,64,72][t]) if t<4 else (55,128)
            a.e(f'ds_read_b64_tr_b16 {v(56+4*t,2)}, {v(reg)} offset:{off}')
            a.e(f'ds_read_b64_tr_b16 {v(58+4*t,2)}, {v(reg)} offset:{off+1280}')
        a.e('s_waitcnt lgkmcnt(0)')
        for t in range(5):
            a.e(f's_add_u32 s27, s54, {t*1024}')
            a.e(f'buffer_store_dwordx4 {v(56+4*t,4)}, v53, s[12:15], s27 offen')
        a.e('s_waitcnt vmcnt(0)')
        a.label('K1_WI_END')
    if 'fuse' in FL and ('can' not in FL or 'hl' in FL):
        a.e('s_cmp_eq_u32 s19, 3'); a.e('s_cbranch_scc0 K1_FL_END')
        a.e(f's_cmp_lt_u32 s2, {FLAGS_BYTES//1024}'); a.e('s_cbranch_scc0 K1_FL_END')
        a.e(f's_add_u32 s12, s34, {FLAGS}'); a.e('s_addc_u32 s13, s35, 0'); a.e(f's_mov_b32 s14, {FLAGS_BYTES}'); a.e('s_mov_b32 s15, 0x00020000')
        a.e('s_lshl_b32 s27, s2, 10')
        a.e('v_lshlrev_b32 v53, 4, v0')
        for k in range(4): a.e(f'v_mov_b32 v{56+k}, 0')
        a.e('buffer_store_dwordx4 v[56:59], v53, s[12:15], s27 offen')
        a.e('s_waitcnt vmcnt(0)')
        a.label('K1_FL_END')
    if 'wearly' in FL: a.e('s_waitcnt vmcnt(0)')
    if 'lst' not in FL and 'bst' not in FL:
        stamp(a,4); stamp(a,5); stamp(a,6); stamp(a,7)
    stamp_store(a,14 if 'bst' in FL else 8,34,'s16',8,3*1024*1024)
    a.label('K1_END')
    a.e('s_endpgm')
    return NV
```

```python
from asmlib import *
from layouts import QIMG,KIMG,VIMG,OIMG,FLAGS,FLAGS_BYTES
import gen_ffn2
NAME='att_kernel'
SLOT=20480
Q1=0+8
Q2=12
K1=16
K2=20
V0=24; V1=28
P0=32; P1=36
E=40
SA=48; SB=64
O=80
vKc=96; vK2c=97; vVc=98; vKn=99; vK2n=100; vVn=101
vL16=0
vT=1; vT2=2; vT3=3; vLaneK=4; vLaneK2=5; vLaneV=6; vMx=7
NV=102
M16=[False]
def mfma(d,a,b,c):
    cs = '0' if c is None else v(c,16)
    if M16[0]:
        if c is None or d in (SA,SB):
            o=0 if c is None else 8
            b=Q1
            return f'v_mfma_f32_16x16x32_bf16 {v(d+o,4)}, {v(a,4)}, {v(b,4)}, 0\n    v_mfma_f32_16x16x32_bf16 {v(d+o+4,4)}, {v(a,4)}, {v(b,4)}, 0'
        return f'v_mfma_f32_16x16x32_bf16 {v(d,4)}, {v(a,4)}, {v(b,4)}, {v(d,4)}\n    v_mfma_f32_16x16x32_bf16 {v(d+4,4)}, {v(a,4)}, {v(b,4)}, {v(d+4,4)}'
    return f'v_mfma_f32_32x32x16_bf16 {v(d,16)}, {v(a,4)}, {v(b,4)}, {cs}'

def emit_dma(a, soff_chunk, sslot):
    a.e(f's_add_u32 s30, s17, {soff_chunk}')
    a.e(f's_add_u32 m0, s20, {sslot}')
    a.e(f's_add_u32 s31, s18, {soff_chunk}')
    a.e(f'buffer_load_dwordx4 {v(vL16)}, s[4:7], s30 offen lds')
    a.e(f's_add_u32 m0, m0, 8192')
    a.e(f's_add_u32 s30, s19, {soff_chunk}')
    a.e(f'buffer_load_dwordx4 {v(vL16)}, s[4:7], s31 offen lds')
    l=a.newlabel('nodma3')
    a.e(f's_cmp_ge_u32 s16, 4')
    a.e(f's_cbranch_scc1 {l}')
    a.e(f's_add_u32 m0, m0, 8192')
    a.e('s_nop 0')
    a.e(f'buffer_load_dwordx4 {v(vL16)}, s[4:7], s30 offen lds')
    a.label(l)

def set_m_pieces(a, add):
    a.e(f'v_mov_b32 {v(vT)}, {v(vMx)}')
    a.e('s_nop 1')
    a.e(f'v_permlane32_swap_b32 {v(vT)}, {v(vMx)}')
    a.e('s_nop 1')
    a.e(f'v_max_f32 {v(vMx)}, {v(vT)}, {v(vMx)}')
    a.e(f'v_ceil_f32 {v(vMx)}, {v(vMx)}')
    a.e(f'v_mov_b32 {v(vT)}, {add}')
    a.e(f'v_add_f32 {v(vMx)}, {v(vT)}, {v(vMx)}')
    a.e(f'v_sub_f32 {v(vMx)}, 0, {v(vMx)}')
    a.e(f'v_and_b32 {v(vT)}, 0xffff0000, {v(vMx)}')
    a.e(f'v_sub_f32 {v(vT2)}, {v(vMx)}, {v(vT)}')
    a.e(f'v_and_b32 {v(vT3)}, 0xffff0000, {v(vT2)}')
    a.e(f'v_sub_f32 {v(vT2)}, {v(vT2)}, {v(vT3)}')
    a.e(f'v_lshrrev_b32 {v(vT)}, 16, {v(vT)}')
    a.e(f'v_or_b32 {v(vT)}, {v(vT)}, {v(vT3)}')
    a.e(f'v_lshrrev_b32 {v(vT2)}, 16, {v(vT2)}')
    a.e('s_mov_b64 exec, 0xffffffff')
    a.e(f'v_mov_b32 {v(Q2+2)}, {v(vT)}')
    a.e(f'v_mov_b32 {v(Q2+3)}, {v(vT2)}')
    a.e('s_mov_b64 exec, -1')

def max16(a, S, first):
    for i in range(0,16,2):
        if first and i==0:
            a.e(f'v_max_f32 {v(vMx)}, {v(S)}, {v(S+1)}')
        else:
            a.e(f'v_max3_f32 {v(vMx)}, {v(vMx)}, {v(S+i)}, {v(S+i+1)}')

FL=set()
def tile(a,i):
    S,N=(SA,SB) if i%2==0 else (SB,SA)
    def addr(kind,ti):
        cur={'k':vKc,'k2':vK2c,'v':vVc}[kind]; nxt={'k':vKn,'k2':vK2n,'v':vVn}[kind]
        return (cur,ti*1280) if ti<8 else (nxt,(ti-8)*1280)
    a.c(f'---- tile {i}')
    if i==6 and 'nodma' not in FL:
        a.e('s_waitcnt vmcnt(0)')
        a.e('s_barrier')
        l=a.newlabel('nodma')
        a.e('s_cmp_ge_u32 s24, 6')
        a.e(f's_cbranch_scc1 {l}')
        emit_dma(a,'s25','s26')
        a.label(l)
    if (i==6 and 'hint6' in FL) or (i==7 and 'hint7' in FL) or (i==5 and 'hint5' in FL):
        l=a.newlabel('hint')
        a.e('s_cmp_eq_u32 s24, 7')
        a.e(f's_cbranch_scc0 {l}')
        a.e('s_mov_b64 exec, 1')
        a.e('buffer_store_dword v102, off, s[40:43], s44 sc1')
        a.e('s_mov_b64 exec, -1')
        a.label(l)
    if 'nolds' in FL:
        E_=a.e
        class A2:
            def e(self,s):
                if s.startswith('ds_read') or s.startswith('s_waitcnt lgkm') or s.startswith('s_mov_b64 exec'): return
                E_(s)
        a=A2()
    ex=lambda dst,src: a.e(f'v_exp_f32 {v(dst)}, {v(src)}')
    cv=lambda dst,x: a.e(f'v_cvt_pk_bf16_f32 {v(dst)}, {v(x)}, {v(x+1)}')
    a.e('s_waitcnt lgkmcnt(3)')
    a.e(mfma(N,K1,Q1,None))
    r,o=addr('k',i+2); a.e(f'ds_read_b128 {v(K1,4)}, {v(r)} offset:{o}')
    cv(P1+2,E+4); cv(P1+3,E+6)
    for k in range(4): ex(E+k,S+k)
    a.e('s_waitcnt lgkmcnt(3)')
    a.e(mfma(N,K2,Q2,N))
    r,o=addr('k2',i+2); a.e(f'ds_read_b64 {v(K2,2)}, {v(r)} offset:{o}')
    for k in range(4): ex(E+4+k,S+4+k)
    cv(P0,E); cv(P0+1,E+2)
    a.e('s_waitcnt lgkmcnt(3)')
    a.e(mfma(O,V1,P1,O))
    cv(P0+2,E+4); cv(P0+3,E+6)
    for k in range(4): ex(E+k,S+8+k)
    a.e('s_waitcnt lgkmcnt(2)')
    a.e(mfma(O,V0,P0,O))
    if 'noexec' not in FL: a.e('s_mov_b64 exec, s[22:23]')
    r,o=addr('v',i);   a.e(f'ds_read_b128 {v(V1,4)}, {v(r)} offset:{o+640}')
    r,o=addr('v',i+1); a.e(f'ds_read_b128 {v(V0,4)}, {v(r)} offset:{o}')
    if 'noexec' not in FL: a.e('s_mov_b64 exec, -1')
    for k in range(4): ex(E+4+k,S+12+k)
    cv(P1,E); cv(P1+1,E+2)

from stamps import stamp, stamp_store, stampc
import stamps
def att_kernel(a, name=NAME):
    a.lines.append(kernel_header(name))
    a.e(f's_cmp_ge_u32 s2, {512 if ("dup" in FL or "ffn2" in FL) else 256}')
    a.e('s_cbranch_scc1 ATT_END')
    if 'dup' in FL: a.e('s_and_b32 s2, s2, 255')
    a.e('s_load_dwordx2 s[34:35], s[0:1], 72')
    if 'ffn2' in FL:
        a.e('s_cmp_ge_u32 s2, 256')
        a.e('s_cbranch_scc1 ATT_FFN2')
        if 'aprio' in FL: a.e('s_setprio 2')
    stamp(a,0)
    a.e(f'v_lshrrev_b32 {v(vT)}, 6, v0')
    a.e(f'v_and_b32 v0, 63, v0')
    a.e(f'v_readfirstlane_b32 s16, {v(vT)}')
    a.e('s_and_b32 s27, s2, 7')
    a.e('s_lshr_b32 s28, s2, 3')
    a.e('s_and_b32 s29, s28, 0x18')
    a.e('s_add_u32 s27, s27, s29')
    a.e('s_and_b32 s28, s28, 7')
    a.e('s_lshl_b32 s28, s28, 3')
    a.e('s_add_u32 s28, s28, s16')
    a.e('s_mul_i32 s29, s27, 81920')
    a.e(f'v_and_b32 {v(vT)}, 31, v0')
    a.e(f'v_lshrrev_b32 {v(vT2)}, 5, v0')
    a.e(f'v_lshlrev_b32 {v(vLaneK2)}, 3, {v(vT)}')
    a.e(f'v_add_u32 {v(vLaneK2)}, 1024, {v(vLaneK2)}')
    a.e(f'v_mul_u32_u24 {v(vLaneV)}, 320, {v(vT2)}')
    a.e(f'v_lshlrev_b32 {v(vT)}, 4, {v(vT)}')
    a.e(f'v_add_u32 {v(vLaneV)}, {v(vLaneV)}, {v(vT)}')
    a.e(f'v_lshlrev_b32 {v(vL16)}, 4, v0')
    a.e('s_lshl_b32 s20, s16, 10')
    a.e('s_mov_b32 s17, s20')
    a.e(f's_add_u32 s18, s20, 8192')
    a.e(f's_add_u32 s19, s20, {VIMG-KIMG-2048}')
    a.e('s_cmp_lt_u32 s16, 2')
    a.e('s_cselect_b32 s18, s18, s19')
    a.e(f's_add_u32 s19, s20, {VIMG-KIMG+6144}')
    a.e('s_mov_b32 s22, 0x000fffff')
    a.e('s_mov_b32 s23, 0x000fffff')
    a.e('s_waitcnt lgkmcnt(0)')
    a.e(f's_add_u32 s4, s34, {KIMG}')
    a.e('s_addc_u32 s5, s35, 0')
    a.e('s_add_u32 s4, s4, s29')
    a.e('s_addc_u32 s5, s5, 0')
    a.e(f's_sub_u32 s6, {VIMG+2621440-KIMG}, s29')
    a.e('s_mov_b32 s7, 0x00020000')
    a.e(f's_add_u32 s8, s34, {QIMG}')
    a.e('s_addc_u32 s9, s35, 0')
    a.e('s_mov_b32 s10, 2621440')
    a.e('s_mov_b32 s11, 0x00020000')
    a.e(f's_add_u32 s12, s34, {OIMG}')
    a.e('s_addc_u32 s13, s35, 0')
    a.e('s_mov_b32 s14, 2621440')
    a.e('s_mov_b32 s15, 0x00020000')
    if 'sent' in FL and 'can' not in FL:
        a.e(f's_add_u32 s40, s34, {FLAGS}'); a.e('s_addc_u32 s41, s35, 0'); a.e(f's_mov_b32 s42, {FLAGS_BYTES}'); a.e('s_mov_b32 s43, 0x00020000')
        a.e('s_lshl_b32 s44, s28, 5'); a.e('s_add_u32 s44, s44, s27'); a.e('s_lshl_b32 s44, s44, 2')
        a.e('v_mov_b32 v102, 1')
    def qload():
        a.e('s_mul_i32 s33, s28, 1280')
        a.e('s_add_u32 s33, s33, s29')
        for k in range(4): a.e(f'v_mov_b32 {v(Q2+k)}, 0')
        a.e(f'buffer_load_dwordx4 {v(Q1,4)}, {v(vL16)}, s[8:11], s33 offen')
        a.e('s_mov_b64 exec, 0xffffffff')
        a.e(f'buffer_load_dwordx2 {v(Q2,2)}, {v(vLaneK2)}, s[8:11], s33 offen')
        a.e('s_mov_b64 exec, -1')
    if 'w0' in FL: qload()
    a.e('s_mov_b32 s25, 0'); a.e('s_mov_b32 s26, 0')
    emit_dma(a,'s25','s26')
    a.e('s_mov_b32 s25, 10240'); a.e(f's_mov_b32 s26, {SLOT}')
    emit_dma(a,'s25','s26')
    if 'w0' not in FL: qload()
    a.e(f'v_mov_b32 {v(K2+2)}, 0x3f803f80')
    a.e(f'v_mov_b32 {v(K2+3)}, 0x00003f80')
    for k in range(4):
        a.e(f'v_mov_b32 {v(V0+k)}, 0x3f803f80')
        a.e(f'v_mov_b32 {v(V1+k)}, 0x3f803f80')
    a.e(f'v_mov_b32 {v(vKc)}, {v(vL16)}')
    a.e(f'v_mov_b32 {v(vK2c)}, {v(vLaneK2)}')
    a.e(f'v_add_u32 {v(vLaneV)}, 10240, {v(vLaneV)}')
    a.e(f'v_mov_b32 {v(vVc)}, {v(vLaneV)}')
    a.e(f'v_add_u32 {v(vKn)}, {SLOT}, {v(vL16)}')
    a.e(f'v_add_u32 {v(vK2n)}, {SLOT}, {v(vLaneK2)}')
    a.e(f'v_add_u32 {v(vVn)}, {SLOT}, {v(vLaneV)}')
    T2=[P0,P1,E,E+4]
    for t in T2:
        a.e(f'v_mov_b32 {v(t+2)}, 0'); a.e(f'v_mov_b32 {v(t+3)}, 0')
    a.e('s_waitcnt vmcnt(2)' if 'w0' in FL else 's_waitcnt vmcnt(0)')
    a.e('s_barrier')
    stamp(a,1)
    if 'pre1' in FL:
        a.e(f'ds_read_b128 {v(K1,4)}, {v(vKc)} offset:0')
        a.e(f'ds_read_b64 {v(K2,2)}, {v(vK2c)} offset:0')
        a.e('s_mov_b64 exec, s[22:23]')
        a.e(f'ds_read_b128 {v(V1,4)}, {v(vVc)} offset:640')
        a.e(f'ds_read_b128 {v(V0,4)}, {v(vVc)} offset:0')
        a.e('s_mov_b64 exec, -1')
        for k in range(16): a.e(f'v_mov_b32 {v(O+k)}, 0')
        for k in range(4): a.e(f'v_mov_b32 {v(P1+k)}, 0')
        for k in range(4,8): a.e(f'v_mov_b32 {v(E+k)}, 0')
        a.e('s_waitcnt lgkmcnt(2)')
        a.e(mfma(SB,K1,Q1,None)); a.e(mfma(SB,K2,Q2,SB)); a.e(mfma(SA,K1,Q1,None))
        a.e(f'ds_read_b128 {v(K1,4)}, {v(vKc)} offset:1280')
        a.e('s_nop 7')
        max16(a,SB,True) if False else None
        a.e('s_nop 3')
        max16(a,SB,True)
        set_m_pieces(a,'0x42c00000')
        a.e('s_nop 1')
        a.e(mfma(SA,K2,Q2,SA))
        a.e(f'ds_read_b64 {v(K2,2)}, {v(vK2c)} offset:1280')
        a.e('s_waitcnt lgkmcnt(0)')
        a.e('s_nop 7'); a.e('s_nop 7')
    else:
        for t in range(4):
            a.e(f'ds_read_b128 {v(O+4*t,4)}, {v(vKc)} offset:{t*1280}')
            a.e(f'ds_read_b64 {v(T2[t],2)}, {v(vK2c)} offset:{t*1280}')
        a.e('s_waitcnt lgkmcnt(4)')
        a.e(mfma(SA,O,Q1,None)); a.e(mfma(SB,O+4,Q1,None))
        a.e(mfma(SA,T2[0],Q2,SA)); a.e(mfma(SB,T2[1],Q2,SB))
        a.e('s_waitcnt lgkmcnt(0)')
        a.e('s_nop 7'); a.e('s_nop 7')
        max16(a,SA,True)
        a.e(mfma(SA,O+8,Q1,None))
        max16(a,SB,False)
        a.e(mfma(SB,O+12,Q1,None))
        a.e(mfma(SA,T2[2],Q2,SA)); a.e(mfma(SB,T2[3],Q2,SB))
        a.e(f'ds_read_b128 {v(K1,4)}, {v(vKc)} offset:0')
        a.e(f'ds_read_b64 {v(K2,2)}, {v(vK2c)} offset:0')
        a.e('s_nop 7'); a.e('s_nop 7')
        max16(a,SA,False)
        max16(a,SB,False)
        set_m_pieces(a,'0x42c00000')
        for k in range(16): a.e(f'v_mov_b32 {v(O+k)}, 0')
        for k in range(4): a.e(f'v_mov_b32 {v(P1+k)}, 0')
        for k in range(4,8): a.e(f'v_mov_b32 {v(E+k)}, 0')
        a.e('s_waitcnt lgkmcnt(0)')
        a.e(mfma(SA,K1,Q1,None))
        a.e(mfma(SA,K2,Q2,SA))
        a.e(f'ds_read_b128 {v(K1,4)}, {v(vKc)} offset:1280')
        a.e(f'ds_read_b64 {v(K2,2)}, {v(vK2c)} offset:1280')
        a.e('s_mov_b64 exec, s[22:23]')
        a.e(f'ds_read_b128 {v(V1,4)}, {v(vVc)} offset:640')
        a.e(f'ds_read_b128 {v(V0,4)}, {v(vVc)} offset:0')
        a.e('s_mov_b64 exec, -1')
        a.e('s_waitcnt lgkmcnt(0)')
        a.e('s_nop 7'); a.e('s_nop 7')
    a.e('s_mov_b32 s24, 0')
    a.e('s_mov_b32 s25, 20480')
    a.e(f's_mov_b32 s26, {2*SLOT}')
    a.e(f's_mov_b32 s21, {SLOT}')
    stamp(a,2); stampc(a,5)
    a.label('ATT_LOOP')
    M16[0]=('am16' in FL)
    for i in range(8): tile(a,i)
    M16[0]=False
    a.e(f'v_mov_b32 {v(vKc)}, {v(vKn)}')
    a.e(f'v_mov_b32 {v(vK2c)}, {v(vK2n)}')
    a.e(f'v_mov_b32 {v(vVc)}, {v(vVn)}')
    a.e('s_mov_b32 s21, s26')
    a.e(f's_add_u32 s26, s26, {SLOT}')
    a.e(f's_cmp_eq_u32 s26, {3*SLOT}')
    a.e('s_cselect_b32 s26, 0, s26')
    a.e(f'v_add_u32 {v(vKn)}, s21, {v(vL16)}')
    a.e(f'v_add_u32 {v(vK2n)}, s21, {v(vLaneK2)}')
    a.e(f'v_add_u32 {v(vVn)}, s21, {v(vLaneV)}')
    a.e('s_add_u32 s25, s25, 10240')
    a.e('s_add_u32 s24, s24, 1')
    a.e('s_cmp_lt_u32 s24, 8')
    a.e('s_cbranch_scc1 ATT_LOOP')
    stamp(a,3); stampc(a,6)
    if 'eprio' in FL: a.e('s_setprio 3')
    a.e(f'v_cvt_pk_bf16_f32 {v(P1+2)}, {v(E+4)}, {v(E+5)}')
    a.e(f'v_cvt_pk_bf16_f32 {v(P1+3)}, {v(E+6)}, {v(E+7)}')
    a.e('s_waitcnt lgkmcnt(0)')
    a.e('s_nop 1')
    a.e(mfma(O,V1,P1,O))
    a.e('s_nop 7'); a.e('s_nop 7')
    a.e(f'v_mov_b32 {v(vT)}, 0')
    for k in range(13): a.e(f'v_fma_f32 {v(vT)}, {v(O+k)}, 0, {v(vT)}')
    a.e(f'v_cmp_u_f32 vcc, {v(vT)}, {v(vT)}')
    a.e('s_mov_b64 s[36:37], vcc')
    a.e(f'v_mov_b32 {v(vT)}, 0x7b800000')
    a.e(f'v_cmp_nlt_f32 vcc, {v(O+12)}, {v(vT)}')
    a.e('s_or_b64 vcc, vcc, s[36:37]')
    if 'am16' not in FL: a.e('s_cbranch_vccnz ATT_FALLBACK')
    a.label('ATT_EPI')
    a.e(f'v_rcp_f32 {v(vT)}, {v(O+12)}')
    a.e('s_nop 0')
    for k in range(12): a.e(f'v_mul_f32 {v(O+k)}, {v(O+k)}, {v(vT)}')
    for k in range(6): a.e(f'v_cvt_pk_bf16_f32 {v(E+k)}, {v(O+2*k)}, {v(O+2*k+1)}')
    if 'sent' in FL:
        for k in range(6): a.e(f'v_min_u32 {v(E+k)}, -2, {v(E+k)}')
    a.e('s_mul_i32 s33, s28, 40960')
    a.e('s_lshl_b32 s30, s27, 10')
    a.e('s_add_u32 s30, s30, s33')
    opol=' '.join(x for x in ('sc0','sc1','nt') if 'ost_'+x in FL)
    a.e(f'buffer_store_dwordx4 {v(E,4)}, {v(vL16)}, s[12:15], s30 offen {opol}')
    if 'lat' in FL:
        stamp(a,0); a.e('s_waitcnt vmcnt(0)'); stamp(a,1)
    if 'can' in FL:
        a.e('s_lshl_b32 s30, s27, 8')
        a.e('s_add_u32 s30, s30, s33')
        a.e(f's_add_u32 s30, s30, {32768-1024}')
        a.e('s_mov_b64 exec, 0xffffffff')
        a.e(f'buffer_store_dwordx2 {v(E+4,2)}, {v(vLaneK2)}, s[12:15], s30 offen {opol}')
    else:
        a.e('s_lshr_b32 s30, s27, 2')
        a.e('s_add_u32 s30, s30, 32')
        a.e('s_lshl_b32 s30, s30, 10')
        a.e('s_add_u32 s30, s30, s33')
        a.e('s_and_b32 s31, s27, 2')
        a.e('s_lshl_b32 s31, s31, 8')
        a.e('s_add_u32 s30, s30, s31')
        a.e('s_and_b32 s31, s27, 1')
        a.e('s_lshl_b32 s31, s31, 3')
        a.e('s_add_u32 s30, s30, s31')
        a.e('s_mov_b64 exec, 0xffffffff')
        a.e(f'buffer_store_dwordx2 {v(E+4,2)}, {v(vL16)}, s[12:15], s30 offen {opol}')
    if 'lat' in FL:
        a.e('s_waitcnt vmcnt(0)'); stamp(a,2)
    if 'sent' in FL:
        if 'hint8' in FL:
            a.e('s_mov_b64 exec, 1')
            a.e('buffer_store_dword v102, off, s[40:43], s44 sc1')
        a.e('s_waitcnt vmcnt(0)')
    else: a.e('s_waitcnt vmcnt(0)')
    if 'fuse' in FL and 'sent' not in FL:
        a.e(f's_add_u32 s8, s34, {FLAGS}'); a.e('s_addc_u32 s9, s35, 0'); a.e(f's_mov_b32 s10, {FLAGS_BYTES}')
        a.e('s_lshl_b32 s30, s28, 5'); a.e('s_add_u32 s30, s30, s27'); a.e('s_lshl_b32 s30, s30, 2')
        a.e(f'v_mov_b32 {v(vT)}, 1')
        a.e('s_mov_b64 exec, 1')
        a.e(f'buffer_store_dword {v(vT)}, off, s[8:11], s30 sc1')
        a.e('s_waitcnt vmcnt(0)')
    stamp(a,4)
    stamp_store(a,7,34,'s16',8,0)
    a.label('ATT_END')
    a.e('s_endpgm')
    a.label('ATT_FALLBACK')
    a.e(f'v_mov_b32 {v(Q2+2)}, 0'); a.e(f'v_mov_b32 {v(Q2+3)}, 0')
    a.e(f'v_mov_b32 {v(vMx)}, 0xff800000')
    a.e('s_mov_b32 s30, 0')
    a.label('ATT_FB1')
    a.e(f'buffer_load_dwordx4 {v(K1,4)}, {v(vL16)}, s[4:7], s30 offen')
    a.e(f'buffer_load_dwordx2 {v(K2,2)}, {v(vLaneK2)}, s[4:7], s30 offen')
    a.e('s_waitcnt vmcnt(0)')
    a.e(mfma(SA,K1,Q1,None)); a.e(mfma(SA,K2,Q2,SA))
    a.e('s_nop 7'); a.e('s_nop 7')
    max16(a,SA,False)
    a.e('s_add_u32 s30, s30, 1280')
    a.e('s_cmp_lt_u32 s30, 81920')
    a.e('s_cbranch_scc1 ATT_FB1')
    set_m_pieces(a,'0')
    for k in range(16): a.e(f'v_mov_b32 {v(O+k)}, 0')
    a.e(f'v_add_u32 {v(vVc)}, {VIMG-KIMG-10240}, {v(vLaneV)}')
    a.e('s_mov_b32 s30, 0')
    a.label('ATT_FB2')
    a.e(f'buffer_load_dwordx4 {v(K1,4)}, {v(vL16)}, s[4:7], s30 offen')
    a.e(f'buffer_load_dwordx2 {v(K2,2)}, {v(vLaneK2)}, s[4:7], s30 offen')
    a.e('s_mov_b64 exec, s[22:23]')
    a.e(f'buffer_load_dwordx4 {v(V0,4)}, {v(vVc)}, s[4:7], s30 offen')
    a.e(f'buffer_load_dwordx4 {v(V1,4)}, {v(vVc)}, s[4:7], s30 offen offset:640')
    a.e('s_mov_b64 exec, -1')
    a.e('s_waitcnt vmcnt(0)')
    a.e(mfma(SA,K1,Q1,None)); a.e(mfma(SA,K2,Q2,SA))
    a.e('s_nop 7'); a.e('s_nop 7')
    for k in range(16): a.e(f'v_exp_f32 {v(SB+k)}, {v(SA+k)}')
    a.e('s_nop 0')
    for k in range(4): a.e(f'v_cvt_pk_bf16_f32 {v(P0+k)}, {v(SB+2*k)}, {v(SB+2*k+1)}')
    for k in range(4): a.e(f'v_cvt_pk_bf16_f32 {v(P1+k)}, {v(SB+8+2*k)}, {v(SB+8+2*k+1)}')
    a.e('s_nop 1')
    a.e(mfma(O,V0,P0,O)); a.e(mfma(O,V1,P1,O))
    a.e('s_add_u32 s30, s30, 1280')
    a.e('s_cmp_lt_u32 s30, 81920')
    a.e('s_cbranch_scc1 ATT_FB2')
    a.e('s_nop 7'); a.e('s_nop 7')
    a.e('s_branch ATT_EPI')
    if 'ffn2' in FL:
        a.label('ATT_FFN2')
        gen_ffn2.FL=FL
        gen_ffn2.ffn2_role(a)
        return 128
    return NV
```

```python
from asmlib import *
from layouts import QIMG,KIMG,VIMG,OIMG,FLAGS,FLAGS_BYTES
import gen_ffn2
NAME='att_kernel'
SLOT=20480
Q1=0+8
Q2=12
K1=16
K2=20
V0=24; V1=28
P0=32; P1=36
E=40
SA=48; SB=64
O=80
vKc=96; vK2c=97; vVc=98; vKn=99; vK2n=100; vVn=101
vL16=0
vT=1; vT2=2; vT3=3; vLaneK=4; vLaneK2=5; vLaneV=6; vMx=7
NV=102
M16=[False]
def mfma(d,a,b,c):
    cs = '0' if c is None else v(c,16)
    if M16[0]:
        if c is None or d in (SA,SB):
            o=0 if c is None else 8
            b=Q1
            return f'v_mfma_f32_16x16x32_bf16 {v(d+o,4)}, {v(a,4)}, {v(b,4)}, 0\n    v_mfma_f32_16x16x32_bf16 {v(d+o+4,4)}, {v(a,4)}, {v(b,4)}, 0'
        return f'v_mfma_f32_16x16x32_bf16 {v(d,4)}, {v(a,4)}, {v(b,4)}, {v(d,4)}\n    v_mfma_f32_16x16x32_bf16 {v(d+4,4)}, {v(a,4)}, {v(b,4)}, {v(d+4,4)}'
    return f'v_mfma_f32_32x32x16_bf16 {v(d,16)}, {v(a,4)}, {v(b,4)}, {cs}'

def emit_dma(a, soff_chunk, sslot):
    a.e(f's_add_u32 s30, s17, {soff_chunk}')
    a.e(f's_add_u32 m0, s20, {sslot}')
    a.e(f's_add_u32 s31, s18, {soff_chunk}')
    a.e(f'buffer_load_dwordx4 {v(vL16)}, s[4:7], s30 offen lds')
    a.e(f's_add_u32 m0, m0, 8192')
    a.e(f's_add_u32 s30, s19, {soff_chunk}')
    a.e(f'buffer_load_dwordx4 {v(vL16)}, s[4:7], s31 offen lds')
    l=a.newlabel('nodma3')
    a.e(f's_cmp_ge_u32 s16, 4')
    a.e(f's_cbranch_scc1 {l}')
    a.e(f's_add_u32 m0, m0, 8192')
    a.e('s_nop 0')
    a.e(f'buffer_load_dwordx4 {v(vL16)}, s[4:7], s30 offen lds')
    a.label(l)

def set_m_pieces(a, add):
    a.e(f'v_mov_b32 {v(vT)}, {v(vMx)}')
    a.e('s_nop 1')
    a.e(f'v_permlane32_swap_b32 {v(vT)}, {v(vMx)}')
    a.e('s_nop 1')
    a.e(f'v_max_f32 {v(vMx)}, {v(vT)}, {v(vMx)}')
    a.e(f'v_ceil_f32 {v(vMx)}, {v(vMx)}')
    a.e(f'v_mov_b32 {v(vT)}, {add}')
    a.e(f'v_add_f32 {v(vMx)}, {v(vT)}, {v(vMx)}')
    a.e(f'v_sub_f32 {v(vMx)}, 0, {v(vMx)}')
    a.e(f'v_and_b32 {v(vT)}, 0xffff0000, {v(vMx)}')
    a.e(f'v_sub_f32 {v(vT2)}, {v(vMx)}, {v(vT)}')
    a.e(f'v_and_b32 {v(vT3)}, 0xffff0000, {v(vT2)}')
    a.e(f'v_sub_f32 {v(vT2)}, {v(vT2)}, {v(vT3)}')
    a.e(f'v_lshrrev_b32 {v(vT)}, 16, {v(vT)}')
    a.e(f'v_or_b32 {v(vT)}, {v(vT)}, {v(vT3)}')
    a.e(f'v_lshrrev_b32 {v(vT2)}, 16, {v(vT2)}')
    a.e('s_mov_b64 exec, 0xffffffff')
    a.e(f'v_mov_b32 {v(Q2+2)}, {v(vT)}')
    a.e(f'v_mov_b32 {v(Q2+3)}, {v(vT2)}')
    a.e('s_mov_b64 exec, -1')

def max16(a, S, first):
    for i in range(0,16,2):
        if first and i==0:
            a.e(f'v_max_f32 {v(vMx)}, {v(S)}, {v(S+1)}')
        else:
            a.e(f'v_max3_f32 {v(vMx)}, {v(vMx)}, {v(S+i)}, {v(S+i+1)}')

FL=set()
def tile(a,i):
    S,N=(SA,SB) if i%2==0 else (SB,SA)
    def addr(kind,ti):
        cur={'k':vKc,'k2':vK2c,'v':vVc}[kind]; nxt={'k':vKn,'k2':vK2n,'v':vVn}[kind]
        return (cur,ti*1280) if ti<8 else (nxt,(ti-8)*1280)
    a.c(f'---- tile {i}')
    if i==6 and 'nodma' not in FL:
        a.e('s_waitcnt vmcnt(0)')
        a.e('s_barrier')
        l=a.newlabel('nodma')
        a.e('s_cmp_ge_u32 s24, 6')
        a.e(f's_cbranch_scc1 {l}')
        emit_dma(a,'s25','s26')
        a.label(l)
    if (i==6 and 'hint6' in FL) or (i==7 and 'hint7' in FL) or (i==5 and 'hint5' in FL) or (i==4 and 'hint4' in FL) or (i==3 and 'hint3' in FL):
        l=a.newlabel('hint')
        a.e('s_cmp_eq_u32 s24, 7')
        a.e(f's_cbranch_scc0 {l}')
        a.e('s_mov_b64 exec, 1')
        a.e('buffer_store_dword v102, off, s[40:43], s44 sc1')
        a.e('s_mov_b64 exec, -1')
        a.label(l)
    if 'nolds' in FL:
        E_=a.e
        class A2:
            def e(self,s):
                if s.startswith('ds_read') or s.startswith('s_waitcnt lgkm') or s.startswith('s_mov_b64 exec'): return
                E_(s)
        a=A2()
    ex=lambda dst,src: a.e(f'v_exp_f32 {v(dst)}, {v(src)}')
    cv=lambda dst,x: a.e(f'v_cvt_pk_bf16_f32 {v(dst)}, {v(x)}, {v(x+1)}')
    a.e('s_waitcnt lgkmcnt(3)')
    a.e(mfma(N,K1,Q1,None))
    r,o=addr('k',i+2); a.e(f'ds_read_b128 {v(K1,4)}, {v(r)} offset:{o}')
    cv(P1+2,E+4); cv(P1+3,E+6)
    for k in range(4): ex(E+k,S+k)
    a.e('s_waitcnt lgkmcnt(3)')
    a.e(mfma(N,K2,Q2,N))
    r,o=addr('k2',i+2); a.e(f'ds_read_b64 {v(K2,2)}, {v(r)} offset:{o}')
    for k in range(4): ex(E+4+k,S+4+k)
    cv(P0,E); cv(P0+1,E+2)
    a.e('s_waitcnt lgkmcnt(3)')
    a.e(mfma(O,V1,P1,O))
    cv(P0+2,E+4); cv(P0+3,E+6)
    for k in range(4): ex(E+k,S+8+k)
    a.e('s_waitcnt lgkmcnt(2)')
    a.e(mfma(O,V0,P0,O))
    if 'noexec' not in FL: a.e('s_mov_b64 exec, s[22:23]')
    r,o=addr('v',i);   a.e(f'ds_read_b128 {v(V1,4)}, {v(r)} offset:{o+640}')
    r,o=addr('v',i+1); a.e(f'ds_read_b128 {v(V0,4)}, {v(r)} offset:{o}')
    if 'noexec' not in FL: a.e('s_mov_b64 exec, -1')
    for k in range(4): ex(E+4+k,S+12+k)
    cv(P1,E); cv(P1+1,E+2)

from stamps import stamp, stamp_store, stampc
import stamps
def att_kernel(a, name=NAME):
    a.lines.append(kernel_header(name))
    a.e(f's_cmp_ge_u32 s2, {512 if ("dup" in FL or "ffn2" in FL) else 256}')
    a.e('s_cbranch_scc1 ATT_END')
    if 'dup' in FL: a.e('s_and_b32 s2, s2, 255')
    a.e('s_load_dwordx2 s[34:35], s[0:1], 72')
    if 'ffn2' in FL:
        a.e('s_cmp_ge_u32 s2, 256')
        a.e('s_cbranch_scc1 ATT_FFN2')
        if 'aprio' in FL: a.e('s_setprio 2')
    stamp(a,0)
    a.e(f'v_lshrrev_b32 {v(vT)}, 6, v0')
    a.e(f'v_and_b32 v0, 63, v0')
    a.e(f'v_readfirstlane_b32 s16, {v(vT)}')
    a.e('s_and_b32 s27, s2, 7')
    a.e('s_lshr_b32 s28, s2, 3')
    a.e('s_and_b32 s29, s28, 0x18')
    a.e('s_add_u32 s27, s27, s29')
    a.e('s_and_b32 s28, s28, 7')
    a.e('s_lshl_b32 s28, s28, 3')
    a.e('s_add_u32 s28, s28, s16')
    a.e('s_mul_i32 s29, s27, 81920')
    a.e(f'v_and_b32 {v(vT)}, 31, v0')
    a.e(f'v_lshrrev_b32 {v(vT2)}, 5, v0')
    a.e(f'v_lshlrev_b32 {v(vLaneK2)}, 3, {v(vT)}')
    a.e(f'v_add_u32 {v(vLaneK2)}, 1024, {v(vLaneK2)}')
    a.e(f'v_mul_u32_u24 {v(vLaneV)}, 320, {v(vT2)}')
    a.e(f'v_lshlrev_b32 {v(vT)}, 4, {v(vT)}')
    a.e(f'v_add_u32 {v(vLaneV)}, {v(vLaneV)}, {v(vT)}')
    a.e(f'v_lshlrev_b32 {v(vL16)}, 4, v0')
    a.e('s_lshl_b32 s20, s16, 10')
    a.e('s_mov_b32 s17, s20')
    a.e(f's_add_u32 s18, s20, 8192')
    a.e(f's_add_u32 s19, s20, {VIMG-KIMG-2048}')
    a.e('s_cmp_lt_u32 s16, 2')
    a.e('s_cselect_b32 s18, s18, s19')
    a.e(f's_add_u32 s19, s20, {VIMG-KIMG+6144}')
    a.e('s_mov_b32 s22, 0x000fffff')
    a.e('s_mov_b32 s23, 0x000fffff')
    a.e('s_waitcnt lgkmcnt(0)')
    a.e(f's_add_u32 s4, s34, {KIMG}')
    a.e('s_addc_u32 s5, s35, 0')
    a.e('s_add_u32 s4, s4, s29')
    a.e('s_addc_u32 s5, s5, 0')
    a.e(f's_sub_u32 s6, {VIMG+2621440-KIMG}, s29')
    a.e('s_mov_b32 s7, 0x00020000')
    a.e(f's_add_u32 s8, s34, {QIMG}')
    a.e('s_addc_u32 s9, s35, 0')
    a.e('s_mov_b32 s10, 2621440')
    a.e('s_mov_b32 s11, 0x00020000')
    a.e(f's_add_u32 s12, s34, {OIMG}')
    a.e('s_addc_u32 s13, s35, 0')
    a.e('s_mov_b32 s14, 2621440')
    a.e('s_mov_b32 s15, 0x00020000')
    if 'hl' in FL:
        a.e(f's_add_u32 s40, s34, {FLAGS}'); a.e('s_addc_u32 s41, s35, 0'); a.e(f's_mov_b32 s42, {FLAGS_BYTES}'); a.e('s_mov_b32 s43, 0x00020000')
        a.e('s_lshl_b32 s44, s28, 2'); a.e('s_lshr_b32 s45, s27, 3'); a.e('s_add_u32 s44, s44, s45'); a.e('s_lshl_b32 s44, s44, 7')
        a.e('s_and_b32 s45, s27, 7'); a.e('s_lshl_b32 s45, s45, 2'); a.e('s_add_u32 s44, s44, s45')
        a.e('v_mov_b32 v102, 1')
    if 'sent' in FL and 'can' not in FL:
        a.e(f's_add_u32 s40, s34, {FLAGS}'); a.e('s_addc_u32 s41, s35, 0'); a.e(f's_mov_b32 s42, {FLAGS_BYTES}'); a.e('s_mov_b32 s43, 0x00020000')
        a.e('s_lshl_b32 s44, s28, 5'); a.e('s_add_u32 s44, s44, s27'); a.e('s_lshl_b32 s44, s44, 2')
        a.e('v_mov_b32 v102, 1')
    def qload():
        a.e('s_mul_i32 s33, s28, 1280')
        a.e('s_add_u32 s33, s33, s29')
        for k in range(4): a.e(f'v_mov_b32 {v(Q2+k)}, 0')
        a.e(f'buffer_load_dwordx4 {v(Q1,4)}, {v(vL16)}, s[8:11], s33 offen')
        a.e('s_mov_b64 exec, 0xffffffff')
        a.e(f'buffer_load_dwordx2 {v(Q2,2)}, {v(vLaneK2)}, s[8:11], s33 offen')
        a.e('s_mov_b64 exec, -1')
    if 'w0' in FL: qload()
    a.e('s_mov_b32 s25, 0'); a.e('s_mov_b32 s26, 0')
    emit_dma(a,'s25','s26')
    a.e('s_mov_b32 s25, 10240'); a.e(f's_mov_b32 s26, {SLOT}')
    emit_dma(a,'s25','s26')
    if 'w0' not in FL: qload()
    a.e(f'v_mov_b32 {v(K2+2)}, 0x3f803f80')
    a.e(f'v_mov_b32 {v(K2+3)}, 0x00003f80')
    for k in range(4):
        a.e(f'v_mov_b32 {v(V0+k)}, 0x3f803f80')
        a.e(f'v_mov_b32 {v(V1+k)}, 0x3f803f80')
    a.e(f'v_mov_b32 {v(vKc)}, {v(vL16)}')
    a.e(f'v_mov_b32 {v(vK2c)}, {v(vLaneK2)}')
    a.e(f'v_add_u32 {v(vLaneV)}, 10240, {v(vLaneV)}')
    a.e(f'v_mov_b32 {v(vVc)}, {v(vLaneV)}')
    a.e(f'v_add_u32 {v(vKn)}, {SLOT}, {v(vL16)}')
    a.e(f'v_add_u32 {v(vK2n)}, {SLOT}, {v(vLaneK2)}')
    a.e(f'v_add_u32 {v(vVn)}, {SLOT}, {v(vLaneV)}')
    T2=[P0,P1,E,E+4]
    for t in T2:
        a.e(f'v_mov_b32 {v(t+2)}, 0'); a.e(f'v_mov_b32 {v(t+3)}, 0')
    a.e('s_waitcnt vmcnt(2)' if 'w0' in FL else 's_waitcnt vmcnt(0)')
    a.e('s_barrier')
    stamp(a,1)
    if 'pre1' in FL:
        a.e(f'ds_read_b128 {v(K1,4)}, {v(vKc)} offset:0')
        a.e(f'ds_read_b64 {v(K2,2)}, {v(vK2c)} offset:0')
        a.e('s_mov_b64 exec, s[22:23]')
        a.e(f'ds_read_b128 {v(V1,4)}, {v(vVc)} offset:640')
        a.e(f'ds_read_b128 {v(V0,4)}, {v(vVc)} offset:0')
        a.e('s_mov_b64 exec, -1')
        for k in range(16): a.e(f'v_mov_b32 {v(O+k)}, 0')
        for k in range(4): a.e(f'v_mov_b32 {v(P1+k)}, 0')
        for k in range(4,8): a.e(f'v_mov_b32 {v(E+k)}, 0')
        a.e('s_waitcnt lgkmcnt(2)')
        a.e(mfma(SB,K1,Q1,None)); a.e(mfma(SB,K2,Q2,SB)); a.e(mfma(SA,K1,Q1,None))
        a.e(f'ds_read_b128 {v(K1,4)}, {v(vKc)} offset:1280')
        a.e('s_nop 7')
        max16(a,SB,True) if False else None
        a.e('s_nop 3')
        max16(a,SB,True)
        set_m_pieces(a,'0x42c00000')
        a.e('s_nop 1')
        a.e(mfma(SA,K2,Q2,SA))
        a.e(f'ds_read_b64 {v(K2,2)}, {v(vK2c)} offset:1280')
        a.e('s_waitcnt lgkmcnt(0)')
        a.e('s_nop 7'); a.e('s_nop 7')
    else:
        for t in range(4):
            a.e(f'ds_read_b128 {v(O+4*t,4)}, {v(vKc)} offset:{t*1280}')
            a.e(f'ds_read_b64 {v(T2[t],2)}, {v(vK2c)} offset:{t*1280}')
        a.e('s_waitcnt lgkmcnt(4)')
        a.e(mfma(SA,O,Q1,None)); a.e(mfma(SB,O+4,Q1,None))
        a.e(mfma(SA,T2[0],Q2,SA)); a.e(mfma(SB,T2[1],Q2,SB))
        a.e('s_waitcnt lgkmcnt(0)')
        a.e('s_nop 7'); a.e('s_nop 7')
        max16(a,SA,True)
        a.e(mfma(SA,O+8,Q1,None))
        max16(a,SB,False)
        a.e(mfma(SB,O+12,Q1,None))
        a.e(mfma(SA,T2[2],Q2,SA)); a.e(mfma(SB,T2[3],Q2,SB))
        a.e(f'ds_read_b128 {v(K1,4)}, {v(vKc)} offset:0')
        a.e(f'ds_read_b64 {v(K2,2)}, {v(vK2c)} offset:0')
        a.e('s_nop 7'); a.e('s_nop 7')
        max16(a,SA,False)
        max16(a,SB,False)
        set_m_pieces(a,'0x42c00000')
        for k in range(16): a.e(f'v_mov_b32 {v(O+k)}, 0')
        for k in range(4): a.e(f'v_mov_b32 {v(P1+k)}, 0')
        for k in range(4,8): a.e(f'v_mov_b32 {v(E+k)}, 0')
        a.e('s_waitcnt lgkmcnt(0)')
        a.e(mfma(SA,K1,Q1,None))
        a.e(mfma(SA,K2,Q2,SA))
        a.e(f'ds_read_b128 {v(K1,4)}, {v(vKc)} offset:1280')
        a.e(f'ds_read_b64 {v(K2,2)}, {v(vK2c)} offset:1280')
        a.e('s_mov_b64 exec, s[22:23]')
        a.e(f'ds_read_b128 {v(V1,4)}, {v(vVc)} offset:640')
        a.e(f'ds_read_b128 {v(V0,4)}, {v(vVc)} offset:0')
        a.e('s_mov_b64 exec, -1')
        a.e('s_waitcnt lgkmcnt(0)')
        a.e('s_nop 7'); a.e('s_nop 7')
    a.e('s_mov_b32 s24, 0')
    a.e('s_mov_b32 s25, 20480')
    a.e(f's_mov_b32 s26, {2*SLOT}')
    a.e(f's_mov_b32 s21, {SLOT}')
    stamp(a,2); stampc(a,5)
    a.label('ATT_LOOP')
    M16[0]=('am16' in FL)
    for i in range(8): tile(a,i)
    M16[0]=False
    a.e(f'v_mov_b32 {v(vKc)}, {v(vKn)}')
    a.e(f'v_mov_b32 {v(vK2c)}, {v(vK2n)}')
    a.e(f'v_mov_b32 {v(vVc)}, {v(vVn)}')
    a.e('s_mov_b32 s21, s26')
    a.e(f's_add_u32 s26, s26, {SLOT}')
    a.e(f's_cmp_eq_u32 s26, {3*SLOT}')
    a.e('s_cselect_b32 s26, 0, s26')
    a.e(f'v_add_u32 {v(vKn)}, s21, {v(vL16)}')
    a.e(f'v_add_u32 {v(vK2n)}, s21, {v(vLaneK2)}')
    a.e(f'v_add_u32 {v(vVn)}, s21, {v(vLaneV)}')
    a.e('s_add_u32 s25, s25, 10240')
    a.e('s_add_u32 s24, s24, 1')
    a.e('s_cmp_lt_u32 s24, 8')
    a.e('s_cbranch_scc1 ATT_LOOP')
    stamp(a,3); stampc(a,6)
    if 'eprio' in FL: a.e('s_setprio 3')
    a.e(f'v_cvt_pk_bf16_f32 {v(P1+2)}, {v(E+4)}, {v(E+5)}')
    a.e(f'v_cvt_pk_bf16_f32 {v(P1+3)}, {v(E+6)}, {v(E+7)}')
    a.e('s_waitcnt lgkmcnt(0)')
    a.e('s_nop 1')
    a.e(mfma(O,V1,P1,O))
    a.e('s_nop 7'); a.e('s_nop 7')
    a.e(f'v_mov_b32 {v(vT)}, 0')
    for k in range(13): a.e(f'v_fma_f32 {v(vT)}, {v(O+k)}, 0, {v(vT)}')
    a.e(f'v_cmp_u_f32 vcc, {v(vT)}, {v(vT)}')
    a.e('s_mov_b64 s[36:37], vcc')
    a.e(f'v_mov_b32 {v(vT)}, 0x7b800000')
    a.e(f'v_cmp_nlt_f32 vcc, {v(O+12)}, {v(vT)}')
    a.e('s_or_b64 vcc, vcc, s[36:37]')
    if 'am16' not in FL: a.e('s_cbranch_vccnz ATT_FALLBACK')
    a.label('ATT_EPI')
    a.e(f'v_rcp_f32 {v(vT)}, {v(O+12)}')
    a.e('s_nop 0')
    for k in range(12): a.e(f'v_mul_f32 {v(O+k)}, {v(O+k)}, {v(vT)}')
    for k in range(6): a.e(f'v_cvt_pk_bf16_f32 {v(E+k)}, {v(O+2*k)}, {v(O+2*k+1)}')
    if 'sent' in FL:
        for k in range(6): a.e(f'v_min_u32 {v(E+k)}, -2, {v(E+k)}')
    a.e('s_mul_i32 s33, s28, 40960')
    a.e('s_lshl_b32 s30, s27, 10')
    a.e('s_add_u32 s30, s30, s33')
    opol=' '.join(x for x in ('sc0','sc1','nt') if 'ost_'+x in FL)
    a.e(f'buffer_store_dwordx4 {v(E,4)}, {v(vL16)}, s[12:15], s30 offen {opol}')
    if 'lat' in FL:
        stamp(a,0); a.e('s_waitcnt vmcnt(0)'); stamp(a,1)
    if 'can' in FL:
        a.e('s_lshl_b32 s30, s27, 8')
        a.e('s_add_u32 s30, s30, s33')
        a.e(f's_add_u32 s30, s30, {32768-1024}')
        a.e('s_mov_b64 exec, 0xffffffff')
        a.e(f'buffer_store_dwordx2 {v(E+4,2)}, {v(vLaneK2)}, s[12:15], s30 offen {opol}')
    else:
        a.e('s_lshr_b32 s30, s27, 2')
        a.e('s_add_u32 s30, s30, 32')
        a.e('s_lshl_b32 s30, s30, 10')
        a.e('s_add_u32 s30, s30, s33')
        a.e('s_and_b32 s31, s27, 2')
        a.e('s_lshl_b32 s31, s31, 8')
        a.e('s_add_u32 s30, s30, s31')
        a.e('s_and_b32 s31, s27, 1')
        a.e('s_lshl_b32 s31, s31, 3')
        a.e('s_add_u32 s30, s30, s31')
        a.e('s_mov_b64 exec, 0xffffffff')
        a.e(f'buffer_store_dwordx2 {v(E+4,2)}, {v(vL16)}, s[12:15], s30 offen {opol}')
    if 'lat' in FL:
        a.e('s_waitcnt vmcnt(0)'); stamp(a,2)
    if 'sent' in FL:
        if 'hint8' in FL:
            a.e('s_mov_b64 exec, 1')
            a.e('buffer_store_dword v102, off, s[40:43], s44 sc1')
        a.e('s_waitcnt vmcnt(0)')
    else: a.e('s_waitcnt vmcnt(0)')
    if 'fuse' in FL and 'sent' not in FL:
        a.e(f's_add_u32 s8, s34, {FLAGS}'); a.e('s_addc_u32 s9, s35, 0'); a.e(f's_mov_b32 s10, {FLAGS_BYTES}')
        a.e('s_lshl_b32 s30, s28, 5'); a.e('s_add_u32 s30, s30, s27'); a.e('s_lshl_b32 s30, s30, 2')
        a.e(f'v_mov_b32 {v(vT)}, 1')
        a.e('s_mov_b64 exec, 1')
        a.e(f'buffer_store_dword {v(vT)}, off, s[8:11], s30 sc1')
        a.e('s_waitcnt vmcnt(0)')
    stamp(a,4)
    stamp_store(a,7,34,'s16',8,0)
    a.label('ATT_END')
    a.e('s_endpgm')
    a.label('ATT_FALLBACK')
    a.e(f'v_mov_b32 {v(Q2+2)}, 0'); a.e(f'v_mov_b32 {v(Q2+3)}, 0')
    a.e(f'v_mov_b32 {v(vMx)}, 0xff800000')
    a.e('s_mov_b32 s30, 0')
    a.label('ATT_FB1')
    a.e(f'buffer_load_dwordx4 {v(K1,4)}, {v(vL16)}, s[4:7], s30 offen')
    a.e(f'buffer_load_dwordx2 {v(K2,2)}, {v(vLaneK2)}, s[4:7], s30 offen')
    a.e('s_waitcnt vmcnt(0)')
    a.e(mfma(SA,K1,Q1,None)); a.e(mfma(SA,K2,Q2,SA))
    a.e('s_nop 7'); a.e('s_nop 7')
    max16(a,SA,False)
    a.e('s_add_u32 s30, s30, 1280')
    a.e('s_cmp_lt_u32 s30, 81920')
    a.e('s_cbranch_scc1 ATT_FB1')
    set_m_pieces(a,'0')
    for k in range(16): a.e(f'v_mov_b32 {v(O+k)}, 0')
    a.e(f'v_add_u32 {v(vVc)}, {VIMG-KIMG-10240}, {v(vLaneV)}')
    a.e('s_mov_b32 s30, 0')
    a.label('ATT_FB2')
    a.e(f'buffer_load_dwordx4 {v(K1,4)}, {v(vL16)}, s[4:7], s30 offen')
    a.e(f'buffer_load_dwordx2 {v(K2,2)}, {v(vLaneK2)}, s[4:7], s30 offen')
    a.e('s_mov_b64 exec, s[22:23]')
    a.e(f'buffer_load_dwordx4 {v(V0,4)}, {v(vVc)}, s[4:7], s30 offen')
    a.e(f'buffer_load_dwordx4 {v(V1,4)}, {v(vVc)}, s[4:7], s30 offen offset:640')
    a.e('s_mov_b64 exec, -1')
    a.e('s_waitcnt vmcnt(0)')
    a.e(mfma(SA,K1,Q1,None)); a.e(mfma(SA,K2,Q2,SA))
    a.e('s_nop 7'); a.e('s_nop 7')
    for k in range(16): a.e(f'v_exp_f32 {v(SB+k)}, {v(SA+k)}')
    a.e('s_nop 0')
    for k in range(4): a.e(f'v_cvt_pk_bf16_f32 {v(P0+k)}, {v(SB+2*k)}, {v(SB+2*k+1)}')
    for k in range(4): a.e(f'v_cvt_pk_bf16_f32 {v(P1+k)}, {v(SB+8+2*k)}, {v(SB+8+2*k+1)}')
    a.e('s_nop 1')
    a.e(mfma(O,V0,P0,O)); a.e(mfma(O,V1,P1,O))
    a.e('s_add_u32 s30, s30, 1280')
    a.e('s_cmp_lt_u32 s30, 81920')
    a.e('s_cbranch_scc1 ATT_FB2')
    a.e('s_nop 7'); a.e('s_nop 7')
    a.e('s_branch ATT_EPI')
    if 'ffn2' in FL:
        a.label('ATT_FFN2')
        gen_ffn2.FL=FL
        gen_ffn2.ffn2_role(a)
        return 128
    return NV
```

```python
from asmlib import *
from layouts import HIMG,WIMG,GIMG,GIMG_BYTES,OIMG,FLAGS,FLAGS_BYTES
from stamps import stamp, stamp_store, stampc
FL=set()
NB=3
BUF=4; ACC=88
vA0=0; vA1=1; vB0=2; vT=3
def acc(u,t): return ACC+(u*5+t)*4
def bufA(b,t): return BUF+28*b+4*t
def bufB(b,u): return BUF+28*b+20+4*u
def loadA(a,b,t):
    if t<4: a.e(f'buffer_load_dwordx4 {v(bufA(b,t),4)}, {v(vA0)}, s[4:7], s20 offen offset:{t*1024}')
    else:   a.e(f'buffer_load_dwordx4 {v(bufA(b,t),4)}, {v(vA1)}, s[4:7], s20 offen')
def loadB(a,b,u):
    a.e(f'buffer_load_dwordx4 {v(bufB(b,u),4)}, {v(vB0)}, s[8:11], s21 offen offset:{u*256}')
def advance(a):
    a.e('s_add_u32 s20, s20, 5120'); a.e('s_add_u32 s21, s21, 2048')

def ffn2_role(a):
    spol=' '.join(x for x in ('sc0','sc1','nt') if 'gst_'+x in FL)
    if 'fuse' in FL:
        a.e('s_load_dwordx2 s[36:37], s[0:1], 0')
        a.e('s_load_dwordx2 s[38:39], s[0:1], 56')
    stamp(a,0)
    a.e('v_lshrrev_b32 v3, 6, v0')
    a.e('v_and_b32 v0, 63, v0')
    a.e('v_readfirstlane_b32 s16, v3')
    a.e('s_and_b32 s27, s2, 7')
    a.e('s_lshr_b32 s28, s2, 3'); a.e('s_and_b32 s28, s28, 31')
    a.e('s_lshr_b32 s29, s27, 1')
    a.e('s_lshl_b32 s29, s29, 3')
    a.e('s_lshr_b32 s30, s28, 2')
    a.e('s_add_u32 s17, s29, s30')
    a.e('s_and_b32 s27, s27, 1')
    a.e('s_lshl_b32 s27, s27, 2')
    a.e('s_and_b32 s28, s28, 3')
    a.e('s_add_u32 s18, s27, s28')
    a.e('s_and_b32 s19, s16, 1')
    a.e('s_lshr_b32 s22, s16, 1')
    a.e('v_lshrrev_b32 v3, 4, v0')
    a.e('v_and_b32 v4, 15, v0')
    a.e(f'v_lshlrev_b32 {v(vB0)}, 9, v3')
    a.e('v_lshlrev_b32 v4, 4, v4')
    a.e(f'v_add_u32 {v(vB0)}, {v(vB0)}, v4')
    a.e(f'v_lshlrev_b32 {v(vA0)}, 4, v0')
    a.e(f'v_add_u32 {v(vA1)}, 4096, {v(vA0)}')
    a.e('s_mul_i32 s27, s18, 348160')
    a.e(f's_mul_i32 s28, s22, {12*5120}')
    a.e('s_add_u32 s27, s27, s28')
    a.e(f's_add_u32 s27, s27, {WIMG}')
    a.e('s_lshl_b32 s28, s17, 1'); a.e('s_add_u32 s28, s28, s19')
    a.e('s_mul_i32 s28, s28, 98304')
    a.e(f's_mul_i32 s29, s22, {12*2048}')
    a.e('s_add_u32 s28, s28, s29')
    a.e(f's_add_u32 s28, s28, {HIMG}')
    a.e('s_mov_b32 s20, 0'); a.e('s_mov_b32 s21, 0')
    a.e('s_waitcnt lgkmcnt(0)')
    a.e('s_add_u32 s4, s34, s27'); a.e('s_addc_u32 s5, s35, 0'); a.e(f's_mov_b32 s6, {12*5120}'); a.e('s_mov_b32 s7, 0x00020000')
    a.e('s_add_u32 s8, s34, s28'); a.e('s_addc_u32 s9, s35, 0'); a.e(f's_mov_b32 s10, {12*2048}'); a.e('s_mov_b32 s11, 0x00020000')
    for b in range(NB):
        for u in range(2): loadB(a,b,u)
        for t in range(5): loadA(a,b,t)
        advance(a)
    n=12
    for j in range(n):
        b=j%NB
        issued=min(j+NB,n)
        a.e(f's_waitcnt vmcnt({7*(issued-j-1)})')
        if j==0: stamp(a,1)
        more=j+NB<n
        for t in range(5):
            for u in range(2):
                c=v(acc(u,t),4) if j>0 else '0'
                a.e(f'v_mfma_f32_16x16x32_bf16 {v(acc(u,t),4)}, {v(bufA(b,t),4)}, {v(bufB(b,u),4)}, {c}')
            if more and t>0: loadA(a,b,t-1)
        if more:
            loadA(a,b,4)
            for u in range(2): loadB(a,b,u)
            advance(a)
    stamp(a,2)
    a.e('s_lshl_b32 s23, s19, 1')
    for u in range(2):
        a.e(f's_add_u32 s27, s23, {u}')
        a.e('s_mul_i32 s27, s27, 3')
        a.e(f's_cmp_gt_u32 s22, {u}')
        a.e('s_cselect_b32 s28, 1, 0')
        a.e('s_sub_u32 s28, s22, s28')
        a.e('s_add_u32 s27, s27, s28')
        a.e('s_mul_i32 s27, s27, 5120')
        a.e(f'v_add_u32 {v(BUF+u)}, s27, {v(vA0)}')
    a.e('s_nop 7')
    for u in range(2):
        l=a.newlabel('fx')
        a.e(f's_cmp_eq_u32 s22, {u}')
        a.e(f's_cbranch_scc1 {l}')
        for t in range(5): a.e(f'ds_write_b128 {v(BUF+u)}, {v(acc(u,t),4)} offset:{t*1024}')
        a.label(l)
    a.e('s_waitcnt lgkmcnt(0)')
    a.e('s_barrier')
    if 'fuse' in FL: return fused_tail(a)
    a.e('s_cmp_ge_u32 s22, 2')
    a.e('s_cbranch_scc1 FFN_TAIL')
    a.e('s_add_u32 s23, s23, s22')
    a.e(f's_mul_i32 s27, s23, {3*5120}')
    a.e(f'v_add_u32 {v(vT)}, s27, {v(vA0)}')
    R=BUF
    for k in range(3):
        for t in range(5): a.e(f'ds_read_b128 {v(R+20*k+4*t,4)}, {v(vT)} offset:{(k*5+t)*1024}')
    a.e('s_cmp_eq_u32 s22, 0')
    a.e('s_cbranch_scc1 FFN_OWN0')
    for i in range(20): a.e(f'v_mov_b32 {v(ACC+i)}, {v(ACC+20+i)}')
    a.label('FFN_OWN0')
    G=ACC; E=ACC+20
    a.e('s_waitcnt lgkmcnt(10)')
    for i in range(20): a.e(f'v_add_f32 {v(G+i)}, {v(G+i)}, {v(R+i)}')
    a.e('s_waitcnt lgkmcnt(5)')
    for i in range(20): a.e(f'v_add_f32 {v(G+i)}, {v(G+i)}, {v(R+20+i)}')
    a.e('s_waitcnt lgkmcnt(0)')
    for i in range(20): a.e(f'v_add_f32 {v(G+i)}, {v(G+i)}, {v(R+40+i)}')
    for i in range(20): a.e(f'v_mul_f32 {v(E+i)}, 0xbfb8aa3b, {v(G+i)}')
    for i in range(20): a.e(f'v_exp_f32 {v(E+i)}, {v(E+i)}')
    for i in range(20): a.e(f'v_add_f32 {v(E+i)}, 1.0, {v(E+i)}')
    for i in range(20): a.e(f'v_rcp_f32 {v(E+i)}, {v(E+i)}')
    for i in range(20): a.e(f'v_mul_f32 {v(G+i)}, {v(G+i)}, {v(E+i)}')
    for i in range(10): a.e(f'v_cvt_pk_bf16_f32 {v(E+i)}, {v(G+2*i)}, {v(G+2*i+1)}')
    a.e('s_lshl_b32 s27, s17, 3'); a.e('s_add_u32 s27, s27, s18'); a.e('s_lshl_b32 s27, s27, 2'); a.e('s_add_u32 s27, s27, s23')
    a.e('s_mul_i32 s27, s27, 2560')
    a.e(f's_add_u32 s4, s34, {GIMG}'); a.e('s_addc_u32 s5, s35, 0'); a.e(f's_mov_b32 s6, {GIMG_BYTES}')
    a.e(f'v_lshrrev_b32 {v(vT)}, 1, {v(vA0)}')
    a.e(f'buffer_store_dwordx4 {v(E,4)}, {v(vA0)}, s[4:7], s27 offen {spol}')
    a.e(f'buffer_store_dwordx4 {v(E+4,4)}, {v(vA0)}, s[4:7], s27 offen offset:1024 {spol}')
    a.e(f'buffer_store_dwordx2 {v(E+8,2)}, {v(vT)}, s[4:7], s27 offen offset:2048 {spol}')
    a.e('s_waitcnt vmcnt(0)')
    stamp(a,3)
    stamp(a,4)
    stamp_store(a,5,34,'s16',8,1*1024*1024-256*8*128)
    a.e('s_endpgm')
    a.label('FFN_TAIL')
    if 'pfk3' in FL:
        pass
    stamp(a,3); stamp(a,4)
    stamp_store(a,5,34,'s16',8,1*1024*1024-256*8*128)
    a.e('s_endpgm')


def exch_addr(a,r0,r1):
    for u,r in ((0,r0),(1,r1)):
        a.e(f's_add_u32 s27, s23, {u}')
        a.e('s_mul_i32 s27, s27, 3')
        a.e(f's_cmp_gt_u32 s22, {u}')
        a.e('s_cselect_b32 s28, 1, 0')
        a.e('s_sub_u32 s28, s22, s28')
        a.e('s_add_u32 s27, s27, s28')
        a.e('s_mul_i32 s27, s27, 5120')
        a.e(f'v_add_u32 {v(r)}, s27, {v(vA0)}')

def lane_off(a,vXo,vXo2,vT):
    a.e(f'v_bfe_u32 {v(vXo)}, {v(vA0)}, 4, 4')
    a.e(f'v_lshrrev_b32 {v(vXo2)}, 8, {v(vA0)}')
    a.e(f'v_mul_u32_u24 {v(vXo)}, 1280, {v(vXo)}')
    a.e(f'v_lshlrev_b32 {v(vXo2)}, 3, {v(vXo2)}')
    a.e(f'v_add_u32 {v(vT)}, {v(vXo)}, {v(vXo2)}')
    a.e(f'v_add_u32 {v(vXo)}, {v(vT)}, {v(vXo2)}')
    a.e(f'v_add_u32 {v(vXo2)}, 128, {v(vT)}')

def tail_can(a,AA,BB,A2,vLA,vB1,vT):
    a.e('s_mul_i32 s27, s18, 348160')
    a.e(f's_mul_i32 s28, s22, {4*5120}')
    a.e('s_add_u32 s27, s27, s28')
    a.e(f's_add_u32 s27, s27, {WIMG+48*5120}')
    a.e('s_add_u32 s4, s34, s27'); a.e('s_addc_u32 s5, s35, 0'); a.e(f's_sub_u32 s6, {20*5120}, s28')
    for t in range(4): a.e(f'buffer_load_dwordx4 {v(AA+4*t,4)}, {v(vA0)}, s[4:7], 0 offen offset:{t*1024}')
    a.e(f'buffer_load_dwordx4 {v(AA+16,4)}, {v(vA1)}, s[4:7], 0 offen')
    a.e('s_mul_i32 s27, s22, 20480')
    a.e(f'v_add_u32 {v(vLA)}, s27, {v(vA0)}')
    a.e('s_mul_i32 s28, s19, 10240')
    a.e('s_add_u32 s27, s27, s28')
    a.e('s_add_u32 s28, s28, 5120')
    a.e(f's_mul_i32 s33, s22, {3*5120}')
    a.e(f's_sub_u32 s33, {16*5120}, s33')
    a.e('s_cmp_eq_u32 s19, 0')
    a.e('s_cselect_b32 s33, 10240, s33')
    a.e('s_barrier')
    for i in range(10):
        if i==5: a.e('s_mov_b32 s28, s33')
        a.e('s_mov_b32 m0, s27')
        a.e('s_add_u32 s27, s27, 1024')
        a.e(f'buffer_load_dwordx4 {v(vA0)}, s[4:7], s28 offen lds')
        a.e('s_add_u32 s28, s28, 1024')
    a.e('s_lshl_b32 s28, s17, 1'); a.e('s_add_u32 s28, s28, s19')
    a.e('s_mul_i32 s28, s28, 40960')
    a.e('s_lshl_b32 s29, s22, 13')
    a.e('s_add_u32 s28, s28, s29')
    a.e(f's_add_u32 s28, s28, {OIMG}')
    a.e('s_add_u32 s8, s34, s28'); a.e('s_addc_u32 s9, s35, 0'); a.e('s_sub_u32 s10, 40960, s29')
    a.e('s_mul_i32 s33, s22, 6144')
    a.e('s_sub_u32 s33, 32768, s33')
    exch_addr(a,1,vT)
    a.e(f'v_and_b32 {v(vB1)}, 0xf0, {v(vA0)}')
    a.e(f'v_lshrrev_b32 {v(vB1)}, 1, {v(vB1)}')
    a.e(f'v_sub_u32 {v(vB1)}, {v(vB0)}, {v(vB1)}')
    if 'can2' in FL:
        a.e(f'v_lshlrev_b32 v67, 6, {v(vA0)}')
        a.e('s_lshl_b32 s30, s18, 7')
    else:
        a.e(f'v_lshlrev_b32 v67, 4, {v(vA0)}')
        a.e('s_mov_b32 s30, s33')
    a.e('s_waitcnt vmcnt(0)')
    a.e('s_barrier')
    stamp(a,3)
    a.e('s_mov_b32 s31, 0')
    ppol='sc0 sc1' if 'psys' in FL else ('sc1 nt' if 'pnt' in FL else 'sc1')
    slp=[int(x[3:]) for x in FL if x.startswith('slp')]
    slp=slp[0] if slp else 6
    if 'hl' in FL:
        a.e(f's_add_u32 s40, s34, {FLAGS}'); a.e('s_addc_u32 s41, s35, 0'); a.e(f's_mov_b32 s42, {FLAGS_BYTES}'); a.e('s_mov_b32 s43, 0x00020000')
        a.e('s_lshl_b32 s44, s17, 1'); a.e('s_add_u32 s44, s44, s19'); a.e('s_lshl_b32 s44, s44, 2'); a.e('s_add_u32 s44, s44, s22'); a.e('s_lshl_b32 s44, s44, 7')
        a.e(f'v_lshrrev_b32 {v(BB+1)}, 2, {v(vA0)}')
        a.e('s_mov_b64 exec, 0xff')
        a.label('FFN_P1')
        if slp: a.e(f's_sleep {slp}')
        a.e(f'buffer_load_dword {v(BB)}, {v(BB+1)}, s[40:43], s44 offen {ppol}')
        a.e('s_add_u32 s31, s31, 1')
        a.e('s_waitcnt vmcnt(0)')
        a.e(f'v_cmp_ne_u32 vcc, 1, {v(BB)}')
        a.e('s_cbranch_vccz FFN_P2' if 'hl2' in FL else 's_cbranch_vccz FFN_GO')
        a.e('s_cmp_lt_u32 s31, 0x40000')
        a.e('s_cbranch_scc1 FFN_P1')
    else:
        a.e('s_mov_b64 exec, 0xff' if 'pany' in FL else 's_mov_b64 exec, 1')
        if 'tlo' in FL:
            a.e('s_mov_b32 s40, s38'); a.e('s_mov_b32 s41, s39'); a.e('s_mov_b32 s42, 2621440'); a.e('s_mov_b32 s43, 0x00020000')
            a.e(f'buffer_load_dword {v(BB)}, off, s[40:43], s26')
        a.label('FFN_P1')
        if slp: a.e(f's_sleep {slp}')
        a.e(f'buffer_load_dword {v(BB)}, v67, s[8:11], s30 offen {ppol}')
        a.e('s_add_u32 s31, s31, 1')
        a.e('s_waitcnt vmcnt(0)')
        a.e(f'v_cmp_eq_u32 vcc, -1, {v(BB)}')
        if 'pany' in FL:
            a.e('s_cbranch_vccz FFN_GO')
            a.e('s_cmp_eq_u32 vcc_lo, 0xff')
            a.e('s_cbranch_scc0 FFN_P2')
        else: a.e('s_cbranch_vccz FFN_GO' if 'nost2' in FL else 's_cbranch_vccz FFN_P2')
        a.e('s_cmp_lt_u32 s31, 0x40000')
        a.e('s_cbranch_scc1 FFN_P1')
    a.label('FFN_P2')
    a.e('s_mov_b64 exec, 0xff')
    a.label('FFN_P3')
    sl2=[int(x[3:]) for x in FL if x.startswith('slq') ]
    if sl2 and sl2[0]: a.e(f's_sleep {sl2[0]}')
    a.e(f'buffer_load_dword {v(BB)}, v67, s[8:11], s30 offen {ppol}')
    a.e('s_add_u32 s31, s31, 1')
    a.e('s_waitcnt vmcnt(0)')
    a.e(f'v_cmp_eq_u32 vcc, -1, {v(BB)}')
    a.e('s_cbranch_vccz FFN_GO')
    a.e('s_cmp_lt_u32 s31, 0x80000')
    a.e('s_cbranch_scc1 FFN_P3')
    a.label('FFN_GO')
    a.e('s_mov_b64 exec, -1')
    if 'fprio' in FL: a.e('s_setprio 3')
    stamp(a,5)
    def loads(j,pol,first):
        b=BB+8*j
        if j<4:
            so='0' if j<2 else 's29'
            if j>=2 and not (first and j==3): a.e('s_movk_i32 s29, 4096')
            for u in range(2): a.e(f'buffer_load_dwordx4 {v(b+4*u,4)}, {v(vB0)}, s[8:11], {so} offen offset:{(j*2048+u*256)%4096} {pol}')
        else:
            for u in range(2):
                for h in range(2): a.e(f'buffer_load_dwordx2 {v(b+4*u+2*h,2)}, {v(vB1)}, s[8:11], s33 offen offset:{u*128+h*256} {pol}')
    for j in range(5): loads(j,'' if 'opl' in FL else 'sc1',True)
    for j in range(5):
        a.e(f's_waitcnt vmcnt({2*(3-j)+4 if j<4 else 0})')
        lc=a.newlabel('oc'); lo=a.newlabel('oo'); b=BB+8*j
        a.label(lc)
        a.e(f'v_max3_u32 v67, {v(b)}, {v(b+1)}, {v(b+2)}')
        a.e(f'v_max3_u32 v67, v67, {v(b+3)}, {v(b+4)}')
        a.e(f'v_max3_u32 v67, v67, {v(b+5)}, {v(b+6)}')
        a.e(f'v_max_u32 v67, v67, {v(b+7)}')
        a.e('v_cmp_eq_u32 vcc, -1, v67')
        a.e(f's_cbranch_vccz {lo}')
        a.e('s_add_u32 s31, s31, 1')
        a.e('s_cmp_ge_u32 s31, 0xc0000')
        a.e(f's_cbranch_scc1 {lo}')
        loads(j,'sc1',False)
        a.e('s_waitcnt vmcnt(0)')
        a.e(f's_branch {lc}')
        a.label(lo)
        if j==0: stamp(a,6)
        for t in range(5):
            if j>0: a.e(f's_waitcnt lgkmcnt({4 if j<4 else 4-t})')
            for u in range(2):
                d=A2+(u*5+t)*4
                c=v(d,4) if j>0 else '0'
                a.e(f'v_mfma_f32_16x16x32_bf16 {v(d,4)}, {v(AA+4*t,4)}, {v(BB+8*j+4*u,4)}, {c}')
            if j<4: a.e(f'ds_read_b128 {v(AA+4*t,4)}, {v(vLA)} offset:{j*5120+t*1024}')

def fused_tail(a):
    spol=' '.join(x for x in ('sc0','sc1','nt') if 'k3st_'+x in FL)
    GP=108; X=118; A2=68; BB=4; AA=44; vXo=64; vXo2=65; vLA=66; vT=3
    R=BUF
    a.e('s_and_b32 s24, s22, 1')
    a.e('s_add_u32 s24, s23, s24')
    a.e('s_lshl_b32 s27, s17, 6'); a.e('s_lshl_b32 s28, s24, 4'); a.e('s_add_u32 s27, s27, s28')
    a.e('s_mul_i32 s27, s27, 1280'); a.e('s_mul_i32 s28, s18, 160'); a.e('s_add_u32 s26, s27, s28')
    a.e('s_mov_b32 s12, s36'); a.e('s_mov_b32 s13, s37'); a.e('s_mov_b32 s14, 2621440'); a.e('s_mov_b32 s15, 0x00020000')
    a.e('s_cmp_ge_u32 s22, 2')
    a.e('s_cbranch_scc1 FFN_NOG')
    a.e(f's_mul_i32 s27, s24, {3*5120}')
    a.e(f'v_add_u32 {v(vT)}, s27, {v(vA0)}')
    for k in range(3):
        for t in range(5): a.e(f'ds_read_b128 {v(R+20*k+4*t,4)}, {v(vT)} offset:{(k*5+t)*1024}')
    a.e('s_cmp_eq_u32 s22, 0')
    a.e('s_cbranch_scc1 FFN_OWN0')
    for i in range(20): a.e(f'v_mov_b32 {v(ACC+i)}, {v(ACC+20+i)}')
    a.label('FFN_OWN0')
    G=ACC; E=ACC+20
    a.e('s_waitcnt lgkmcnt(10)')
    for i in range(20): a.e(f'v_add_f32 {v(G+i)}, {v(G+i)}, {v(R+i)}')
    a.e('s_waitcnt lgkmcnt(5)')
    for i in range(20): a.e(f'v_add_f32 {v(G+i)}, {v(G+i)}, {v(R+20+i)}')
    a.e('s_waitcnt lgkmcnt(0)')
    for i in range(20): a.e(f'v_add_f32 {v(G+i)}, {v(G+i)}, {v(R+40+i)}')
    for i in range(20): a.e(f'v_mul_f32 {v(E+i)}, 0xbfb8aa3b, {v(G+i)}')
    for i in range(20): a.e(f'v_exp_f32 {v(E+i)}, {v(E+i)}')
    for i in range(20): a.e(f'v_add_f32 {v(E+i)}, 1.0, {v(E+i)}')
    for i in range(20): a.e(f'v_rcp_f32 {v(E+i)}, {v(E+i)}')
    for i in range(20): a.e(f'v_mul_f32 {v(G+i)}, {v(G+i)}, {v(E+i)}')
    assert GP==E
    for i in range(10): a.e(f'v_cvt_pk_bf16_f32 {v(GP+i)}, {v(G+2*i)}, {v(G+2*i+1)}')
    lane_off(a,vXo,vXo2,vT)
    a.e(f'buffer_load_dwordx4 {v(X,4)}, {v(vXo)}, s[12:15], s26 offen')
    a.e(f'buffer_load_dwordx4 {v(X+4,4)}, {v(vXo)}, s[12:15], s26 offen offset:64')
    a.e(f'buffer_load_dwordx2 {v(X+8,2)}, {v(vXo2)}, s[12:15], s26 offen')
    a.label('FFN_NOG')
    lane_off(a,vXo,vXo2,vT)
    if 'can' in FL:
        tail_can(a,AA,BB,A2,vLA,vXo2,vT)
    else:
        a.e('s_mul_i32 s27, s18, 348160')
        a.e(f's_mul_i32 s28, s22, {5*5120}')
        a.e('s_add_u32 s27, s27, s28')
        a.e(f's_add_u32 s27, s27, {WIMG+48*5120}')
        a.e('s_add_u32 s4, s34, s27'); a.e('s_addc_u32 s5, s35, 0'); a.e(f's_mov_b32 s6, {5*5120}')
        for t in range(4): a.e(f'buffer_load_dwordx4 {v(AA+4*t,4)}, {v(vA0)}, s[4:7], 0 offen offset:{t*1024}')
        a.e(f'buffer_load_dwordx4 {v(AA+16,4)}, {v(vA1)}, s[4:7], 0 offen')
        a.e('s_mul_i32 s27, s22, 20480')
        a.e(f'v_add_u32 {v(vLA)}, s27, {v(vA0)}')
        a.e('s_mul_i32 s28, s19, 10240')
        a.e('s_add_u32 s27, s27, s28')
        a.e('s_add_u32 s28, s28, 5120')
        a.e('s_barrier')
        for i in range(10):
            a.e('s_mov_b32 m0, s27')
            a.e('s_add_u32 s27, s27, 1024')
            a.e(f'buffer_load_dwordx4 {v(vA0)}, s[4:7], s28 offen lds')
            a.e('s_add_u32 s28, s28, 1024')
        a.e('s_lshl_b32 s28, s17, 1'); a.e('s_add_u32 s28, s28, s19')
        a.e('s_mul_i32 s28, s28, 40960')
        a.e(f's_mul_i32 s29, s22, {5*2048}')
        a.e('s_add_u32 s28, s28, s29')
        a.e(f's_add_u32 s28, s28, {OIMG}')
        a.e('s_add_u32 s8, s34, s28'); a.e('s_addc_u32 s9, s35, 0'); a.e(f's_mov_b32 s10, {5*2048}')
        exch_addr(a,1,vT)
        a.e('s_waitcnt vmcnt(0)')
        stamp(a,3)
        a.e('s_mov_b32 s31, 0')
        a.e('s_cmp_eq_u32 s16, 0')
        a.e('s_cbranch_scc0 FFN_GO')
        a.e(f's_add_u32 s40, s34, {FLAGS}'); a.e('s_addc_u32 s41, s35, 0'); a.e(f's_mov_b32 s42, {FLAGS_BYTES}'); a.e('s_mov_b32 s43, 0x00020000')
        a.e('s_lshl_b32 s29, s17, 8')
        a.e(f'v_lshrrev_b32 {v(BB)}, 2, {v(vA0)}')
        a.label('FFN_POLL')
        a.e(f'buffer_load_dword {v(BB+1)}, {v(BB)}, s[40:43], s29 offen sc1')
        a.e('s_add_u32 s31, s31, 1')
        a.e('s_waitcnt vmcnt(0)')
        a.e(f'v_cmp_ne_u32 vcc, 1, {v(BB+1)}')
        a.e('s_cbranch_vccz FFN_GO')
        a.e('s_cmp_lt_u32 s31, 0x40000')
        a.e('s_cbranch_scc1 FFN_POLL')
        a.label('FFN_GO')
        a.e('s_barrier')
        stamp(a,5)
        for j in range(5):
            for u in range(2):
                off=j*2048+u*256
                a.e(f'buffer_load_dwordx4 {v(BB+8*j+4*u,4)}, {v(vB0)}, s[8:11], {"0" if off<4096 else "s29"} offen offset:{off%4096} {"" if "opl" in FL else "sc1"}')
            if j==1: a.e('s_movk_i32 s29, 4096')
            if j==3: a.e('s_movk_i32 s29, 8192')
        for j in range(5):
            a.e(f's_waitcnt vmcnt({2*(4-j)})')
            if 'sent' in FL:
                lc=a.newlabel('oc'); lo=a.newlabel('oo'); b=BB+8*j
                a.label(lc)
                a.e(f'v_max3_u32 v67, {v(b)}, {v(b+1)}, {v(b+2)}')
                a.e(f'v_max3_u32 v67, v67, {v(b+3)}, {v(b+4)}')
                a.e(f'v_max3_u32 v67, v67, {v(b+5)}, {v(b+6)}')
                a.e(f'v_max_u32 v67, v67, {v(b+7)}')
                a.e('v_cmp_eq_u32 vcc, -1, v67')
                a.e(f's_cbranch_vccz {lo}')
                a.e('s_add_u32 s31, s31, 1')
                a.e('s_cmp_ge_u32 s31, 0x80000')
                a.e(f's_cbranch_scc1 {lo}')
                a.e(f's_movk_i32 s30, {(j*2048)&~4095}')
                for u in range(2):
                    off=j*2048+u*256
                    a.e(f'buffer_load_dwordx4 {v(b+4*u,4)}, {v(vB0)}, s[8:11], s30 offen offset:{off%4096} sc1')
                a.e('s_waitcnt vmcnt(0)')
                a.e(f's_branch {lc}')
                a.label(lo)
            if j==0: stamp(a,6)
            for t in range(5):
                if j>0: a.e(f's_waitcnt lgkmcnt({4 if j<4 else 4-t})')
                for u in range(2):
                    d=A2+(u*5+t)*4
                    c=v(d,4) if j>0 else '0'
                    a.e(f'v_mfma_f32_16x16x32_bf16 {v(d,4)}, {v(AA+4*t,4)}, {v(BB+8*j+4*u,4)}, {c}')
                if j<4: a.e(f'ds_read_b128 {v(AA+4*t,4)}, {v(vLA)} offset:{j*5120+t*1024}')
    a.e('s_barrier')
    stamp(a,7)
    a.e('s_nop 7')
    for u,r in ((0,1),(1,vT)):
        l=a.newlabel('fy')
        a.e(f's_cmp_eq_u32 s22, {u}')
        a.e(f's_cbranch_scc1 {l}')
        for t in range(5): a.e(f'ds_write_b128 {v(r)}, {v(A2+(u*5+t)*4,4)} offset:{t*1024}')
        a.label(l)
    a.e('s_waitcnt lgkmcnt(0)')
    a.e('s_barrier')
    a.e('s_cmp_ge_u32 s22, 2')
    a.e('s_cbranch_scc1 FFN_TAIL')
    a.e(f's_mul_i32 s27, s24, {3*5120}')
    a.e(f'v_add_u32 {v(vT)}, s27, {v(vA0)}')
    for k in range(3):
        for t in range(5): a.e(f'ds_read_b128 {v(R+20*k+4*t,4)}, {v(vT)} offset:{(k*5+t)*1024}')
    a.e('s_cmp_eq_u32 s22, 0')
    a.e('s_cbranch_scc1 FFN_OWN1')
    for i in range(20): a.e(f'v_mov_b32 {v(A2+i)}, {v(A2+20+i)}')
    a.label('FFN_OWN1')
    S=A2; W=A2+20
    a.e('s_mov_b32 s12, s38'); a.e('s_mov_b32 s13, s39'); a.e('s_mov_b32 s14, 2621440'); a.e('s_mov_b32 s15, 0x00020000')
    a.e('s_waitcnt lgkmcnt(10)')
    for i in range(20): a.e(f'v_add_f32 {v(S+i)}, {v(S+i)}, {v(R+i)}')
    a.e('s_waitcnt lgkmcnt(5)')
    for i in range(20): a.e(f'v_add_f32 {v(S+i)}, {v(S+i)}, {v(R+20+i)}')
    for i in range(10):
        a.e(f'v_lshlrev_b32 {v(W+2*i)}, 16, {v(GP+i)}')
        a.e(f'v_and_b32 {v(W+2*i+1)}, 0xffff0000, {v(GP+i)}')
        a.e(f'v_lshlrev_b32 {v(R+2*i)}, 16, {v(X+i)}')
        a.e(f'v_and_b32 {v(R+2*i+1)}, 0xffff0000, {v(X+i)}')
    a.e('s_waitcnt lgkmcnt(0)')
    for i in range(20): a.e(f'v_add_f32 {v(S+i)}, {v(S+i)}, {v(R+40+i)}')
    if 'can' in FL: lane_off(a,vXo,vXo2,vT)
    for i in range(20): a.e(f'v_fma_f32 {v(S+i)}, {v(S+i)}, {v(W+i)}, {v(R+i)}')
    for i in range(10): a.e(f'v_cvt_pk_bf16_f32 {v(W+i)}, {v(S+2*i)}, {v(S+2*i+1)}')
    a.e(f'buffer_store_dwordx4 {v(W,4)}, {v(vXo)}, s[12:15], s26 offen {spol}')
    a.e(f'buffer_store_dwordx4 {v(W+4,4)}, {v(vXo)}, s[12:15], s26 offen offset:64 {spol}')
    a.e(f'buffer_store_dwordx2 {v(W+8,2)}, {v(vXo2)}, s[12:15], s26 offen {spol}')
    a.e('s_waitcnt vmcnt(0)')
    stamp(a,4)
    stamp_store(a,8,34,'s16',8,1*1024*1024-256*8*128)
    a.e('s_endpgm')
    a.label('FFN_TAIL')
    stamp(a,4)
    stamp_store(a,8,34,'s16',8,1*1024*1024-256*8*128)
    a.e('s_endpgm')
```

```python
from asmlib import *
from layouts import QIMG,KIMG,VIMG,HIMG,WIMG,WIMG_BYTES,FLAGS,FLAGS_BYTES,OIMG
from stamps import stamp, stamp_store, stampc
import stamps
XS=16384; WBASE=49152; WP=20544
CS=WBASE+5*WP
CSP=CS+1280
NM=CSP+2560
RR=NM+512
ST2=RR+512
LDS=ST2+1024
SP=LDS
def lds_size(): return LDS+(5120 if 'wearly' in FL else 0)
WF=4
XF=24
XA=40
WA=44
SEL=48
vT=58; vT2=59; vT3=60; vT4=61
CSA=64
ACC=96
NV=256
FL=set()
def acc(i,t): return ACC+(i*5+t)*16
def mfma(d,a_,b_):
    if 'm16' in FL:
        return f'v_mfma_f32_16x16x32_bf16 {v(d,4)}, {v(a_,4)}, {v(b_,4)}, {v(d,4)}\n    v_mfma_f32_16x16x32_bf16 {v(d+4,4)}, {v(a_,4)}, {v(b_,4)}, {v(d+4,4)}'
    return f'v_mfma_f32_32x32x16_bf16 {v(d,16)}, {v(a_,4)}, {v(b_,4)}, {v(d,16)}'

def wread(a,var,jl,t):
    if var=='ffn':
        reg=WA+2*jl; pitch=320; off=32*t
    else:
        reg=WA+2*jl+(t%2); pitch=640; off=64*t
    for p in range(2):
        a.e(f'ds_read_b64_tr_b16 {v(WF+4*t+2*p,2)}, {v(reg)} offset:{off+4*p*pitch}')
def xread(a,buf,j):
    for i in range(2):
        a.e(f'ds_read_b128 {v(XF+buf*8+i*4,4)}, {v(XA+j)} offset:{i*4096}')

def kstep(a,var,k):
    jl=k%2; xb=k%2
    a.c(f'kstep {k}')
    A=[[] for _ in range(5)]
    if jl==1 and 'nobar' not in FL: A[0].append('BAR')
    A[1]+=[f'ds_read_b128 {v(XF+(1-xb)*8+i*4,4)}, {v(XA+(k+1)%4)} offset:{i*4096}' for i in range(2)]
    regs=[WA+2*jl] if var=='ffn' else [WA+2*jl,WA+2*jl+1]
    A[2]+=[f'v_add_u32 {v(r)}, s22, {v(r)}' for r in regs]
    xs={1:[0,1],2:[2],3:[3]}.get(k,[])
    A[3]+=[f'v_add_u32 {v(XA+j)}, s24, {v(XA+j)}' for j in xs]
    if jl==1:
        A[3]+=['s_add_u32 s23, s23, 1','s_cmp_eq_u32 s23, 5']
        A[4]+=['s_cselect_b32 s22, s45, s44','s_cselect_b32 s23, 0, s23']
    if k==0:
        A[0]+=['s_add_u32 s25, s25, 1','s_cmp_eq_u32 s25, 3']
        A[0]+=['s_cselect_b32 s24, s47, s46']
        A[4]+=['s_cmp_eq_u32 s25, 3','s_cselect_b32 s25, 0, s25']
    if k==2:
        A[4]=['s_add_u32 s26, s26, 1']+A[4]
    if k==1 and 'ppf' in FL:
        A[1]+=['s_cmp_le_u32 s26, %d'%PPF_LAST(),'s_cselect_b32 s6, s6, 0']
        A[2]+=['buffer_load_dword v95, v94, s[4:7], 0 offen']
        A[3]=['v_add_u32 v94, s28, v94']+A[3]
    if k==3:
        A[4]+=['s_cmp_lt_u32 s26, 10']
    for t in range(5):
        n=8 if t<2 else 10
        a.e(f's_waitcnt lgkmcnt({n})')
        if 'nocs' not in FL and ((jl==0 and t%2==0) or (jl==1 and t%2==1)):
            a.e(f'v_mfma_f32_16x16x32_bf16 {v(CSA+4*t,4)}, {v(SEL,4)}, {v(WF+4*t,4)}, {v(CSA+4*t,4)}')
        for i in range(2):
            X=XF+xb*8+i*4
            if var=='v': a.e(mfma(acc(i,t),X,WF+4*t))
            else:        a.e(mfma(acc(i,t),WF+4*t,X))
            if i==0:
                for f in A[t]:
                    a.e('s_barrier' if f=='BAR' else f)
        wread(a,var,1-jl,t)

def stats(a,i,P,Pc=None,mode='qk'):
    a.e(f'v_mul_f32 {v(P)}, 0x3acccccd, {v(P)}')
    a.e(f'v_mul_f32 {v(P+1)}, 0x3acccccd, {v(P+1)}')
    a.e(f'v_fma_f32 {v(P+1)}, -{v(P)}, {v(P)}, {v(P+1)}')
    a.e(f'v_max_f32 {v(P+1)}, 0, {v(P+1)}')
    a.e(f'v_cvt_pk_bf16_f32 {v(P)}, {v(P)}, {v(P+1)}')
    a.e(f'v_and_b32 {v(P+1)}, 0xffff0000, {v(P)}')
    a.e(f'v_lshlrev_b32 {v(P)}, 16, {v(P)}')
    a.e(f'v_add_f32 {v(P+1)}, 0x3727c5ac, {v(P+1)}')
    a.e(f'v_cvt_pk_bf16_f32 {v(P+1)}, {v(P+1)}, {v(P+1)}')
    a.e(f'v_and_b32 {v(P+1)}, 0xffff0000, {v(P+1)}')
    a.e(f'v_sqrt_f32 {v(P+1)}, {v(P+1)}')
    a.e(f'v_xor_b32 {v(P)}, 0x80000000, {v(P)}')
    a.e(f'v_cvt_pk_bf16_f32 {v(P+1)}, {v(P+1)}, {v(P+1)}')
    a.e(f'v_and_b32 {v(P+1)}, 0xffff0000, {v(P+1)}')
    a.e(f'v_rcp_f32 {v(P+1)}, {v(P+1)}')
    a.e('s_nop 0')

def pkfma(d,x,y,z,bx=None,by=None,bz=None):
    sel=[0 if b is None else b for b in (bx,by,bz)]
    hi=[1 if b is None else b for b in (bx,by,bz)]
    return f'v_pk_fma_f32 {v(d,2)}, {v(x,2)}, {v(y,2)}, {v(z,2)} op_sel:[{sel[0]},{sel[1]},{sel[2]}] op_sel_hi:[{hi[0]},{hi[1]},{hi[2]}]'
def pkmul(d,x,y,bx=None,by=None):
    sel=[0 if b is None else b for b in (bx,by)]
    hi=[1 if b is None else b for b in (bx,by)]
    return f'v_pk_mul_f32 {v(d,2)}, {v(x,2)}, {v(y,2)} op_sel:[{sel[0]},{sel[1]}] op_sel_hi:[{hi[0]},{hi[1]}]'

def PPF_N():
    for n in (1,2,3,4,5):
        if f'ppf{n}' in FL: return n
    return 3
def PPF_LAST():
    return 8-PPF_N()
def ppf_setup(a,var):
    a.e('s_lshr_b32 s29, s2, 3'); a.e('s_and_b32 s29, s29, 7')
    if var=='ffn':
        L,mul,pitch,nw=3,21846,3072,2
        a.e('s_sub_u32 s31, s18, 6'); a.e('s_mul_i32 s31, s31, 320'); a.e('s_min_u32 s31, s31, 2752'); a.e('s_andn2_b32 s31, s31, 127')
        a.e('s_cmp_eq_u32 s16, 0'); a.e('s_cselect_b32 s4, s40, s42'); a.e('s_cselect_b32 s5, s41, s43')
    else:
        L,mul,pitch,nw=5,13108,3840,1
        a.e('s_mul_i32 s31, s18, 640')
        a.e('s_mov_b32 s4, s38'); a.e('s_mov_b32 s5, s39')
    a.e(f's_add_u32 s29, s29, 64')
    a.e(f'v_mul_u32_u24 v92, {mul}, v0')
    a.e('v_lshrrev_b32 v92, 16, v92')
    a.e(f'v_mul_u32_u24 v93, {L}, v92')
    a.e('v_sub_u32 v93, v0, v93')
    a.e('v_lshlrev_b32 v92, 3, v92')
    a.e('v_add_u32 v92, s29, v92')
    a.e(f'v_mul_u32_u24 v92, {pitch}, v92')
    a.e('v_lshlrev_b32 v93, 7, v93')
    a.e('v_add_u32 v92, v92, v93')
    a.e('v_add_u32 v92, s31, v92')
    a.e('v_bfrev_b32 v93, 1')
    a.e(f'v_cmp_gt_u32 vcc, {8*L}, v0')
    a.e('v_cndmask_b32 v94, v93, v92, vcc')
    a.e(f's_mov_b32 s28, {64*pitch}')
    a.e(f's_cmp_lt_u32 s16, {nw}'); a.e(f's_cselect_b32 s6, {640*pitch}, 0')
    a.e('s_mov_b32 s7, 0x00020000')
    a.e('s_cmp_eq_u32 s16, 2')
    a.e(f's_cbranch_scc0 K1_PPF_{var}')
    a.e('s_lshr_b32 s29, s2, 6'); a.e('s_lshl_b32 s29, s29, 5'); a.e('s_lshl_b32 s31, s17, 7'); a.e('s_add_u32 s29, s29, s31')
    a.e('v_add_u32 v92, s29, v0')
    a.e('v_mul_u32_u24 v92, 1280, v92')
    a.e('v_add_u32 v92, 256, v92')
    a.e('v_cmp_gt_u32 vcc, 32, v0')
    a.e('v_cndmask_b32 v94, v93, v92, vcc')
    a.e('s_mov_b32 s4, s36'); a.e('s_mov_b32 s5, s37'); a.e('s_mov_b32 s6, 2621440'); a.e('s_mov_b32 s28, 128')
    a.label(f'K1_PPF_{var}')
    for j in range(PPF_PRE()):
        a.e('buffer_load_dword v95, v94, s[4:7], 0 offen')
        a.e('v_add_u32 v94, s28, v94')
def PPF_PRE():
    for n in (0,1,2,3,4):
        if f'pre{n}' in FL: return n
    return PPF_N()

def main_loop(a,var):
    L=f'K1_{var.upper()}'
    if 'ppf' in FL: ppf_setup(a,var)
    a.e('s_barrier')
    stamp(a,1); stampc(a,8)
    if 'ppf' in FL:
        for j in range(PPF_N()-PPF_PRE()):
            a.e('buffer_load_dword v95, v94, s[4:7], 0 offen')
            a.e('v_add_u32 v94, s28, v94')
    wread(a,var,0,0)
    xread(a,0,0)
    for t in range(1,5): wread(a,var,0,t)
    a.e('s_mov_b32 s26, 0')
    a.e('s_mov_b32 s22, s44'); a.e('s_mov_b32 s23, 1')
    a.label(f'{L}_LOOP')
    for k in range(4): kstep(a,var,k)
    if stamps.STAMP:
        a.e('s_cmp_eq_u32 s26, 1')
        a.e(f's_cbranch_scc0 {L}_NS')
        stamp(a,7)
        a.label(f'{L}_NS')
        a.e('s_cmp_lt_u32 s26, 10')
    a.e(f's_cbranch_scc1 {L}_LOOP')
    stamp(a,2); stampc(a,9)
    step,r1=(64,640) if var=='ffn' else (128,64)
    a.e('s_nop 7')
    a.e('s_mov_b64 exec, 0xffff')
    for t in range(5):
        a.e(f'ds_write_b32 v62, {v(CSA+4*t)} offset:{t*step}')
        a.e(f'ds_write_b32 v62, {v(CSA+4*t+1)} offset:{t*step+r1}')
    a.e('s_mov_b64 exec, -1')
    a.e('s_waitcnt lgkmcnt(0)')
    stamp(a,5)
    a.e('s_barrier')
    if var!='v':
        a.e('ds_read_b64 v[64:65], v63 offset:0')
        a.e('ds_read_b64 v[66:67], v63 offset:256')
    a.e('s_barrier')
    stamp(a,6)

def k1_kernel(a,name):
    pol=' '.join(x for x in ('sc0','sc1','nt') if 'st_'+x in FL)
    if 'nost' in FL or pol:
        E0=a.e
        def e2(x):
            if x.startswith('buffer_store'):
                if 'nost' in FL: return
                x=x+' '+pol
            E0(x)
        a.e=e2
    a.lines.append(kernel_header(name))
    a.e('s_cmp_ge_u32 s2, 256')
    a.e('s_cbranch_scc1 K1_END')
    a.e('s_load_dwordx2 s[34:35], s[0:1], 72')
    a.e('s_load_dwordx2 s[36:37], s[0:1], 0')
    a.e('s_load_dwordx2 s[38:39], s[0:1], 8')
    a.e('s_load_dwordx4 s[40:43], s[0:1], 32')
    if 'wimg' in FL:
        a.e('s_load_dwordx2 s[50:51], s[0:1], 16')
        a.e('s_load_dwordx2 s[52:53], s[0:1], 48')
    stamp(a,0)
    a.e(f'v_lshrrev_b32 {v(vT)}, 6, v0')
    a.e('v_and_b32 v0, 63, v0')
    a.e(f'v_readfirstlane_b32 s16, {v(vT)}')
    a.e('s_and_b32 s27, s2, 7')
    a.e('s_lshr_b32 s29, s2, 3')
    a.e('s_and_b32 s17, s27, 1')
    a.e('s_lshl_b32 s17, s17, 3')
    a.e('s_and_b32 s30, s29, 7')
    a.e('s_add_u32 s17, s17, s30')
    a.e('s_lshr_b32 s18, s27, 1')
    a.e('s_lshl_b32 s18, s18, 2')
    a.e('s_lshr_b32 s30, s29, 3')
    a.e('s_add_u32 s18, s18, s30')
    if 'mix' in FL:
        perm=[0,1,6,7,2,3,8,9,4,10,11,12,5,13,14,15]
        lo=sum(perm[i]<<(4*i) for i in range(8)); hi=sum(perm[8+i]<<(4*i) for i in range(8))
        a.e(f's_mov_b32 s30, {lo}'); a.e(f's_mov_b32 s31, {hi}')
        a.e('s_lshl_b32 s18, s18, 2')
        a.e('s_lshr_b64 s[30:31], s[30:31], s18')
        a.e('s_and_b32 s18, s30, 15')
    a.e('s_cmp_ge_u32 s16, 4')
    a.e('s_cbranch_scc1 K1_LOADER')
    if 'sent' in FL:
        a.e('s_mul_i32 s27, s2, 10240')
        a.e(f's_add_u32 s27, s27, {OIMG}')
        a.e('v_lshlrev_b32 v59, 4, v0')
        for k in range(4): a.e(f'v_mov_b32 v{60+k}, -1')
        a.e('s_lshl_b32 s28, s16, 10')
        a.e('s_waitcnt lgkmcnt(0)')
        a.e('s_add_u32 s4, s34, s27'); a.e('s_addc_u32 s5, s35, 0'); a.e('s_mov_b32 s6, 10240'); a.e('s_mov_b32 s7, 0x00020000')
        a.e('buffer_store_dwordx4 v[60:63], v59, s[4:7], s28 offen')
        a.e('s_add_u32 s28, s28, 4096')
        a.e('buffer_store_dwordx4 v[60:63], v59, s[4:7], s28 offen')
        a.e('s_add_u32 s28, s28, 4096')
        a.e('buffer_store_dwordx4 v[60:63], v59, s[4:7], s28 offen')
        a.e('s_nop 3')
    if 'cpa' in FL:
        a.e('s_cmp_lt_u32 s2, 32'); a.e('s_cbranch_scc0 K1_CPA_END')
        a.e('s_getpc_b64 s[4:5]')
        a.label('K1_CPA_PC')
        a.e('s_sub_u32 s4, s4, K1_CPA_PC-k1_kernel'); a.e('s_subb_u32 s5, s5, 0')
        a.e('s_mov_b32 s6, FFN_TAIL+4-k1_kernel'); a.e('s_mov_b32 s7, 0x00020000')
        a.e('v_lshlrev_b32 v52, 7, v0'); a.e('s_lshl_b32 s28, s16, 13')
        a.e('buffer_load_dword v53, v52, s[4:7], s28 offen')
        a.label('K1_CPA_END')
    if 'pf' in FL:
        pol=' '.join(x for x in ('sc0','sc1','nt') if 'pf_'+x in FL)
        a.e('s_lshr_b32 s27, s2, 6')
        a.e('s_lshr_b32 s29, s2, 3'); a.e('s_and_b32 s29, s29, 7')
        a.e('s_lshl_b32 s30, s17, 7'); a.e('s_lshl_b32 s27, s27, 5'); a.e('s_add_u32 s30, s30, s27')
        a.e('v_and_b32 v52, 31, v0')
        a.e('v_add_u32 v52, s30, v52')
        a.e('v_mul_u32_u24 v52, 1280, v52')
        a.e('v_lshrrev_b32 v53, 5, v0')
        a.e('v_lshlrev_b32 v53, 7, v53')
        a.e('v_add_u32 v52, v52, v53')
        a.e('s_lshl_b32 s30, s16, 8')
        a.e('s_cmp_ge_u32 s18, 6')
        a.e('s_cbranch_scc1 K1_PF_FFN')
        a.e('s_lshl_b32 s27, s16, 6')
        for q in range(2):
            a.e(f'v_add_u32 v53, s27, v0')
            if q==1: a.e('v_add_u32 v53, 256, v53')
            a.e(f'v_mul_u32_u24 v54, 13108, v53')
            a.e('v_lshrrev_b32 v54, 16, v54')
            a.e('v_mul_u32_u24 v55, 5, v54')
            a.e('v_sub_u32 v55, v53, v55')
            a.e('v_lshlrev_b32 v54, 3, v54')
            a.e('v_add_u32 v54, s29, v54')
            a.e('v_mul_u32_u24 v54, 3840, v54')
            a.e('v_lshlrev_b32 v55, 7, v55')
            a.e(f'v_add_u32 v{55+q+1}, v54, v55')
        a.e('s_mul_i32 s31, s18, 640')
        a.e('s_waitcnt lgkmcnt(0)')
        a.e('s_mov_b32 s4, s38'); a.e('s_mov_b32 s5, s39'); a.e(f's_mov_b32 s6, {640*3840}')
        a.e('s_branch K1_PF_GO')
        a.label('K1_PF_FFN')
        a.e('s_and_b32 s27, s16, 1')
        a.e('s_lshl_b32 s27, s27, 6')
        for q in range(2):
            a.e(f'v_add_u32 v53, s27, v0')
            if q==1: a.e('v_add_u32 v53, 128, v53')
            a.e(f'v_mul_u32_u24 v54, 21846, v53')
            a.e('v_lshrrev_b32 v54, 16, v54')
            a.e('v_mul_u32_u24 v55, 3, v54')
            a.e('v_sub_u32 v55, v53, v55')
            a.e('v_lshlrev_b32 v54, 3, v54')
            a.e('v_add_u32 v54, s29, v54')
            a.e('v_mul_u32_u24 v54, 3072, v54')
            a.e('v_lshlrev_b32 v55, 7, v55')
            a.e(f'v_add_u32 v{55+q+1}, v54, v55')
        a.e('s_sub_u32 s31, s18, 6')
        a.e('s_mul_i32 s31, s31, 320')
        a.e('s_min_u32 s31, s31, 2752')
        a.e('s_andn2_b32 s31, s31, 127')
        a.e('s_waitcnt lgkmcnt(0)')
        a.e('s_cmp_lt_u32 s16, 2')
        a.e('s_cselect_b32 s4, s40, s42')
        a.e('s_cselect_b32 s5, s41, s43')
        a.e(f's_mov_b32 s6, {640*3072}')
        a.label('K1_PF_GO')
        a.e('s_mov_b32 s7, 0x00020000')
        a.e('s_mov_b32 s8, s36'); a.e('s_mov_b32 s9, s37'); a.e('s_mov_b32 s10, 2621440'); a.e('s_mov_b32 s11, 0x00020000')
        a.e(f'buffer_load_dword v95, v56, s[4:7], s31 offen {pol}')
        a.e(f'buffer_load_dword v95, v52, s[8:11], s30 offen {pol}')
        a.e(f'buffer_load_dword v95, v57, s[4:7], s31 offen {pol}')
        a.e('s_cmp_eq_u32 s16, 0')
        a.e('s_cbranch_scc0 K1_PF_END')
        a.e(f'buffer_load_dword v95, v52, s[8:11], 0 offen offset:1024 {pol}')
        a.label('K1_PF_END')
    if 'cp3' in FL: a.e('s_setprio 3')
    a.e('s_lshr_b32 s19, s16, 1')
    a.e('s_and_b32 s20, s16, 1')
    a.e('s_xor_b32 s21, s19, s20')
    a.e(f's_mov_b32 s44, {WP}'); a.e(f's_mov_b32 s45, {(-4*WP)&0xffffffff}'); a.e(f's_mov_b32 s46, {XS}'); a.e(f's_mov_b32 s47, {(-2*XS)&0xffffffff}')
    a.e(f'v_and_b32 {v(vT)}, 31, v0')
    a.e(f'v_lshrrev_b32 {v(vT2)}, 5, v0')
    a.e(f'v_bfe_u32 {v(vT3)}, v0, 1, 3')
    a.e(f'v_lshlrev_b32 {v(vT4)}, 7, {v(vT)}')
    a.e('s_lshl_b32 s27, s19, 13')
    a.e(f'v_add_u32 {v(vT4)}, s27, {v(vT4)}')
    for kk in range(4):
        a.e(f's_xor_b32 s27, s21, {kk%2}')
        a.e(f's_add_u32 s27, s27, {2*(kk//2)}')
        a.e('s_lshl_b32 s27, s27, 1')
        a.e(f'v_add_u32 {v(XA+kk)}, s27, {v(vT2)}')
        a.e(f'v_xor_b32 {v(XA+kk)}, {v(XA+kk)}, {v(vT3)}')
        a.e(f'v_lshlrev_b32 {v(XA+kk)}, 4, {v(XA+kk)}')
        a.e(f'v_add_u32 {v(XA+kk)}, {v(XA+kk)}, {v(vT4)}')
    a.e('s_lshl_b32 s27, s19, 9')
    a.e(f's_add_u32 s27, s27, {ST2}')
    a.e(f'v_lshlrev_b32 v63, 3, {v(vT)}')
    a.e('v_add_u32 v63, s27, v63')
    for k in range(20): a.e(f'v_mov_b32 {v(CSA+k)}, 0')
    a.e(f'v_and_b32 {v(vT2)}, 15, v0')
    a.e(f'v_bfe_u32 {v(vT3)}, v0, 4, 1')
    a.e(f'v_cmp_eq_u32 vcc, {v(vT2)}, {v(vT3)}')
    a.e(f'v_mov_b32 {v(vT2)}, 0')
    a.e(f'v_mov_b32 {v(vT3)}, 0x3f803f80')
    for k in range(4): a.e(f'v_cndmask_b32 {v(SEL+k)}, {v(vT2)}, {v(vT3)}, vcc')
    a.e('s_mov_b32 s25, 0')
    vH=84; vCh=85; vR=86; vC4=87; vRow=88
    a.e(f'v_lshrrev_b32 {v(vH)}, 5, v0')
    a.e(f'v_bfe_u32 {v(vCh)}, v0, 4, 1')
    a.e(f'v_bfe_u32 {v(vR)}, v0, 2, 2')
    a.e(f'v_and_b32 {v(vC4)}, 3, v0')
    a.e(f'v_lshlrev_b32 {v(vRow)}, 3, {v(vH)}')
    a.e(f'v_add_u32 {v(vRow)}, {v(vRow)}, {v(vR)}')
    a.e('s_cmp_ge_u32 s18, 6')
    a.e('s_cbranch_scc1 K1_FFN_SETUP')
    a.e(f'v_mul_u32_u24 {v(vT2)}, 640, {v(vRow)}')
    a.e(f'v_lshlrev_b32 {v(vT3)}, 5, {v(vCh)}')
    a.e(f'v_add_u32 {v(vT2)}, {v(vT2)}, {v(vT3)}')
    a.e(f'v_lshlrev_b32 {v(vT3)}, 3, {v(vC4)}')
    a.e(f'v_add_u32 {v(vT2)}, {v(vT2)}, {v(vT3)}')
    a.e('s_mul_i32 s27, s20, 320')
    a.e(f's_add_u32 s27, s27, {WBASE}')
    a.e(f'v_add_u32 {v(vT2)}, s27, {v(vT2)}')
    a.e(f'v_lshrrev_b32 {v(vT3)}, 1, {v(vR)}')
    a.e(f'v_lshlrev_b32 {v(vT3)}, 6, {v(vT3)}')
    a.e(f'v_sub_u32 {v(vT4)}, 0, {v(vT3)}')
    a.e('s_cmp_eq_u32 s20, 0')
    a.e('s_cselect_b64 vcc, -1, 0')
    a.e(f'v_cndmask_b32 v89, {v(vT4)}, {v(vT3)}, vcc')
    a.e(f'v_cndmask_b32 v90, {v(vT3)}, {v(vT4)}, vcc')
    for jl in range(2):
        a.e(f's_xor_b32 s27, s21, {jl}')
        a.e(f's_mul_i32 s27, s27, {16*640}')
        a.e(f'v_add_u32 {v(vT3)}, s27, {v(vT2)}')
        a.e(f'v_add_u32 {v(WA+2*jl)}, {v(vT3)}, v89')
        a.e(f'v_add_u32 {v(WA+2*jl+1)}, {v(vT3)}, v90')
    a.e('s_mul_i32 s27, s20, 640')
    a.e('s_mul_i32 s29, s19, 1280')
    a.e('s_add_u32 s27, s27, s29')
    a.e(f's_add_u32 s27, s27, {CSP}')
    a.e(f'v_and_b32 v62, 15, v0')
    a.e(f'v_lshlrev_b32 v62, 2, v62')
    a.e('v_add_u32 v62, s27, v62')
    for k in range(160): a.e(f'v_mov_b32 {v(ACC+k)}, 0')
    a.e('s_waitcnt lgkmcnt(0)')
    a.e('s_cmp_ge_u32 s18, 4')
    a.e('s_cbranch_scc1 K1_V_START')
    main_loop(a,'qk')
    a.e(f'v_lshrrev_b32 {v(vT)}, 5, v0')
    a.e(f'v_lshlrev_b32 {v(vT)}, 4, {v(vT)}')
    a.e('s_mul_i32 s27, s20, 640')
    a.e(f's_add_u32 s27, s27, {CS}')
    a.e(f'v_add_u32 {v(vT)}, s27, {v(vT)}')
    CQ=[4,20]
    for b in range(4): a.e(f'ds_read_b128 {v(CQ[0]+4*b,4)}, {v(vT)} offset:{b*32}')
    a.e('s_cmp_lt_u32 s18, 2')
    a.e(f's_cselect_b32 s27, {QIMG}, {KIMG}')
    a.e('s_add_u32 s4, s34, s27')
    a.e('s_addc_u32 s5, s35, 0')
    a.e('s_mov_b32 s6, 2621440')
    a.e('s_mov_b32 s7, 0x00020000')
    a.e('s_cmp_lt_u32 s18, 2')
    a.e('s_cselect_b32 s29, 0x3ea52b5c, 0x3f800000')
    a.e('s_and_b32 s27, s18, 1')
    a.e('s_lshl_b32 s27, s27, 4')
    a.e('s_lshl_b32 s30, s20, 3')
    a.e('s_add_u32 s27, s27, s30')
    a.e('s_mul_i32 s30, s27, 81920')
    a.e('s_lshl_b32 s31, s17, 2')
    a.e('s_lshl_b32 s27, s19, 1')
    a.e('s_add_u32 s31, s31, s27')
    a.e('s_mul_i32 s31, s31, 1280')
    a.e('s_add_u32 s30, s30, s31')
    vL16=71; vR8=72
    a.e(f'v_lshlrev_b32 {v(vL16)}, 4, v0')
    a.e(f'v_and_b32 {v(vR8)}, 31, v0')
    a.e(f'v_lshlrev_b32 {v(vR8)}, 3, {v(vR8)}')
    a.e(f'v_lshrrev_b32 {v(vT2)}, 5, v0')
    a.e(f'v_mul_u32_u24 {v(vT2)}, 81920, {v(vT2)}')
    a.e(f'v_add_u32 {v(vR8)}, {v(vR8)}, {v(vT2)}')
    a.e(f'v_add_u32 {v(vR8)}, 1024, {v(vR8)}')
    a.e('s_waitcnt lgkmcnt(4)')
    for i in range(2):
        a.e(f'v_mul_f32 {v(65+2*i)}, s29, {v(65+2*i)}')
    TMP=76
    for t in range(5):
        if t<4:
            for b in range(4): a.e(f'ds_read_b128 {v(CQ[(t+1)%2]+4*b,4)}, {v(vT)} offset:{(t+1)*128+b*32}')
            a.e('s_waitcnt lgkmcnt(4)')
        else:
            a.e('s_waitcnt lgkmcnt(0)')
        for b in range(4):
            j=4*t+b; m=j//5; jj=j%5
            dst={0:0,1:2,2:4,3:8,4:10}[jj]+20*m
            for i in range(2):
                A=acc(i,0)+4*j; P=64+2*i; C=CQ[t%2]+4*b; T_=TMP+4*i
                a.e(pkfma(T_,C,P,A,None,0,None))
                a.e(pkfma(T_+2,C+2,P,A+2,None,0,None))
                a.e(pkmul(T_,T_,P,None,1))
                a.e(pkmul(T_+2,T_+2,P,None,1))
            for i in range(2):
                T_=TMP+4*i; D=acc(i,0)+dst
                a.e(f'v_cvt_pk_bf16_f32 {v(D)}, {v(T_)}, {v(T_+1)}')
                a.e(f'v_cvt_pk_bf16_f32 {v(D+1)}, {v(T_+2)}, {v(T_+3)}')
            if jj==4:
                for i in range(2):
                    B=acc(i,0)+20*m
                    a.e(f's_add_u32 s27, s30, {2*m*81920+i*1280}')
                    a.e(f's_add_u32 s31, s27, 81920')
                    a.e(f'buffer_store_dwordx4 {v(B,4)}, {v(vL16)}, s[4:7], s27 offen')
                    a.e(f'buffer_store_dwordx4 {v(B+8,4)}, {v(vL16)}, s[4:7], s31 offen')
                    a.e(f'buffer_store_dwordx2 {v(B+4,2)}, {v(vR8)}, s[4:7], s27 offen')
    a.e('s_branch K1_DONE')
    a.label('K1_V_START')
    main_loop(a,'v')
    CB=76
    a.e('s_mul_i32 s27, s20, 640')
    a.e(f's_add_u32 s27, s27, {CS}')
    a.e(f'v_and_b32 v62, 31, v0')
    a.e(f'v_lshlrev_b32 v62, 2, v62')
    a.e('v_add_u32 v62, s27, v62')
    for t in range(5): a.e(f'ds_read_b32 {v(CB+2*t)}, v62 offset:{t*128}')
    a.e(f'v_lshrrev_b32 {v(vT2)}, 5, v0')
    a.e(f'v_lshlrev_b32 {v(vT2)}, 4, {v(vT2)}')
    a.e('s_lshl_b32 s27, s19, 8')
    a.e(f's_add_u32 s27, s27, {NM}')
    a.e(f'v_add_u32 {v(vT2)}, s27, {v(vT2)}')
    a.e(f's_add_u32 s4, s34, {VIMG}')
    a.e('s_addc_u32 s5, s35, 0')
    a.e('s_mov_b32 s6, 2621440')
    a.e('s_mov_b32 s7, 0x00020000')
    a.e('s_sub_u32 s27, s18, 4')
    a.e(f's_mul_i32 s30, s27, {16*81920}')
    a.e('s_lshl_b32 s31, s17, 2')
    a.e('s_lshl_b32 s27, s19, 1')
    a.e('s_add_u32 s31, s31, s27')
    a.e('s_mul_i32 s31, s31, 1280')
    a.e('s_add_u32 s30, s30, s31')
    VO=86
    a.e(f'v_and_b32 {v(vT3)}, 31, v0')
    a.e('s_mul_i32 s27, s20, 160')
    a.e(f'v_add_u32 {v(vT3)}, s27, {v(vT3)}')
    a.e(f'v_lshrrev_b32 {v(vT4)}, 5, v0')
    a.e(f'v_mul_u32_u24 {v(vT4)}, 320, {v(vT4)}')
    for t in range(5):
        a.e(f'v_add_u32 v91, {32*t}, {v(vT3)}')
        a.e(f'v_mul_u32_u24 v92, 3277, v91')
        a.e(f'v_lshrrev_b32 v92, 16, v92')
        a.e(f'v_mul_u32_u24 v93, 20, v92')
        a.e(f'v_sub_u32 v91, v91, v93')
        a.e(f'v_lshlrev_b32 v91, 4, v91')
        a.e(f'v_add_u32 v91, v91, {v(vT4)}')
        a.e(f's_mov_b32 s27, 81920')
        a.e(f'v_mul_lo_u32 v92, v92, s27')
        a.e(f'v_add_u32 {v(VO+t)}, v91, v92')
    qN=4; qR=20; TMP=36
    for i in range(2):
        a.e('s_waitcnt lgkmcnt(0)')
        for b in range(4):
            a.e(f'ds_read_b128 {v(qN+4*b,4)}, {v(vT2)} offset:{i*128+b*32}')
            a.e(f'ds_read_b128 {v(qR+4*b,4)}, {v(vT2)} offset:{512+i*128+b*32}')
        a.e(f's_add_u32 s27, s30, {i*1280}')
        a.e('s_waitcnt lgkmcnt(0)')
        for t in range(5):
            A=acc(i,t)
            for j in range(2):
                for q in range(4):
                    r_=8*j+2*q
                    a.e(pkfma(TMP+2*q,qN+r_,CB+2*t,A+r_,None,0,None))
                for q in range(4):
                    r_=8*j+2*q
                    a.e(pkmul(TMP+2*q,TMP+2*q,qR+r_))
                for q in range(4):
                    a.e(f'v_cvt_pk_bf16_f32 {v(A+8*j+q)}, {v(TMP+2*q)}, {v(TMP+2*q+1)}')
                a.e(f'buffer_store_dwordx4 {v(A+8*j,4)}, {v(VO+t)}, s[4:7], s27 offen offset:{j*640}')
    a.e('s_branch K1_DONE')
    a.label('K1_FFN_SETUP')
    a.e(f'v_mul_u32_u24 {v(vT2)}, 320, {v(vRow)}')
    a.e(f'v_mul_u32_u24 {v(vT3)}, 10272, {v(vCh)}')
    a.e(f'v_add_u32 {v(vT2)}, {v(vT2)}, {v(vT3)}')
    a.e(f'v_lshlrev_b32 {v(vT3)}, 3, {v(vC4)}')
    a.e(f'v_add_u32 {v(vT2)}, {v(vT2)}, {v(vT3)}')
    a.e('s_mul_i32 s27, s20, 160')
    a.e(f's_add_u32 s27, s27, {WBASE}')
    a.e(f'v_add_u32 {v(vT2)}, s27, {v(vT2)}')
    for jl in range(2):
        a.e(f's_xor_b32 s27, s21, {jl}')
        a.e(f's_mul_i32 s27, s27, {16*320}')
        a.e(f'v_add_u32 {v(WA+2*jl)}, s27, {v(vT2)}')
    a.e(f'v_and_b32 v62, 15, v0')
    a.e('v_lshlrev_b32 v62, 2, v62')
    a.e('s_mul_i32 s27, s20, 320')
    a.e('s_mul_i32 s29, s19, 1280')
    a.e('s_add_u32 s27, s27, s29')
    a.e(f's_add_u32 s27, s27, {CSP}')
    a.e('v_add_u32 v62, s27, v62')
    for k in range(160): a.e(f'v_mov_b32 {v(ACC+k)}, 0')
    a.e('s_waitcnt lgkmcnt(0)')
    main_loop(a,'ffn')
    a.e(f'v_lshrrev_b32 {v(vT)}, 5, v0')
    a.e(f'v_lshlrev_b32 {v(vT)}, 4, {v(vT)}')
    a.e('s_mul_i32 s27, s20, 320')
    a.e(f's_add_u32 s27, s27, {CS}')
    a.e(f'v_add_u32 {v(vT)}, s27, {v(vT)}')
    CQ=[4,20]
    def csread(t):
        C=CQ[t%2]
        for b in range(2):
            a.e(f'ds_read_b128 {v(C+4*b,4)}, {v(vT)} offset:{t*64+b*32}')
            a.e(f'ds_read_b128 {v(C+8+4*b,4)}, {v(vT)} offset:{640+t*64+b*32}')
    csread(0)
    a.e(f's_add_u32 s4, s34, {HIMG}')
    a.e('s_addc_u32 s5, s35, 0')
    a.e('s_cmp_eq_u32 s18, 15'); a.e('s_cselect_b32 s27, 1, 0')
    a.e('s_cmp_eq_u32 s20, 0'); a.e('s_cselect_b32 s27, s27, 0')
    a.e('s_cmp_eq_u32 s27, 1'); a.e('s_cselect_b32 s6, 0, 6291456')
    a.e('s_mov_b32 s7, 0x00020000')
    a.e('s_sub_u32 s27, s18, 6')
    a.e('s_mul_i32 s27, s27, 10')
    a.e('s_min_u32 s27, s27, 86')
    a.e('s_mul_i32 s30, s20, 5')
    a.e('s_add_u32 s27, s27, s30')
    a.e('s_lshl_b32 s30, s27, 10')
    a.e('s_lshl_b32 s31, s17, 2')
    a.e('s_lshl_b32 s27, s19, 1')
    a.e('s_add_u32 s31, s31, s27')
    a.e('s_mul_i32 s31, s31, 98304')
    a.e('s_add_u32 s30, s30, s31')
    vL16=71
    a.e(f'v_lshlrev_b32 {v(vL16)}, 4, v0')
    a.e('s_waitcnt lgkmcnt(4)')
    for i in range(2):
        P=64+2*i
        a.e(f'v_mul_f32 {v(72+2*i)}, {v(P+1)}, {v(P+1)}')
        a.e(f'v_rcp_f32 {v(72+2*i)}, {v(72+2*i)}')
        a.e(f'v_mul_f32 {v(P+1)}, 0xbfb8aa3b, {v(P+1)}')
    E=76
    for t in range(5):
        if t<4:
            csread(t+1); a.e('s_waitcnt lgkmcnt(4)')
        else: a.e('s_waitcnt lgkmcnt(0)')
        C=CQ[t%2]
        for i in range(2):
            A=acc(i,t); P=64+2*i
            for q in range(4): a.e(pkfma(A+2*q,C+2*q,P,A+2*q,None,0,None))
        for i in range(2):
            A=acc(i,t); P=64+2*i
            for q in range(4): a.e(pkmul(E+8*i+2*q,A+2*q,P,None,1))
        for i in range(2):
            A=acc(i,t); P=64+2*i
            for q in range(4):
                a.e(f'v_exp_f32 {v(E+8*i+2*q)}, {v(E+8*i+2*q)}')
                a.e(f'v_exp_f32 {v(E+8*i+2*q+1)}, {v(E+8*i+2*q+1)}')
                a.e(pkfma(A+8+2*q,C+8+2*q,P,A+8+2*q,None,0,None))
        for i in range(2):
            A=acc(i,t); I=72+2*i
            for q in range(4):
                a.e(pkfma(E+8*i+2*q,E+8*i+2*q,I,I,None,0,0))
                a.e(pkmul(A+2*q,A+2*q,A+8+2*q))
        for i in range(2):
            for q in range(8): a.e(f'v_rcp_f32 {v(E+8*i+q)}, {v(E+8*i+q)}')
        for i in range(2):
            A=acc(i,t)
            for q in range(4): a.e(pkmul(A+2*q,A+2*q,E+8*i+2*q))
        if t==4: a.e('s_mov_b32 s6, 6291456')
        for i in range(2):
            A=acc(i,t)
            for q in range(4): a.e(f'v_cvt_pk_bf16_f32 {v(A+8+q)}, {v(A+2*q)}, {v(A+2*q+1)}')
            a.e(f's_add_u32 s27, s30, {i*98304+t*1024}')
            a.e(f'buffer_store_dwordx4 {v(A+8,4)}, {v(vL16)}, s[4:7], s27 offen')
    a.label('K1_DONE')
    stamp(a,3)
    a.e('s_waitcnt vmcnt(0)')
    stamp(a,4)
    stamp_store(a,10,34,'s16',8,3*1024*1024)
    a.e('s_endpgm')
    a.label('K1_LOADER')
    a.e('s_sub_u32 s19, s16, 4')
    if 'lp0' not in FL: a.e('s_setprio 3')
    if 'lst' in FL: stamp(a,5)
    vX=4; vW=8
    a.e(f'v_lshrrev_b32 {v(vT)}, 3, v0')
    a.e(f'v_and_b32 {v(vT2)}, 7, v0')
    a.e(f'v_lshrrev_b32 {v(vT3)}, 4, v0')
    a.e('s_lshl_b32 s27, s17, 7')
    a.e('s_lshl_b32 s29, s19, 5')
    a.e('s_add_u32 s27, s27, s29')
    a.e(f'v_xor_b32 {v(vT4)}, {v(vT3)}, {v(vT2)}')
    a.e(f'v_lshlrev_b32 {v(vT4)}, 4, {v(vT4)}')
    a.e(f'v_add_u32 {v(vX)}, s27, {v(vT)}')
    a.e(f'v_mul_u32_u24 {v(vX)}, 1280, {v(vX)}')
    a.e(f'v_xor_b32 {v(vT3)}, 64, {v(vT4)}')
    a.e(f'v_add_u32 {v(vX+1)}, {v(vX)}, {v(vT3)}')
    a.e(f'v_add_u32 {v(vX)}, {v(vX)}, {v(vT4)}')
    a.e(f'v_add_u32 {v(vX+1)}, 10240, {v(vX+1)}')
    a.e(f'v_add_u32 {v(vX+2)}, 20480, {v(vX)}')
    a.e(f'v_add_u32 {v(vX+3)}, 20480, {v(vX+1)}')
    if 'lst' in FL: stamp(a,6)
    a.e('s_waitcnt lgkmcnt(0)')
    a.e('s_mov_b32 s8, s36'); a.e('s_mov_b32 s9, s37'); a.e('s_mov_b32 s10, 2621440'); a.e('s_mov_b32 s11, 0x00020000')
    a.e('s_lshl_b32 s21, s19, 12')
    a.e('s_mov_b32 s25, 0'); a.e('s_mov_b32 s26, s21')
    a.e(f's_add_u32 s30, s21, {3*XS}')
    def issueX(pro=False):
        for i in range(4):
            if 'nodma' in FL and not pro: break
            a.e(f's_add_u32 m0, s26, {i*1024}')
            a.e('s_nop 0')
            a.e(f'buffer_load_dwordx4 {v(vX+i)}, s[8:11], s25 offen lds')
        a.e('s_add_u32 s25, s25, 128')
        a.e(f's_add_u32 s26, s26, {XS}')
        a.e('s_cmp_eq_u32 s26, s30')
        a.e('s_cselect_b32 s26, s21, s26')
    issueX(True)
    if 'lst' in FL: stamp(a,4)
    a.e('s_cmp_ge_u32 s18, 6')
    a.e('s_cbranch_scc1 K1_LD_FFN')
    a.e('s_mul_i32 s27, s19, 320')
    for p in range(5):
        a.e(f's_add_u32 s29, s27, {64*p}')
        a.e(f'v_add_u32 {v(vT)}, s29, v0')
        a.e(f'v_mul_u32_u24 {v(vT2)}, 1639, {v(vT)}')
        a.e(f'v_lshrrev_b32 {v(vT2)}, 16, {v(vT2)}')
        a.e(f'v_mul_u32_u24 {v(vT3)}, 40, {v(vT2)}')
        a.e(f'v_sub_u32 {v(vT)}, {v(vT)}, {v(vT3)}')
        a.e(f'v_bfe_u32 {v(vT3)}, {v(vT2)}, 1, 1')
        a.e(f'v_lshlrev_b32 {v(vT3)}, 2, {v(vT3)}')
        a.e(f'v_xor_b32 {v(vT)}, {v(vT)}, {v(vT3)}')
        a.e(f'v_lshlrev_b32 {v(vT)}, 4, {v(vT)}')
        a.e(f'v_mul_u32_u24 {v(vT2)}, 3840, {v(vT2)}')
        a.e(f'v_add_u32 {v(vW+p)}, {v(vT)}, {v(vT2)}')
    a.e('s_mul_i32 s29, s18, 640')
    for p in range(5): a.e(f'v_add_u32 {v(vW+p)}, s29, {v(vW+p)}')
    a.e('s_waitcnt lgkmcnt(0)')
    a.e('s_mov_b32 s4, s38'); a.e('s_mov_b32 s5, s39'); a.e(f's_mov_b32 s6, {640*3840}')
    a.e(f's_mov_b32 s22, {32*3840}')
    a.e('s_mul_i32 s20, s19, 5120')
    a.e('s_branch K1_LD_GO')
    a.label('K1_LD_FFN')
    a.e('s_and_b32 s27, s19, 1')
    a.e('s_lshl_b32 s27, s27, 4')
    a.e('s_sub_u32 s29, s18, 6')
    a.e('s_mul_i32 s29, s29, 320')
    a.e('s_min_u32 s29, s29, 2752')
    for p in range(5):
        a.e(f'v_add_u32 {v(vT)}, {64*p}, v0')
        a.e(f'v_mul_u32_u24 {v(vT2)}, 3277, {v(vT)}')
        a.e(f'v_lshrrev_b32 {v(vT2)}, 16, {v(vT2)}')
        a.e(f'v_mul_u32_u24 {v(vT3)}, 20, {v(vT2)}')
        a.e(f'v_sub_u32 {v(vT)}, {v(vT)}, {v(vT3)}')
        a.e(f'v_lshlrev_b32 {v(vT)}, 4, {v(vT)}')
        a.e(f'v_add_u32 {v(vT2)}, s27, {v(vT2)}')
        a.e(f'v_mul_u32_u24 {v(vT2)}, 3072, {v(vT2)}')
        a.e(f'v_add_u32 {v(vW+p)}, {v(vT)}, {v(vT2)}')
        a.e(f'v_add_u32 {v(vW+p)}, s29, {v(vW+p)}')
    a.e('s_waitcnt lgkmcnt(0)')
    a.e('s_cmp_lt_u32 s19, 2')
    a.e('s_cselect_b32 s4, s40, s42')
    a.e('s_cselect_b32 s5, s41, s43')
    a.e(f's_mov_b32 s6, {640*3072}')
    a.e(f's_mov_b32 s22, {32*3072}')
    a.e('s_mul_i32 s20, s19, 5120')
    a.e('s_lshr_b32 s27, s19, 1')
    a.e('s_lshl_b32 s27, s27, 5')
    a.e('s_add_u32 s20, s20, s27')
    a.label('K1_LD_GO')
    if 'lst' in FL: stamp(a,7)
    a.e('s_mov_b32 s7, 0x00020000')
    a.e(f's_add_u32 s20, s20, {WBASE}')
    a.e('s_mov_b32 s23, 0'); a.e('s_mov_b32 s24, s20')
    a.e(f's_add_u32 s29, s20, {5*WP}')
    def issueW(pro=False):
        for p in range(5):
            if 'nodma' in FL and not pro: break
            a.e(f's_add_u32 m0, s24, {p*1024}')
            a.e('s_nop 0')
            a.e(f'buffer_load_dwordx4 {v(vW+p)}, s[4:7], s23 offen lds')
        a.e('s_add_u32 s23, s23, s22')
        a.e(f's_add_u32 s24, s24, {WP}')
        a.e('s_cmp_eq_u32 s24, s29')
        a.e('s_cselect_b32 s24, s20, s24')
    issueW(True); issueW(True); issueX(True)
    stamp(a,1)
    if 'lp0' in FL or 'lp30' in FL: a.e('s_setprio 0')
    vU=50
    if 'wimg' in FL:
        a.e('s_lshl_b32 s27, s2, 1'); a.e('s_add_u32 s27, s27, s19')
        a.e('s_add_u32 s28, s2, 512')
        a.e('s_cmp_eq_u32 s19, 2'); a.e('s_cselect_b32 s27, s28, s27')
        a.e('s_cmp_lt_u32 s27, 544'); a.e('s_cselect_b32 s33, 1, 0')
        a.e('s_cmp_eq_u32 s19, 3'); a.e('s_cselect_b32 s33, 0, s33')
        a.e('s_and_b32 s32, s27, 7')
        a.e('s_lshr_b32 s27, s27, 3')
        a.e('s_mul_i32 s54, s32, 68'); a.e('s_add_u32 s54, s54, s27'); a.e('s_mul_i32 s54, s54, 5120')
        a.e('s_mul_i32 s32, s32, 160')
        a.e('s_lshl_b32 s28, s27, 5'); a.e('s_mov_b32 s55, 16'); a.e('s_mov_b32 s48, 8'); a.e('s_mov_b32 s49, 4')
        a.e('s_mov_b32 s12, s52'); a.e('s_mov_b32 s13, s53'); a.e(f's_mov_b32 s14, {1536*1280}')
        a.e('s_cmp_lt_u32 s27, 48'); a.e('s_cbranch_scc1 K1_WI_SET')
        a.e('s_mov_b32 s12, s50'); a.e('s_mov_b32 s13, s51'); a.e(f's_mov_b32 s14, {640*1280}')
        a.e('s_sub_u32 s27, s27, 48')
        a.e('s_mul_i32 s28, s27, 40'); a.e('s_mov_b32 s55, 20')
        a.e('s_cmp_lt_u32 s27, 16'); a.e('s_cbranch_scc1 K1_WI_SET')
        a.e('s_sub_u32 s27, s27, 16')
        a.e('s_mul_i32 s28, s27, 160'); a.e('s_add_u32 s28, s28, 16')
        a.e('s_mov_b32 s55, 80'); a.e('s_mov_b32 s48, 20'); a.e('s_mov_b32 s49, 40')
        a.label('K1_WI_SET')
        a.e('s_mov_b32 s15, 0x00020000')
        a.e('s_cmp_eq_u32 s33, 0'); a.e('s_cselect_b32 s14, 0, s14')
        for p in range(5):
            a.e(f'v_add_u32 v56, {64*p}, v0')
            a.e('v_mul_u32_u24 v57, 6554, v56')
            a.e('v_lshrrev_b32 v57, 16, v57')
            a.e('v_mul_u32_u24 v58, 10, v57')
            a.e('v_sub_u32 v56, v56, v58')
            a.e('v_lshlrev_b32 v56, 4, v56')
            a.e('v_add_u32 v56, s32, v56')
            a.e('v_lshrrev_b32 v58, 4, v57')
            a.e('v_mul_u32_u24 v58, s55, v58')
            a.e('v_bfe_u32 v59, v57, 3, 1')
            a.e('v_mul_u32_u24 v59, s48, v59')
            a.e('v_add_u32 v58, v58, v59')
            a.e('v_bfe_u32 v59, v57, 2, 1')
            a.e('v_mul_u32_u24 v59, s49, v59')
            a.e('v_add_u32 v58, v58, v59')
            a.e('v_and_b32 v59, 3, v57')
            a.e('v_add_u32 v58, v58, v59')
            a.e('v_add_u32 v58, s28, v58')
            a.e('v_mul_u32_u24 v58, 1280, v58')
            a.e(f'v_add_u32 {v(vU+p)}, v56, v58')
        if 'wearly' in FL:
            a.e('v_lshrrev_b32 v56, 5, v0'); a.e('v_lshlrev_b32 v56, 4, v56')
            a.e('v_bfe_u32 v57, v0, 4, 1'); a.e('v_lshlrev_b32 v57, 2, v57'); a.e('v_add_u32 v56, v56, v57')
            a.e('v_bfe_u32 v57, v0, 2, 2'); a.e('v_add_u32 v56, v56, v57')
            a.e('v_mul_u32_u24 v56, 160, v56'); a.e(f'v_add_u32 v56, {SP}, v56')
            a.e('v_and_b32 v57, 3, v0'); a.e('v_lshlrev_b32 v58, 4, v57'); a.e('v_add_u32 v76, v56, v58')
            a.e('v_lshlrev_b32 v58, 3, v57'); a.e('v_add_u32 v77, v56, v58')
            a.e('v_lshlrev_b32 v78, 4, v0')
            a.e(f's_add_u32 s88, s34, {WIMG}'); a.e('s_addc_u32 s89, s35, 0')
            a.e('s_cmp_eq_u32 s33, 0'); a.e(f's_cselect_b32 s90, 0, {WIMG_BYTES}'); a.e('s_mov_b32 s91, 0x00020000')
    vSA=16
    D=20
    U=36
    sL,sH,qL,qH=40,41,42,43
    a.e(f'v_and_b32 {v(vT)}, 31, v0')
    a.e(f'v_lshrrev_b32 {v(vT2)}, 5, v0')
    a.e(f'v_lshlrev_b32 {v(vT2)}, 2, {v(vT2)}')
    a.e(f'v_bfe_u32 {v(vT3)}, v0, 1, 3')
    a.e(f'v_xor_b32 {v(vT2)}, {v(vT2)}, {v(vT3)}')
    a.e(f'v_lshlrev_b32 {v(vT2)}, 4, {v(vT2)}')
    a.e(f'v_lshlrev_b32 {v(vT3)}, 7, {v(vT)}')
    a.e(f'v_add_u32 {v(vT2)}, {v(vT2)}, {v(vT3)}')
    a.e(f'v_add_u32 {v(vSA)}, s21, {v(vT2)}')
    for i in range(1,4): a.e(f'v_xor_b32 {v(vSA+i)}, {16*i}, {v(vSA)}')
    for r in (sL,sH,qL,qH): a.e(f'v_mov_b32 {v(r)}, 0')
    if 'dot2' in FL: a.e('s_mov_b32 s56, 0x3f803f80')
    a.e(f's_mov_b32 s27, 0')
    a.e(f's_mov_b32 s46, {XS}'); a.e(f's_mov_b32 s47, {(-2*XS)&0xffffffff}')
    def st_read():
        if 'nostat' in FL: return
        for i in range(4): a.e(f'ds_read_b128 {v(D+4*i,4)}, {v(vSA+i)}')
        a.e('s_add_u32 s27, s27, 1')
        a.e('s_cmp_eq_u32 s27, 3')
        a.e('s_cselect_b32 s28, s47, s46')
        a.e('s_cselect_b32 s27, 0, s27')
        for i in range(4): a.e(f'v_add_u32 {v(vSA+i)}, s28, {v(vSA+i)}')
    def st_acc(half):
        if 'nostat' in FL: return
        a.e(f's_waitcnt lgkmcnt({2 if half==0 else 0})')
        if 'dot2' in FL:
            for d in range(8*half,8*half+8,2):
                a.e(f'v_dot2c_f32_bf16 {v(qL)}, {v(D+d)}, {v(D+d)}')
                a.e(f'v_dot2c_f32_bf16 {v(sL)}, s56, {v(D+d)}')
                a.e(f'v_dot2c_f32_bf16 {v(qH)}, {v(D+d+1)}, {v(D+d+1)}')
                a.e(f'v_dot2c_f32_bf16 {v(sH)}, s56, {v(D+d+1)}')
            return
        for d in range(8*half,8*half+8,2):
            a.e(f'v_lshlrev_b32 {v(U)}, 16, {v(D+d)}')
            a.e(f'v_and_b32 {v(U+1)}, 0xffff0000, {v(D+d)}')
            a.e(f'v_lshlrev_b32 {v(U+2)}, 16, {v(D+d+1)}')
            a.e(f'v_and_b32 {v(U+3)}, 0xffff0000, {v(D+d+1)}')
            a.e(f'v_add_f32 {v(sL)}, {v(sL)}, {v(U)}')
            a.e(f'v_add_f32 {v(sH)}, {v(sH)}, {v(U+1)}')
            a.e(f'v_fma_f32 {v(qL)}, {v(U)}, {v(U)}, {v(qL)}')
            a.e(f'v_fma_f32 {v(qH)}, {v(U+1)}, {v(U+1)}, {v(qH)}')
            a.e(f'v_add_f32 {v(sL)}, {v(sL)}, {v(U+2)}')
            a.e(f'v_add_f32 {v(sH)}, {v(sH)}, {v(U+3)}')
            a.e(f'v_fma_f32 {v(qL)}, {v(U+2)}, {v(U+2)}, {v(qL)}')
            a.e(f'v_fma_f32 {v(qH)}, {v(U+3)}, {v(U+3)}, {v(qH)}')
    bst=('bst' in FL)
    we=('wearly' in FL)
    def bs(i):
        if bst:
            (stampc if 'bstc' in FL else stamp)(a,i)
    def wave_only(w,fn):
        l=a.newlabel('K1_WO')
        a.e(f's_cmp_eq_u32 s19, {w}'); a.e(f's_cbranch_scc0 {l}')
        fn(); a.label(l)
    def unit_dma():
        for p in range(5):
            a.e(f's_mov_b32 m0, {SP+p*1024}')
            a.e('s_nop 0')
            a.e(f'buffer_load_dwordx4 {v(vU+p)}, s[12:15], 0 offen lds')
    def unit_tr():
        for t in range(5):
            reg,off=(76,[0,8,64,72][t]) if t<4 else (77,128)
            a.e(f'ds_read_b64_tr_b16 {v(56+4*t,2)}, {v(reg)} offset:{off}')
            a.e(f'ds_read_b64_tr_b16 {v(58+4*t,2)}, {v(reg)} offset:{off+1280}')
    def unit_store():
        a.e('s_waitcnt lgkmcnt(0)')
        for t in range(5):
            a.e(f's_add_u32 s28, s54, {t*1024}')
            a.e(f'buffer_store_dwordx4 {v(56+4*t,4)}, v78, s[88:91], s28 offen')
    U0={0:-1,1:4,2:9}; T0={0:2,1:7,2:12}; S0={0:3,1:8,2:13}
    WIDE={0:{0,1,4,5,6},1:{5,6,9,10,11},2:{10,11,14,15,16}}
    late=('wlate' in FL)
    if late:
        S0={}
        WIDE={0:{0,1,17,18,19},1:{5,6,17,18,19},2:{10,11,17,18,19}}
    def ldwait(s_,n):
        ws=[w for w in WIDE if s_ in WIDE[w]] if we else []
        if not ws:
            a.e(f's_waitcnt vmcnt({n})'); return
        l1=a.newlabel('K1_LW'); l2=a.newlabel('K1_LW')
        if len(ws)==1:
            a.e(f's_cmp_eq_u32 s19, {ws[0]}')
        elif len(ws)==3:
            a.e('s_cmp_lt_u32 s19, 3')
        else:
            assert ws[1]==ws[0]+1
            a.e(f's_sub_u32 s28, s19, {ws[0]}'); a.e('s_cmp_lt_u32 s28, 2')
        a.e(f's_cbranch_scc1 {l1}')
        a.e(f's_waitcnt vmcnt({n})'); a.e(f's_branch {l2}')
        a.label(l1); a.e(f's_waitcnt vmcnt({n+5})'); a.label(l2)
    def hook(tab,fn,s_):
        if we:
            for w in tab:
                if tab[w]==s_: wave_only(w,fn)
    pre=lambda s_: hook(U0,unit_dma,s_)
    mid=lambda s_: hook(T0,unit_tr,s_)
    post=lambda s_: hook(S0,unit_store,s_)
    pre(-1)
    ldwait(0,9); a.e('s_barrier'); bs(4); issueW(True); st_read(); st_acc(0)
    ldwait(1,9); a.e('s_barrier'); issueW(True); issueX(True); st_acc(1)
    ldwait(2,9); a.e('s_barrier'); bs(5); issueW(True); issueW(True); st_read(); st_acc(0); mid(2)
    ldwait(3,14); a.e('s_barrier'); issueW(True); issueX(True); st_acc(1); post(3)
    if bst or we:
        for it in range(2,8):
            ldwait(2*it,14); a.e('s_barrier'); bs(4+it); pre(2*it); issueW(); st_read(); st_acc(0); mid(2*it); post(2*it)
            ldwait(2*it+1,14); a.e('s_barrier'); pre(2*it+1); issueW(); issueX(); st_acc(1); mid(2*it+1); post(2*it+1)
    else:
        a.e('s_mov_b32 s31, 2')
        a.label('K1_LD_LOOP')
        a.e('s_waitcnt vmcnt(14)'); a.e('s_barrier'); issueW(); st_read(); st_acc(0)
        a.e('s_waitcnt vmcnt(14)'); a.e('s_barrier'); issueW(); issueX(); st_acc(1)
        a.e('s_add_u32 s31, s31, 1')
        a.e('s_cmp_lt_u32 s31, 8')
        a.e('s_cbranch_scc1 K1_LD_LOOP')
    ldwait(16,14); a.e('s_barrier'); bs(12); issueW(); st_read(); st_acc(0)
    if we and late:
        l=a.newlabel('K1_WS')
        a.e('s_cmp_lt_u32 s19, 3'); a.e(f's_cbranch_scc0 {l}')
        unit_store(); a.label(l)
    wi=5 if ('wimg' in FL and not we) else 0
    ldwait(17,14); a.e('s_barrier')
    if wi:
        for p in range(5):
            a.e(f's_add_u32 m0, s20, {p*1024}')
            a.e('s_nop 0')
            a.e(f'buffer_load_dwordx4 {v(vU+p)}, s[12:15], 0 offen lds')
    st_acc(1)
    ldwait(18,5+wi); a.e('s_barrier'); bs(13); st_read(); st_acc(0)
    ldwait(19,wi); a.e('s_barrier'); st_acc(1)
    a.e('s_barrier')
    stamp(a,2)
    if 'cpb' in FL:
        a.e('s_cmp_eq_u32 s19, 3'); a.e('s_cbranch_scc0 K1_CPB_END')
        a.e('s_getpc_b64 s[12:13]')
        a.label('K1_CPB_PC')
        a.e('s_add_u32 s12, s12, att_kernel-K1_CPB_PC'); a.e('s_addc_u32 s13, s13, 0')
        a.e('s_mov_b32 s14, FFN_TAIL+4-att_kernel'); a.e('s_mov_b32 s15, 0x00020000')
        a.e('v_lshlrev_b32 v120, 7, v0')
        a.e('buffer_load_dword v121, v120, s[12:15], 0 offen')
        a.e('v_add_u32 v120, 8192, v120')
        a.e('buffer_load_dword v122, v120, s[12:15], 0 offen')
        a.label('K1_CPB_END')
    P=44
    a.e(f'v_add_f32 {v(P)}, {v(sL)}, {v(sH)}')
    a.e(f'v_add_f32 {v(P+1)}, {v(qL)}, {v(qH)}')
    a.e(f'v_mov_b32 {v(U)}, {v(P)}')
    a.e(f'v_mov_b32 {v(U+1)}, {v(P+1)}')
    a.e('s_nop 1')
    a.e(f'v_permlane32_swap_b32 {v(U)}, {v(P)}')
    a.e(f'v_permlane32_swap_b32 {v(U+1)}, {v(P+1)}')
    a.e('s_nop 1')
    a.e(f'v_add_f32 {v(P)}, {v(U)}, {v(P)}')
    a.e(f'v_add_f32 {v(P+1)}, {v(U+1)}, {v(P+1)}')
    stats(a,0,P)
    a.e(f'v_and_b32 {v(vT)}, 31, v0')
    a.e('s_lshl_b32 s27, s19, 5')
    a.e(f'v_add_u32 {v(vT)}, s27, {v(vT)}')
    a.e(f'v_lshlrev_b32 {v(vT2)}, 2, {v(vT)}')
    a.e(f'v_lshlrev_b32 {v(vT3)}, 3, {v(vT)}')
    a.e('s_mov_b64 exec, 0xffffffff')
    a.e(f'ds_write_b32 {v(vT2)}, {v(P)} offset:{NM}' if NM<65536 else f'v_add_u32 {v(vT2)}, {NM}, {v(vT2)}')
    if NM>=65536:
        a.e(f'v_add_u32 {v(vT3)}, {ST2}, {v(vT3)}')
        a.e(f'ds_write_b32 {v(vT2)}, {v(P)}')
        a.e(f'ds_write_b32 {v(vT2)}, {v(P+1)} offset:512')
        a.e(f'ds_write_b64 {v(vT3)}, {v(P,2)}')
    a.e('s_mov_b64 exec, -1')
    a.e('s_lshl_b32 s27, s19, 6')
    a.e(f'v_add_u32 {v(vT)}, s27, v0')
    a.e(f'v_lshlrev_b32 {v(vT2)}, 3, {v(vT)}')
    a.e(f'v_add_u32 {v(vT2)}, {CS}, {v(vT2)}')
    a.e('s_waitcnt lgkmcnt(0)')
    stamp(a,3)
    a.e('s_barrier')
    a.e(f'v_cmp_gt_u32 vcc, 160, {v(vT)}')
    a.e('s_and_saveexec_b64 s[48:49], vcc')
    a.e(f'ds_read_b64 {v(D,2)}, {v(vT2)} offset:1280')
    a.e(f'ds_read_b64 {v(D+2,2)}, {v(vT2)} offset:2560')
    a.e('s_waitcnt lgkmcnt(0)')
    a.e(f'v_add_f32 {v(D)}, {v(D)}, {v(D+2)}')
    a.e(f'v_add_f32 {v(D+1)}, {v(D+1)}, {v(D+3)}')
    a.e(f'ds_write_b64 {v(vT2)}, {v(D,2)}')
    a.e('s_mov_b64 exec, -1')
    a.e('s_waitcnt lgkmcnt(0)')
    a.e('s_barrier')
    if 'wimg' in FL and 'wearly' not in FL:
        a.e('s_cmp_eq_u32 s33, 0')
        a.e('s_cbranch_scc1 K1_WI_END')
        a.e('v_lshrrev_b32 v56, 5, v0')
        a.e('v_lshlrev_b32 v56, 4, v56')
        a.e('v_bfe_u32 v57, v0, 4, 1')
        a.e('v_lshlrev_b32 v57, 2, v57')
        a.e('v_add_u32 v56, v56, v57')
        a.e('v_bfe_u32 v57, v0, 2, 2')
        a.e('v_add_u32 v56, v56, v57')
        a.e('v_mul_u32_u24 v56, 160, v56')
        a.e('v_add_u32 v56, s20, v56')
        a.e('v_and_b32 v57, 3, v0')
        a.e('v_lshlrev_b32 v58, 4, v57')
        a.e('v_add_u32 v54, v56, v58')
        a.e('v_lshlrev_b32 v58, 3, v57')
        a.e('v_add_u32 v55, v56, v58')
        a.e('v_lshlrev_b32 v53, 4, v0')
        a.e(f's_add_u32 s12, s34, {WIMG}'); a.e('s_addc_u32 s13, s35, 0'); a.e(f's_mov_b32 s14, {WIMG_BYTES}')
        a.e('s_waitcnt vmcnt(0)')
        for t in range(5):
            reg,off=(54,[0,8,64,72][t]) if t<4 else (55,128)
            a.e(f'ds_read_b64_tr_b16 {v(56+4*t,2)}, {v(reg)} offset:{off}')
            a.e(f'ds_read_b64_tr_b16 {v(58+4*t,2)}, {v(reg)} offset:{off+1280}')
        a.e('s_waitcnt lgkmcnt(0)')
        for t in range(5):
            a.e(f's_add_u32 s27, s54, {t*1024}')
            a.e(f'buffer_store_dwordx4 {v(56+4*t,4)}, v53, s[12:15], s27 offen')
        a.e('s_waitcnt vmcnt(0)')
        a.label('K1_WI_END')
    if 'fuse' in FL and ('can' not in FL or 'hl' in FL):
        a.e('s_cmp_eq_u32 s19, 3'); a.e('s_cbranch_scc0 K1_FL_END')
        a.e(f's_cmp_lt_u32 s2, {FLAGS_BYTES//1024}'); a.e('s_cbranch_scc0 K1_FL_END')
        a.e(f's_add_u32 s12, s34, {FLAGS}'); a.e('s_addc_u32 s13, s35, 0'); a.e(f's_mov_b32 s14, {FLAGS_BYTES}'); a.e('s_mov_b32 s15, 0x00020000')
        a.e('s_lshl_b32 s27, s2, 10')
        a.e('v_lshlrev_b32 v53, 4, v0')
        for k in range(4): a.e(f'v_mov_b32 v{56+k}, 0')
        a.e('buffer_store_dwordx4 v[56:59], v53, s[12:15], s27 offen')
        a.e('s_waitcnt vmcnt(0)')
        a.label('K1_FL_END')
    if 'wearly' in FL: a.e('s_waitcnt vmcnt(0)')
    if 'lst' not in FL and 'bst' not in FL:
        stamp(a,4); stamp(a,5); stamp(a,6); stamp(a,7)
    stamp_store(a,14 if 'bst' in FL else 8,34,'s16',8,3*1024*1024)
    a.label('K1_END')
    a.e('s_endpgm')
    return NV
```

```python
from asmlib import *
from layouts import QIMG,KIMG,VIMG,OIMG,FLAGS,FLAGS_BYTES
import gen_ffn2
NAME='att_kernel'
SLOT=20480
Q1=0+8
Q2=12
K1=16
K2=20
V0=24; V1=28
P0=32; P1=36
E=40
SA=48; SB=64
O=80
vKc=96; vK2c=97; vVc=98; vKn=99; vK2n=100; vVn=101
vL16=0
vT=1; vT2=2; vT3=3; vLaneK=4; vLaneK2=5; vLaneV=6; vMx=7
NV=102
M16=[False]
def mfma(d,a,b,c):
    cs = '0' if c is None else v(c,16)
    if M16[0]:
        if c is None or d in (SA,SB):
            o=0 if c is None else 8
            b=Q1
            return f'v_mfma_f32_16x16x32_bf16 {v(d+o,4)}, {v(a,4)}, {v(b,4)}, 0\n    v_mfma_f32_16x16x32_bf16 {v(d+o+4,4)}, {v(a,4)}, {v(b,4)}, 0'
        return f'v_mfma_f32_16x16x32_bf16 {v(d,4)}, {v(a,4)}, {v(b,4)}, {v(d,4)}\n    v_mfma_f32_16x16x32_bf16 {v(d+4,4)}, {v(a,4)}, {v(b,4)}, {v(d+4,4)}'
    return f'v_mfma_f32_32x32x16_bf16 {v(d,16)}, {v(a,4)}, {v(b,4)}, {cs}'

def emit_dma(a, soff_chunk, sslot):
    a.e(f's_add_u32 s30, s17, {soff_chunk}')
    a.e(f's_add_u32 m0, s20, {sslot}')
    a.e(f's_add_u32 s31, s18, {soff_chunk}')
    a.e(f'buffer_load_dwordx4 {v(vL16)}, s[4:7], s30 offen lds')
    a.e(f's_add_u32 m0, m0, 8192')
    a.e(f's_add_u32 s30, s19, {soff_chunk}')
    a.e(f'buffer_load_dwordx4 {v(vL16)}, s[4:7], s31 offen lds')
    l=a.newlabel('nodma3')
    a.e(f's_cmp_ge_u32 s16, 4')
    a.e(f's_cbranch_scc1 {l}')
    a.e(f's_add_u32 m0, m0, 8192')
    a.e('s_nop 0')
    a.e(f'buffer_load_dwordx4 {v(vL16)}, s[4:7], s30 offen lds')
    a.label(l)

def set_m_pieces(a, add):
    a.e(f'v_mov_b32 {v(vT)}, {v(vMx)}')
    a.e('s_nop 1')
    a.e(f'v_permlane32_swap_b32 {v(vT)}, {v(vMx)}')
    a.e('s_nop 1')
    a.e(f'v_max_f32 {v(vMx)}, {v(vT)}, {v(vMx)}')
    a.e(f'v_ceil_f32 {v(vMx)}, {v(vMx)}')
    a.e(f'v_mov_b32 {v(vT)}, {add}')
    a.e(f'v_add_f32 {v(vMx)}, {v(vT)}, {v(vMx)}')
    a.e(f'v_sub_f32 {v(vMx)}, 0, {v(vMx)}')
    a.e(f'v_and_b32 {v(vT)}, 0xffff0000, {v(vMx)}')
    a.e(f'v_sub_f32 {v(vT2)}, {v(vMx)}, {v(vT)}')
    a.e(f'v_and_b32 {v(vT3)}, 0xffff0000, {v(vT2)}')
    a.e(f'v_sub_f32 {v(vT2)}, {v(vT2)}, {v(vT3)}')
    a.e(f'v_lshrrev_b32 {v(vT)}, 16, {v(vT)}')
    a.e(f'v_or_b32 {v(vT)}, {v(vT)}, {v(vT3)}')
    a.e(f'v_lshrrev_b32 {v(vT2)}, 16, {v(vT2)}')
    a.e('s_mov_b64 exec, 0xffffffff')
    a.e(f'v_mov_b32 {v(Q2+2)}, {v(vT)}')
    a.e(f'v_mov_b32 {v(Q2+3)}, {v(vT2)}')
    a.e('s_mov_b64 exec, -1')

def max16(a, S, first):
    for i in range(0,16,2):
        if first and i==0:
            a.e(f'v_max_f32 {v(vMx)}, {v(S)}, {v(S+1)}')
        else:
            a.e(f'v_max3_f32 {v(vMx)}, {v(vMx)}, {v(S+i)}, {v(S+i+1)}')

FL=set()
def tile(a,i):
    S,N=(SA,SB) if i%2==0 else (SB,SA)
    def addr(kind,ti):
        cur={'k':vKc,'k2':vK2c,'v':vVc}[kind]; nxt={'k':vKn,'k2':vK2n,'v':vVn}[kind]
        return (cur,ti*1280) if ti<8 else (nxt,(ti-8)*1280)
    a.c(f'---- tile {i}')
    if i==6 and 'nodma' not in FL:
        a.e('s_waitcnt vmcnt(0)')
        a.e('s_barrier')
        l=a.newlabel('nodma')
        a.e('s_cmp_ge_u32 s24, 6')
        a.e(f's_cbranch_scc1 {l}')
        emit_dma(a,'s25','s26')
        a.label(l)
    if (i==6 and 'hint6' in FL) or (i==7 and 'hint7' in FL) or (i==5 and 'hint5' in FL) or (i==4 and 'hint4' in FL) or (i==3 and 'hint3' in FL):
        l=a.newlabel('hint')
        a.e('s_cmp_eq_u32 s24, 7')
        a.e(f's_cbranch_scc0 {l}')
        a.e('s_mov_b64 exec, 1')
        a.e('buffer_store_dword v102, off, s[40:43], s44 sc1')
        a.e('s_mov_b64 exec, -1')
        a.label(l)
    if 'nolds' in FL:
        E_=a.e
        class A2:
            def e(self,s):
                if s.startswith('ds_read') or s.startswith('s_waitcnt lgkm') or s.startswith('s_mov_b64 exec'): return
                E_(s)
        a=A2()
    ex=lambda dst,src: a.e(f'v_exp_f32 {v(dst)}, {v(src)}')
    cv=lambda dst,x: a.e(f'v_cvt_pk_bf16_f32 {v(dst)}, {v(x)}, {v(x+1)}')
    a.e('s_waitcnt lgkmcnt(3)')
    a.e(mfma(N,K1,Q1,None))
    r,o=addr('k',i+2); a.e(f'ds_read_b128 {v(K1,4)}, {v(r)} offset:{o}')
    cv(P1+2,E+4); cv(P1+3,E+6)
    for k in range(4): ex(E+k,S+k)
    a.e('s_waitcnt lgkmcnt(3)')
    a.e(mfma(N,K2,Q2,N))
    r,o=addr('k2',i+2); a.e(f'ds_read_b64 {v(K2,2)}, {v(r)} offset:{o}')
    for k in range(4): ex(E+4+k,S+4+k)
    cv(P0,E); cv(P0+1,E+2)
    a.e('s_waitcnt lgkmcnt(3)')
    a.e(mfma(O,V1,P1,O))
    cv(P0+2,E+4); cv(P0+3,E+6)
    for k in range(4): ex(E+k,S+8+k)
    a.e('s_waitcnt lgkmcnt(2)')
    a.e(mfma(O,V0,P0,O))
    if 'noexec' not in FL: a.e('s_mov_b64 exec, s[22:23]')
    r,o=addr('v',i);   a.e(f'ds_read_b128 {v(V1,4)}, {v(r)} offset:{o+640}')
    r,o=addr('v',i+1); a.e(f'ds_read_b128 {v(V0,4)}, {v(r)} offset:{o}')
    if 'noexec' not in FL: a.e('s_mov_b64 exec, -1')
    for k in range(4): ex(E+4+k,S+12+k)
    cv(P1,E); cv(P1+1,E+2)

from stamps import stamp, stamp_store, stampc
import stamps
def att_kernel(a, name=NAME):
    a.lines.append(kernel_header(name))
    a.e(f's_cmp_ge_u32 s2, {512 if ("dup" in FL or "ffn2" in FL) else 256}')
    a.e('s_cbranch_scc1 ATT_END')
    if 'dup' in FL: a.e('s_and_b32 s2, s2, 255')
    a.e('s_load_dwordx2 s[34:35], s[0:1], 72')
    if 'ffn2' in FL:
        a.e('s_cmp_ge_u32 s2, 256')
        a.e('s_cbranch_scc1 ATT_FFN2')
        if 'aprio' in FL: a.e('s_setprio 2')
    for n in (8,32,256):
      if f'cpc{n}' in FL:
        a.e(f's_cmp_lt_u32 s2, {n}'); a.e('s_cbranch_scc0 ATT_CPC_END')
        a.e('s_getpc_b64 s[4:5]')
        a.label('ATT_CPC_PC')
        a.e('s_sub_u32 s4, s4, ATT_CPC_PC-att_kernel'); a.e('s_subb_u32 s5, s5, 0')
        a.e('s_mov_b32 s6, FFN_TAIL+4-att_kernel'); a.e('s_mov_b32 s7, 0x00020000')
        a.e('v_lshlrev_b32 v126, 7, v0')
        a.e('buffer_load_dword v127, v126, s[4:7], 0 offen')
        a.label('ATT_CPC_END')
    stamp(a,0)
    a.e(f'v_lshrrev_b32 {v(vT)}, 6, v0')
    a.e(f'v_and_b32 v0, 63, v0')
    a.e(f'v_readfirstlane_b32 s16, {v(vT)}')
    a.e('s_and_b32 s27, s2, 7')
    a.e('s_lshr_b32 s28, s2, 3')
    a.e('s_and_b32 s29, s28, 0x18')
    a.e('s_add_u32 s27, s27, s29')
    a.e('s_and_b32 s28, s28, 7')
    a.e('s_lshl_b32 s28, s28, 3')
    a.e('s_add_u32 s28, s28, s16')
    a.e('s_mul_i32 s29, s27, 81920')
    a.e(f'v_and_b32 {v(vT)}, 31, v0')
    a.e(f'v_lshrrev_b32 {v(vT2)}, 5, v0')
    a.e(f'v_lshlrev_b32 {v(vLaneK2)}, 3, {v(vT)}')
    a.e(f'v_add_u32 {v(vLaneK2)}, 1024, {v(vLaneK2)}')
    a.e(f'v_mul_u32_u24 {v(vLaneV)}, 320, {v(vT2)}')
    a.e(f'v_lshlrev_b32 {v(vT)}, 4, {v(vT)}')
    a.e(f'v_add_u32 {v(vLaneV)}, {v(vLaneV)}, {v(vT)}')
    a.e(f'v_lshlrev_b32 {v(vL16)}, 4, v0')
    a.e('s_lshl_b32 s20, s16, 10')
    a.e('s_mov_b32 s17, s20')
    a.e(f's_add_u32 s18, s20, 8192')
    a.e(f's_add_u32 s19, s20, {VIMG-KIMG-2048}')
    a.e('s_cmp_lt_u32 s16, 2')
    a.e('s_cselect_b32 s18, s18, s19')
    a.e(f's_add_u32 s19, s20, {VIMG-KIMG+6144}')
    a.e('s_mov_b32 s22, 0x000fffff')
    a.e('s_mov_b32 s23, 0x000fffff')
    a.e('s_waitcnt lgkmcnt(0)')
    a.e(f's_add_u32 s4, s34, {KIMG}')
    a.e('s_addc_u32 s5, s35, 0')
    a.e('s_add_u32 s4, s4, s29')
    a.e('s_addc_u32 s5, s5, 0')
    a.e(f's_sub_u32 s6, {VIMG+2621440-KIMG}, s29')
    a.e('s_mov_b32 s7, 0x00020000')
    a.e(f's_add_u32 s8, s34, {QIMG}')
    a.e('s_addc_u32 s9, s35, 0')
    a.e('s_mov_b32 s10, 2621440')
    a.e('s_mov_b32 s11, 0x00020000')
    a.e(f's_add_u32 s12, s34, {OIMG}')
    a.e('s_addc_u32 s13, s35, 0')
    a.e('s_mov_b32 s14, 2621440')
    a.e('s_mov_b32 s15, 0x00020000')
    if 'hl' in FL:
        a.e(f's_add_u32 s40, s34, {FLAGS}'); a.e('s_addc_u32 s41, s35, 0'); a.e(f's_mov_b32 s42, {FLAGS_BYTES}'); a.e('s_mov_b32 s43, 0x00020000')
        a.e('s_lshl_b32 s44, s28, 2'); a.e('s_lshr_b32 s45, s27, 3'); a.e('s_add_u32 s44, s44, s45'); a.e('s_lshl_b32 s44, s44, 7')
        a.e('s_and_b32 s45, s27, 7'); a.e('s_lshl_b32 s45, s45, 2'); a.e('s_add_u32 s44, s44, s45')
        a.e('v_mov_b32 v102, 1')
    if 'sent' in FL and 'can' not in FL:
        a.e(f's_add_u32 s40, s34, {FLAGS}'); a.e('s_addc_u32 s41, s35, 0'); a.e(f's_mov_b32 s42, {FLAGS_BYTES}'); a.e('s_mov_b32 s43, 0x00020000')
        a.e('s_lshl_b32 s44, s28, 5'); a.e('s_add_u32 s44, s44, s27'); a.e('s_lshl_b32 s44, s44, 2')
        a.e('v_mov_b32 v102, 1')
    def qload():
        a.e('s_mul_i32 s33, s28, 1280')
        a.e('s_add_u32 s33, s33, s29')
        for k in range(4): a.e(f'v_mov_b32 {v(Q2+k)}, 0')
        a.e(f'buffer_load_dwordx4 {v(Q1,4)}, {v(vL16)}, s[8:11], s33 offen')
        a.e('s_mov_b64 exec, 0xffffffff')
        a.e(f'buffer_load_dwordx2 {v(Q2,2)}, {v(vLaneK2)}, s[8:11], s33 offen')
        a.e('s_mov_b64 exec, -1')
    if 'w0' in FL: qload()
    a.e('s_mov_b32 s25, 0'); a.e('s_mov_b32 s26, 0')
    emit_dma(a,'s25','s26')
    a.e('s_mov_b32 s25, 10240'); a.e(f's_mov_b32 s26, {SLOT}')
    emit_dma(a,'s25','s26')
    if 'w0' not in FL: qload()
    a.e(f'v_mov_b32 {v(K2+2)}, 0x3f803f80')
    a.e(f'v_mov_b32 {v(K2+3)}, 0x00003f80')
    for k in range(4):
        a.e(f'v_mov_b32 {v(V0+k)}, 0x3f803f80')
        a.e(f'v_mov_b32 {v(V1+k)}, 0x3f803f80')
    a.e(f'v_mov_b32 {v(vKc)}, {v(vL16)}')
    a.e(f'v_mov_b32 {v(vK2c)}, {v(vLaneK2)}')
    a.e(f'v_add_u32 {v(vLaneV)}, 10240, {v(vLaneV)}')
    a.e(f'v_mov_b32 {v(vVc)}, {v(vLaneV)}')
    a.e(f'v_add_u32 {v(vKn)}, {SLOT}, {v(vL16)}')
    a.e(f'v_add_u32 {v(vK2n)}, {SLOT}, {v(vLaneK2)}')
    a.e(f'v_add_u32 {v(vVn)}, {SLOT}, {v(vLaneV)}')
    T2=[P0,P1,E,E+4]
    for t in T2:
        a.e(f'v_mov_b32 {v(t+2)}, 0'); a.e(f'v_mov_b32 {v(t+3)}, 0')
    a.e('s_waitcnt vmcnt(2)' if 'w0' in FL else 's_waitcnt vmcnt(0)')
    a.e('s_barrier')
    stamp(a,1)
    if 'pre1' in FL:
        a.e(f'ds_read_b128 {v(K1,4)}, {v(vKc)} offset:0')
        a.e(f'ds_read_b64 {v(K2,2)}, {v(vK2c)} offset:0')
        a.e('s_mov_b64 exec, s[22:23]')
        a.e(f'ds_read_b128 {v(V1,4)}, {v(vVc)} offset:640')
        a.e(f'ds_read_b128 {v(V0,4)}, {v(vVc)} offset:0')
        a.e('s_mov_b64 exec, -1')
        for k in range(16): a.e(f'v_mov_b32 {v(O+k)}, 0')
        for k in range(4): a.e(f'v_mov_b32 {v(P1+k)}, 0')
        for k in range(4,8): a.e(f'v_mov_b32 {v(E+k)}, 0')
        a.e('s_waitcnt lgkmcnt(2)')
        a.e(mfma(SB,K1,Q1,None)); a.e(mfma(SB,K2,Q2,SB)); a.e(mfma(SA,K1,Q1,None))
        a.e(f'ds_read_b128 {v(K1,4)}, {v(vKc)} offset:1280')
        a.e('s_nop 7')
        max16(a,SB,True) if False else None
        a.e('s_nop 3')
        max16(a,SB,True)
        set_m_pieces(a,'0x42c00000')
        a.e('s_nop 1')
        a.e(mfma(SA,K2,Q2,SA))
        a.e(f'ds_read_b64 {v(K2,2)}, {v(vK2c)} offset:1280')
        a.e('s_waitcnt lgkmcnt(0)')
        a.e('s_nop 7'); a.e('s_nop 7')
    else:
        for t in range(4):
            a.e(f'ds_read_b128 {v(O+4*t,4)}, {v(vKc)} offset:{t*1280}')
            a.e(f'ds_read_b64 {v(T2[t],2)}, {v(vK2c)} offset:{t*1280}')
        a.e('s_waitcnt lgkmcnt(4)')
        a.e(mfma(SA,O,Q1,None)); a.e(mfma(SB,O+4,Q1,None))
        a.e(mfma(SA,T2[0],Q2,SA)); a.e(mfma(SB,T2[1],Q2,SB))
        a.e('s_waitcnt lgkmcnt(0)')
        a.e('s_nop 7'); a.e('s_nop 7')
        max16(a,SA,True)
        a.e(mfma(SA,O+8,Q1,None))
        max16(a,SB,False)
        a.e(mfma(SB,O+12,Q1,None))
        a.e(mfma(SA,T2[2],Q2,SA)); a.e(mfma(SB,T2[3],Q2,SB))
        a.e(f'ds_read_b128 {v(K1,4)}, {v(vKc)} offset:0')
        a.e(f'ds_read_b64 {v(K2,2)}, {v(vK2c)} offset:0')
        a.e('s_nop 7'); a.e('s_nop 7')
        max16(a,SA,False)
        max16(a,SB,False)
        set_m_pieces(a,'0x42c00000')
        for k in range(16): a.e(f'v_mov_b32 {v(O+k)}, 0')
        for k in range(4): a.e(f'v_mov_b32 {v(P1+k)}, 0')
        for k in range(4,8): a.e(f'v_mov_b32 {v(E+k)}, 0')
        a.e('s_waitcnt lgkmcnt(0)')
        a.e(mfma(SA,K1,Q1,None))
        a.e(mfma(SA,K2,Q2,SA))
        a.e(f'ds_read_b128 {v(K1,4)}, {v(vKc)} offset:1280')
        a.e(f'ds_read_b64 {v(K2,2)}, {v(vK2c)} offset:1280')
        a.e('s_mov_b64 exec, s[22:23]')
        a.e(f'ds_read_b128 {v(V1,4)}, {v(vVc)} offset:640')
        a.e(f'ds_read_b128 {v(V0,4)}, {v(vVc)} offset:0')
        a.e('s_mov_b64 exec, -1')
        a.e('s_waitcnt lgkmcnt(0)')
        a.e('s_nop 7'); a.e('s_nop 7')
    a.e('s_mov_b32 s24, 0')
    a.e('s_mov_b32 s25, 20480')
    a.e(f's_mov_b32 s26, {2*SLOT}')
    a.e(f's_mov_b32 s21, {SLOT}')
    stamp(a,2); stampc(a,5)
    a.label('ATT_LOOP')
    M16[0]=('am16' in FL)
    for i in range(8): tile(a,i)
    M16[0]=False
    a.e(f'v_mov_b32 {v(vKc)}, {v(vKn)}')
    a.e(f'v_mov_b32 {v(vK2c)}, {v(vK2n)}')
    a.e(f'v_mov_b32 {v(vVc)}, {v(vVn)}')
    a.e('s_mov_b32 s21, s26')
    a.e(f's_add_u32 s26, s26, {SLOT}')
    a.e(f's_cmp_eq_u32 s26, {3*SLOT}')
    a.e('s_cselect_b32 s26, 0, s26')
    a.e(f'v_add_u32 {v(vKn)}, s21, {v(vL16)}')
    a.e(f'v_add_u32 {v(vK2n)}, s21, {v(vLaneK2)}')
    a.e(f'v_add_u32 {v(vVn)}, s21, {v(vLaneV)}')
    a.e('s_add_u32 s25, s25, 10240')
    a.e('s_add_u32 s24, s24, 1')
    a.e('s_cmp_lt_u32 s24, 8')
    a.e('s_cbranch_scc1 ATT_LOOP')
    stamp(a,3); stampc(a,6)
    if 'eprio' in FL: a.e('s_setprio 3')
    a.e(f'v_cvt_pk_bf16_f32 {v(P1+2)}, {v(E+4)}, {v(E+5)}')
    a.e(f'v_cvt_pk_bf16_f32 {v(P1+3)}, {v(E+6)}, {v(E+7)}')
    a.e('s_waitcnt lgkmcnt(0)')
    a.e('s_nop 1')
    a.e(mfma(O,V1,P1,O))
    a.e('s_nop 7'); a.e('s_nop 7')
    a.e(f'v_mov_b32 {v(vT)}, 0')
    for k in range(13): a.e(f'v_fma_f32 {v(vT)}, {v(O+k)}, 0, {v(vT)}')
    a.e(f'v_cmp_u_f32 vcc, {v(vT)}, {v(vT)}')
    a.e('s_mov_b64 s[36:37], vcc')
    a.e(f'v_mov_b32 {v(vT)}, 0x7b800000')
    a.e(f'v_cmp_nlt_f32 vcc, {v(O+12)}, {v(vT)}')
    a.e('s_or_b64 vcc, vcc, s[36:37]')
    if 'am16' not in FL: a.e('s_cbranch_vccnz ATT_FALLBACK')
    a.label('ATT_EPI')
    a.e(f'v_rcp_f32 {v(vT)}, {v(O+12)}')
    a.e('s_nop 0')
    for k in range(12): a.e(f'v_mul_f32 {v(O+k)}, {v(O+k)}, {v(vT)}')
    for k in range(6): a.e(f'v_cvt_pk_bf16_f32 {v(E+k)}, {v(O+2*k)}, {v(O+2*k+1)}')
    if 'sent' in FL:
        for k in range(6): a.e(f'v_min_u32 {v(E+k)}, -2, {v(E+k)}')
    a.e('s_mul_i32 s33, s28, 40960')
    a.e('s_lshl_b32 s30, s27, 10')
    a.e('s_add_u32 s30, s30, s33')
    opol=' '.join(x for x in ('sc0','sc1','nt') if 'ost_'+x in FL)
    a.e(f'buffer_store_dwordx4 {v(E,4)}, {v(vL16)}, s[12:15], s30 offen {opol}')
    if 'lat' in FL:
        stamp(a,0); a.e('s_waitcnt vmcnt(0)'); stamp(a,1)
    if 'can' in FL:
        a.e('s_lshl_b32 s30, s27, 8')
        a.e('s_add_u32 s30, s30, s33')
        a.e(f's_add_u32 s30, s30, {32768-1024}')
        a.e('s_mov_b64 exec, 0xffffffff')
        a.e(f'buffer_store_dwordx2 {v(E+4,2)}, {v(vLaneK2)}, s[12:15], s30 offen {opol}')
    else:
        a.e('s_lshr_b32 s30, s27, 2')
        a.e('s_add_u32 s30, s30, 32')
        a.e('s_lshl_b32 s30, s30, 10')
        a.e('s_add_u32 s30, s30, s33')
        a.e('s_and_b32 s31, s27, 2')
        a.e('s_lshl_b32 s31, s31, 8')
        a.e('s_add_u32 s30, s30, s31')
        a.e('s_and_b32 s31, s27, 1')
        a.e('s_lshl_b32 s31, s31, 3')
        a.e('s_add_u32 s30, s30, s31')
        a.e('s_mov_b64 exec, 0xffffffff')
        a.e(f'buffer_store_dwordx2 {v(E+4,2)}, {v(vL16)}, s[12:15], s30 offen {opol}')
    if 'lat' in FL:
        a.e('s_waitcnt vmcnt(0)'); stamp(a,2)
    if 'sent' in FL:
        if 'hint8' in FL:
            a.e('s_mov_b64 exec, 1')
            a.e('buffer_store_dword v102, off, s[40:43], s44 sc1')
        a.e('s_waitcnt vmcnt(0)')
    else: a.e('s_waitcnt vmcnt(0)')
    if 'fuse' in FL and 'sent' not in FL:
        a.e(f's_add_u32 s8, s34, {FLAGS}'); a.e('s_addc_u32 s9, s35, 0'); a.e(f's_mov_b32 s10, {FLAGS_BYTES}')
        a.e('s_lshl_b32 s30, s28, 5'); a.e('s_add_u32 s30, s30, s27'); a.e('s_lshl_b32 s30, s30, 2')
        a.e(f'v_mov_b32 {v(vT)}, 1')
        a.e('s_mov_b64 exec, 1')
        a.e(f'buffer_store_dword {v(vT)}, off, s[8:11], s30 sc1')
        a.e('s_waitcnt vmcnt(0)')
    stamp(a,4)
    stamp_store(a,7,34,'s16',8,0)
    a.label('ATT_END')
    a.e('s_endpgm')
    a.label('ATT_FALLBACK')
    a.e(f'v_mov_b32 {v(Q2+2)}, 0'); a.e(f'v_mov_b32 {v(Q2+3)}, 0')
    a.e(f'v_mov_b32 {v(vMx)}, 0xff800000')
    a.e('s_mov_b32 s30, 0')
    a.label('ATT_FB1')
    a.e(f'buffer_load_dwordx4 {v(K1,4)}, {v(vL16)}, s[4:7], s30 offen')
    a.e(f'buffer_load_dwordx2 {v(K2,2)}, {v(vLaneK2)}, s[4:7], s30 offen')
    a.e('s_waitcnt vmcnt(0)')
    a.e(mfma(SA,K1,Q1,None)); a.e(mfma(SA,K2,Q2,SA))
    a.e('s_nop 7'); a.e('s_nop 7')
    max16(a,SA,False)
    a.e('s_add_u32 s30, s30, 1280')
    a.e('s_cmp_lt_u32 s30, 81920')
    a.e('s_cbranch_scc1 ATT_FB1')
    set_m_pieces(a,'0')
    for k in range(16): a.e(f'v_mov_b32 {v(O+k)}, 0')
    a.e(f'v_add_u32 {v(vVc)}, {VIMG-KIMG-10240}, {v(vLaneV)}')
    a.e('s_mov_b32 s30, 0')
    a.label('ATT_FB2')
    a.e(f'buffer_load_dwordx4 {v(K1,4)}, {v(vL16)}, s[4:7], s30 offen')
    a.e(f'buffer_load_dwordx2 {v(K2,2)}, {v(vLaneK2)}, s[4:7], s30 offen')
    a.e('s_mov_b64 exec, s[22:23]')
    a.e(f'buffer_load_dwordx4 {v(V0,4)}, {v(vVc)}, s[4:7], s30 offen')
    a.e(f'buffer_load_dwordx4 {v(V1,4)}, {v(vVc)}, s[4:7], s30 offen offset:640')
    a.e('s_mov_b64 exec, -1')
    a.e('s_waitcnt vmcnt(0)')
    a.e(mfma(SA,K1,Q1,None)); a.e(mfma(SA,K2,Q2,SA))
    a.e('s_nop 7'); a.e('s_nop 7')
    for k in range(16): a.e(f'v_exp_f32 {v(SB+k)}, {v(SA+k)}')
    a.e('s_nop 0')
    for k in range(4): a.e(f'v_cvt_pk_bf16_f32 {v(P0+k)}, {v(SB+2*k)}, {v(SB+2*k+1)}')
    for k in range(4): a.e(f'v_cvt_pk_bf16_f32 {v(P1+k)}, {v(SB+8+2*k)}, {v(SB+8+2*k+1)}')
    a.e('s_nop 1')
    a.e(mfma(O,V0,P0,O)); a.e(mfma(O,V1,P1,O))
    a.e('s_add_u32 s30, s30, 1280')
    a.e('s_cmp_lt_u32 s30, 81920')
    a.e('s_cbranch_scc1 ATT_FB2')
    a.e('s_nop 7'); a.e('s_nop 7')
    a.e('s_branch ATT_EPI')
    if 'ffn2' in FL:
        a.label('ATT_FFN2')
        gen_ffn2.FL=FL
        gen_ffn2.ffn2_role(a)
        return 128
    return NV
```

```python
from asmlib import *
from layouts import QIMG,KIMG,VIMG,HIMG,WIMG,WIMG_BYTES,FLAGS,FLAGS_BYTES,OIMG
from stamps import stamp, stamp_store, stampc
import stamps
XS=16384; WBASE=49152; WP=20544
CS=WBASE+5*WP
CSP=CS+1280
NM=CSP+2560
RR=NM+512
ST2=RR+512
LDS=ST2+1024
SP=LDS
def lds_size(): return LDS+(5120 if 'wearly' in FL else 0)
WF=4
XF=24
XA=40
WA=44
SEL=48
vT=58; vT2=59; vT3=60; vT4=61
CSA=64
ACC=96
NV=256
FL=set()
def acc(i,t): return ACC+(i*5+t)*16
def mfma(d,a_,b_):
    if 'm16' in FL:
        return f'v_mfma_f32_16x16x32_bf16 {v(d,4)}, {v(a_,4)}, {v(b_,4)}, {v(d,4)}\n    v_mfma_f32_16x16x32_bf16 {v(d+4,4)}, {v(a_,4)}, {v(b_,4)}, {v(d+4,4)}'
    return f'v_mfma_f32_32x32x16_bf16 {v(d,16)}, {v(a_,4)}, {v(b_,4)}, {v(d,16)}'

def wread(a,var,jl,t):
    if var=='ffn':
        reg=WA+2*jl; pitch=320; off=32*t
    else:
        reg=WA+2*jl+(t%2); pitch=640; off=64*t
    for p in range(2):
        a.e(f'ds_read_b64_tr_b16 {v(WF+4*t+2*p,2)}, {v(reg)} offset:{off+4*p*pitch}')
def xread(a,buf,j):
    for i in range(2):
        a.e(f'ds_read_b128 {v(XF+buf*8+i*4,4)}, {v(XA+j)} offset:{i*4096}')

def kstep(a,var,k):
    jl=k%2; xb=k%2
    a.c(f'kstep {k}')
    A=[[] for _ in range(5)]
    if jl==1 and 'nobar' not in FL: A[0].append('BAR')
    A[1]+=[f'ds_read_b128 {v(XF+(1-xb)*8+i*4,4)}, {v(XA+(k+1)%4)} offset:{i*4096}' for i in range(2)]
    regs=[WA+2*jl] if var=='ffn' else [WA+2*jl,WA+2*jl+1]
    A[2]+=[f'v_add_u32 {v(r)}, s22, {v(r)}' for r in regs]
    xs={1:[0,1],2:[2],3:[3]}.get(k,[])
    A[3]+=[f'v_add_u32 {v(XA+j)}, s24, {v(XA+j)}' for j in xs]
    if jl==1:
        A[3]+=['s_add_u32 s23, s23, 1','s_cmp_eq_u32 s23, 5']
        A[4]+=['s_cselect_b32 s22, s45, s44','s_cselect_b32 s23, 0, s23']
    if k==0:
        A[0]+=['s_add_u32 s25, s25, 1','s_cmp_eq_u32 s25, 3']
        A[0]+=['s_cselect_b32 s24, s47, s46']
        A[4]+=['s_cmp_eq_u32 s25, 3','s_cselect_b32 s25, 0, s25']
    if k==2:
        A[4]=['s_add_u32 s26, s26, 1']+A[4]
    if k==1 and 'ppf' in FL:
        A[1]+=['s_cmp_le_u32 s26, %d'%PPF_LAST(),'s_cselect_b32 s6, s6, 0']
        A[2]+=['buffer_load_dword v95, v94, s[4:7], 0 offen']
        A[3]=['v_add_u32 v94, s28, v94']+A[3]
    if k==3:
        A[4]+=['s_cmp_lt_u32 s26, 10']
    for t in range(5):
        n=8 if t<2 else 10
        a.e(f's_waitcnt lgkmcnt({n})')
        if 'nocs' not in FL and ((jl==0 and t%2==0) or (jl==1 and t%2==1)):
            a.e(f'v_mfma_f32_16x16x32_bf16 {v(CSA+4*t,4)}, {v(SEL,4)}, {v(WF+4*t,4)}, {v(CSA+4*t,4)}')
        for i in range(2):
            X=XF+xb*8+i*4
            if var=='v': a.e(mfma(acc(i,t),X,WF+4*t))
            else:        a.e(mfma(acc(i,t),WF+4*t,X))
            if i==0:
                for f in A[t]:
                    a.e('s_barrier' if f=='BAR' else f)
        wread(a,var,1-jl,t)

def stats(a,i,P,Pc=None,mode='qk'):
    a.e(f'v_mul_f32 {v(P)}, 0x3acccccd, {v(P)}')
    a.e(f'v_mul_f32 {v(P+1)}, 0x3acccccd, {v(P+1)}')
    a.e(f'v_fma_f32 {v(P+1)}, -{v(P)}, {v(P)}, {v(P+1)}')
    a.e(f'v_max_f32 {v(P+1)}, 0, {v(P+1)}')
    a.e(f'v_cvt_pk_bf16_f32 {v(P)}, {v(P)}, {v(P+1)}')
    a.e(f'v_and_b32 {v(P+1)}, 0xffff0000, {v(P)}')
    a.e(f'v_lshlrev_b32 {v(P)}, 16, {v(P)}')
    a.e(f'v_add_f32 {v(P+1)}, 0x3727c5ac, {v(P+1)}')
    a.e(f'v_cvt_pk_bf16_f32 {v(P+1)}, {v(P+1)}, {v(P+1)}')
    a.e(f'v_and_b32 {v(P+1)}, 0xffff0000, {v(P+1)}')
    a.e(f'v_sqrt_f32 {v(P+1)}, {v(P+1)}')
    a.e(f'v_xor_b32 {v(P)}, 0x80000000, {v(P)}')
    a.e(f'v_cvt_pk_bf16_f32 {v(P+1)}, {v(P+1)}, {v(P+1)}')
    a.e(f'v_and_b32 {v(P+1)}, 0xffff0000, {v(P+1)}')
    a.e(f'v_rcp_f32 {v(P+1)}, {v(P+1)}')
    a.e('s_nop 0')

def pkfma(d,x,y,z,bx=None,by=None,bz=None):
    sel=[0 if b is None else b for b in (bx,by,bz)]
    hi=[1 if b is None else b for b in (bx,by,bz)]
    return f'v_pk_fma_f32 {v(d,2)}, {v(x,2)}, {v(y,2)}, {v(z,2)} op_sel:[{sel[0]},{sel[1]},{sel[2]}] op_sel_hi:[{hi[0]},{hi[1]},{hi[2]}]'
def pkmul(d,x,y,bx=None,by=None):
    sel=[0 if b is None else b for b in (bx,by)]
    hi=[1 if b is None else b for b in (bx,by)]
    return f'v_pk_mul_f32 {v(d,2)}, {v(x,2)}, {v(y,2)} op_sel:[{sel[0]},{sel[1]}] op_sel_hi:[{hi[0]},{hi[1]}]'

def PPF_N():
    for n in (1,2,3,4,5):
        if f'ppf{n}' in FL: return n
    return 3
def PPF_LAST():
    return 8-PPF_N()
def ppf_setup(a,var):
    a.e('s_lshr_b32 s29, s2, 3'); a.e('s_and_b32 s29, s29, 7')
    if var=='ffn':
        L,mul,pitch,nw=3,21846,3072,2
        a.e('s_sub_u32 s31, s18, 6'); a.e('s_mul_i32 s31, s31, 320'); a.e('s_min_u32 s31, s31, 2752'); a.e('s_andn2_b32 s31, s31, 127')
        a.e('s_cmp_eq_u32 s16, 0'); a.e('s_cselect_b32 s4, s40, s42'); a.e('s_cselect_b32 s5, s41, s43')
    else:
        L,mul,pitch,nw=5,13108,3840,1
        a.e('s_mul_i32 s31, s18, 640')
        a.e('s_mov_b32 s4, s38'); a.e('s_mov_b32 s5, s39')
    a.e(f's_add_u32 s29, s29, 64')
    a.e(f'v_mul_u32_u24 v92, {mul}, v0')
    a.e('v_lshrrev_b32 v92, 16, v92')
    a.e(f'v_mul_u32_u24 v93, {L}, v92')
    a.e('v_sub_u32 v93, v0, v93')
    a.e('v_lshlrev_b32 v92, 3, v92')
    a.e('v_add_u32 v92, s29, v92')
    a.e(f'v_mul_u32_u24 v92, {pitch}, v92')
    a.e('v_lshlrev_b32 v93, 7, v93')
    a.e('v_add_u32 v92, v92, v93')
    a.e('v_add_u32 v92, s31, v92')
    a.e('v_bfrev_b32 v93, 1')
    a.e(f'v_cmp_gt_u32 vcc, {8*L}, v0')
    a.e('v_cndmask_b32 v94, v93, v92, vcc')
    a.e(f's_mov_b32 s28, {64*pitch}')
    a.e(f's_cmp_lt_u32 s16, {nw}'); a.e(f's_cselect_b32 s6, {640*pitch}, 0')
    a.e('s_mov_b32 s7, 0x00020000')
    a.e('s_cmp_eq_u32 s16, 2')
    a.e(f's_cbranch_scc0 K1_PPF_{var}')
    a.e('s_lshr_b32 s29, s2, 6'); a.e('s_lshl_b32 s29, s29, 5'); a.e('s_lshl_b32 s31, s17, 7'); a.e('s_add_u32 s29, s29, s31')
    a.e('v_add_u32 v92, s29, v0')
    a.e('v_mul_u32_u24 v92, 1280, v92')
    a.e('v_add_u32 v92, 256, v92')
    a.e('v_cmp_gt_u32 vcc, 32, v0')
    a.e('v_cndmask_b32 v94, v93, v92, vcc')
    a.e('s_mov_b32 s4, s36'); a.e('s_mov_b32 s5, s37'); a.e('s_mov_b32 s6, 2621440'); a.e('s_mov_b32 s28, 128')
    a.label(f'K1_PPF_{var}')
    for j in range(PPF_PRE()):
        a.e('buffer_load_dword v95, v94, s[4:7], 0 offen')
        a.e('v_add_u32 v94, s28, v94')
def PPF_PRE():
    for n in (0,1,2,3,4):
        if f'pre{n}' in FL: return n
    return PPF_N()

def main_loop(a,var):
    L=f'K1_{var.upper()}'
    if 'ppf' in FL: ppf_setup(a,var)
    a.e('s_barrier')
    stamp(a,1); stampc(a,8)
    if 'ppf' in FL:
        for j in range(PPF_N()-PPF_PRE()):
            a.e('buffer_load_dword v95, v94, s[4:7], 0 offen')
            a.e('v_add_u32 v94, s28, v94')
    wread(a,var,0,0)
    xread(a,0,0)
    for t in range(1,5): wread(a,var,0,t)
    a.e('s_mov_b32 s26, 0')
    a.e('s_mov_b32 s22, s44'); a.e('s_mov_b32 s23, 1')
    a.label(f'{L}_LOOP')
    for k in range(4): kstep(a,var,k)
    if stamps.STAMP:
        a.e('s_cmp_eq_u32 s26, 1')
        a.e(f's_cbranch_scc0 {L}_NS')
        stamp(a,7)
        a.label(f'{L}_NS')
        a.e('s_cmp_lt_u32 s26, 10')
    a.e(f's_cbranch_scc1 {L}_LOOP')
    stamp(a,2); stampc(a,9)
    step,r1=(64,640) if var=='ffn' else (128,64)
    a.e('s_nop 7')
    a.e('s_mov_b64 exec, 0xffff')
    for t in range(5):
        a.e(f'ds_write_b32 v62, {v(CSA+4*t)} offset:{t*step}')
        a.e(f'ds_write_b32 v62, {v(CSA+4*t+1)} offset:{t*step+r1}')
    a.e('s_mov_b64 exec, -1')
    a.e('s_waitcnt lgkmcnt(0)')
    stamp(a,5)
    a.e('s_barrier')
    if var!='v':
        a.e('ds_read_b64 v[64:65], v63 offset:0')
        a.e('ds_read_b64 v[66:67], v63 offset:256')
    a.e('s_barrier')
    stamp(a,6)

def k1_kernel(a,name):
    pol=' '.join(x for x in ('sc0','sc1','nt') if 'st_'+x in FL)
    if 'nost' in FL or pol:
        E0=a.e
        def e2(x):
            if x.startswith('buffer_store'):
                if 'nost' in FL: return
                x=x+' '+pol
            E0(x)
        a.e=e2
    a.lines.append(kernel_header(name))
    a.e('s_cmp_ge_u32 s2, 256')
    a.e('s_cbranch_scc1 K1_END')
    for n in (8,32,64,256):
      if f'cpt{n}' in FL:
        a.e(f's_cmp_lt_u32 s2, {n}'); a.e('s_cbranch_scc0 K1_CPT_END')
        a.e('s_getpc_b64 s[4:5]')
        a.label('K1_CPT_PC')
        a.e('s_sub_u32 s4, s4, K1_CPT_PC-k1_kernel'); a.e('s_subb_u32 s5, s5, 0')
        a.e('s_mov_b32 s6, FFN_TAIL+4-k1_kernel'); a.e('s_mov_b32 s7, 0x00020000')
        a.e('v_lshlrev_b32 v2, 7, v0')
        a.e('buffer_load_dword v3, v2, s[4:7], 0 offen')
        a.label('K1_CPT_END')
    a.e('s_load_dwordx2 s[34:35], s[0:1], 72')
    a.e('s_load_dwordx2 s[36:37], s[0:1], 0')
    a.e('s_load_dwordx2 s[38:39], s[0:1], 8')
    a.e('s_load_dwordx4 s[40:43], s[0:1], 32')
    if 'wimg' in FL:
        a.e('s_load_dwordx2 s[50:51], s[0:1], 16')
        a.e('s_load_dwordx2 s[52:53], s[0:1], 48')
    stamp(a,0)
    a.e(f'v_lshrrev_b32 {v(vT)}, 6, v0')
    a.e('v_and_b32 v0, 63, v0')
    a.e(f'v_readfirstlane_b32 s16, {v(vT)}')
    a.e('s_and_b32 s27, s2, 7')
    a.e('s_lshr_b32 s29, s2, 3')
    a.e('s_and_b32 s17, s27, 1')
    a.e('s_lshl_b32 s17, s17, 3')
    a.e('s_and_b32 s30, s29, 7')
    a.e('s_add_u32 s17, s17, s30')
    a.e('s_lshr_b32 s18, s27, 1')
    a.e('s_lshl_b32 s18, s18, 2')
    a.e('s_lshr_b32 s30, s29, 3')
    a.e('s_add_u32 s18, s18, s30')
    if 'mix' in FL:
        perm=[0,1,6,7,2,3,8,9,4,10,11,12,5,13,14,15]
        lo=sum(perm[i]<<(4*i) for i in range(8)); hi=sum(perm[8+i]<<(4*i) for i in range(8))
        a.e(f's_mov_b32 s30, {lo}'); a.e(f's_mov_b32 s31, {hi}')
        a.e('s_lshl_b32 s18, s18, 2')
        a.e('s_lshr_b64 s[30:31], s[30:31], s18')
        a.e('s_and_b32 s18, s30, 15')
    a.e('s_cmp_ge_u32 s16, 4')
    a.e('s_cbranch_scc1 K1_LOADER')
    if 'sent' in FL:
        a.e('s_mul_i32 s27, s2, 10240')
        a.e(f's_add_u32 s27, s27, {OIMG}')
        a.e('v_lshlrev_b32 v59, 4, v0')
        for k in range(4): a.e(f'v_mov_b32 v{60+k}, -1')
        a.e('s_lshl_b32 s28, s16, 10')
        a.e('s_waitcnt lgkmcnt(0)')
        a.e('s_add_u32 s4, s34, s27'); a.e('s_addc_u32 s5, s35, 0'); a.e('s_mov_b32 s6, 10240'); a.e('s_mov_b32 s7, 0x00020000')
        a.e('buffer_store_dwordx4 v[60:63], v59, s[4:7], s28 offen')
        a.e('s_add_u32 s28, s28, 4096')
        a.e('buffer_store_dwordx4 v[60:63], v59, s[4:7], s28 offen')
        a.e('s_add_u32 s28, s28, 4096')
        a.e('buffer_store_dwordx4 v[60:63], v59, s[4:7], s28 offen')
        a.e('s_nop 3')
    if 'cpa' in FL:
        a.e('s_cmp_lt_u32 s2, 32'); a.e('s_cbranch_scc0 K1_CPA_END')
        a.e('s_getpc_b64 s[4:5]')
        a.label('K1_CPA_PC')
        a.e('s_sub_u32 s4, s4, K1_CPA_PC-k1_kernel'); a.e('s_subb_u32 s5, s5, 0')
        a.e('s_mov_b32 s6, FFN_TAIL+4-k1_kernel'); a.e('s_mov_b32 s7, 0x00020000')
        a.e('v_lshlrev_b32 v52, 7, v0'); a.e('s_lshl_b32 s28, s16, 13')
        a.e('buffer_load_dword v53, v52, s[4:7], s28 offen')
        a.label('K1_CPA_END')
    if 'pf' in FL:
        pol=' '.join(x for x in ('sc0','sc1','nt') if 'pf_'+x in FL)
        a.e('s_lshr_b32 s27, s2, 6')
        a.e('s_lshr_b32 s29, s2, 3'); a.e('s_and_b32 s29, s29, 7')
        a.e('s_lshl_b32 s30, s17, 7'); a.e('s_lshl_b32 s27, s27, 5'); a.e('s_add_u32 s30, s30, s27')
        a.e('v_and_b32 v52, 31, v0')
        a.e('v_add_u32 v52, s30, v52')
        a.e('v_mul_u32_u24 v52, 1280, v52')
        a.e('v_lshrrev_b32 v53, 5, v0')
        a.e('v_lshlrev_b32 v53, 7, v53')
        a.e('v_add_u32 v52, v52, v53')
        a.e('s_lshl_b32 s30, s16, 8')
        a.e('s_cmp_ge_u32 s18, 6')
        a.e('s_cbranch_scc1 K1_PF_FFN')
        a.e('s_lshl_b32 s27, s16, 6')
        for q in range(2):
            a.e(f'v_add_u32 v53, s27, v0')
            if q==1: a.e('v_add_u32 v53, 256, v53')
            a.e(f'v_mul_u32_u24 v54, 13108, v53')
            a.e('v_lshrrev_b32 v54, 16, v54')
            a.e('v_mul_u32_u24 v55, 5, v54')
            a.e('v_sub_u32 v55, v53, v55')
            a.e('v_lshlrev_b32 v54, 3, v54')
            a.e('v_add_u32 v54, s29, v54')
            a.e('v_mul_u32_u24 v54, 3840, v54')
            a.e('v_lshlrev_b32 v55, 7, v55')
            a.e(f'v_add_u32 v{55+q+1}, v54, v55')
        a.e('s_mul_i32 s31, s18, 640')
        a.e('s_waitcnt lgkmcnt(0)')
        a.e('s_mov_b32 s4, s38'); a.e('s_mov_b32 s5, s39'); a.e(f's_mov_b32 s6, {640*3840}')
        a.e('s_branch K1_PF_GO')
        a.label('K1_PF_FFN')
        a.e('s_and_b32 s27, s16, 1')
        a.e('s_lshl_b32 s27, s27, 6')
        for q in range(2):
            a.e(f'v_add_u32 v53, s27, v0')
            if q==1: a.e('v_add_u32 v53, 128, v53')
            a.e(f'v_mul_u32_u24 v54, 21846, v53')
            a.e('v_lshrrev_b32 v54, 16, v54')
            a.e('v_mul_u32_u24 v55, 3, v54')
            a.e('v_sub_u32 v55, v53, v55')
            a.e('v_lshlrev_b32 v54, 3, v54')
            a.e('v_add_u32 v54, s29, v54')
            a.e('v_mul_u32_u24 v54, 3072, v54')
            a.e('v_lshlrev_b32 v55, 7, v55')
            a.e(f'v_add_u32 v{55+q+1}, v54, v55')
        a.e('s_sub_u32 s31, s18, 6')
        a.e('s_mul_i32 s31, s31, 320')
        a.e('s_min_u32 s31, s31, 2752')
        a.e('s_andn2_b32 s31, s31, 127')
        a.e('s_waitcnt lgkmcnt(0)')
        a.e('s_cmp_lt_u32 s16, 2')
        a.e('s_cselect_b32 s4, s40, s42')
        a.e('s_cselect_b32 s5, s41, s43')
        a.e(f's_mov_b32 s6, {640*3072}')
        a.label('K1_PF_GO')
        a.e('s_mov_b32 s7, 0x00020000')
        a.e('s_mov_b32 s8, s36'); a.e('s_mov_b32 s9, s37'); a.e('s_mov_b32 s10, 2621440'); a.e('s_mov_b32 s11, 0x00020000')
        a.e(f'buffer_load_dword v95, v56, s[4:7], s31 offen {pol}')
        a.e(f'buffer_load_dword v95, v52, s[8:11], s30 offen {pol}')
        a.e(f'buffer_load_dword v95, v57, s[4:7], s31 offen {pol}')
        a.e('s_cmp_eq_u32 s16, 0')
        a.e('s_cbranch_scc0 K1_PF_END')
        a.e(f'buffer_load_dword v95, v52, s[8:11], 0 offen offset:1024 {pol}')
        a.label('K1_PF_END')
    if 'cp3' in FL: a.e('s_setprio 3')
    a.e('s_lshr_b32 s19, s16, 1')
    a.e('s_and_b32 s20, s16, 1')
    a.e('s_xor_b32 s21, s19, s20')
    a.e(f's_mov_b32 s44, {WP}'); a.e(f's_mov_b32 s45, {(-4*WP)&0xffffffff}'); a.e(f's_mov_b32 s46, {XS}'); a.e(f's_mov_b32 s47, {(-2*XS)&0xffffffff}')
    a.e(f'v_and_b32 {v(vT)}, 31, v0')
    a.e(f'v_lshrrev_b32 {v(vT2)}, 5, v0')
    a.e(f'v_bfe_u32 {v(vT3)}, v0, 1, 3')
    a.e(f'v_lshlrev_b32 {v(vT4)}, 7, {v(vT)}')
    a.e('s_lshl_b32 s27, s19, 13')
    a.e(f'v_add_u32 {v(vT4)}, s27, {v(vT4)}')
    for kk in range(4):
        a.e(f's_xor_b32 s27, s21, {kk%2}')
        a.e(f's_add_u32 s27, s27, {2*(kk//2)}')
        a.e('s_lshl_b32 s27, s27, 1')
        a.e(f'v_add_u32 {v(XA+kk)}, s27, {v(vT2)}')
        a.e(f'v_xor_b32 {v(XA+kk)}, {v(XA+kk)}, {v(vT3)}')
        a.e(f'v_lshlrev_b32 {v(XA+kk)}, 4, {v(XA+kk)}')
        a.e(f'v_add_u32 {v(XA+kk)}, {v(XA+kk)}, {v(vT4)}')
    a.e('s_lshl_b32 s27, s19, 9')
    a.e(f's_add_u32 s27, s27, {ST2}')
    a.e(f'v_lshlrev_b32 v63, 3, {v(vT)}')
    a.e('v_add_u32 v63, s27, v63')
    for k in range(20): a.e(f'v_mov_b32 {v(CSA+k)}, 0')
    a.e(f'v_and_b32 {v(vT2)}, 15, v0')
    a.e(f'v_bfe_u32 {v(vT3)}, v0, 4, 1')
    a.e(f'v_cmp_eq_u32 vcc, {v(vT2)}, {v(vT3)}')
    a.e(f'v_mov_b32 {v(vT2)}, 0')
    a.e(f'v_mov_b32 {v(vT3)}, 0x3f803f80')
    for k in range(4): a.e(f'v_cndmask_b32 {v(SEL+k)}, {v(vT2)}, {v(vT3)}, vcc')
    a.e('s_mov_b32 s25, 0')
    vH=84; vCh=85; vR=86; vC4=87; vRow=88
    a.e(f'v_lshrrev_b32 {v(vH)}, 5, v0')
    a.e(f'v_bfe_u32 {v(vCh)}, v0, 4, 1')
    a.e(f'v_bfe_u32 {v(vR)}, v0, 2, 2')
    a.e(f'v_and_b32 {v(vC4)}, 3, v0')
    a.e(f'v_lshlrev_b32 {v(vRow)}, 3, {v(vH)}')
    a.e(f'v_add_u32 {v(vRow)}, {v(vRow)}, {v(vR)}')
    a.e('s_cmp_ge_u32 s18, 6')
    a.e('s_cbranch_scc1 K1_FFN_SETUP')
    a.e(f'v_mul_u32_u24 {v(vT2)}, 640, {v(vRow)}')
    a.e(f'v_lshlrev_b32 {v(vT3)}, 5, {v(vCh)}')
    a.e(f'v_add_u32 {v(vT2)}, {v(vT2)}, {v(vT3)}')
    a.e(f'v_lshlrev_b32 {v(vT3)}, 3, {v(vC4)}')
    a.e(f'v_add_u32 {v(vT2)}, {v(vT2)}, {v(vT3)}')
    a.e('s_mul_i32 s27, s20, 320')
    a.e(f's_add_u32 s27, s27, {WBASE}')
    a.e(f'v_add_u32 {v(vT2)}, s27, {v(vT2)}')
    a.e(f'v_lshrrev_b32 {v(vT3)}, 1, {v(vR)}')
    a.e(f'v_lshlrev_b32 {v(vT3)}, 6, {v(vT3)}')
    a.e(f'v_sub_u32 {v(vT4)}, 0, {v(vT3)}')
    a.e('s_cmp_eq_u32 s20, 0')
    a.e('s_cselect_b64 vcc, -1, 0')
    a.e(f'v_cndmask_b32 v89, {v(vT4)}, {v(vT3)}, vcc')
    a.e(f'v_cndmask_b32 v90, {v(vT3)}, {v(vT4)}, vcc')
    for jl in range(2):
        a.e(f's_xor_b32 s27, s21, {jl}')
        a.e(f's_mul_i32 s27, s27, {16*640}')
        a.e(f'v_add_u32 {v(vT3)}, s27, {v(vT2)}')
        a.e(f'v_add_u32 {v(WA+2*jl)}, {v(vT3)}, v89')
        a.e(f'v_add_u32 {v(WA+2*jl+1)}, {v(vT3)}, v90')
    a.e('s_mul_i32 s27, s20, 640')
    a.e('s_mul_i32 s29, s19, 1280')
    a.e('s_add_u32 s27, s27, s29')
    a.e(f's_add_u32 s27, s27, {CSP}')
    a.e(f'v_and_b32 v62, 15, v0')
    a.e(f'v_lshlrev_b32 v62, 2, v62')
    a.e('v_add_u32 v62, s27, v62')
    for k in range(160): a.e(f'v_mov_b32 {v(ACC+k)}, 0')
    a.e('s_waitcnt lgkmcnt(0)')
    a.e('s_cmp_ge_u32 s18, 4')
    a.e('s_cbranch_scc1 K1_V_START')
    main_loop(a,'qk')
    a.e(f'v_lshrrev_b32 {v(vT)}, 5, v0')
    a.e(f'v_lshlrev_b32 {v(vT)}, 4, {v(vT)}')
    a.e('s_mul_i32 s27, s20, 640')
    a.e(f's_add_u32 s27, s27, {CS}')
    a.e(f'v_add_u32 {v(vT)}, s27, {v(vT)}')
    CQ=[4,20]
    for b in range(4): a.e(f'ds_read_b128 {v(CQ[0]+4*b,4)}, {v(vT)} offset:{b*32}')
    a.e('s_cmp_lt_u32 s18, 2')
    a.e(f's_cselect_b32 s27, {QIMG}, {KIMG}')
    a.e('s_add_u32 s4, s34, s27')
    a.e('s_addc_u32 s5, s35, 0')
    a.e('s_mov_b32 s6, 2621440')
    a.e('s_mov_b32 s7, 0x00020000')
    a.e('s_cmp_lt_u32 s18, 2')
    a.e('s_cselect_b32 s29, 0x3ea52b5c, 0x3f800000')
    a.e('s_and_b32 s27, s18, 1')
    a.e('s_lshl_b32 s27, s27, 4')
    a.e('s_lshl_b32 s30, s20, 3')
    a.e('s_add_u32 s27, s27, s30')
    a.e('s_mul_i32 s30, s27, 81920')
    a.e('s_lshl_b32 s31, s17, 2')
    a.e('s_lshl_b32 s27, s19, 1')
    a.e('s_add_u32 s31, s31, s27')
    a.e('s_mul_i32 s31, s31, 1280')
    a.e('s_add_u32 s30, s30, s31')
    vL16=71; vR8=72
    a.e(f'v_lshlrev_b32 {v(vL16)}, 4, v0')
    a.e(f'v_and_b32 {v(vR8)}, 31, v0')
    a.e(f'v_lshlrev_b32 {v(vR8)}, 3, {v(vR8)}')
    a.e(f'v_lshrrev_b32 {v(vT2)}, 5, v0')
    a.e(f'v_mul_u32_u24 {v(vT2)}, 81920, {v(vT2)}')
    a.e(f'v_add_u32 {v(vR8)}, {v(vR8)}, {v(vT2)}')
    a.e(f'v_add_u32 {v(vR8)}, 1024, {v(vR8)}')
    a.e('s_waitcnt lgkmcnt(4)')
    for i in range(2):
        a.e(f'v_mul_f32 {v(65+2*i)}, s29, {v(65+2*i)}')
    TMP=76
    for t in range(5):
        if t<4:
            for b in range(4): a.e(f'ds_read_b128 {v(CQ[(t+1)%2]+4*b,4)}, {v(vT)} offset:{(t+1)*128+b*32}')
            a.e('s_waitcnt lgkmcnt(4)')
        else:
            a.e('s_waitcnt lgkmcnt(0)')
        for b in range(4):
            j=4*t+b; m=j//5; jj=j%5
            dst={0:0,1:2,2:4,3:8,4:10}[jj]+20*m
            for i in range(2):
                A=acc(i,0)+4*j; P=64+2*i; C=CQ[t%2]+4*b; T_=TMP+4*i
                a.e(pkfma(T_,C,P,A,None,0,None))
                a.e(pkfma(T_+2,C+2,P,A+2,None,0,None))
                a.e(pkmul(T_,T_,P,None,1))
                a.e(pkmul(T_+2,T_+2,P,None,1))
            for i in range(2):
                T_=TMP+4*i; D=acc(i,0)+dst
                a.e(f'v_cvt_pk_bf16_f32 {v(D)}, {v(T_)}, {v(T_+1)}')
                a.e(f'v_cvt_pk_bf16_f32 {v(D+1)}, {v(T_+2)}, {v(T_+3)}')
            if jj==4:
                for i in range(2):
                    B=acc(i,0)+20*m
                    a.e(f's_add_u32 s27, s30, {2*m*81920+i*1280}')
                    a.e(f's_add_u32 s31, s27, 81920')
                    a.e(f'buffer_store_dwordx4 {v(B,4)}, {v(vL16)}, s[4:7], s27 offen')
                    a.e(f'buffer_store_dwordx4 {v(B+8,4)}, {v(vL16)}, s[4:7], s31 offen')
                    a.e(f'buffer_store_dwordx2 {v(B+4,2)}, {v(vR8)}, s[4:7], s27 offen')
    a.e('s_branch K1_DONE')
    a.label('K1_V_START')
    main_loop(a,'v')
    CB=76
    a.e('s_mul_i32 s27, s20, 640')
    a.e(f's_add_u32 s27, s27, {CS}')
    a.e(f'v_and_b32 v62, 31, v0')
    a.e(f'v_lshlrev_b32 v62, 2, v62')
    a.e('v_add_u32 v62, s27, v62')
    for t in range(5): a.e(f'ds_read_b32 {v(CB+2*t)}, v62 offset:{t*128}')
    a.e(f'v_lshrrev_b32 {v(vT2)}, 5, v0')
    a.e(f'v_lshlrev_b32 {v(vT2)}, 4, {v(vT2)}')
    a.e('s_lshl_b32 s27, s19, 8')
    a.e(f's_add_u32 s27, s27, {NM}')
    a.e(f'v_add_u32 {v(vT2)}, s27, {v(vT2)}')
    a.e(f's_add_u32 s4, s34, {VIMG}')
    a.e('s_addc_u32 s5, s35, 0')
    a.e('s_mov_b32 s6, 2621440')
    a.e('s_mov_b32 s7, 0x00020000')
    a.e('s_sub_u32 s27, s18, 4')
    a.e(f's_mul_i32 s30, s27, {16*81920}')
    a.e('s_lshl_b32 s31, s17, 2')
    a.e('s_lshl_b32 s27, s19, 1')
    a.e('s_add_u32 s31, s31, s27')
    a.e('s_mul_i32 s31, s31, 1280')
    a.e('s_add_u32 s30, s30, s31')
    VO=86
    a.e(f'v_and_b32 {v(vT3)}, 31, v0')
    a.e('s_mul_i32 s27, s20, 160')
    a.e(f'v_add_u32 {v(vT3)}, s27, {v(vT3)}')
    a.e(f'v_lshrrev_b32 {v(vT4)}, 5, v0')
    a.e(f'v_mul_u32_u24 {v(vT4)}, 320, {v(vT4)}')
    for t in range(5):
        a.e(f'v_add_u32 v91, {32*t}, {v(vT3)}')
        a.e(f'v_mul_u32_u24 v92, 3277, v91')
        a.e(f'v_lshrrev_b32 v92, 16, v92')
        a.e(f'v_mul_u32_u24 v93, 20, v92')
        a.e(f'v_sub_u32 v91, v91, v93')
        a.e(f'v_lshlrev_b32 v91, 4, v91')
        a.e(f'v_add_u32 v91, v91, {v(vT4)}')
        a.e(f's_mov_b32 s27, 81920')
        a.e(f'v_mul_lo_u32 v92, v92, s27')
        a.e(f'v_add_u32 {v(VO+t)}, v91, v92')
    qN=4; qR=20; TMP=36
    for i in range(2):
        a.e('s_waitcnt lgkmcnt(0)')
        for b in range(4):
            a.e(f'ds_read_b128 {v(qN+4*b,4)}, {v(vT2)} offset:{i*128+b*32}')
            a.e(f'ds_read_b128 {v(qR+4*b,4)}, {v(vT2)} offset:{512+i*128+b*32}')
        a.e(f's_add_u32 s27, s30, {i*1280}')
        a.e('s_waitcnt lgkmcnt(0)')
        for t in range(5):
            A=acc(i,t)
            for j in range(2):
                for q in range(4):
                    r_=8*j+2*q
                    a.e(pkfma(TMP+2*q,qN+r_,CB+2*t,A+r_,None,0,None))
                for q in range(4):
                    r_=8*j+2*q
                    a.e(pkmul(TMP+2*q,TMP+2*q,qR+r_))
                for q in range(4):
                    a.e(f'v_cvt_pk_bf16_f32 {v(A+8*j+q)}, {v(TMP+2*q)}, {v(TMP+2*q+1)}')
                a.e(f'buffer_store_dwordx4 {v(A+8*j,4)}, {v(VO+t)}, s[4:7], s27 offen offset:{j*640}')
    a.e('s_branch K1_DONE')
    a.label('K1_FFN_SETUP')
    a.e(f'v_mul_u32_u24 {v(vT2)}, 320, {v(vRow)}')
    a.e(f'v_mul_u32_u24 {v(vT3)}, 10272, {v(vCh)}')
    a.e(f'v_add_u32 {v(vT2)}, {v(vT2)}, {v(vT3)}')
    a.e(f'v_lshlrev_b32 {v(vT3)}, 3, {v(vC4)}')
    a.e(f'v_add_u32 {v(vT2)}, {v(vT2)}, {v(vT3)}')
    a.e('s_mul_i32 s27, s20, 160')
    a.e(f's_add_u32 s27, s27, {WBASE}')
    a.e(f'v_add_u32 {v(vT2)}, s27, {v(vT2)}')
    for jl in range(2):
        a.e(f's_xor_b32 s27, s21, {jl}')
        a.e(f's_mul_i32 s27, s27, {16*320}')
        a.e(f'v_add_u32 {v(WA+2*jl)}, s27, {v(vT2)}')
    a.e(f'v_and_b32 v62, 15, v0')
    a.e('v_lshlrev_b32 v62, 2, v62')
    a.e('s_mul_i32 s27, s20, 320')
    a.e('s_mul_i32 s29, s19, 1280')
    a.e('s_add_u32 s27, s27, s29')
    a.e(f's_add_u32 s27, s27, {CSP}')
    a.e('v_add_u32 v62, s27, v62')
    for k in range(160): a.e(f'v_mov_b32 {v(ACC+k)}, 0')
    a.e('s_waitcnt lgkmcnt(0)')
    main_loop(a,'ffn')
    a.e(f'v_lshrrev_b32 {v(vT)}, 5, v0')
    a.e(f'v_lshlrev_b32 {v(vT)}, 4, {v(vT)}')
    a.e('s_mul_i32 s27, s20, 320')
    a.e(f's_add_u32 s27, s27, {CS}')
    a.e(f'v_add_u32 {v(vT)}, s27, {v(vT)}')
    CQ=[4,20]
    def csread(t):
        C=CQ[t%2]
        for b in range(2):
            a.e(f'ds_read_b128 {v(C+4*b,4)}, {v(vT)} offset:{t*64+b*32}')
            a.e(f'ds_read_b128 {v(C+8+4*b,4)}, {v(vT)} offset:{640+t*64+b*32}')
    csread(0)
    a.e(f's_add_u32 s4, s34, {HIMG}')
    a.e('s_addc_u32 s5, s35, 0')
    a.e('s_cmp_eq_u32 s18, 15'); a.e('s_cselect_b32 s27, 1, 0')
    a.e('s_cmp_eq_u32 s20, 0'); a.e('s_cselect_b32 s27, s27, 0')
    a.e('s_cmp_eq_u32 s27, 1'); a.e('s_cselect_b32 s6, 0, 6291456')
    a.e('s_mov_b32 s7, 0x00020000')
    a.e('s_sub_u32 s27, s18, 6')
    a.e('s_mul_i32 s27, s27, 10')
    a.e('s_min_u32 s27, s27, 86')
    a.e('s_mul_i32 s30, s20, 5')
    a.e('s_add_u32 s27, s27, s30')
    a.e('s_lshl_b32 s30, s27, 10')
    a.e('s_lshl_b32 s31, s17, 2')
    a.e('s_lshl_b32 s27, s19, 1')
    a.e('s_add_u32 s31, s31, s27')
    a.e('s_mul_i32 s31, s31, 98304')
    a.e('s_add_u32 s30, s30, s31')
    vL16=71
    a.e(f'v_lshlrev_b32 {v(vL16)}, 4, v0')
    a.e('s_waitcnt lgkmcnt(4)')
    for i in range(2):
        P=64+2*i
        a.e(f'v_mul_f32 {v(72+2*i)}, {v(P+1)}, {v(P+1)}')
        a.e(f'v_rcp_f32 {v(72+2*i)}, {v(72+2*i)}')
        a.e(f'v_mul_f32 {v(P+1)}, 0xbfb8aa3b, {v(P+1)}')
    E=76
    for t in range(5):
        if t<4:
            csread(t+1); a.e('s_waitcnt lgkmcnt(4)')
        else: a.e('s_waitcnt lgkmcnt(0)')
        C=CQ[t%2]
        for i in range(2):
            A=acc(i,t); P=64+2*i
            for q in range(4): a.e(pkfma(A+2*q,C+2*q,P,A+2*q,None,0,None))
        for i in range(2):
            A=acc(i,t); P=64+2*i
            for q in range(4): a.e(pkmul(E+8*i+2*q,A+2*q,P,None,1))
        for i in range(2):
            A=acc(i,t); P=64+2*i
            for q in range(4):
                a.e(f'v_exp_f32 {v(E+8*i+2*q)}, {v(E+8*i+2*q)}')
                a.e(f'v_exp_f32 {v(E+8*i+2*q+1)}, {v(E+8*i+2*q+1)}')
                a.e(pkfma(A+8+2*q,C+8+2*q,P,A+8+2*q,None,0,None))
        for i in range(2):
            A=acc(i,t); I=72+2*i
            for q in range(4):
                a.e(pkfma(E+8*i+2*q,E+8*i+2*q,I,I,None,0,0))
                a.e(pkmul(A+2*q,A+2*q,A+8+2*q))
        for i in range(2):
            for q in range(8): a.e(f'v_rcp_f32 {v(E+8*i+q)}, {v(E+8*i+q)}')
        for i in range(2):
            A=acc(i,t)
            for q in range(4): a.e(pkmul(A+2*q,A+2*q,E+8*i+2*q))
        if t==4: a.e('s_mov_b32 s6, 6291456')
        for i in range(2):
            A=acc(i,t)
            for q in range(4): a.e(f'v_cvt_pk_bf16_f32 {v(A+8+q)}, {v(A+2*q)}, {v(A+2*q+1)}')
            a.e(f's_add_u32 s27, s30, {i*98304+t*1024}')
            a.e(f'buffer_store_dwordx4 {v(A+8,4)}, {v(vL16)}, s[4:7], s27 offen')
    a.label('K1_DONE')
    stamp(a,3)
    a.e('s_waitcnt vmcnt(0)')
    stamp(a,4)
    stamp_store(a,10,34,'s16',8,3*1024*1024)
    a.e('s_endpgm')
    a.label('K1_LOADER')
    a.e('s_sub_u32 s19, s16, 4')
    if 'lp0' not in FL: a.e('s_setprio 3')
    if 'lst' in FL: stamp(a,5)
    vX=4; vW=8
    a.e(f'v_lshrrev_b32 {v(vT)}, 3, v0')
    a.e(f'v_and_b32 {v(vT2)}, 7, v0')
    a.e(f'v_lshrrev_b32 {v(vT3)}, 4, v0')
    a.e('s_lshl_b32 s27, s17, 7')
    a.e('s_lshl_b32 s29, s19, 5')
    a.e('s_add_u32 s27, s27, s29')
    a.e(f'v_xor_b32 {v(vT4)}, {v(vT3)}, {v(vT2)}')
    a.e(f'v_lshlrev_b32 {v(vT4)}, 4, {v(vT4)}')
    a.e(f'v_add_u32 {v(vX)}, s27, {v(vT)}')
    a.e(f'v_mul_u32_u24 {v(vX)}, 1280, {v(vX)}')
    a.e(f'v_xor_b32 {v(vT3)}, 64, {v(vT4)}')
    a.e(f'v_add_u32 {v(vX+1)}, {v(vX)}, {v(vT3)}')
    a.e(f'v_add_u32 {v(vX)}, {v(vX)}, {v(vT4)}')
    a.e(f'v_add_u32 {v(vX+1)}, 10240, {v(vX+1)}')
    a.e(f'v_add_u32 {v(vX+2)}, 20480, {v(vX)}')
    a.e(f'v_add_u32 {v(vX+3)}, 20480, {v(vX+1)}')
    if 'lst' in FL: stamp(a,6)
    a.e('s_waitcnt lgkmcnt(0)')
    a.e('s_mov_b32 s8, s36'); a.e('s_mov_b32 s9, s37'); a.e('s_mov_b32 s10, 2621440'); a.e('s_mov_b32 s11, 0x00020000')
    a.e('s_lshl_b32 s21, s19, 12')
    a.e('s_mov_b32 s25, 0'); a.e('s_mov_b32 s26, s21')
    a.e(f's_add_u32 s30, s21, {3*XS}')
    def issueX(pro=False):
        for i in range(4):
            if 'nodma' in FL and not pro: break
            a.e(f's_add_u32 m0, s26, {i*1024}')
            a.e('s_nop 0')
            a.e(f'buffer_load_dwordx4 {v(vX+i)}, s[8:11], s25 offen lds')
        a.e('s_add_u32 s25, s25, 128')
        a.e(f's_add_u32 s26, s26, {XS}')
        a.e('s_cmp_eq_u32 s26, s30')
        a.e('s_cselect_b32 s26, s21, s26')
    issueX(True)
    if 'lst' in FL: stamp(a,4)
    a.e('s_cmp_ge_u32 s18, 6')
    a.e('s_cbranch_scc1 K1_LD_FFN')
    a.e('s_mul_i32 s27, s19, 320')
    for p in range(5):
        a.e(f's_add_u32 s29, s27, {64*p}')
        a.e(f'v_add_u32 {v(vT)}, s29, v0')
        a.e(f'v_mul_u32_u24 {v(vT2)}, 1639, {v(vT)}')
        a.e(f'v_lshrrev_b32 {v(vT2)}, 16, {v(vT2)}')
        a.e(f'v_mul_u32_u24 {v(vT3)}, 40, {v(vT2)}')
        a.e(f'v_sub_u32 {v(vT)}, {v(vT)}, {v(vT3)}')
        a.e(f'v_bfe_u32 {v(vT3)}, {v(vT2)}, 1, 1')
        a.e(f'v_lshlrev_b32 {v(vT3)}, 2, {v(vT3)}')
        a.e(f'v_xor_b32 {v(vT)}, {v(vT)}, {v(vT3)}')
        a.e(f'v_lshlrev_b32 {v(vT)}, 4, {v(vT)}')
        a.e(f'v_mul_u32_u24 {v(vT2)}, 3840, {v(vT2)}')
        a.e(f'v_add_u32 {v(vW+p)}, {v(vT)}, {v(vT2)}')
    a.e('s_mul_i32 s29, s18, 640')
    for p in range(5): a.e(f'v_add_u32 {v(vW+p)}, s29, {v(vW+p)}')
    a.e('s_waitcnt lgkmcnt(0)')
    a.e('s_mov_b32 s4, s38'); a.e('s_mov_b32 s5, s39'); a.e(f's_mov_b32 s6, {640*3840}')
    a.e(f's_mov_b32 s22, {32*3840}')
    a.e('s_mul_i32 s20, s19, 5120')
    a.e('s_branch K1_LD_GO')
    a.label('K1_LD_FFN')
    a.e('s_and_b32 s27, s19, 1')
    a.e('s_lshl_b32 s27, s27, 4')
    a.e('s_sub_u32 s29, s18, 6')
    a.e('s_mul_i32 s29, s29, 320')
    a.e('s_min_u32 s29, s29, 2752')
    for p in range(5):
        a.e(f'v_add_u32 {v(vT)}, {64*p}, v0')
        a.e(f'v_mul_u32_u24 {v(vT2)}, 3277, {v(vT)}')
        a.e(f'v_lshrrev_b32 {v(vT2)}, 16, {v(vT2)}')
        a.e(f'v_mul_u32_u24 {v(vT3)}, 20, {v(vT2)}')
        a.e(f'v_sub_u32 {v(vT)}, {v(vT)}, {v(vT3)}')
        a.e(f'v_lshlrev_b32 {v(vT)}, 4, {v(vT)}')
        a.e(f'v_add_u32 {v(vT2)}, s27, {v(vT2)}')
        a.e(f'v_mul_u32_u24 {v(vT2)}, 3072, {v(vT2)}')
        a.e(f'v_add_u32 {v(vW+p)}, {v(vT)}, {v(vT2)}')
        a.e(f'v_add_u32 {v(vW+p)}, s29, {v(vW+p)}')
    a.e('s_waitcnt lgkmcnt(0)')
    a.e('s_cmp_lt_u32 s19, 2')
    a.e('s_cselect_b32 s4, s40, s42')
    a.e('s_cselect_b32 s5, s41, s43')
    a.e(f's_mov_b32 s6, {640*3072}')
    a.e(f's_mov_b32 s22, {32*3072}')
    a.e('s_mul_i32 s20, s19, 5120')
    a.e('s_lshr_b32 s27, s19, 1')
    a.e('s_lshl_b32 s27, s27, 5')
    a.e('s_add_u32 s20, s20, s27')
    a.label('K1_LD_GO')
    if 'lst' in FL: stamp(a,7)
    a.e('s_mov_b32 s7, 0x00020000')
    a.e(f's_add_u32 s20, s20, {WBASE}')
    a.e('s_mov_b32 s23, 0'); a.e('s_mov_b32 s24, s20')
    a.e(f's_add_u32 s29, s20, {5*WP}')
    def issueW(pro=False):
        for p in range(5):
            if 'nodma' in FL and not pro: break
            a.e(f's_add_u32 m0, s24, {p*1024}')
            a.e('s_nop 0')
            a.e(f'buffer_load_dwordx4 {v(vW+p)}, s[4:7], s23 offen lds')
        a.e('s_add_u32 s23, s23, s22')
        a.e(f's_add_u32 s24, s24, {WP}')
        a.e('s_cmp_eq_u32 s24, s29')
        a.e('s_cselect_b32 s24, s20, s24')
    issueW(True); issueW(True); issueX(True)
    stamp(a,1)
    if 'lp0' in FL or 'lp30' in FL: a.e('s_setprio 0')
    vU=50
    if 'wimg' in FL:
        a.e('s_lshl_b32 s27, s2, 1'); a.e('s_add_u32 s27, s27, s19')
        a.e('s_add_u32 s28, s2, 512')
        a.e('s_cmp_eq_u32 s19, 2'); a.e('s_cselect_b32 s27, s28, s27')
        a.e('s_cmp_lt_u32 s27, 544'); a.e('s_cselect_b32 s33, 1, 0')
        a.e('s_cmp_eq_u32 s19, 3'); a.e('s_cselect_b32 s33, 0, s33')
        a.e('s_and_b32 s32, s27, 7')
        a.e('s_lshr_b32 s27, s27, 3')
        a.e('s_mul_i32 s54, s32, 68'); a.e('s_add_u32 s54, s54, s27'); a.e('s_mul_i32 s54, s54, 5120')
        a.e('s_mul_i32 s32, s32, 160')
        a.e('s_lshl_b32 s28, s27, 5'); a.e('s_mov_b32 s55, 16'); a.e('s_mov_b32 s48, 8'); a.e('s_mov_b32 s49, 4')
        a.e('s_mov_b32 s12, s52'); a.e('s_mov_b32 s13, s53'); a.e(f's_mov_b32 s14, {1536*1280}')
        a.e('s_cmp_lt_u32 s27, 48'); a.e('s_cbranch_scc1 K1_WI_SET')
        a.e('s_mov_b32 s12, s50'); a.e('s_mov_b32 s13, s51'); a.e(f's_mov_b32 s14, {640*1280}')
        a.e('s_sub_u32 s27, s27, 48')
        a.e('s_mul_i32 s28, s27, 40'); a.e('s_mov_b32 s55, 20')
        a.e('s_cmp_lt_u32 s27, 16'); a.e('s_cbranch_scc1 K1_WI_SET')
        a.e('s_sub_u32 s27, s27, 16')
        a.e('s_mul_i32 s28, s27, 160'); a.e('s_add_u32 s28, s28, 16')
        a.e('s_mov_b32 s55, 80'); a.e('s_mov_b32 s48, 20'); a.e('s_mov_b32 s49, 40')
        a.label('K1_WI_SET')
        a.e('s_mov_b32 s15, 0x00020000')
        a.e('s_cmp_eq_u32 s33, 0'); a.e('s_cselect_b32 s14, 0, s14')
        for p in range(5):
            a.e(f'v_add_u32 v56, {64*p}, v0')
            a.e('v_mul_u32_u24 v57, 6554, v56')
            a.e('v_lshrrev_b32 v57, 16, v57')
            a.e('v_mul_u32_u24 v58, 10, v57')
            a.e('v_sub_u32 v56, v56, v58')
            a.e('v_lshlrev_b32 v56, 4, v56')
            a.e('v_add_u32 v56, s32, v56')
            a.e('v_lshrrev_b32 v58, 4, v57')
            a.e('v_mul_u32_u24 v58, s55, v58')
            a.e('v_bfe_u32 v59, v57, 3, 1')
            a.e('v_mul_u32_u24 v59, s48, v59')
            a.e('v_add_u32 v58, v58, v59')
            a.e('v_bfe_u32 v59, v57, 2, 1')
            a.e('v_mul_u32_u24 v59, s49, v59')
            a.e('v_add_u32 v58, v58, v59')
            a.e('v_and_b32 v59, 3, v57')
            a.e('v_add_u32 v58, v58, v59')
            a.e('v_add_u32 v58, s28, v58')
            a.e('v_mul_u32_u24 v58, 1280, v58')
            a.e(f'v_add_u32 {v(vU+p)}, v56, v58')
        if 'wearly' in FL:
            a.e('v_lshrrev_b32 v56, 5, v0'); a.e('v_lshlrev_b32 v56, 4, v56')
            a.e('v_bfe_u32 v57, v0, 4, 1'); a.e('v_lshlrev_b32 v57, 2, v57'); a.e('v_add_u32 v56, v56, v57')
            a.e('v_bfe_u32 v57, v0, 2, 2'); a.e('v_add_u32 v56, v56, v57')
            a.e('v_mul_u32_u24 v56, 160, v56'); a.e(f'v_add_u32 v56, {SP}, v56')
            a.e('v_and_b32 v57, 3, v0'); a.e('v_lshlrev_b32 v58, 4, v57'); a.e('v_add_u32 v76, v56, v58')
            a.e('v_lshlrev_b32 v58, 3, v57'); a.e('v_add_u32 v77, v56, v58')
            a.e('v_lshlrev_b32 v78, 4, v0')
            a.e(f's_add_u32 s88, s34, {WIMG}'); a.e('s_addc_u32 s89, s35, 0')
            a.e('s_cmp_eq_u32 s33, 0'); a.e(f's_cselect_b32 s90, 0, {WIMG_BYTES}'); a.e('s_mov_b32 s91, 0x00020000')
    vSA=16
    D=20
    U=36
    sL,sH,qL,qH=40,41,42,43
    a.e(f'v_and_b32 {v(vT)}, 31, v0')
    a.e(f'v_lshrrev_b32 {v(vT2)}, 5, v0')
    a.e(f'v_lshlrev_b32 {v(vT2)}, 2, {v(vT2)}')
    a.e(f'v_bfe_u32 {v(vT3)}, v0, 1, 3')
    a.e(f'v_xor_b32 {v(vT2)}, {v(vT2)}, {v(vT3)}')
    a.e(f'v_lshlrev_b32 {v(vT2)}, 4, {v(vT2)}')
    a.e(f'v_lshlrev_b32 {v(vT3)}, 7, {v(vT)}')
    a.e(f'v_add_u32 {v(vT2)}, {v(vT2)}, {v(vT3)}')
    a.e(f'v_add_u32 {v(vSA)}, s21, {v(vT2)}')
    for i in range(1,4): a.e(f'v_xor_b32 {v(vSA+i)}, {16*i}, {v(vSA)}')
    for r in (sL,sH,qL,qH): a.e(f'v_mov_b32 {v(r)}, 0')
    if 'dot2' in FL: a.e('s_mov_b32 s56, 0x3f803f80')
    a.e(f's_mov_b32 s27, 0')
    a.e(f's_mov_b32 s46, {XS}'); a.e(f's_mov_b32 s47, {(-2*XS)&0xffffffff}')
    def st_read():
        if 'nostat' in FL: return
        for i in range(4): a.e(f'ds_read_b128 {v(D+4*i,4)}, {v(vSA+i)}')
        a.e('s_add_u32 s27, s27, 1')
        a.e('s_cmp_eq_u32 s27, 3')
        a.e('s_cselect_b32 s28, s47, s46')
        a.e('s_cselect_b32 s27, 0, s27')
        for i in range(4): a.e(f'v_add_u32 {v(vSA+i)}, s28, {v(vSA+i)}')
    def st_acc(half):
        if 'nostat' in FL: return
        a.e(f's_waitcnt lgkmcnt({2 if half==0 else 0})')
        if 'dot2' in FL:
            for d in range(8*half,8*half+8,2):
                a.e(f'v_dot2c_f32_bf16 {v(qL)}, {v(D+d)}, {v(D+d)}')
                a.e(f'v_dot2c_f32_bf16 {v(sL)}, s56, {v(D+d)}')
                a.e(f'v_dot2c_f32_bf16 {v(qH)}, {v(D+d+1)}, {v(D+d+1)}')
                a.e(f'v_dot2c_f32_bf16 {v(sH)}, s56, {v(D+d+1)}')
            return
        for d in range(8*half,8*half+8,2):
            a.e(f'v_lshlrev_b32 {v(U)}, 16, {v(D+d)}')
            a.e(f'v_and_b32 {v(U+1)}, 0xffff0000, {v(D+d)}')
            a.e(f'v_lshlrev_b32 {v(U+2)}, 16, {v(D+d+1)}')
            a.e(f'v_and_b32 {v(U+3)}, 0xffff0000, {v(D+d+1)}')
            a.e(f'v_add_f32 {v(sL)}, {v(sL)}, {v(U)}')
            a.e(f'v_add_f32 {v(sH)}, {v(sH)}, {v(U+1)}')
            a.e(f'v_fma_f32 {v(qL)}, {v(U)}, {v(U)}, {v(qL)}')
            a.e(f'v_fma_f32 {v(qH)}, {v(U+1)}, {v(U+1)}, {v(qH)}')
            a.e(f'v_add_f32 {v(sL)}, {v(sL)}, {v(U+2)}')
            a.e(f'v_add_f32 {v(sH)}, {v(sH)}, {v(U+3)}')
            a.e(f'v_fma_f32 {v(qL)}, {v(U+2)}, {v(U+2)}, {v(qL)}')
            a.e(f'v_fma_f32 {v(qH)}, {v(U+3)}, {v(U+3)}, {v(qH)}')
    bst=('bst' in FL)
    we=('wearly' in FL)
    def bs(i):
        if bst:
            (stampc if 'bstc' in FL else stamp)(a,i)
    def wave_only(w,fn):
        l=a.newlabel('K1_WO')
        a.e(f's_cmp_eq_u32 s19, {w}'); a.e(f's_cbranch_scc0 {l}')
        fn(); a.label(l)
    def unit_dma():
        for p in range(5):
            a.e(f's_mov_b32 m0, {SP+p*1024}')
            a.e('s_nop 0')
            a.e(f'buffer_load_dwordx4 {v(vU+p)}, s[12:15], 0 offen lds')
    def unit_tr():
        for t in range(5):
            reg,off=(76,[0,8,64,72][t]) if t<4 else (77,128)
            a.e(f'ds_read_b64_tr_b16 {v(56+4*t,2)}, {v(reg)} offset:{off}')
            a.e(f'ds_read_b64_tr_b16 {v(58+4*t,2)}, {v(reg)} offset:{off+1280}')
    def unit_store():
        a.e('s_waitcnt lgkmcnt(0)')
        for t in range(5):
            a.e(f's_add_u32 s28, s54, {t*1024}')
            a.e(f'buffer_store_dwordx4 {v(56+4*t,4)}, v78, s[88:91], s28 offen')
    U0={0:-1,1:4,2:9}; T0={0:2,1:7,2:12}; S0={0:3,1:8,2:13}
    WIDE={0:{0,1,4,5,6},1:{5,6,9,10,11},2:{10,11,14,15,16}}
    late=('wlate' in FL)
    if late:
        S0={}
        WIDE={0:{0,1,17,18,19},1:{5,6,17,18,19},2:{10,11,17,18,19}}
    def ldwait(s_,n):
        ws=[w for w in WIDE if s_ in WIDE[w]] if we else []
        if not ws:
            a.e(f's_waitcnt vmcnt({n})'); return
        l1=a.newlabel('K1_LW'); l2=a.newlabel('K1_LW')
        if len(ws)==1:
            a.e(f's_cmp_eq_u32 s19, {ws[0]}')
        elif len(ws)==3:
            a.e('s_cmp_lt_u32 s19, 3')
        else:
            assert ws[1]==ws[0]+1
            a.e(f's_sub_u32 s28, s19, {ws[0]}'); a.e('s_cmp_lt_u32 s28, 2')
        a.e(f's_cbranch_scc1 {l1}')
        a.e(f's_waitcnt vmcnt({n})'); a.e(f's_branch {l2}')
        a.label(l1); a.e(f's_waitcnt vmcnt({n+5})'); a.label(l2)
    def hook(tab,fn,s_):
        if we:
            for w in tab:
                if tab[w]==s_: wave_only(w,fn)
    pre=lambda s_: hook(U0,unit_dma,s_)
    mid=lambda s_: hook(T0,unit_tr,s_)
    post=lambda s_: hook(S0,unit_store,s_)
    pre(-1)
    ldwait(0,9); a.e('s_barrier'); bs(4); issueW(True); st_read(); st_acc(0)
    ldwait(1,9); a.e('s_barrier'); issueW(True); issueX(True); st_acc(1)
    ldwait(2,9); a.e('s_barrier'); bs(5); issueW(True); issueW(True); st_read(); st_acc(0); mid(2)
    ldwait(3,14); a.e('s_barrier'); issueW(True); issueX(True); st_acc(1); post(3)
    if bst or we:
        for it in range(2,8):
            ldwait(2*it,14); a.e('s_barrier'); bs(4+it); pre(2*it); issueW(); st_read(); st_acc(0); mid(2*it); post(2*it)
            ldwait(2*it+1,14); a.e('s_barrier'); pre(2*it+1); issueW(); issueX(); st_acc(1); mid(2*it+1); post(2*it+1)
    else:
        a.e('s_mov_b32 s31, 2')
        a.label('K1_LD_LOOP')
        a.e('s_waitcnt vmcnt(14)'); a.e('s_barrier'); issueW(); st_read(); st_acc(0)
        a.e('s_waitcnt vmcnt(14)'); a.e('s_barrier'); issueW(); issueX(); st_acc(1)
        a.e('s_add_u32 s31, s31, 1')
        a.e('s_cmp_lt_u32 s31, 8')
        a.e('s_cbranch_scc1 K1_LD_LOOP')
    ldwait(16,14); a.e('s_barrier'); bs(12); issueW(); st_read(); st_acc(0)
    if we and late:
        l=a.newlabel('K1_WS')
        a.e('s_cmp_lt_u32 s19, 3'); a.e(f's_cbranch_scc0 {l}')
        unit_store(); a.label(l)
    wi=5 if ('wimg' in FL and not we) else 0
    ldwait(17,14); a.e('s_barrier')
    if wi:
        for p in range(5):
            a.e(f's_add_u32 m0, s20, {p*1024}')
            a.e('s_nop 0')
            a.e(f'buffer_load_dwordx4 {v(vU+p)}, s[12:15], 0 offen lds')
    st_acc(1)
    ldwait(18,5+wi); a.e('s_barrier'); bs(13); st_read(); st_acc(0)
    ldwait(19,wi); a.e('s_barrier'); st_acc(1)
    a.e('s_barrier')
    stamp(a,2)
    if 'cpb' in FL:
        a.e('s_cmp_eq_u32 s19, 3'); a.e('s_cbranch_scc0 K1_CPB_END')
        a.e('s_getpc_b64 s[12:13]')
        a.label('K1_CPB_PC')
        a.e('s_add_u32 s12, s12, att_kernel-K1_CPB_PC'); a.e('s_addc_u32 s13, s13, 0')
        a.e('s_mov_b32 s14, FFN_TAIL+4-att_kernel'); a.e('s_mov_b32 s15, 0x00020000')
        a.e('v_lshlrev_b32 v120, 7, v0')
        a.e('buffer_load_dword v121, v120, s[12:15], 0 offen')
        a.e('v_add_u32 v120, 8192, v120')
        a.e('buffer_load_dword v122, v120, s[12:15], 0 offen')
        a.label('K1_CPB_END')
    P=44
    a.e(f'v_add_f32 {v(P)}, {v(sL)}, {v(sH)}')
    a.e(f'v_add_f32 {v(P+1)}, {v(qL)}, {v(qH)}')
    a.e(f'v_mov_b32 {v(U)}, {v(P)}')
    a.e(f'v_mov_b32 {v(U+1)}, {v(P+1)}')
    a.e('s_nop 1')
    a.e(f'v_permlane32_swap_b32 {v(U)}, {v(P)}')
    a.e(f'v_permlane32_swap_b32 {v(U+1)}, {v(P+1)}')
    a.e('s_nop 1')
    a.e(f'v_add_f32 {v(P)}, {v(U)}, {v(P)}')
    a.e(f'v_add_f32 {v(P+1)}, {v(U+1)}, {v(P+1)}')
    stats(a,0,P)
    a.e(f'v_and_b32 {v(vT)}, 31, v0')
    a.e('s_lshl_b32 s27, s19, 5')
    a.e(f'v_add_u32 {v(vT)}, s27, {v(vT)}')
    a.e(f'v_lshlrev_b32 {v(vT2)}, 2, {v(vT)}')
    a.e(f'v_lshlrev_b32 {v(vT3)}, 3, {v(vT)}')
    a.e('s_mov_b64 exec, 0xffffffff')
    a.e(f'ds_write_b32 {v(vT2)}, {v(P)} offset:{NM}' if NM<65536 else f'v_add_u32 {v(vT2)}, {NM}, {v(vT2)}')
    if NM>=65536:
        a.e(f'v_add_u32 {v(vT3)}, {ST2}, {v(vT3)}')
        a.e(f'ds_write_b32 {v(vT2)}, {v(P)}')
        a.e(f'ds_write_b32 {v(vT2)}, {v(P+1)} offset:512')
        a.e(f'ds_write_b64 {v(vT3)}, {v(P,2)}')
    a.e('s_mov_b64 exec, -1')
    a.e('s_lshl_b32 s27, s19, 6')
    a.e(f'v_add_u32 {v(vT)}, s27, v0')
    a.e(f'v_lshlrev_b32 {v(vT2)}, 3, {v(vT)}')
    a.e(f'v_add_u32 {v(vT2)}, {CS}, {v(vT2)}')
    a.e('s_waitcnt lgkmcnt(0)')
    stamp(a,3)
    a.e('s_barrier')
    a.e(f'v_cmp_gt_u32 vcc, 160, {v(vT)}')
    a.e('s_and_saveexec_b64 s[48:49], vcc')
    a.e(f'ds_read_b64 {v(D,2)}, {v(vT2)} offset:1280')
    a.e(f'ds_read_b64 {v(D+2,2)}, {v(vT2)} offset:2560')
    a.e('s_waitcnt lgkmcnt(0)')
    a.e(f'v_add_f32 {v(D)}, {v(D)}, {v(D+2)}')
    a.e(f'v_add_f32 {v(D+1)}, {v(D+1)}, {v(D+3)}')
    a.e(f'ds_write_b64 {v(vT2)}, {v(D,2)}')
    a.e('s_mov_b64 exec, -1')
    a.e('s_waitcnt lgkmcnt(0)')
    a.e('s_barrier')
    if 'wimg' in FL and 'wearly' not in FL:
        a.e('s_cmp_eq_u32 s33, 0')
        a.e('s_cbranch_scc1 K1_WI_END')
        a.e('v_lshrrev_b32 v56, 5, v0')
        a.e('v_lshlrev_b32 v56, 4, v56')
        a.e('v_bfe_u32 v57, v0, 4, 1')
        a.e('v_lshlrev_b32 v57, 2, v57')
        a.e('v_add_u32 v56, v56, v57')
        a.e('v_bfe_u32 v57, v0, 2, 2')
        a.e('v_add_u32 v56, v56, v57')
        a.e('v_mul_u32_u24 v56, 160, v56')
        a.e('v_add_u32 v56, s20, v56')
        a.e('v_and_b32 v57, 3, v0')
        a.e('v_lshlrev_b32 v58, 4, v57')
        a.e('v_add_u32 v54, v56, v58')
        a.e('v_lshlrev_b32 v58, 3, v57')
        a.e('v_add_u32 v55, v56, v58')
        a.e('v_lshlrev_b32 v53, 4, v0')
        a.e(f's_add_u32 s12, s34, {WIMG}'); a.e('s_addc_u32 s13, s35, 0'); a.e(f's_mov_b32 s14, {WIMG_BYTES}')
        a.e('s_waitcnt vmcnt(0)')
        for t in range(5):
            reg,off=(54,[0,8,64,72][t]) if t<4 else (55,128)
            a.e(f'ds_read_b64_tr_b16 {v(56+4*t,2)}, {v(reg)} offset:{off}')
            a.e(f'ds_read_b64_tr_b16 {v(58+4*t,2)}, {v(reg)} offset:{off+1280}')
        a.e('s_waitcnt lgkmcnt(0)')
        for t in range(5):
            a.e(f's_add_u32 s27, s54, {t*1024}')
            a.e(f'buffer_store_dwordx4 {v(56+4*t,4)}, v53, s[12:15], s27 offen')
        a.e('s_waitcnt vmcnt(0)')
        a.label('K1_WI_END')
    if 'fuse' in FL and ('can' not in FL or 'hl' in FL):
        a.e('s_cmp_eq_u32 s19, 3'); a.e('s_cbranch_scc0 K1_FL_END')
        a.e(f's_cmp_lt_u32 s2, {FLAGS_BYTES//1024}'); a.e('s_cbranch_scc0 K1_FL_END')
        a.e(f's_add_u32 s12, s34, {FLAGS}'); a.e('s_addc_u32 s13, s35, 0'); a.e(f's_mov_b32 s14, {FLAGS_BYTES}'); a.e('s_mov_b32 s15, 0x00020000')
        a.e('s_lshl_b32 s27, s2, 10')
        a.e('v_lshlrev_b32 v53, 4, v0')
        for k in range(4): a.e(f'v_mov_b32 v{56+k}, 0')
        a.e('buffer_store_dwordx4 v[56:59], v53, s[12:15], s27 offen')
        a.e('s_waitcnt vmcnt(0)')
        a.label('K1_FL_END')
    if 'wearly' in FL: a.e('s_waitcnt vmcnt(0)')
    if 'lst' not in FL and 'bst' not in FL:
        stamp(a,4); stamp(a,5); stamp(a,6); stamp(a,7)
    stamp_store(a,14 if 'bst' in FL else 8,34,'s16',8,3*1024*1024)
    a.label('K1_END')
    a.e('s_endpgm')
    return NV
```

```python
import sys
from asmlib import *
import gen_att, gen_g64, gen_k1, gen_k3, gen_k3p, stamps
HDR=open('recurrent_scan__mha_block__glu_gated_swiglu__prompt.s.ref').read().split('\n')
def build(kernels):
    out=[]
    for ln in HDR:
        if ln.startswith('; Override launch'): break
        out.append(ln)
    for (name,fn,grid,block,lds) in kernels:
        out.append(f'; @launch kernel={name} grid=({grid},1,1) block=({block},1,1) lds={lds}')
    out.append('.amdgcn_target "amdgcn-amd-amdhsa--gfx950"')
    out.append('.text')
    descs=[]
    done=set()
    for (name,fn,grid,block,lds) in kernels:
        if name in done: continue
        done.add(name)
        a=Asm()
        nv=fn(a,name)
        out.append(a.text())
        descs.append(kernel_desc(name,nv))
    out.append('.section .rodata,"a"')
    out.append('.p2align 6')
    out+=descs
    return '\n'.join(out)+'\n'
if __name__=='__main__':
    which=sys.argv[1]; path=sys.argv[2]
    ks=[]
    if len(sys.argv)>3 and sys.argv[3] in('stamp','real'): stamps.STAMP=True
    if len(sys.argv)>3 and sys.argv[3]=='real': stamps.REAL=True
    if len(sys.argv)>4: gen_att.FL=set(sys.argv[4].split(',')); gen_k1.FL=set(sys.argv[4].split(',')); gen_k3.FL=set(sys.argv[4].split(',')); gen_k3p.FL=set(sys.argv[4].split(','))
    if which=='att': ks=[('att_kernel',gen_att.att_kernel,512 if ('dup' in gen_att.FL or 'ffn2' in gen_att.FL) else 256,512,61440)]
    if which=='g64': ks=[('w2_kernel',gen_g64.w2_kernel,256,256,102400),('wo_kernel',gen_g64.wo_kernel,256,256,102400)]
    if which=='k1': ks=[('k1_kernel',gen_k1.k1_kernel,256,512,gen_k1.LDS)]
    if which=='all': ks=[('k1_kernel',gen_k1.k1_kernel,256,512,gen_k1.LDS),('att_kernel',gen_att.att_kernel,256,512,61440),('w2_kernel',gen_g64.w2_kernel,256,256,102400),('wo_kernel',gen_g64.wo_kernel,256,256,102400)]
    if which=='k3': ks=[('k3_kernel',gen_k3.k3_kernel,256,256,61440)]
    if which=='all3': ks=[('k1_kernel',gen_k1.k1_kernel,256,512,gen_k1.LDS),('att_kernel',gen_att.att_kernel,256,512,61440),('k3_kernel',gen_k3.k3_kernel,256,256,61440)]
    if which=='ally': ks=[('k1_kernel',gen_k1.k1_kernel,256,512,gen_k1.LDS),('att_kernel',gen_att.att_kernel,512,512,61440),('k3_kernel',gen_k3p.k3p_kernel,256,256,61440)]
    if which=='allf': ks=[('k1_kernel',gen_k1.k1_kernel,256,512,gen_k1.lds_size()),('att_kernel',gen_att.att_kernel,512,512,81920)]
    text=build(ks)
    FLs=gen_att.FL
    import pad
    if 'padf' in FLs or 'padfa' in FLs:
        L=text.split('\n')
        i=[k for k,l in enumerate(L) if l=='ATT_EPI:'][0]
        j=i
        while 's_cbranch_scc1 ATT_LOOP' not in L[j] and 's_cbranch_scc0 ATT_LOOP' not in L[j] and 'ATT_LOOP' not in L[j]: j-=1
        lab=[k for k in range(j,-1,-1) if L[k].endswith(':')][0]
        regs=[('FFN_GO','FFN_TAIL')]
        print('loop branch line',L[j],'label before',L[lab],j-lab,file=sys.stderr)
        if 'padfa' in FLs: regs.append((L[lab][:-1],'ATT_END',j-lab+1))
        text=pad.addpads(text,regs,('FFN_P1',-1),'s16',8,'PADF')
    open(path,'w').write(text)
```

```python
from asmlib import *
from layouts import QIMG,KIMG,VIMG,OIMG,FLAGS,FLAGS_BYTES
import gen_ffn2
NAME='att_kernel'
SLOT=20480
Q1=0+8
Q2=12
K1=16
K2=20
V0=24; V1=28
P0=32; P1=36
E=40
SA=48; SB=64
O=80
vKc=96; vK2c=97; vVc=98; vKn=99; vK2n=100; vVn=101
vL16=0
vT=1; vT2=2; vT3=3; vLaneK=4; vLaneK2=5; vLaneV=6; vMx=7
NV=102
M16=[False]
def mfma(d,a,b,c):
    cs = '0' if c is None else v(c,16)
    if M16[0]:
        if c is None or d in (SA,SB):
            o=0 if c is None else 8
            b=Q1
            return f'v_mfma_f32_16x16x32_bf16 {v(d+o,4)}, {v(a,4)}, {v(b,4)}, 0\n    v_mfma_f32_16x16x32_bf16 {v(d+o+4,4)}, {v(a,4)}, {v(b,4)}, 0'
        return f'v_mfma_f32_16x16x32_bf16 {v(d,4)}, {v(a,4)}, {v(b,4)}, {v(d,4)}\n    v_mfma_f32_16x16x32_bf16 {v(d+4,4)}, {v(a,4)}, {v(b,4)}, {v(d+4,4)}'
    return f'v_mfma_f32_32x32x16_bf16 {v(d,16)}, {v(a,4)}, {v(b,4)}, {cs}'

def emit_dma(a, soff_chunk, sslot):
    a.e(f's_add_u32 s30, s17, {soff_chunk}')
    a.e(f's_add_u32 m0, s20, {sslot}')
    a.e(f's_add_u32 s31, s18, {soff_chunk}')
    a.e(f'buffer_load_dwordx4 {v(vL16)}, s[4:7], s30 offen lds')
    a.e(f's_add_u32 m0, m0, 8192')
    a.e(f's_add_u32 s30, s19, {soff_chunk}')
    a.e(f'buffer_load_dwordx4 {v(vL16)}, s[4:7], s31 offen lds')
    l=a.newlabel('nodma3')
    a.e(f's_cmp_ge_u32 s16, 4')
    a.e(f's_cbranch_scc1 {l}')
    a.e(f's_add_u32 m0, m0, 8192')
    a.e('s_nop 0')
    a.e(f'buffer_load_dwordx4 {v(vL16)}, s[4:7], s30 offen lds')
    a.label(l)

def set_m_pieces(a, add):
    a.e(f'v_mov_b32 {v(vT)}, {v(vMx)}')
    a.e('s_nop 1')
    a.e(f'v_permlane32_swap_b32 {v(vT)}, {v(vMx)}')
    a.e('s_nop 1')
    a.e(f'v_max_f32 {v(vMx)}, {v(vT)}, {v(vMx)}')
    a.e(f'v_ceil_f32 {v(vMx)}, {v(vMx)}')
    a.e(f'v_mov_b32 {v(vT)}, {add}')
    a.e(f'v_add_f32 {v(vMx)}, {v(vT)}, {v(vMx)}')
    a.e(f'v_sub_f32 {v(vMx)}, 0, {v(vMx)}')
    a.e(f'v_and_b32 {v(vT)}, 0xffff0000, {v(vMx)}')
    a.e(f'v_sub_f32 {v(vT2)}, {v(vMx)}, {v(vT)}')
    a.e(f'v_and_b32 {v(vT3)}, 0xffff0000, {v(vT2)}')
    a.e(f'v_sub_f32 {v(vT2)}, {v(vT2)}, {v(vT3)}')
    a.e(f'v_lshrrev_b32 {v(vT)}, 16, {v(vT)}')
    a.e(f'v_or_b32 {v(vT)}, {v(vT)}, {v(vT3)}')
    a.e(f'v_lshrrev_b32 {v(vT2)}, 16, {v(vT2)}')
    a.e('s_mov_b64 exec, 0xffffffff')
    a.e(f'v_mov_b32 {v(Q2+2)}, {v(vT)}')
    a.e(f'v_mov_b32 {v(Q2+3)}, {v(vT2)}')
    a.e('s_mov_b64 exec, -1')

def max16(a, S, first):
    for i in range(0,16,2):
        if first and i==0:
            a.e(f'v_max_f32 {v(vMx)}, {v(S)}, {v(S+1)}')
        else:
            a.e(f'v_max3_f32 {v(vMx)}, {v(vMx)}, {v(S+i)}, {v(S+i+1)}')

FL=set()
def tile(a,i):
    S,N=(SA,SB) if i%2==0 else (SB,SA)
    def addr(kind,ti):
        cur={'k':vKc,'k2':vK2c,'v':vVc}[kind]; nxt={'k':vKn,'k2':vK2n,'v':vVn}[kind]
        return (cur,ti*1280) if ti<8 else (nxt,(ti-8)*1280)
    a.c(f'---- tile {i}')
    if i==6 and 'nodma' not in FL:
        a.e('s_waitcnt vmcnt(0)')
        a.e('s_barrier')
        l=a.newlabel('nodma')
        a.e('s_cmp_ge_u32 s24, 6')
        a.e(f's_cbranch_scc1 {l}')
        emit_dma(a,'s25','s26')
        a.label(l)
    if (i==6 and 'hint6' in FL) or (i==7 and 'hint7' in FL) or (i==5 and 'hint5' in FL) or (i==4 and 'hint4' in FL) or (i==3 and 'hint3' in FL):
        l=a.newlabel('hint')
        a.e('s_cmp_eq_u32 s24, 7')
        a.e(f's_cbranch_scc0 {l}')
        a.e('s_mov_b64 exec, 1')
        a.e('buffer_store_dword v102, off, s[40:43], s44 sc1')
        a.e('s_mov_b64 exec, -1')
        a.label(l)
    if 'nolds' in FL:
        E_=a.e
        class A2:
            def e(self,s):
                if s.startswith('ds_read') or s.startswith('s_waitcnt lgkm') or s.startswith('s_mov_b64 exec'): return
                E_(s)
        a=A2()
    ex=lambda dst,src: a.e(f'v_exp_f32 {v(dst)}, {v(src)}')
    cv=lambda dst,x: a.e(f'v_cvt_pk_bf16_f32 {v(dst)}, {v(x)}, {v(x+1)}')
    a.e('s_waitcnt lgkmcnt(3)')
    a.e(mfma(N,K1,Q1,None))
    r,o=addr('k',i+2); a.e(f'ds_read_b128 {v(K1,4)}, {v(r)} offset:{o}')
    cv(P1+2,E+4); cv(P1+3,E+6)
    for k in range(4): ex(E+k,S+k)
    a.e('s_waitcnt lgkmcnt(3)')
    a.e(mfma(N,K2,Q2,N))
    r,o=addr('k2',i+2); a.e(f'ds_read_b64 {v(K2,2)}, {v(r)} offset:{o}')
    for k in range(4): ex(E+4+k,S+4+k)
    cv(P0,E); cv(P0+1,E+2)
    a.e('s_waitcnt lgkmcnt(3)')
    a.e(mfma(O,V1,P1,O))
    cv(P0+2,E+4); cv(P0+3,E+6)
    for k in range(4): ex(E+k,S+8+k)
    a.e('s_waitcnt lgkmcnt(2)')
    a.e(mfma(O,V0,P0,O))
    if 'noexec' not in FL: a.e('s_mov_b64 exec, s[22:23]')
    r,o=addr('v',i);   a.e(f'ds_read_b128 {v(V1,4)}, {v(r)} offset:{o+640}')
    r,o=addr('v',i+1); a.e(f'ds_read_b128 {v(V0,4)}, {v(r)} offset:{o}')
    if 'noexec' not in FL: a.e('s_mov_b64 exec, -1')
    for k in range(4): ex(E+4+k,S+12+k)
    cv(P1,E); cv(P1+1,E+2)

from stamps import stamp, stamp_store, stampc
import stamps
def att_kernel(a, name=NAME):
    a.lines.append(kernel_header(name))
    a.e(f's_cmp_ge_u32 s2, {512 if ("dup" in FL or "ffn2" in FL) else 256}')
    a.e('s_cbranch_scc1 ATT_END')
    if 'dup' in FL: a.e('s_and_b32 s2, s2, 255')
    a.e('s_load_dwordx2 s[34:35], s[0:1], 72')
    if 'ffn2' in FL:
        a.e('s_cmp_ge_u32 s2, 256')
        a.e('s_cbranch_scc1 ATT_FFN2')
        if 'aprio' in FL: a.e('s_setprio 2')
    for n in (8,32,256):
      if f'cpc{n}' in FL:
        a.e(f's_cmp_lt_u32 s2, {n}'); a.e('s_cbranch_scc0 ATT_CPC_END')
        a.e('s_getpc_b64 s[4:5]')
        a.label('ATT_CPC_PC')
        a.e('s_sub_u32 s4, s4, ATT_CPC_PC-att_kernel'); a.e('s_subb_u32 s5, s5, 0')
        a.e('s_mov_b32 s6, FFN_TAIL+4-att_kernel'); a.e('s_mov_b32 s7, 0x00020000')
        a.e('v_lshlrev_b32 v126, 7, v0')
        a.e('buffer_load_dword v127, v126, s[4:7], 0 offen')
        a.label('ATT_CPC_END')
    stamp(a,0)
    a.e(f'v_lshrrev_b32 {v(vT)}, 6, v0')
    a.e(f'v_and_b32 v0, 63, v0')
    a.e(f'v_readfirstlane_b32 s16, {v(vT)}')
    if 'cpf' in FL:
        a.e('s_nop 0')
        a.e('s_cmp_eq_u32 s16, 7'); a.e('s_cbranch_scc0 ATT_CPF_END')
        a.e('s_getpc_b64 s[4:5]')
        a.label('ATT_CPF_PC')
        a.e('s_sub_u32 s4, s4, ATT_CPF_PC-att_kernel'); a.e('s_subb_u32 s5, s5, 0')
        a.e('s_mov_b32 s6, FFN_TAIL+4-att_kernel'); a.e('s_mov_b32 s7, 0x00020000')
        a.e('v_lshlrev_b32 v126, 7, v0'); a.e('s_lshr_b32 s28, s2, 3'); a.e('s_mul_i32 s28, s28, 384')
        a.e('s_mov_b64 exec, 7')
        a.e('buffer_load_dword v127, v126, s[4:7], s28 offen')
        a.e('s_mov_b64 exec, -1')
        a.label('ATT_CPF_END')
    a.e('s_and_b32 s27, s2, 7')
    a.e('s_lshr_b32 s28, s2, 3')
    a.e('s_and_b32 s29, s28, 0x18')
    a.e('s_add_u32 s27, s27, s29')
    a.e('s_and_b32 s28, s28, 7')
    a.e('s_lshl_b32 s28, s28, 3')
    a.e('s_add_u32 s28, s28, s16')
    a.e('s_mul_i32 s29, s27, 81920')
    a.e(f'v_and_b32 {v(vT)}, 31, v0')
    a.e(f'v_lshrrev_b32 {v(vT2)}, 5, v0')
    a.e(f'v_lshlrev_b32 {v(vLaneK2)}, 3, {v(vT)}')
    a.e(f'v_add_u32 {v(vLaneK2)}, 1024, {v(vLaneK2)}')
    a.e(f'v_mul_u32_u24 {v(vLaneV)}, 320, {v(vT2)}')
    a.e(f'v_lshlrev_b32 {v(vT)}, 4, {v(vT)}')
    a.e(f'v_add_u32 {v(vLaneV)}, {v(vLaneV)}, {v(vT)}')
    a.e(f'v_lshlrev_b32 {v(vL16)}, 4, v0')
    a.e('s_lshl_b32 s20, s16, 10')
    a.e('s_mov_b32 s17, s20')
    a.e(f's_add_u32 s18, s20, 8192')
    a.e(f's_add_u32 s19, s20, {VIMG-KIMG-2048}')
    a.e('s_cmp_lt_u32 s16, 2')
    a.e('s_cselect_b32 s18, s18, s19')
    a.e(f's_add_u32 s19, s20, {VIMG-KIMG+6144}')
    a.e('s_mov_b32 s22, 0x000fffff')
    a.e('s_mov_b32 s23, 0x000fffff')
    a.e('s_waitcnt lgkmcnt(0)')
    a.e(f's_add_u32 s4, s34, {KIMG}')
    a.e('s_addc_u32 s5, s35, 0')
    a.e('s_add_u32 s4, s4, s29')
    a.e('s_addc_u32 s5, s5, 0')
    a.e(f's_sub_u32 s6, {VIMG+2621440-KIMG}, s29')
    a.e('s_mov_b32 s7, 0x00020000')
    a.e(f's_add_u32 s8, s34, {QIMG}')
    a.e('s_addc_u32 s9, s35, 0')
    a.e('s_mov_b32 s10, 2621440')
    a.e('s_mov_b32 s11, 0x00020000')
    a.e(f's_add_u32 s12, s34, {OIMG}')
    a.e('s_addc_u32 s13, s35, 0')
    a.e('s_mov_b32 s14, 2621440')
    a.e('s_mov_b32 s15, 0x00020000')
    if 'hl' in FL:
        a.e(f's_add_u32 s40, s34, {FLAGS}'); a.e('s_addc_u32 s41, s35, 0'); a.e(f's_mov_b32 s42, {FLAGS_BYTES}'); a.e('s_mov_b32 s43, 0x00020000')
        a.e('s_lshl_b32 s44, s28, 2'); a.e('s_lshr_b32 s45, s27, 3'); a.e('s_add_u32 s44, s44, s45'); a.e('s_lshl_b32 s44, s44, 7')
        a.e('s_and_b32 s45, s27, 7'); a.e('s_lshl_b32 s45, s45, 2'); a.e('s_add_u32 s44, s44, s45')
        a.e('v_mov_b32 v102, 1')
    if 'sent' in FL and 'can' not in FL:
        a.e(f's_add_u32 s40, s34, {FLAGS}'); a.e('s_addc_u32 s41, s35, 0'); a.e(f's_mov_b32 s42, {FLAGS_BYTES}'); a.e('s_mov_b32 s43, 0x00020000')
        a.e('s_lshl_b32 s44, s28, 5'); a.e('s_add_u32 s44, s44, s27'); a.e('s_lshl_b32 s44, s44, 2')
        a.e('v_mov_b32 v102, 1')
    def qload():
        a.e('s_mul_i32 s33, s28, 1280')
        a.e('s_add_u32 s33, s33, s29')
        for k in range(4): a.e(f'v_mov_b32 {v(Q2+k)}, 0')
        a.e(f'buffer_load_dwordx4 {v(Q1,4)}, {v(vL16)}, s[8:11], s33 offen')
        a.e('s_mov_b64 exec, 0xffffffff')
        a.e(f'buffer_load_dwordx2 {v(Q2,2)}, {v(vLaneK2)}, s[8:11], s33 offen')
        a.e('s_mov_b64 exec, -1')
    if 'w0' in FL: qload()
    a.e('s_mov_b32 s25, 0'); a.e('s_mov_b32 s26, 0')
    emit_dma(a,'s25','s26')
    a.e('s_mov_b32 s25, 10240'); a.e(f's_mov_b32 s26, {SLOT}')
    emit_dma(a,'s25','s26')
    if 'w0' not in FL: qload()
    a.e(f'v_mov_b32 {v(K2+2)}, 0x3f803f80')
    a.e(f'v_mov_b32 {v(K2+3)}, 0x00003f80')
    for k in range(4):
        a.e(f'v_mov_b32 {v(V0+k)}, 0x3f803f80')
        a.e(f'v_mov_b32 {v(V1+k)}, 0x3f803f80')
    a.e(f'v_mov_b32 {v(vKc)}, {v(vL16)}')
    a.e(f'v_mov_b32 {v(vK2c)}, {v(vLaneK2)}')
    a.e(f'v_add_u32 {v(vLaneV)}, 10240, {v(vLaneV)}')
    a.e(f'v_mov_b32 {v(vVc)}, {v(vLaneV)}')
    a.e(f'v_add_u32 {v(vKn)}, {SLOT}, {v(vL16)}')
    a.e(f'v_add_u32 {v(vK2n)}, {SLOT}, {v(vLaneK2)}')
    a.e(f'v_add_u32 {v(vVn)}, {SLOT}, {v(vLaneV)}')
    T2=[P0,P1,E,E+4]
    for t in T2:
        a.e(f'v_mov_b32 {v(t+2)}, 0'); a.e(f'v_mov_b32 {v(t+3)}, 0')
    a.e('s_waitcnt vmcnt(2)' if 'w0' in FL else 's_waitcnt vmcnt(0)')
    a.e('s_barrier')
    stamp(a,1)
    if 'pre1' in FL:
        a.e(f'ds_read_b128 {v(K1,4)}, {v(vKc)} offset:0')
        a.e(f'ds_read_b64 {v(K2,2)}, {v(vK2c)} offset:0')
        a.e('s_mov_b64 exec, s[22:23]')
        a.e(f'ds_read_b128 {v(V1,4)}, {v(vVc)} offset:640')
        a.e(f'ds_read_b128 {v(V0,4)}, {v(vVc)} offset:0')
        a.e('s_mov_b64 exec, -1')
        for k in range(16): a.e(f'v_mov_b32 {v(O+k)}, 0')
        for k in range(4): a.e(f'v_mov_b32 {v(P1+k)}, 0')
        for k in range(4,8): a.e(f'v_mov_b32 {v(E+k)}, 0')
        a.e('s_waitcnt lgkmcnt(2)')
        a.e(mfma(SB,K1,Q1,None)); a.e(mfma(SB,K2,Q2,SB)); a.e(mfma(SA,K1,Q1,None))
        a.e(f'ds_read_b128 {v(K1,4)}, {v(vKc)} offset:1280')
        a.e('s_nop 7')
        max16(a,SB,True) if False else None
        a.e('s_nop 3')
        max16(a,SB,True)
        set_m_pieces(a,'0x42c00000')
        a.e('s_nop 1')
        a.e(mfma(SA,K2,Q2,SA))
        a.e(f'ds_read_b64 {v(K2,2)}, {v(vK2c)} offset:1280')
        a.e('s_waitcnt lgkmcnt(0)')
        a.e('s_nop 7'); a.e('s_nop 7')
    else:
        for t in range(4):
            a.e(f'ds_read_b128 {v(O+4*t,4)}, {v(vKc)} offset:{t*1280}')
            a.e(f'ds_read_b64 {v(T2[t],2)}, {v(vK2c)} offset:{t*1280}')
        a.e('s_waitcnt lgkmcnt(4)')
        a.e(mfma(SA,O,Q1,None)); a.e(mfma(SB,O+4,Q1,None))
        a.e(mfma(SA,T2[0],Q2,SA)); a.e(mfma(SB,T2[1],Q2,SB))
        a.e('s_waitcnt lgkmcnt(0)')
        a.e('s_nop 7'); a.e('s_nop 7')
        max16(a,SA,True)
        a.e(mfma(SA,O+8,Q1,None))
        max16(a,SB,False)
        a.e(mfma(SB,O+12,Q1,None))
        a.e(mfma(SA,T2[2],Q2,SA)); a.e(mfma(SB,T2[3],Q2,SB))
        a.e(f'ds_read_b128 {v(K1,4)}, {v(vKc)} offset:0')
        a.e(f'ds_read_b64 {v(K2,2)}, {v(vK2c)} offset:0')
        a.e('s_nop 7'); a.e('s_nop 7')
        max16(a,SA,False)
        max16(a,SB,False)
        set_m_pieces(a,'0x42c00000')
        for k in range(16): a.e(f'v_mov_b32 {v(O+k)}, 0')
        for k in range(4): a.e(f'v_mov_b32 {v(P1+k)}, 0')
        for k in range(4,8): a.e(f'v_mov_b32 {v(E+k)}, 0')
        a.e('s_waitcnt lgkmcnt(0)')
        a.e(mfma(SA,K1,Q1,None))
        a.e(mfma(SA,K2,Q2,SA))
        a.e(f'ds_read_b128 {v(K1,4)}, {v(vKc)} offset:1280')
        a.e(f'ds_read_b64 {v(K2,2)}, {v(vK2c)} offset:1280')
        a.e('s_mov_b64 exec, s[22:23]')
        a.e(f'ds_read_b128 {v(V1,4)}, {v(vVc)} offset:640')
        a.e(f'ds_read_b128 {v(V0,4)}, {v(vVc)} offset:0')
        a.e('s_mov_b64 exec, -1')
        a.e('s_waitcnt lgkmcnt(0)')
        a.e('s_nop 7'); a.e('s_nop 7')
    a.e('s_mov_b32 s24, 0')
    a.e('s_mov_b32 s25, 20480')
    a.e(f's_mov_b32 s26, {2*SLOT}')
    a.e(f's_mov_b32 s21, {SLOT}')
    stamp(a,2); stampc(a,5)
    a.label('ATT_LOOP')
    M16[0]=('am16' in FL)
    for i in range(8): tile(a,i)
    M16[0]=False
    a.e(f'v_mov_b32 {v(vKc)}, {v(vKn)}')
    a.e(f'v_mov_b32 {v(vK2c)}, {v(vK2n)}')
    a.e(f'v_mov_b32 {v(vVc)}, {v(vVn)}')
    a.e('s_mov_b32 s21, s26')
    a.e(f's_add_u32 s26, s26, {SLOT}')
    a.e(f's_cmp_eq_u32 s26, {3*SLOT}')
    a.e('s_cselect_b32 s26, 0, s26')
    a.e(f'v_add_u32 {v(vKn)}, s21, {v(vL16)}')
    a.e(f'v_add_u32 {v(vK2n)}, s21, {v(vLaneK2)}')
    a.e(f'v_add_u32 {v(vVn)}, s21, {v(vLaneV)}')
    a.e('s_add_u32 s25, s25, 10240')
    a.e('s_add_u32 s24, s24, 1')
    a.e('s_cmp_lt_u32 s24, 8')
    a.e('s_cbranch_scc1 ATT_LOOP')
    stamp(a,3); stampc(a,6)
    if 'eprio' in FL: a.e('s_setprio 3')
    a.e(f'v_cvt_pk_bf16_f32 {v(P1+2)}, {v(E+4)}, {v(E+5)}')
    a.e(f'v_cvt_pk_bf16_f32 {v(P1+3)}, {v(E+6)}, {v(E+7)}')
    a.e('s_waitcnt lgkmcnt(0)')
    a.e('s_nop 1')
    a.e(mfma(O,V1,P1,O))
    a.e('s_nop 7'); a.e('s_nop 7')
    a.e(f'v_mov_b32 {v(vT)}, 0')
    for k in range(13): a.e(f'v_fma_f32 {v(vT)}, {v(O+k)}, 0, {v(vT)}')
    a.e(f'v_cmp_u_f32 vcc, {v(vT)}, {v(vT)}')
    a.e('s_mov_b64 s[36:37], vcc')
    a.e(f'v_mov_b32 {v(vT)}, 0x7b800000')
    a.e(f'v_cmp_nlt_f32 vcc, {v(O+12)}, {v(vT)}')
    a.e('s_or_b64 vcc, vcc, s[36:37]')
    if 'am16' not in FL: a.e('s_cbranch_vccnz ATT_FALLBACK')
    a.label('ATT_EPI')
    a.e(f'v_rcp_f32 {v(vT)}, {v(O+12)}')
    a.e('s_nop 0')
    for k in range(12): a.e(f'v_mul_f32 {v(O+k)}, {v(O+k)}, {v(vT)}')
    for k in range(6): a.e(f'v_cvt_pk_bf16_f32 {v(E+k)}, {v(O+2*k)}, {v(O+2*k+1)}')
    if 'sent' in FL:
        for k in range(6): a.e(f'v_min_u32 {v(E+k)}, -2, {v(E+k)}')
    a.e('s_mul_i32 s33, s28, 40960')
    a.e('s_lshl_b32 s30, s27, 10')
    a.e('s_add_u32 s30, s30, s33')
    opol=' '.join(x for x in ('sc0','sc1','nt') if 'ost_'+x in FL)
    a.e(f'buffer_store_dwordx4 {v(E,4)}, {v(vL16)}, s[12:15], s30 offen {opol}')
    if 'lat' in FL:
        stamp(a,0); a.e('s_waitcnt vmcnt(0)'); stamp(a,1)
    if 'can' in FL:
        a.e('s_lshl_b32 s30, s27, 8')
        a.e('s_add_u32 s30, s30, s33')
        a.e(f's_add_u32 s30, s30, {32768-1024}')
        a.e('s_mov_b64 exec, 0xffffffff')
        a.e(f'buffer_store_dwordx2 {v(E+4,2)}, {v(vLaneK2)}, s[12:15], s30 offen {opol}')
    else:
        a.e('s_lshr_b32 s30, s27, 2')
        a.e('s_add_u32 s30, s30, 32')
        a.e('s_lshl_b32 s30, s30, 10')
        a.e('s_add_u32 s30, s30, s33')
        a.e('s_and_b32 s31, s27, 2')
        a.e('s_lshl_b32 s31, s31, 8')
        a.e('s_add_u32 s30, s30, s31')
        a.e('s_and_b32 s31, s27, 1')
        a.e('s_lshl_b32 s31, s31, 3')
        a.e('s_add_u32 s30, s30, s31')
        a.e('s_mov_b64 exec, 0xffffffff')
        a.e(f'buffer_store_dwordx2 {v(E+4,2)}, {v(vL16)}, s[12:15], s30 offen {opol}')
    if 'lat' in FL:
        a.e('s_waitcnt vmcnt(0)'); stamp(a,2)
    if 'sent' in FL:
        if 'hint8' in FL:
            a.e('s_mov_b64 exec, 1')
            a.e('buffer_store_dword v102, off, s[40:43], s44 sc1')
        a.e('s_waitcnt vmcnt(0)')
    else: a.e('s_waitcnt vmcnt(0)')
    if 'fuse' in FL and 'sent' not in FL:
        a.e(f's_add_u32 s8, s34, {FLAGS}'); a.e('s_addc_u32 s9, s35, 0'); a.e(f's_mov_b32 s10, {FLAGS_BYTES}')
        a.e('s_lshl_b32 s30, s28, 5'); a.e('s_add_u32 s30, s30, s27'); a.e('s_lshl_b32 s30, s30, 2')
        a.e(f'v_mov_b32 {v(vT)}, 1')
        a.e('s_mov_b64 exec, 1')
        a.e(f'buffer_store_dword {v(vT)}, off, s[8:11], s30 sc1')
        a.e('s_waitcnt vmcnt(0)')
    stamp(a,4)
    stamp_store(a,7,34,'s16',8,0)
    a.label('ATT_END')
    a.e('s_endpgm')
    a.label('ATT_FALLBACK')
    a.e(f'v_mov_b32 {v(Q2+2)}, 0'); a.e(f'v_mov_b32 {v(Q2+3)}, 0')
    a.e(f'v_mov_b32 {v(vMx)}, 0xff800000')
    a.e('s_mov_b32 s30, 0')
    a.label('ATT_FB1')
    a.e(f'buffer_load_dwordx4 {v(K1,4)}, {v(vL16)}, s[4:7], s30 offen')
    a.e(f'buffer_load_dwordx2 {v(K2,2)}, {v(vLaneK2)}, s[4:7], s30 offen')
    a.e('s_waitcnt vmcnt(0)')
    a.e(mfma(SA,K1,Q1,None)); a.e(mfma(SA,K2,Q2,SA))
    a.e('s_nop 7'); a.e('s_nop 7')
    max16(a,SA,False)
    a.e('s_add_u32 s30, s30, 1280')
    a.e('s_cmp_lt_u32 s30, 81920')
    a.e('s_cbranch_scc1 ATT_FB1')
    set_m_pieces(a,'0')
    for k in range(16): a.e(f'v_mov_b32 {v(O+k)}, 0')
    a.e(f'v_add_u32 {v(vVc)}, {VIMG-KIMG-10240}, {v(vLaneV)}')
    a.e('s_mov_b32 s30, 0')
    a.label('ATT_FB2')
    a.e(f'buffer_load_dwordx4 {v(K1,4)}, {v(vL16)}, s[4:7], s30 offen')
    a.e(f'buffer_load_dwordx2 {v(K2,2)}, {v(vLaneK2)}, s[4:7], s30 offen')
    a.e('s_mov_b64 exec, s[22:23]')
    a.e(f'buffer_load_dwordx4 {v(V0,4)}, {v(vVc)}, s[4:7], s30 offen')
    a.e(f'buffer_load_dwordx4 {v(V1,4)}, {v(vVc)}, s[4:7], s30 offen offset:640')
    a.e('s_mov_b64 exec, -1')
    a.e('s_waitcnt vmcnt(0)')
    a.e(mfma(SA,K1,Q1,None)); a.e(mfma(SA,K2,Q2,SA))
    a.e('s_nop 7'); a.e('s_nop 7')
    for k in range(16): a.e(f'v_exp_f32 {v(SB+k)}, {v(SA+k)}')
    a.e('s_nop 0')
    for k in range(4): a.e(f'v_cvt_pk_bf16_f32 {v(P0+k)}, {v(SB+2*k)}, {v(SB+2*k+1)}')
    for k in range(4): a.e(f'v_cvt_pk_bf16_f32 {v(P1+k)}, {v(SB+8+2*k)}, {v(SB+8+2*k+1)}')
    a.e('s_nop 1')
    a.e(mfma(O,V0,P0,O)); a.e(mfma(O,V1,P1,O))
    a.e('s_add_u32 s30, s30, 1280')
    a.e('s_cmp_lt_u32 s30, 81920')
    a.e('s_cbranch_scc1 ATT_FB2')
    a.e('s_nop 7'); a.e('s_nop 7')
    a.e('s_branch ATT_EPI')
    if 'ffn2' in FL:
        a.label('ATT_FFN2')
        gen_ffn2.FL=FL
        gen_ffn2.ffn2_role(a)
        return 128
    return NV
```

```python
from asmlib import *
from layouts import QIMG,KIMG,VIMG,HIMG,WIMG,WIMG_BYTES,FLAGS,FLAGS_BYTES,OIMG
from stamps import stamp, stamp_store, stampc
import stamps
XS=16384; WBASE=49152; WP=20544
CS=WBASE+5*WP
CSP=CS+1280
NM=CSP+2560
RR=NM+512
ST2=RR+512
LDS=ST2+1024
SP=LDS
def lds_size(): return LDS+(5120 if 'wearly' in FL else 0)
WF=4
XF=24
XA=40
WA=44
SEL=48
vT=58; vT2=59; vT3=60; vT4=61
CSA=64
ACC=96
NV=256
FL=set()
def acc(i,t): return ACC+(i*5+t)*16
def mfma(d,a_,b_):
    if 'm16' in FL:
        return f'v_mfma_f32_16x16x32_bf16 {v(d,4)}, {v(a_,4)}, {v(b_,4)}, {v(d,4)}\n    v_mfma_f32_16x16x32_bf16 {v(d+4,4)}, {v(a_,4)}, {v(b_,4)}, {v(d+4,4)}'
    return f'v_mfma_f32_32x32x16_bf16 {v(d,16)}, {v(a_,4)}, {v(b_,4)}, {v(d,16)}'

def wread(a,var,jl,t):
    if var=='ffn':
        reg=WA+2*jl; pitch=320; off=32*t
    else:
        reg=WA+2*jl+(t%2); pitch=640; off=64*t
    for p in range(2):
        a.e(f'ds_read_b64_tr_b16 {v(WF+4*t+2*p,2)}, {v(reg)} offset:{off+4*p*pitch}')
def xread(a,buf,j):
    for i in range(2):
        a.e(f'ds_read_b128 {v(XF+buf*8+i*4,4)}, {v(XA+j)} offset:{i*4096}')

def kstep(a,var,k):
    jl=k%2; xb=k%2
    a.c(f'kstep {k}')
    A=[[] for _ in range(5)]
    if jl==1 and 'nobar' not in FL: A[0].append('BAR')
    A[1]+=[f'ds_read_b128 {v(XF+(1-xb)*8+i*4,4)}, {v(XA+(k+1)%4)} offset:{i*4096}' for i in range(2)]
    regs=[WA+2*jl] if var=='ffn' else [WA+2*jl,WA+2*jl+1]
    A[2]+=[f'v_add_u32 {v(r)}, s22, {v(r)}' for r in regs]
    xs={1:[0,1],2:[2],3:[3]}.get(k,[])
    A[3]+=[f'v_add_u32 {v(XA+j)}, s24, {v(XA+j)}' for j in xs]
    if jl==1:
        A[3]+=['s_add_u32 s23, s23, 1','s_cmp_eq_u32 s23, 5']
        A[4]+=['s_cselect_b32 s22, s45, s44','s_cselect_b32 s23, 0, s23']
    if k==0:
        A[0]+=['s_add_u32 s25, s25, 1','s_cmp_eq_u32 s25, 3']
        A[0]+=['s_cselect_b32 s24, s47, s46']
        A[4]+=['s_cmp_eq_u32 s25, 3','s_cselect_b32 s25, 0, s25']
    if k==2:
        A[4]=['s_add_u32 s26, s26, 1']+A[4]
    if k==1 and 'ppf' in FL:
        A[1]+=['s_cmp_le_u32 s26, %d'%PPF_LAST(),'s_cselect_b32 s6, s6, 0']
        A[2]+=['buffer_load_dword v95, v94, s[4:7], 0 offen']
        A[3]=['v_add_u32 v94, s28, v94']+A[3]
    if k==3:
        A[4]+=['s_cmp_lt_u32 s26, 10']
    for t in range(5):
        n=8 if t<2 else 10
        a.e(f's_waitcnt lgkmcnt({n})')
        if 'nocs' not in FL and ((jl==0 and t%2==0) or (jl==1 and t%2==1)):
            a.e(f'v_mfma_f32_16x16x32_bf16 {v(CSA+4*t,4)}, {v(SEL,4)}, {v(WF+4*t,4)}, {v(CSA+4*t,4)}')
        for i in range(2):
            X=XF+xb*8+i*4
            if var=='v': a.e(mfma(acc(i,t),X,WF+4*t))
            else:        a.e(mfma(acc(i,t),WF+4*t,X))
            if i==0:
                for f in A[t]:
                    a.e('s_barrier' if f=='BAR' else f)
        wread(a,var,1-jl,t)

def stats(a,i,P,Pc=None,mode='qk'):
    a.e(f'v_mul_f32 {v(P)}, 0x3acccccd, {v(P)}')
    a.e(f'v_mul_f32 {v(P+1)}, 0x3acccccd, {v(P+1)}')
    a.e(f'v_fma_f32 {v(P+1)}, -{v(P)}, {v(P)}, {v(P+1)}')
    a.e(f'v_max_f32 {v(P+1)}, 0, {v(P+1)}')
    a.e(f'v_cvt_pk_bf16_f32 {v(P)}, {v(P)}, {v(P+1)}')
    a.e(f'v_and_b32 {v(P+1)}, 0xffff0000, {v(P)}')
    a.e(f'v_lshlrev_b32 {v(P)}, 16, {v(P)}')
    a.e(f'v_add_f32 {v(P+1)}, 0x3727c5ac, {v(P+1)}')
    a.e(f'v_cvt_pk_bf16_f32 {v(P+1)}, {v(P+1)}, {v(P+1)}')
    a.e(f'v_and_b32 {v(P+1)}, 0xffff0000, {v(P+1)}')
    a.e(f'v_sqrt_f32 {v(P+1)}, {v(P+1)}')
    a.e(f'v_xor_b32 {v(P)}, 0x80000000, {v(P)}')
    a.e(f'v_cvt_pk_bf16_f32 {v(P+1)}, {v(P+1)}, {v(P+1)}')
    a.e(f'v_and_b32 {v(P+1)}, 0xffff0000, {v(P+1)}')
    a.e(f'v_rcp_f32 {v(P+1)}, {v(P+1)}')
    a.e('s_nop 0')

def pkfma(d,x,y,z,bx=None,by=None,bz=None):
    sel=[0 if b is None else b for b in (bx,by,bz)]
    hi=[1 if b is None else b for b in (bx,by,bz)]
    return f'v_pk_fma_f32 {v(d,2)}, {v(x,2)}, {v(y,2)}, {v(z,2)} op_sel:[{sel[0]},{sel[1]},{sel[2]}] op_sel_hi:[{hi[0]},{hi[1]},{hi[2]}]'
def pkmul(d,x,y,bx=None,by=None):
    sel=[0 if b is None else b for b in (bx,by)]
    hi=[1 if b is None else b for b in (bx,by)]
    return f'v_pk_mul_f32 {v(d,2)}, {v(x,2)}, {v(y,2)} op_sel:[{sel[0]},{sel[1]}] op_sel_hi:[{hi[0]},{hi[1]}]'

def PPF_N():
    for n in (1,2,3,4,5):
        if f'ppf{n}' in FL: return n
    return 3
def PPF_LAST():
    return 8-PPF_N()
def ppf_setup(a,var):
    a.e('s_lshr_b32 s29, s2, 3'); a.e('s_and_b32 s29, s29, 7')
    if var=='ffn':
        L,mul,pitch,nw=3,21846,3072,2
        a.e('s_sub_u32 s31, s18, 6'); a.e('s_mul_i32 s31, s31, 320'); a.e('s_min_u32 s31, s31, 2752'); a.e('s_andn2_b32 s31, s31, 127')
        a.e('s_cmp_eq_u32 s16, 0'); a.e('s_cselect_b32 s4, s40, s42'); a.e('s_cselect_b32 s5, s41, s43')
    else:
        L,mul,pitch,nw=5,13108,3840,1
        a.e('s_mul_i32 s31, s18, 640')
        a.e('s_mov_b32 s4, s38'); a.e('s_mov_b32 s5, s39')
    a.e(f's_add_u32 s29, s29, 64')
    a.e(f'v_mul_u32_u24 v92, {mul}, v0')
    a.e('v_lshrrev_b32 v92, 16, v92')
    a.e(f'v_mul_u32_u24 v93, {L}, v92')
    a.e('v_sub_u32 v93, v0, v93')
    a.e('v_lshlrev_b32 v92, 3, v92')
    a.e('v_add_u32 v92, s29, v92')
    a.e(f'v_mul_u32_u24 v92, {pitch}, v92')
    a.e('v_lshlrev_b32 v93, 7, v93')
    a.e('v_add_u32 v92, v92, v93')
    a.e('v_add_u32 v92, s31, v92')
    a.e('v_bfrev_b32 v93, 1')
    a.e(f'v_cmp_gt_u32 vcc, {8*L}, v0')
    a.e('v_cndmask_b32 v94, v93, v92, vcc')
    a.e(f's_mov_b32 s28, {64*pitch}')
    a.e(f's_cmp_lt_u32 s16, {nw}'); a.e(f's_cselect_b32 s6, {640*pitch}, 0')
    a.e('s_mov_b32 s7, 0x00020000')
    a.e('s_cmp_eq_u32 s16, 2')
    a.e(f's_cbranch_scc0 K1_PPF_{var}')
    a.e('s_lshr_b32 s29, s2, 6'); a.e('s_lshl_b32 s29, s29, 5'); a.e('s_lshl_b32 s31, s17, 7'); a.e('s_add_u32 s29, s29, s31')
    a.e('v_add_u32 v92, s29, v0')
    a.e('v_mul_u32_u24 v92, 1280, v92')
    a.e('v_add_u32 v92, 256, v92')
    a.e('v_cmp_gt_u32 vcc, 32, v0')
    a.e('v_cndmask_b32 v94, v93, v92, vcc')
    a.e('s_mov_b32 s4, s36'); a.e('s_mov_b32 s5, s37'); a.e('s_mov_b32 s6, 2621440'); a.e('s_mov_b32 s28, 128')
    a.label(f'K1_PPF_{var}')
    for j in range(PPF_PRE()):
        a.e('buffer_load_dword v95, v94, s[4:7], 0 offen')
        a.e('v_add_u32 v94, s28, v94')
def PPF_PRE():
    for n in (0,1,2,3,4):
        if f'pre{n}' in FL: return n
    return PPF_N()

def main_loop(a,var):
    L=f'K1_{var.upper()}'
    if 'ppf' in FL: ppf_setup(a,var)
    a.e('s_barrier')
    stamp(a,1); stampc(a,8)
    if 'ppf' in FL:
        for j in range(PPF_N()-PPF_PRE()):
            a.e('buffer_load_dword v95, v94, s[4:7], 0 offen')
            a.e('v_add_u32 v94, s28, v94')
    wread(a,var,0,0)
    xread(a,0,0)
    for t in range(1,5): wread(a,var,0,t)
    a.e('s_mov_b32 s26, 0')
    a.e('s_mov_b32 s22, s44'); a.e('s_mov_b32 s23, 1')
    a.label(f'{L}_LOOP')
    for k in range(4): kstep(a,var,k)
    if stamps.STAMP:
        a.e('s_cmp_eq_u32 s26, 1')
        a.e(f's_cbranch_scc0 {L}_NS')
        stamp(a,7)
        a.label(f'{L}_NS')
        a.e('s_cmp_lt_u32 s26, 10')
    a.e(f's_cbranch_scc1 {L}_LOOP')
    stamp(a,2); stampc(a,9)
    step,r1=(64,640) if var=='ffn' else (128,64)
    a.e('s_nop 7')
    a.e('s_mov_b64 exec, 0xffff')
    for t in range(5):
        a.e(f'ds_write_b32 v62, {v(CSA+4*t)} offset:{t*step}')
        a.e(f'ds_write_b32 v62, {v(CSA+4*t+1)} offset:{t*step+r1}')
    a.e('s_mov_b64 exec, -1')
    a.e('s_waitcnt lgkmcnt(0)')
    stamp(a,5)
    a.e('s_barrier')
    if var!='v':
        a.e('ds_read_b64 v[64:65], v63 offset:0')
        a.e('ds_read_b64 v[66:67], v63 offset:256')
    a.e('s_barrier')
    stamp(a,6)

def k1_kernel(a,name):
    pol=' '.join(x for x in ('sc0','sc1','nt') if 'st_'+x in FL)
    if 'nost' in FL or pol:
        E0=a.e
        def e2(x):
            if x.startswith('buffer_store'):
                if 'nost' in FL: return
                x=x+' '+pol
            E0(x)
        a.e=e2
    a.lines.append(kernel_header(name))
    a.e('s_cmp_ge_u32 s2, 256')
    a.e('s_cbranch_scc1 K1_END')
    for n in (8,32,64,256):
      if f'cpt{n}' in FL:
        a.e(f's_cmp_lt_u32 s2, {n}'); a.e('s_cbranch_scc0 K1_CPT_END')
        a.e('s_getpc_b64 s[4:5]')
        a.label('K1_CPT_PC')
        a.e('s_sub_u32 s4, s4, K1_CPT_PC-k1_kernel'); a.e('s_subb_u32 s5, s5, 0')
        a.e('s_mov_b32 s6, FFN_TAIL+4-k1_kernel'); a.e('s_mov_b32 s7, 0x00020000')
        a.e('v_lshlrev_b32 v2, 7, v0')
        a.e('buffer_load_dword v3, v2, s[4:7], 0 offen')
        a.label('K1_CPT_END')
    a.e('s_load_dwordx2 s[34:35], s[0:1], 72')
    a.e('s_load_dwordx2 s[36:37], s[0:1], 0')
    a.e('s_load_dwordx2 s[38:39], s[0:1], 8')
    a.e('s_load_dwordx4 s[40:43], s[0:1], 32')
    if 'wimg' in FL:
        a.e('s_load_dwordx2 s[50:51], s[0:1], 16')
        a.e('s_load_dwordx2 s[52:53], s[0:1], 48')
    stamp(a,0)
    a.e(f'v_lshrrev_b32 {v(vT)}, 6, v0')
    a.e('v_and_b32 v0, 63, v0')
    a.e(f'v_readfirstlane_b32 s16, {v(vT)}')
    a.e('s_and_b32 s27, s2, 7')
    a.e('s_lshr_b32 s29, s2, 3')
    a.e('s_and_b32 s17, s27, 1')
    a.e('s_lshl_b32 s17, s17, 3')
    a.e('s_and_b32 s30, s29, 7')
    a.e('s_add_u32 s17, s17, s30')
    a.e('s_lshr_b32 s18, s27, 1')
    a.e('s_lshl_b32 s18, s18, 2')
    a.e('s_lshr_b32 s30, s29, 3')
    a.e('s_add_u32 s18, s18, s30')
    if 'mix' in FL:
        perm=[0,1,6,7,2,3,8,9,4,10,11,12,5,13,14,15]
        lo=sum(perm[i]<<(4*i) for i in range(8)); hi=sum(perm[8+i]<<(4*i) for i in range(8))
        a.e(f's_mov_b32 s30, {lo}'); a.e(f's_mov_b32 s31, {hi}')
        a.e('s_lshl_b32 s18, s18, 2')
        a.e('s_lshr_b64 s[30:31], s[30:31], s18')
        a.e('s_and_b32 s18, s30, 15')
    a.e('s_cmp_ge_u32 s16, 4')
    a.e('s_cbranch_scc1 K1_LOADER')
    if 'sent' in FL:
        a.e('s_mul_i32 s27, s2, 10240')
        a.e(f's_add_u32 s27, s27, {OIMG}')
        a.e('v_lshlrev_b32 v59, 4, v0')
        for k in range(4): a.e(f'v_mov_b32 v{60+k}, -1')
        a.e('s_lshl_b32 s28, s16, 10')
        a.e('s_waitcnt lgkmcnt(0)')
        a.e('s_add_u32 s4, s34, s27'); a.e('s_addc_u32 s5, s35, 0'); a.e('s_mov_b32 s6, 10240'); a.e('s_mov_b32 s7, 0x00020000')
        a.e('buffer_store_dwordx4 v[60:63], v59, s[4:7], s28 offen')
        a.e('s_add_u32 s28, s28, 4096')
        a.e('buffer_store_dwordx4 v[60:63], v59, s[4:7], s28 offen')
        a.e('s_add_u32 s28, s28, 4096')
        a.e('buffer_store_dwordx4 v[60:63], v59, s[4:7], s28 offen')
        a.e('s_nop 3')
    if 'cpa' in FL:
        a.e('s_cmp_lt_u32 s2, 224' if 'cpl' in FL else 's_cmp_lt_u32 s2, 32'); a.e('s_cbranch_scc1 K1_CPA_END' if 'cpl' in FL else 's_cbranch_scc0 K1_CPA_END')
        a.e('s_getpc_b64 s[4:5]')
        a.label('K1_CPA_PC')
        a.e('s_sub_u32 s4, s4, K1_CPA_PC-k1_kernel'); a.e('s_subb_u32 s5, s5, 0')
        a.e('s_mov_b32 s6, FFN_TAIL+4-k1_kernel'); a.e('s_mov_b32 s7, 0x00020000')
        a.e('v_lshlrev_b32 v52, 7, v0'); a.e('s_lshl_b32 s28, s16, 13')
        a.e('buffer_load_dword v53, v52, s[4:7], s28 offen')
        a.label('K1_CPA_END')
    for nm,wv in (('cpe',3),('cpe0',0)):
      if nm in FL:
        a.e(f's_cmp_eq_u32 s16, {wv}'); a.e('s_cbranch_scc0 K1_CPE_END')
        a.e('s_getpc_b64 s[4:5]')
        a.label('K1_CPE_PC')
        a.e('s_sub_u32 s4, s4, K1_CPE_PC-k1_kernel'); a.e('s_subb_u32 s5, s5, 0')
        a.e('s_mov_b32 s6, FFN_TAIL+4-k1_kernel'); a.e('s_mov_b32 s7, 0x00020000')
        a.e('v_lshlrev_b32 v52, 7, v0'); a.e('s_lshr_b32 s28, s2, 3'); a.e('s_mul_i32 s28, s28, 1152')
        a.e('s_mov_b64 exec, 0x1ff')
        a.e('buffer_load_dword v53, v52, s[4:7], s28 offen')
        a.e('s_mov_b64 exec, -1')
        a.label('K1_CPE_END')
    if 'pf' in FL:
        pol=' '.join(x for x in ('sc0','sc1','nt') if 'pf_'+x in FL)
        a.e('s_lshr_b32 s27, s2, 6')
        a.e('s_lshr_b32 s29, s2, 3'); a.e('s_and_b32 s29, s29, 7')
        a.e('s_lshl_b32 s30, s17, 7'); a.e('s_lshl_b32 s27, s27, 5'); a.e('s_add_u32 s30, s30, s27')
        a.e('v_and_b32 v52, 31, v0')
        a.e('v_add_u32 v52, s30, v52')
        a.e('v_mul_u32_u24 v52, 1280, v52')
        a.e('v_lshrrev_b32 v53, 5, v0')
        a.e('v_lshlrev_b32 v53, 7, v53')
        a.e('v_add_u32 v52, v52, v53')
        a.e('s_lshl_b32 s30, s16, 8')
        a.e('s_cmp_ge_u32 s18, 6')
        a.e('s_cbranch_scc1 K1_PF_FFN')
        a.e('s_lshl_b32 s27, s16, 6')
        for q in range(2):
            a.e(f'v_add_u32 v53, s27, v0')
            if q==1: a.e('v_add_u32 v53, 256, v53')
            a.e(f'v_mul_u32_u24 v54, 13108, v53')
            a.e('v_lshrrev_b32 v54, 16, v54')
            a.e('v_mul_u32_u24 v55, 5, v54')
            a.e('v_sub_u32 v55, v53, v55')
            a.e('v_lshlrev_b32 v54, 3, v54')
            a.e('v_add_u32 v54, s29, v54')
            a.e('v_mul_u32_u24 v54, 3840, v54')
            a.e('v_lshlrev_b32 v55, 7, v55')
            a.e(f'v_add_u32 v{55+q+1}, v54, v55')
        a.e('s_mul_i32 s31, s18, 640')
        a.e('s_waitcnt lgkmcnt(0)')
        a.e('s_mov_b32 s4, s38'); a.e('s_mov_b32 s5, s39'); a.e(f's_mov_b32 s6, {640*3840}')
        a.e('s_branch K1_PF_GO')
        a.label('K1_PF_FFN')
        a.e('s_and_b32 s27, s16, 1')
        a.e('s_lshl_b32 s27, s27, 6')
        for q in range(2):
            a.e(f'v_add_u32 v53, s27, v0')
            if q==1: a.e('v_add_u32 v53, 128, v53')
            a.e(f'v_mul_u32_u24 v54, 21846, v53')
            a.e('v_lshrrev_b32 v54, 16, v54')
            a.e('v_mul_u32_u24 v55, 3, v54')
            a.e('v_sub_u32 v55, v53, v55')
            a.e('v_lshlrev_b32 v54, 3, v54')
            a.e('v_add_u32 v54, s29, v54')
            a.e('v_mul_u32_u24 v54, 3072, v54')
            a.e('v_lshlrev_b32 v55, 7, v55')
            a.e(f'v_add_u32 v{55+q+1}, v54, v55')
        a.e('s_sub_u32 s31, s18, 6')
        a.e('s_mul_i32 s31, s31, 320')
        a.e('s_min_u32 s31, s31, 2752')
        a.e('s_andn2_b32 s31, s31, 127')
        a.e('s_waitcnt lgkmcnt(0)')
        a.e('s_cmp_lt_u32 s16, 2')
        a.e('s_cselect_b32 s4, s40, s42')
        a.e('s_cselect_b32 s5, s41, s43')
        a.e(f's_mov_b32 s6, {640*3072}')
        a.label('K1_PF_GO')
        a.e('s_mov_b32 s7, 0x00020000')
        a.e('s_mov_b32 s8, s36'); a.e('s_mov_b32 s9, s37'); a.e('s_mov_b32 s10, 2621440'); a.e('s_mov_b32 s11, 0x00020000')
        a.e(f'buffer_load_dword v95, v56, s[4:7], s31 offen {pol}')
        a.e(f'buffer_load_dword v95, v52, s[8:11], s30 offen {pol}')
        a.e(f'buffer_load_dword v95, v57, s[4:7], s31 offen {pol}')
        a.e('s_cmp_eq_u32 s16, 0')
        a.e('s_cbranch_scc0 K1_PF_END')
        a.e(f'buffer_load_dword v95, v52, s[8:11], 0 offen offset:1024 {pol}')
        a.label('K1_PF_END')
    if 'cp3' in FL: a.e('s_setprio 3')
    a.e('s_lshr_b32 s19, s16, 1')
    a.e('s_and_b32 s20, s16, 1')
    a.e('s_xor_b32 s21, s19, s20')
    a.e(f's_mov_b32 s44, {WP}'); a.e(f's_mov_b32 s45, {(-4*WP)&0xffffffff}'); a.e(f's_mov_b32 s46, {XS}'); a.e(f's_mov_b32 s47, {(-2*XS)&0xffffffff}')
    a.e(f'v_and_b32 {v(vT)}, 31, v0')
    a.e(f'v_lshrrev_b32 {v(vT2)}, 5, v0')
    a.e(f'v_bfe_u32 {v(vT3)}, v0, 1, 3')
    a.e(f'v_lshlrev_b32 {v(vT4)}, 7, {v(vT)}')
    a.e('s_lshl_b32 s27, s19, 13')
    a.e(f'v_add_u32 {v(vT4)}, s27, {v(vT4)}')
    for kk in range(4):
        a.e(f's_xor_b32 s27, s21, {kk%2}')
        a.e(f's_add_u32 s27, s27, {2*(kk//2)}')
        a.e('s_lshl_b32 s27, s27, 1')
        a.e(f'v_add_u32 {v(XA+kk)}, s27, {v(vT2)}')
        a.e(f'v_xor_b32 {v(XA+kk)}, {v(XA+kk)}, {v(vT3)}')
        a.e(f'v_lshlrev_b32 {v(XA+kk)}, 4, {v(XA+kk)}')
        a.e(f'v_add_u32 {v(XA+kk)}, {v(XA+kk)}, {v(vT4)}')
    a.e('s_lshl_b32 s27, s19, 9')
    a.e(f's_add_u32 s27, s27, {ST2}')
    a.e(f'v_lshlrev_b32 v63, 3, {v(vT)}')
    a.e('v_add_u32 v63, s27, v63')
    for k in range(20): a.e(f'v_mov_b32 {v(CSA+k)}, 0')
    a.e(f'v_and_b32 {v(vT2)}, 15, v0')
    a.e(f'v_bfe_u32 {v(vT3)}, v0, 4, 1')
    a.e(f'v_cmp_eq_u32 vcc, {v(vT2)}, {v(vT3)}')
    a.e(f'v_mov_b32 {v(vT2)}, 0')
    a.e(f'v_mov_b32 {v(vT3)}, 0x3f803f80')
    for k in range(4): a.e(f'v_cndmask_b32 {v(SEL+k)}, {v(vT2)}, {v(vT3)}, vcc')
    a.e('s_mov_b32 s25, 0')
    vH=84; vCh=85; vR=86; vC4=87; vRow=88
    a.e(f'v_lshrrev_b32 {v(vH)}, 5, v0')
    a.e(f'v_bfe_u32 {v(vCh)}, v0, 4, 1')
    a.e(f'v_bfe_u32 {v(vR)}, v0, 2, 2')
    a.e(f'v_and_b32 {v(vC4)}, 3, v0')
    a.e(f'v_lshlrev_b32 {v(vRow)}, 3, {v(vH)}')
    a.e(f'v_add_u32 {v(vRow)}, {v(vRow)}, {v(vR)}')
    a.e('s_cmp_ge_u32 s18, 6')
    a.e('s_cbranch_scc1 K1_FFN_SETUP')
    a.e(f'v_mul_u32_u24 {v(vT2)}, 640, {v(vRow)}')
    a.e(f'v_lshlrev_b32 {v(vT3)}, 5, {v(vCh)}')
    a.e(f'v_add_u32 {v(vT2)}, {v(vT2)}, {v(vT3)}')
    a.e(f'v_lshlrev_b32 {v(vT3)}, 3, {v(vC4)}')
    a.e(f'v_add_u32 {v(vT2)}, {v(vT2)}, {v(vT3)}')
    a.e('s_mul_i32 s27, s20, 320')
    a.e(f's_add_u32 s27, s27, {WBASE}')
    a.e(f'v_add_u32 {v(vT2)}, s27, {v(vT2)}')
    a.e(f'v_lshrrev_b32 {v(vT3)}, 1, {v(vR)}')
    a.e(f'v_lshlrev_b32 {v(vT3)}, 6, {v(vT3)}')
    a.e(f'v_sub_u32 {v(vT4)}, 0, {v(vT3)}')
    a.e('s_cmp_eq_u32 s20, 0')
    a.e('s_cselect_b64 vcc, -1, 0')
    a.e(f'v_cndmask_b32 v89, {v(vT4)}, {v(vT3)}, vcc')
    a.e(f'v_cndmask_b32 v90, {v(vT3)}, {v(vT4)}, vcc')
    for jl in range(2):
        a.e(f's_xor_b32 s27, s21, {jl}')
        a.e(f's_mul_i32 s27, s27, {16*640}')
        a.e(f'v_add_u32 {v(vT3)}, s27, {v(vT2)}')
        a.e(f'v_add_u32 {v(WA+2*jl)}, {v(vT3)}, v89')
        a.e(f'v_add_u32 {v(WA+2*jl+1)}, {v(vT3)}, v90')
    a.e('s_mul_i32 s27, s20, 640')
    a.e('s_mul_i32 s29, s19, 1280')
    a.e('s_add_u32 s27, s27, s29')
    a.e(f's_add_u32 s27, s27, {CSP}')
    a.e(f'v_and_b32 v62, 15, v0')
    a.e(f'v_lshlrev_b32 v62, 2, v62')
    a.e('v_add_u32 v62, s27, v62')
    for k in range(160): a.e(f'v_mov_b32 {v(ACC+k)}, 0')
    a.e('s_waitcnt lgkmcnt(0)')
    a.e('s_cmp_ge_u32 s18, 4')
    a.e('s_cbranch_scc1 K1_V_START')
    main_loop(a,'qk')
    a.e(f'v_lshrrev_b32 {v(vT)}, 5, v0')
    a.e(f'v_lshlrev_b32 {v(vT)}, 4, {v(vT)}')
    a.e('s_mul_i32 s27, s20, 640')
    a.e(f's_add_u32 s27, s27, {CS}')
    a.e(f'v_add_u32 {v(vT)}, s27, {v(vT)}')
    CQ=[4,20]
    for b in range(4): a.e(f'ds_read_b128 {v(CQ[0]+4*b,4)}, {v(vT)} offset:{b*32}')
    a.e('s_cmp_lt_u32 s18, 2')
    a.e(f's_cselect_b32 s27, {QIMG}, {KIMG}')
    a.e('s_add_u32 s4, s34, s27')
    a.e('s_addc_u32 s5, s35, 0')
    a.e('s_mov_b32 s6, 2621440')
    a.e('s_mov_b32 s7, 0x00020000')
    a.e('s_cmp_lt_u32 s18, 2')
    a.e('s_cselect_b32 s29, 0x3ea52b5c, 0x3f800000')
    a.e('s_and_b32 s27, s18, 1')
    a.e('s_lshl_b32 s27, s27, 4')
    a.e('s_lshl_b32 s30, s20, 3')
    a.e('s_add_u32 s27, s27, s30')
    a.e('s_mul_i32 s30, s27, 81920')
    a.e('s_lshl_b32 s31, s17, 2')
    a.e('s_lshl_b32 s27, s19, 1')
    a.e('s_add_u32 s31, s31, s27')
    a.e('s_mul_i32 s31, s31, 1280')
    a.e('s_add_u32 s30, s30, s31')
    vL16=71; vR8=72
    a.e(f'v_lshlrev_b32 {v(vL16)}, 4, v0')
    a.e(f'v_and_b32 {v(vR8)}, 31, v0')
    a.e(f'v_lshlrev_b32 {v(vR8)}, 3, {v(vR8)}')
    a.e(f'v_lshrrev_b32 {v(vT2)}, 5, v0')
    a.e(f'v_mul_u32_u24 {v(vT2)}, 81920, {v(vT2)}')
    a.e(f'v_add_u32 {v(vR8)}, {v(vR8)}, {v(vT2)}')
    a.e(f'v_add_u32 {v(vR8)}, 1024, {v(vR8)}')
    a.e('s_waitcnt lgkmcnt(4)')
    for i in range(2):
        a.e(f'v_mul_f32 {v(65+2*i)}, s29, {v(65+2*i)}')
    TMP=76
    for t in range(5):
        if t<4:
            for b in range(4): a.e(f'ds_read_b128 {v(CQ[(t+1)%2]+4*b,4)}, {v(vT)} offset:{(t+1)*128+b*32}')
            a.e('s_waitcnt lgkmcnt(4)')
        else:
            a.e('s_waitcnt lgkmcnt(0)')
        for b in range(4):
            j=4*t+b; m=j//5; jj=j%5
            dst={0:0,1:2,2:4,3:8,4:10}[jj]+20*m
            for i in range(2):
                A=acc(i,0)+4*j; P=64+2*i; C=CQ[t%2]+4*b; T_=TMP+4*i
                a.e(pkfma(T_,C,P,A,None,0,None))
                a.e(pkfma(T_+2,C+2,P,A+2,None,0,None))
                a.e(pkmul(T_,T_,P,None,1))
                a.e(pkmul(T_+2,T_+2,P,None,1))
            for i in range(2):
                T_=TMP+4*i; D=acc(i,0)+dst
                a.e(f'v_cvt_pk_bf16_f32 {v(D)}, {v(T_)}, {v(T_+1)}')
                a.e(f'v_cvt_pk_bf16_f32 {v(D+1)}, {v(T_+2)}, {v(T_+3)}')
            if jj==4:
                for i in range(2):
                    B=acc(i,0)+20*m
                    a.e(f's_add_u32 s27, s30, {2*m*81920+i*1280}')
                    a.e(f's_add_u32 s31, s27, 81920')
                    a.e(f'buffer_store_dwordx4 {v(B,4)}, {v(vL16)}, s[4:7], s27 offen')
                    a.e(f'buffer_store_dwordx4 {v(B+8,4)}, {v(vL16)}, s[4:7], s31 offen')
                    a.e(f'buffer_store_dwordx2 {v(B+4,2)}, {v(vR8)}, s[4:7], s27 offen')
    a.e('s_branch K1_DONE')
    a.label('K1_V_START')
    main_loop(a,'v')
    CB=76
    a.e('s_mul_i32 s27, s20, 640')
    a.e(f's_add_u32 s27, s27, {CS}')
    a.e(f'v_and_b32 v62, 31, v0')
    a.e(f'v_lshlrev_b32 v62, 2, v62')
    a.e('v_add_u32 v62, s27, v62')
    for t in range(5): a.e(f'ds_read_b32 {v(CB+2*t)}, v62 offset:{t*128}')
    a.e(f'v_lshrrev_b32 {v(vT2)}, 5, v0')
    a.e(f'v_lshlrev_b32 {v(vT2)}, 4, {v(vT2)}')
    a.e('s_lshl_b32 s27, s19, 8')
    a.e(f's_add_u32 s27, s27, {NM}')
    a.e(f'v_add_u32 {v(vT2)}, s27, {v(vT2)}')
    a.e(f's_add_u32 s4, s34, {VIMG}')
    a.e('s_addc_u32 s5, s35, 0')
    a.e('s_mov_b32 s6, 2621440')
    a.e('s_mov_b32 s7, 0x00020000')
    a.e('s_sub_u32 s27, s18, 4')
    a.e(f's_mul_i32 s30, s27, {16*81920}')
    a.e('s_lshl_b32 s31, s17, 2')
    a.e('s_lshl_b32 s27, s19, 1')
    a.e('s_add_u32 s31, s31, s27')
    a.e('s_mul_i32 s31, s31, 1280')
    a.e('s_add_u32 s30, s30, s31')
    VO=86
    a.e(f'v_and_b32 {v(vT3)}, 31, v0')
    a.e('s_mul_i32 s27, s20, 160')
    a.e(f'v_add_u32 {v(vT3)}, s27, {v(vT3)}')
    a.e(f'v_lshrrev_b32 {v(vT4)}, 5, v0')
    a.e(f'v_mul_u32_u24 {v(vT4)}, 320, {v(vT4)}')
    for t in range(5):
        a.e(f'v_add_u32 v91, {32*t}, {v(vT3)}')
        a.e(f'v_mul_u32_u24 v92, 3277, v91')
        a.e(f'v_lshrrev_b32 v92, 16, v92')
        a.e(f'v_mul_u32_u24 v93, 20, v92')
        a.e(f'v_sub_u32 v91, v91, v93')
        a.e(f'v_lshlrev_b32 v91, 4, v91')
        a.e(f'v_add_u32 v91, v91, {v(vT4)}')
        a.e(f's_mov_b32 s27, 81920')
        a.e(f'v_mul_lo_u32 v92, v92, s27')
        a.e(f'v_add_u32 {v(VO+t)}, v91, v92')
    qN=4; qR=20; TMP=36
    for i in range(2):
        a.e('s_waitcnt lgkmcnt(0)')
        for b in range(4):
            a.e(f'ds_read_b128 {v(qN+4*b,4)}, {v(vT2)} offset:{i*128+b*32}')
            a.e(f'ds_read_b128 {v(qR+4*b,4)}, {v(vT2)} offset:{512+i*128+b*32}')
        a.e(f's_add_u32 s27, s30, {i*1280}')
        a.e('s_waitcnt lgkmcnt(0)')
        for t in range(5):
            A=acc(i,t)
            for j in range(2):
                for q in range(4):
                    r_=8*j+2*q
                    a.e(pkfma(TMP+2*q,qN+r_,CB+2*t,A+r_,None,0,None))
                for q in range(4):
                    r_=8*j+2*q
                    a.e(pkmul(TMP+2*q,TMP+2*q,qR+r_))
                for q in range(4):
                    a.e(f'v_cvt_pk_bf16_f32 {v(A+8*j+q)}, {v(TMP+2*q)}, {v(TMP+2*q+1)}')
                a.e(f'buffer_store_dwordx4 {v(A+8*j,4)}, {v(VO+t)}, s[4:7], s27 offen offset:{j*640}')
    a.e('s_branch K1_DONE')
    a.label('K1_FFN_SETUP')
    a.e(f'v_mul_u32_u24 {v(vT2)}, 320, {v(vRow)}')
    a.e(f'v_mul_u32_u24 {v(vT3)}, 10272, {v(vCh)}')
    a.e(f'v_add_u32 {v(vT2)}, {v(vT2)}, {v(vT3)}')
    a.e(f'v_lshlrev_b32 {v(vT3)}, 3, {v(vC4)}')
    a.e(f'v_add_u32 {v(vT2)}, {v(vT2)}, {v(vT3)}')
    a.e('s_mul_i32 s27, s20, 160')
    a.e(f's_add_u32 s27, s27, {WBASE}')
    a.e(f'v_add_u32 {v(vT2)}, s27, {v(vT2)}')
    for jl in range(2):
        a.e(f's_xor_b32 s27, s21, {jl}')
        a.e(f's_mul_i32 s27, s27, {16*320}')
        a.e(f'v_add_u32 {v(WA+2*jl)}, s27, {v(vT2)}')
    a.e(f'v_and_b32 v62, 15, v0')
    a.e('v_lshlrev_b32 v62, 2, v62')
    a.e('s_mul_i32 s27, s20, 320')
    a.e('s_mul_i32 s29, s19, 1280')
    a.e('s_add_u32 s27, s27, s29')
    a.e(f's_add_u32 s27, s27, {CSP}')
    a.e('v_add_u32 v62, s27, v62')
    for k in range(160): a.e(f'v_mov_b32 {v(ACC+k)}, 0')
    a.e('s_waitcnt lgkmcnt(0)')
    main_loop(a,'ffn')
    a.e(f'v_lshrrev_b32 {v(vT)}, 5, v0')
    a.e(f'v_lshlrev_b32 {v(vT)}, 4, {v(vT)}')
    a.e('s_mul_i32 s27, s20, 320')
    a.e(f's_add_u32 s27, s27, {CS}')
    a.e(f'v_add_u32 {v(vT)}, s27, {v(vT)}')
    CQ=[4,20]
    def csread(t):
        C=CQ[t%2]
        for b in range(2):
            a.e(f'ds_read_b128 {v(C+4*b,4)}, {v(vT)} offset:{t*64+b*32}')
            a.e(f'ds_read_b128 {v(C+8+4*b,4)}, {v(vT)} offset:{640+t*64+b*32}')
    csread(0)
    a.e(f's_add_u32 s4, s34, {HIMG}')
    a.e('s_addc_u32 s5, s35, 0')
    a.e('s_cmp_eq_u32 s18, 15'); a.e('s_cselect_b32 s27, 1, 0')
    a.e('s_cmp_eq_u32 s20, 0'); a.e('s_cselect_b32 s27, s27, 0')
    a.e('s_cmp_eq_u32 s27, 1'); a.e('s_cselect_b32 s6, 0, 6291456')
    a.e('s_mov_b32 s7, 0x00020000')
    a.e('s_sub_u32 s27, s18, 6')
    a.e('s_mul_i32 s27, s27, 10')
    a.e('s_min_u32 s27, s27, 86')
    a.e('s_mul_i32 s30, s20, 5')
    a.e('s_add_u32 s27, s27, s30')
    a.e('s_lshl_b32 s30, s27, 10')
    a.e('s_lshl_b32 s31, s17, 2')
    a.e('s_lshl_b32 s27, s19, 1')
    a.e('s_add_u32 s31, s31, s27')
    a.e('s_mul_i32 s31, s31, 98304')
    a.e('s_add_u32 s30, s30, s31')
    vL16=71
    a.e(f'v_lshlrev_b32 {v(vL16)}, 4, v0')
    a.e('s_waitcnt lgkmcnt(4)')
    for i in range(2):
        P=64+2*i
        a.e(f'v_mul_f32 {v(72+2*i)}, {v(P+1)}, {v(P+1)}')
        a.e(f'v_rcp_f32 {v(72+2*i)}, {v(72+2*i)}')
        a.e(f'v_mul_f32 {v(P+1)}, 0xbfb8aa3b, {v(P+1)}')
    E=76
    for t in range(5):
        if t<4:
            csread(t+1); a.e('s_waitcnt lgkmcnt(4)')
        else: a.e('s_waitcnt lgkmcnt(0)')
        C=CQ[t%2]
        for i in range(2):
            A=acc(i,t); P=64+2*i
            for q in range(4): a.e(pkfma(A+2*q,C+2*q,P,A+2*q,None,0,None))
        for i in range(2):
            A=acc(i,t); P=64+2*i
            for q in range(4): a.e(pkmul(E+8*i+2*q,A+2*q,P,None,1))
        for i in range(2):
            A=acc(i,t); P=64+2*i
            for q in range(4):
                a.e(f'v_exp_f32 {v(E+8*i+2*q)}, {v(E+8*i+2*q)}')
                a.e(f'v_exp_f32 {v(E+8*i+2*q+1)}, {v(E+8*i+2*q+1)}')
                a.e(pkfma(A+8+2*q,C+8+2*q,P,A+8+2*q,None,0,None))
        for i in range(2):
            A=acc(i,t); I=72+2*i
            for q in range(4):
                a.e(pkfma(E+8*i+2*q,E+8*i+2*q,I,I,None,0,0))
                a.e(pkmul(A+2*q,A+2*q,A+8+2*q))
        for i in range(2):
            for q in range(8): a.e(f'v_rcp_f32 {v(E+8*i+q)}, {v(E+8*i+q)}')
        for i in range(2):
            A=acc(i,t)
            for q in range(4): a.e(pkmul(A+2*q,A+2*q,E+8*i+2*q))
        if t==4: a.e('s_mov_b32 s6, 6291456')
        for i in range(2):
            A=acc(i,t)
            for q in range(4): a.e(f'v_cvt_pk_bf16_f32 {v(A+8+q)}, {v(A+2*q)}, {v(A+2*q+1)}')
            a.e(f's_add_u32 s27, s30, {i*98304+t*1024}')
            a.e(f'buffer_store_dwordx4 {v(A+8,4)}, {v(vL16)}, s[4:7], s27 offen')
    a.label('K1_DONE')
    stamp(a,3)
    a.e('s_waitcnt vmcnt(0)')
    stamp(a,4)
    stamp_store(a,10,34,'s16',8,3*1024*1024)
    a.e('s_endpgm')
    a.label('K1_LOADER')
    a.e('s_sub_u32 s19, s16, 4')
    if 'lp0' not in FL: a.e('s_setprio 3')
    if 'lst' in FL: stamp(a,5)
    vX=4; vW=8
    a.e(f'v_lshrrev_b32 {v(vT)}, 3, v0')
    a.e(f'v_and_b32 {v(vT2)}, 7, v0')
    a.e(f'v_lshrrev_b32 {v(vT3)}, 4, v0')
    a.e('s_lshl_b32 s27, s17, 7')
    a.e('s_lshl_b32 s29, s19, 5')
    a.e('s_add_u32 s27, s27, s29')
    a.e(f'v_xor_b32 {v(vT4)}, {v(vT3)}, {v(vT2)}')
    a.e(f'v_lshlrev_b32 {v(vT4)}, 4, {v(vT4)}')
    a.e(f'v_add_u32 {v(vX)}, s27, {v(vT)}')
    a.e(f'v_mul_u32_u24 {v(vX)}, 1280, {v(vX)}')
    a.e(f'v_xor_b32 {v(vT3)}, 64, {v(vT4)}')
    a.e(f'v_add_u32 {v(vX+1)}, {v(vX)}, {v(vT3)}')
    a.e(f'v_add_u32 {v(vX)}, {v(vX)}, {v(vT4)}')
    a.e(f'v_add_u32 {v(vX+1)}, 10240, {v(vX+1)}')
    a.e(f'v_add_u32 {v(vX+2)}, 20480, {v(vX)}')
    a.e(f'v_add_u32 {v(vX+3)}, 20480, {v(vX+1)}')
    if 'lst' in FL: stamp(a,6)
    a.e('s_waitcnt lgkmcnt(0)')
    a.e('s_mov_b32 s8, s36'); a.e('s_mov_b32 s9, s37'); a.e('s_mov_b32 s10, 2621440'); a.e('s_mov_b32 s11, 0x00020000')
    a.e('s_lshl_b32 s21, s19, 12')
    a.e('s_mov_b32 s25, 0'); a.e('s_mov_b32 s26, s21')
    a.e(f's_add_u32 s30, s21, {3*XS}')
    def issueX(pro=False):
        for i in range(4):
            if 'nodma' in FL and not pro: break
            a.e(f's_add_u32 m0, s26, {i*1024}')
            a.e('s_nop 0')
            a.e(f'buffer_load_dwordx4 {v(vX+i)}, s[8:11], s25 offen lds')
        a.e('s_add_u32 s25, s25, 128')
        a.e(f's_add_u32 s26, s26, {XS}')
        a.e('s_cmp_eq_u32 s26, s30')
        a.e('s_cselect_b32 s26, s21, s26')
    issueX(True)
    if 'lst' in FL: stamp(a,4)
    a.e('s_cmp_ge_u32 s18, 6')
    a.e('s_cbranch_scc1 K1_LD_FFN')
    a.e('s_mul_i32 s27, s19, 320')
    for p in range(5):
        a.e(f's_add_u32 s29, s27, {64*p}')
        a.e(f'v_add_u32 {v(vT)}, s29, v0')
        a.e(f'v_mul_u32_u24 {v(vT2)}, 1639, {v(vT)}')
        a.e(f'v_lshrrev_b32 {v(vT2)}, 16, {v(vT2)}')
        a.e(f'v_mul_u32_u24 {v(vT3)}, 40, {v(vT2)}')
        a.e(f'v_sub_u32 {v(vT)}, {v(vT)}, {v(vT3)}')
        a.e(f'v_bfe_u32 {v(vT3)}, {v(vT2)}, 1, 1')
        a.e(f'v_lshlrev_b32 {v(vT3)}, 2, {v(vT3)}')
        a.e(f'v_xor_b32 {v(vT)}, {v(vT)}, {v(vT3)}')
        a.e(f'v_lshlrev_b32 {v(vT)}, 4, {v(vT)}')
        a.e(f'v_mul_u32_u24 {v(vT2)}, 3840, {v(vT2)}')
        a.e(f'v_add_u32 {v(vW+p)}, {v(vT)}, {v(vT2)}')
    a.e('s_mul_i32 s29, s18, 640')
    for p in range(5): a.e(f'v_add_u32 {v(vW+p)}, s29, {v(vW+p)}')
    a.e('s_waitcnt lgkmcnt(0)')
    a.e('s_mov_b32 s4, s38'); a.e('s_mov_b32 s5, s39'); a.e(f's_mov_b32 s6, {640*3840}')
    a.e(f's_mov_b32 s22, {32*3840}')
    a.e('s_mul_i32 s20, s19, 5120')
    a.e('s_branch K1_LD_GO')
    a.label('K1_LD_FFN')
    a.e('s_and_b32 s27, s19, 1')
    a.e('s_lshl_b32 s27, s27, 4')
    a.e('s_sub_u32 s29, s18, 6')
    a.e('s_mul_i32 s29, s29, 320')
    a.e('s_min_u32 s29, s29, 2752')
    for p in range(5):
        a.e(f'v_add_u32 {v(vT)}, {64*p}, v0')
        a.e(f'v_mul_u32_u24 {v(vT2)}, 3277, {v(vT)}')
        a.e(f'v_lshrrev_b32 {v(vT2)}, 16, {v(vT2)}')
        a.e(f'v_mul_u32_u24 {v(vT3)}, 20, {v(vT2)}')
        a.e(f'v_sub_u32 {v(vT)}, {v(vT)}, {v(vT3)}')
        a.e(f'v_lshlrev_b32 {v(vT)}, 4, {v(vT)}')
        a.e(f'v_add_u32 {v(vT2)}, s27, {v(vT2)}')
        a.e(f'v_mul_u32_u24 {v(vT2)}, 3072, {v(vT2)}')
        a.e(f'v_add_u32 {v(vW+p)}, {v(vT)}, {v(vT2)}')
        a.e(f'v_add_u32 {v(vW+p)}, s29, {v(vW+p)}')
    a.e('s_waitcnt lgkmcnt(0)')
    a.e('s_cmp_lt_u32 s19, 2')
    a.e('s_cselect_b32 s4, s40, s42')
    a.e('s_cselect_b32 s5, s41, s43')
    a.e(f's_mov_b32 s6, {640*3072}')
    a.e(f's_mov_b32 s22, {32*3072}')
    a.e('s_mul_i32 s20, s19, 5120')
    a.e('s_lshr_b32 s27, s19, 1')
    a.e('s_lshl_b32 s27, s27, 5')
    a.e('s_add_u32 s20, s20, s27')
    a.label('K1_LD_GO')
    if 'lst' in FL: stamp(a,7)
    a.e('s_mov_b32 s7, 0x00020000')
    a.e(f's_add_u32 s20, s20, {WBASE}')
    a.e('s_mov_b32 s23, 0'); a.e('s_mov_b32 s24, s20')
    a.e(f's_add_u32 s29, s20, {5*WP}')
    def issueW(pro=False):
        for p in range(5):
            if 'nodma' in FL and not pro: break
            a.e(f's_add_u32 m0, s24, {p*1024}')
            a.e('s_nop 0')
            a.e(f'buffer_load_dwordx4 {v(vW+p)}, s[4:7], s23 offen lds')
        a.e('s_add_u32 s23, s23, s22')
        a.e(f's_add_u32 s24, s24, {WP}')
        a.e('s_cmp_eq_u32 s24, s29')
        a.e('s_cselect_b32 s24, s20, s24')
    issueW(True); issueW(True); issueX(True)
    stamp(a,1)
    if 'lp0' in FL or 'lp30' in FL: a.e('s_setprio 0')
    vU=50
    if 'wimg' in FL:
        a.e('s_lshl_b32 s27, s2, 1'); a.e('s_add_u32 s27, s27, s19')
        a.e('s_add_u32 s28, s2, 512')
        a.e('s_cmp_eq_u32 s19, 2'); a.e('s_cselect_b32 s27, s28, s27')
        a.e('s_cmp_lt_u32 s27, 544'); a.e('s_cselect_b32 s33, 1, 0')
        a.e('s_cmp_eq_u32 s19, 3'); a.e('s_cselect_b32 s33, 0, s33')
        a.e('s_and_b32 s32, s27, 7')
        a.e('s_lshr_b32 s27, s27, 3')
        a.e('s_mul_i32 s54, s32, 68'); a.e('s_add_u32 s54, s54, s27'); a.e('s_mul_i32 s54, s54, 5120')
        a.e('s_mul_i32 s32, s32, 160')
        a.e('s_lshl_b32 s28, s27, 5'); a.e('s_mov_b32 s55, 16'); a.e('s_mov_b32 s48, 8'); a.e('s_mov_b32 s49, 4')
        a.e('s_mov_b32 s12, s52'); a.e('s_mov_b32 s13, s53'); a.e(f's_mov_b32 s14, {1536*1280}')
        a.e('s_cmp_lt_u32 s27, 48'); a.e('s_cbranch_scc1 K1_WI_SET')
        a.e('s_mov_b32 s12, s50'); a.e('s_mov_b32 s13, s51'); a.e(f's_mov_b32 s14, {640*1280}')
        a.e('s_sub_u32 s27, s27, 48')
        a.e('s_mul_i32 s28, s27, 40'); a.e('s_mov_b32 s55, 20')
        a.e('s_cmp_lt_u32 s27, 16'); a.e('s_cbranch_scc1 K1_WI_SET')
        a.e('s_sub_u32 s27, s27, 16')
        a.e('s_mul_i32 s28, s27, 160'); a.e('s_add_u32 s28, s28, 16')
        a.e('s_mov_b32 s55, 80'); a.e('s_mov_b32 s48, 20'); a.e('s_mov_b32 s49, 40')
        a.label('K1_WI_SET')
        a.e('s_mov_b32 s15, 0x00020000')
        a.e('s_cmp_eq_u32 s33, 0'); a.e('s_cselect_b32 s14, 0, s14')
        for p in range(5):
            a.e(f'v_add_u32 v56, {64*p}, v0')
            a.e('v_mul_u32_u24 v57, 6554, v56')
            a.e('v_lshrrev_b32 v57, 16, v57')
            a.e('v_mul_u32_u24 v58, 10, v57')
            a.e('v_sub_u32 v56, v56, v58')
            a.e('v_lshlrev_b32 v56, 4, v56')
            a.e('v_add_u32 v56, s32, v56')
            a.e('v_lshrrev_b32 v58, 4, v57')
            a.e('v_mul_u32_u24 v58, s55, v58')
            a.e('v_bfe_u32 v59, v57, 3, 1')
            a.e('v_mul_u32_u24 v59, s48, v59')
            a.e('v_add_u32 v58, v58, v59')
            a.e('v_bfe_u32 v59, v57, 2, 1')
            a.e('v_mul_u32_u24 v59, s49, v59')
            a.e('v_add_u32 v58, v58, v59')
            a.e('v_and_b32 v59, 3, v57')
            a.e('v_add_u32 v58, v58, v59')
            a.e('v_add_u32 v58, s28, v58')
            a.e('v_mul_u32_u24 v58, 1280, v58')
            a.e(f'v_add_u32 {v(vU+p)}, v56, v58')
        if 'wearly' in FL:
            a.e('v_lshrrev_b32 v56, 5, v0'); a.e('v_lshlrev_b32 v56, 4, v56')
            a.e('v_bfe_u32 v57, v0, 4, 1'); a.e('v_lshlrev_b32 v57, 2, v57'); a.e('v_add_u32 v56, v56, v57')
            a.e('v_bfe_u32 v57, v0, 2, 2'); a.e('v_add_u32 v56, v56, v57')
            a.e('v_mul_u32_u24 v56, 160, v56'); a.e(f'v_add_u32 v56, {SP}, v56')
            a.e('v_and_b32 v57, 3, v0'); a.e('v_lshlrev_b32 v58, 4, v57'); a.e('v_add_u32 v76, v56, v58')
            a.e('v_lshlrev_b32 v58, 3, v57'); a.e('v_add_u32 v77, v56, v58')
            a.e('v_lshlrev_b32 v78, 4, v0')
            a.e(f's_add_u32 s88, s34, {WIMG}'); a.e('s_addc_u32 s89, s35, 0')
            a.e('s_cmp_eq_u32 s33, 0'); a.e(f's_cselect_b32 s90, 0, {WIMG_BYTES}'); a.e('s_mov_b32 s91, 0x00020000')
    vSA=16
    D=20
    U=36
    sL,sH,qL,qH=40,41,42,43
    a.e(f'v_and_b32 {v(vT)}, 31, v0')
    a.e(f'v_lshrrev_b32 {v(vT2)}, 5, v0')
    a.e(f'v_lshlrev_b32 {v(vT2)}, 2, {v(vT2)}')
    a.e(f'v_bfe_u32 {v(vT3)}, v0, 1, 3')
    a.e(f'v_xor_b32 {v(vT2)}, {v(vT2)}, {v(vT3)}')
    a.e(f'v_lshlrev_b32 {v(vT2)}, 4, {v(vT2)}')
    a.e(f'v_lshlrev_b32 {v(vT3)}, 7, {v(vT)}')
    a.e(f'v_add_u32 {v(vT2)}, {v(vT2)}, {v(vT3)}')
    a.e(f'v_add_u32 {v(vSA)}, s21, {v(vT2)}')
    for i in range(1,4): a.e(f'v_xor_b32 {v(vSA+i)}, {16*i}, {v(vSA)}')
    for r in (sL,sH,qL,qH): a.e(f'v_mov_b32 {v(r)}, 0')
    if 'dot2' in FL: a.e('s_mov_b32 s56, 0x3f803f80')
    a.e(f's_mov_b32 s27, 0')
    a.e(f's_mov_b32 s46, {XS}'); a.e(f's_mov_b32 s47, {(-2*XS)&0xffffffff}')
    def st_read():
        if 'nostat' in FL: return
        for i in range(4): a.e(f'ds_read_b128 {v(D+4*i,4)}, {v(vSA+i)}')
        a.e('s_add_u32 s27, s27, 1')
        a.e('s_cmp_eq_u32 s27, 3')
        a.e('s_cselect_b32 s28, s47, s46')
        a.e('s_cselect_b32 s27, 0, s27')
        for i in range(4): a.e(f'v_add_u32 {v(vSA+i)}, s28, {v(vSA+i)}')
    def st_acc(half):
        if 'nostat' in FL: return
        a.e(f's_waitcnt lgkmcnt({2 if half==0 else 0})')
        if 'dot2' in FL:
            for d in range(8*half,8*half+8,2):
                a.e(f'v_dot2c_f32_bf16 {v(qL)}, {v(D+d)}, {v(D+d)}')
                a.e(f'v_dot2c_f32_bf16 {v(sL)}, s56, {v(D+d)}')
                a.e(f'v_dot2c_f32_bf16 {v(qH)}, {v(D+d+1)}, {v(D+d+1)}')
                a.e(f'v_dot2c_f32_bf16 {v(sH)}, s56, {v(D+d+1)}')
            return
        for d in range(8*half,8*half+8,2):
            a.e(f'v_lshlrev_b32 {v(U)}, 16, {v(D+d)}')
            a.e(f'v_and_b32 {v(U+1)}, 0xffff0000, {v(D+d)}')
            a.e(f'v_lshlrev_b32 {v(U+2)}, 16, {v(D+d+1)}')
            a.e(f'v_and_b32 {v(U+3)}, 0xffff0000, {v(D+d+1)}')
            a.e(f'v_add_f32 {v(sL)}, {v(sL)}, {v(U)}')
            a.e(f'v_add_f32 {v(sH)}, {v(sH)}, {v(U+1)}')
            a.e(f'v_fma_f32 {v(qL)}, {v(U)}, {v(U)}, {v(qL)}')
            a.e(f'v_fma_f32 {v(qH)}, {v(U+1)}, {v(U+1)}, {v(qH)}')
            a.e(f'v_add_f32 {v(sL)}, {v(sL)}, {v(U+2)}')
            a.e(f'v_add_f32 {v(sH)}, {v(sH)}, {v(U+3)}')
            a.e(f'v_fma_f32 {v(qL)}, {v(U+2)}, {v(U+2)}, {v(qL)}')
            a.e(f'v_fma_f32 {v(qH)}, {v(U+3)}, {v(U+3)}, {v(qH)}')
    bst=('bst' in FL)
    we=('wearly' in FL)
    def bs(i):
        if bst:
            (stampc if 'bstc' in FL else stamp)(a,i)
    def wave_only(w,fn):
        l=a.newlabel('K1_WO')
        a.e(f's_cmp_eq_u32 s19, {w}'); a.e(f's_cbranch_scc0 {l}')
        fn(); a.label(l)
    def unit_dma():
        for p in range(5):
            a.e(f's_mov_b32 m0, {SP+p*1024}')
            a.e('s_nop 0')
            a.e(f'buffer_load_dwordx4 {v(vU+p)}, s[12:15], 0 offen lds')
    def unit_tr():
        for t in range(5):
            reg,off=(76,[0,8,64,72][t]) if t<4 else (77,128)
            a.e(f'ds_read_b64_tr_b16 {v(56+4*t,2)}, {v(reg)} offset:{off}')
            a.e(f'ds_read_b64_tr_b16 {v(58+4*t,2)}, {v(reg)} offset:{off+1280}')
    def unit_store():
        a.e('s_waitcnt lgkmcnt(0)')
        for t in range(5):
            a.e(f's_add_u32 s28, s54, {t*1024}')
            a.e(f'buffer_store_dwordx4 {v(56+4*t,4)}, v78, s[88:91], s28 offen')
    U0={0:-1,1:4,2:9}; T0={0:2,1:7,2:12}; S0={0:3,1:8,2:13}
    WIDE={0:{0,1,4,5,6},1:{5,6,9,10,11},2:{10,11,14,15,16}}
    late=('wlate' in FL)
    if late:
        S0={}
        WIDE={0:{0,1,17,18,19},1:{5,6,17,18,19},2:{10,11,17,18,19}}
    def ldwait(s_,n):
        ws=[w for w in WIDE if s_ in WIDE[w]] if we else []
        if not ws:
            a.e(f's_waitcnt vmcnt({n})'); return
        l1=a.newlabel('K1_LW'); l2=a.newlabel('K1_LW')
        if len(ws)==1:
            a.e(f's_cmp_eq_u32 s19, {ws[0]}')
        elif len(ws)==3:
            a.e('s_cmp_lt_u32 s19, 3')
        else:
            assert ws[1]==ws[0]+1
            a.e(f's_sub_u32 s28, s19, {ws[0]}'); a.e('s_cmp_lt_u32 s28, 2')
        a.e(f's_cbranch_scc1 {l1}')
        a.e(f's_waitcnt vmcnt({n})'); a.e(f's_branch {l2}')
        a.label(l1); a.e(f's_waitcnt vmcnt({n+5})'); a.label(l2)
    def hook(tab,fn,s_):
        if we:
            for w in tab:
                if tab[w]==s_: wave_only(w,fn)
    pre=lambda s_: hook(U0,unit_dma,s_)
    mid=lambda s_: hook(T0,unit_tr,s_)
    post=lambda s_: hook(S0,unit_store,s_)
    pre(-1)
    ldwait(0,9); a.e('s_barrier'); bs(4); issueW(True); st_read(); st_acc(0)
    ldwait(1,9); a.e('s_barrier'); issueW(True); issueX(True); st_acc(1)
    ldwait(2,9); a.e('s_barrier'); bs(5); issueW(True); issueW(True); st_read(); st_acc(0); mid(2)
    ldwait(3,14); a.e('s_barrier'); issueW(True); issueX(True); st_acc(1); post(3)
    if bst or we:
        for it in range(2,8):
            ldwait(2*it,14); a.e('s_barrier'); bs(4+it); pre(2*it); issueW(); st_read(); st_acc(0); mid(2*it); post(2*it)
            ldwait(2*it+1,14); a.e('s_barrier'); pre(2*it+1); issueW(); issueX(); st_acc(1); mid(2*it+1); post(2*it+1)
    else:
        a.e('s_mov_b32 s31, 2')
        a.label('K1_LD_LOOP')
        a.e('s_waitcnt vmcnt(14)'); a.e('s_barrier'); issueW(); st_read(); st_acc(0)
        a.e('s_waitcnt vmcnt(14)'); a.e('s_barrier'); issueW(); issueX(); st_acc(1)
        a.e('s_add_u32 s31, s31, 1')
        a.e('s_cmp_lt_u32 s31, 8')
        a.e('s_cbranch_scc1 K1_LD_LOOP')
    ldwait(16,14); a.e('s_barrier'); bs(12); issueW(); st_read(); st_acc(0)
    if we and late:
        l=a.newlabel('K1_WS')
        a.e('s_cmp_lt_u32 s19, 3'); a.e(f's_cbranch_scc0 {l}')
        unit_store(); a.label(l)
    wi=5 if ('wimg' in FL and not we) else 0
    ldwait(17,14); a.e('s_barrier')
    if wi:
        for p in range(5):
            a.e(f's_add_u32 m0, s20, {p*1024}')
            a.e('s_nop 0')
            a.e(f'buffer_load_dwordx4 {v(vU+p)}, s[12:15], 0 offen lds')
    st_acc(1)
    ldwait(18,5+wi); a.e('s_barrier'); bs(13); st_read(); st_acc(0)
    ldwait(19,wi); a.e('s_barrier'); st_acc(1)
    a.e('s_barrier')
    stamp(a,2)
    if 'cpb' in FL:
        a.e('s_cmp_eq_u32 s19, 3'); a.e('s_cbranch_scc0 K1_CPB_END')
        a.e('s_getpc_b64 s[12:13]')
        a.label('K1_CPB_PC')
        a.e('s_add_u32 s12, s12, att_kernel-K1_CPB_PC'); a.e('s_addc_u32 s13, s13, 0')
        a.e('s_mov_b32 s14, FFN_TAIL+4-att_kernel'); a.e('s_mov_b32 s15, 0x00020000')
        a.e('v_lshlrev_b32 v120, 7, v0')
        a.e('buffer_load_dword v121, v120, s[12:15], 0 offen')
        a.e('v_add_u32 v120, 8192, v120')
        a.e('buffer_load_dword v122, v120, s[12:15], 0 offen')
        a.label('K1_CPB_END')
    P=44
    a.e(f'v_add_f32 {v(P)}, {v(sL)}, {v(sH)}')
    a.e(f'v_add_f32 {v(P+1)}, {v(qL)}, {v(qH)}')
    a.e(f'v_mov_b32 {v(U)}, {v(P)}')
    a.e(f'v_mov_b32 {v(U+1)}, {v(P+1)}')
    a.e('s_nop 1')
    a.e(f'v_permlane32_swap_b32 {v(U)}, {v(P)}')
    a.e(f'v_permlane32_swap_b32 {v(U+1)}, {v(P+1)}')
    a.e('s_nop 1')
    a.e(f'v_add_f32 {v(P)}, {v(U)}, {v(P)}')
    a.e(f'v_add_f32 {v(P+1)}, {v(U+1)}, {v(P+1)}')
    stats(a,0,P)
    a.e(f'v_and_b32 {v(vT)}, 31, v0')
    a.e('s_lshl_b32 s27, s19, 5')
    a.e(f'v_add_u32 {v(vT)}, s27, {v(vT)}')
    a.e(f'v_lshlrev_b32 {v(vT2)}, 2, {v(vT)}')
    a.e(f'v_lshlrev_b32 {v(vT3)}, 3, {v(vT)}')
    a.e('s_mov_b64 exec, 0xffffffff')
    a.e(f'ds_write_b32 {v(vT2)}, {v(P)} offset:{NM}' if NM<65536 else f'v_add_u32 {v(vT2)}, {NM}, {v(vT2)}')
    if NM>=65536:
        a.e(f'v_add_u32 {v(vT3)}, {ST2}, {v(vT3)}')
        a.e(f'ds_write_b32 {v(vT2)}, {v(P)}')
        a.e(f'ds_write_b32 {v(vT2)}, {v(P+1)} offset:512')
        a.e(f'ds_write_b64 {v(vT3)}, {v(P,2)}')
    a.e('s_mov_b64 exec, -1')
    a.e('s_lshl_b32 s27, s19, 6')
    a.e(f'v_add_u32 {v(vT)}, s27, v0')
    a.e(f'v_lshlrev_b32 {v(vT2)}, 3, {v(vT)}')
    a.e(f'v_add_u32 {v(vT2)}, {CS}, {v(vT2)}')
    a.e('s_waitcnt lgkmcnt(0)')
    stamp(a,3)
    a.e('s_barrier')
    a.e(f'v_cmp_gt_u32 vcc, 160, {v(vT)}')
    a.e('s_and_saveexec_b64 s[48:49], vcc')
    a.e(f'ds_read_b64 {v(D,2)}, {v(vT2)} offset:1280')
    a.e(f'ds_read_b64 {v(D+2,2)}, {v(vT2)} offset:2560')
    a.e('s_waitcnt lgkmcnt(0)')
    a.e(f'v_add_f32 {v(D)}, {v(D)}, {v(D+2)}')
    a.e(f'v_add_f32 {v(D+1)}, {v(D+1)}, {v(D+3)}')
    a.e(f'ds_write_b64 {v(vT2)}, {v(D,2)}')
    a.e('s_mov_b64 exec, -1')
    a.e('s_waitcnt lgkmcnt(0)')
    a.e('s_barrier')
    if 'wimg' in FL and 'wearly' not in FL:
        a.e('s_cmp_eq_u32 s33, 0')
        a.e('s_cbranch_scc1 K1_WI_END')
        a.e('v_lshrrev_b32 v56, 5, v0')
        a.e('v_lshlrev_b32 v56, 4, v56')
        a.e('v_bfe_u32 v57, v0, 4, 1')
        a.e('v_lshlrev_b32 v57, 2, v57')
        a.e('v_add_u32 v56, v56, v57')
        a.e('v_bfe_u32 v57, v0, 2, 2')
        a.e('v_add_u32 v56, v56, v57')
        a.e('v_mul_u32_u24 v56, 160, v56')
        a.e('v_add_u32 v56, s20, v56')
        a.e('v_and_b32 v57, 3, v0')
        a.e('v_lshlrev_b32 v58, 4, v57')
        a.e('v_add_u32 v54, v56, v58')
        a.e('v_lshlrev_b32 v58, 3, v57')
        a.e('v_add_u32 v55, v56, v58')
        a.e('v_lshlrev_b32 v53, 4, v0')
        a.e(f's_add_u32 s12, s34, {WIMG}'); a.e('s_addc_u32 s13, s35, 0'); a.e(f's_mov_b32 s14, {WIMG_BYTES}')
        a.e('s_waitcnt vmcnt(0)')
        for t in range(5):
            reg,off=(54,[0,8,64,72][t]) if t<4 else (55,128)
            a.e(f'ds_read_b64_tr_b16 {v(56+4*t,2)}, {v(reg)} offset:{off}')
            a.e(f'ds_read_b64_tr_b16 {v(58+4*t,2)}, {v(reg)} offset:{off+1280}')
        a.e('s_waitcnt lgkmcnt(0)')
        for t in range(5):
            a.e(f's_add_u32 s27, s54, {t*1024}')
            a.e(f'buffer_store_dwordx4 {v(56+4*t,4)}, v53, s[12:15], s27 offen')
        a.e('s_waitcnt vmcnt(0)')
        a.label('K1_WI_END')
    if 'fuse' in FL and ('can' not in FL or 'hl' in FL):
        a.e('s_cmp_eq_u32 s19, 3'); a.e('s_cbranch_scc0 K1_FL_END')
        a.e(f's_cmp_lt_u32 s2, {FLAGS_BYTES//1024}'); a.e('s_cbranch_scc0 K1_FL_END')
        a.e(f's_add_u32 s12, s34, {FLAGS}'); a.e('s_addc_u32 s13, s35, 0'); a.e(f's_mov_b32 s14, {FLAGS_BYTES}'); a.e('s_mov_b32 s15, 0x00020000')
        a.e('s_lshl_b32 s27, s2, 10')
        a.e('v_lshlrev_b32 v53, 4, v0')
        for k in range(4): a.e(f'v_mov_b32 v{56+k}, 0')
        a.e('buffer_store_dwordx4 v[56:59], v53, s[12:15], s27 offen')
        a.e('s_waitcnt vmcnt(0)')
        a.label('K1_FL_END')
    if 'wearly' in FL: a.e('s_waitcnt vmcnt(0)')
    if 'lst' not in FL and 'bst' not in FL:
        stamp(a,4); stamp(a,5); stamp(a,6); stamp(a,7)
    stamp_store(a,14 if 'bst' in FL else 8,34,'s16',8,3*1024*1024)
    a.label('K1_END')
    a.e('s_endpgm')
    return NV
```

```python
from asmlib import *
from layouts import QIMG,KIMG,VIMG,HIMG,WIMG,WIMG_BYTES,FLAGS,FLAGS_BYTES,OIMG
from stamps import stamp, stamp_store, stampc
import stamps
XS=16384; WBASE=49152; WP=20544
CS=WBASE+5*WP
CSP=CS+1280
NM=CSP+2560
RR=NM+512
ST2=RR+512
LDS=ST2+1024
SP=LDS
def lds_size(): return LDS+(5120 if 'wearly' in FL else 0)
WF=4
XF=24
XA=40
WA=44
SEL=48
vT=58; vT2=59; vT3=60; vT4=61
CSA=64
ACC=96
NV=256
FL=set()
def acc(i,t): return ACC+(i*5+t)*16
def mfma(d,a_,b_):
    if 'm16' in FL:
        return f'v_mfma_f32_16x16x32_bf16 {v(d,4)}, {v(a_,4)}, {v(b_,4)}, {v(d,4)}\n    v_mfma_f32_16x16x32_bf16 {v(d+4,4)}, {v(a_,4)}, {v(b_,4)}, {v(d+4,4)}'
    return f'v_mfma_f32_32x32x16_bf16 {v(d,16)}, {v(a_,4)}, {v(b_,4)}, {v(d,16)}'

def wread(a,var,jl,t):
    if var=='ffn':
        reg=WA+2*jl; pitch=320; off=32*t
    else:
        reg=WA+2*jl+(t%2); pitch=640; off=64*t
    for p in range(2):
        a.e(f'ds_read_b64_tr_b16 {v(WF+4*t+2*p,2)}, {v(reg)} offset:{off+4*p*pitch}')
def xread(a,buf,j):
    for i in range(2):
        a.e(f'ds_read_b128 {v(XF+buf*8+i*4,4)}, {v(XA+j)} offset:{i*4096}')

def kstep(a,var,k):
    jl=k%2; xb=k%2
    a.c(f'kstep {k}')
    A=[[] for _ in range(5)]
    if jl==1 and 'nobar' not in FL: A[0].append('BAR')
    A[1]+=[f'ds_read_b128 {v(XF+(1-xb)*8+i*4,4)}, {v(XA+(k+1)%4)} offset:{i*4096}' for i in range(2)]
    regs=[WA+2*jl] if var=='ffn' else [WA+2*jl,WA+2*jl+1]
    A[2]+=[f'v_add_u32 {v(r)}, s22, {v(r)}' for r in regs]
    xs={1:[0,1],2:[2],3:[3]}.get(k,[])
    A[3]+=[f'v_add_u32 {v(XA+j)}, s24, {v(XA+j)}' for j in xs]
    if jl==1:
        A[3]+=['s_add_u32 s23, s23, 1','s_cmp_eq_u32 s23, 5']
        A[4]+=['s_cselect_b32 s22, s45, s44','s_cselect_b32 s23, 0, s23']
    if k==0:
        A[0]+=['s_add_u32 s25, s25, 1','s_cmp_eq_u32 s25, 3']
        A[0]+=['s_cselect_b32 s24, s47, s46']
        A[4]+=['s_cmp_eq_u32 s25, 3','s_cselect_b32 s25, 0, s25']
    if k==2:
        A[4]=['s_add_u32 s26, s26, 1']+A[4]
    if k==1 and 'ppf' in FL:
        A[1]+=['s_cmp_le_u32 s26, %d'%PPF_LAST(),'s_cselect_b32 s6, s6, 0']
        A[2]+=['buffer_load_dword v95, v94, s[4:7], 0 offen']
        A[3]=['v_add_u32 v94, s28, v94']+A[3]
    if k==3:
        A[4]+=['s_cmp_lt_u32 s26, 10']
    for t in range(5):
        n=8 if t<2 else 10
        a.e(f's_waitcnt lgkmcnt({n})')
        if 'nocs' not in FL and ((jl==0 and t%2==0) or (jl==1 and t%2==1)):
            a.e(f'v_mfma_f32_16x16x32_bf16 {v(CSA+4*t,4)}, {v(SEL,4)}, {v(WF+4*t,4)}, {v(CSA+4*t,4)}')
        for i in range(2):
            X=XF+xb*8+i*4
            if var=='v': a.e(mfma(acc(i,t),X,WF+4*t))
            else:        a.e(mfma(acc(i,t),WF+4*t,X))
            if i==0:
                for f in A[t]:
                    a.e('s_barrier' if f=='BAR' else f)
        wread(a,var,1-jl,t)

def stats(a,i,P,Pc=None,mode='qk'):
    a.e(f'v_mul_f32 {v(P)}, 0x3acccccd, {v(P)}')
    a.e(f'v_mul_f32 {v(P+1)}, 0x3acccccd, {v(P+1)}')
    a.e(f'v_fma_f32 {v(P+1)}, -{v(P)}, {v(P)}, {v(P+1)}')
    a.e(f'v_max_f32 {v(P+1)}, 0, {v(P+1)}')
    a.e(f'v_cvt_pk_bf16_f32 {v(P)}, {v(P)}, {v(P+1)}')
    a.e(f'v_and_b32 {v(P+1)}, 0xffff0000, {v(P)}')
    a.e(f'v_lshlrev_b32 {v(P)}, 16, {v(P)}')
    a.e(f'v_add_f32 {v(P+1)}, 0x3727c5ac, {v(P+1)}')
    a.e(f'v_cvt_pk_bf16_f32 {v(P+1)}, {v(P+1)}, {v(P+1)}')
    a.e(f'v_and_b32 {v(P+1)}, 0xffff0000, {v(P+1)}')
    a.e(f'v_sqrt_f32 {v(P+1)}, {v(P+1)}')
    a.e(f'v_xor_b32 {v(P)}, 0x80000000, {v(P)}')
    a.e(f'v_cvt_pk_bf16_f32 {v(P+1)}, {v(P+1)}, {v(P+1)}')
    a.e(f'v_and_b32 {v(P+1)}, 0xffff0000, {v(P+1)}')
    a.e(f'v_rcp_f32 {v(P+1)}, {v(P+1)}')
    a.e('s_nop 0')

def pkfma(d,x,y,z,bx=None,by=None,bz=None):
    sel=[0 if b is None else b for b in (bx,by,bz)]
    hi=[1 if b is None else b for b in (bx,by,bz)]
    return f'v_pk_fma_f32 {v(d,2)}, {v(x,2)}, {v(y,2)}, {v(z,2)} op_sel:[{sel[0]},{sel[1]},{sel[2]}] op_sel_hi:[{hi[0]},{hi[1]},{hi[2]}]'
def pkmul(d,x,y,bx=None,by=None):
    sel=[0 if b is None else b for b in (bx,by)]
    hi=[1 if b is None else b for b in (bx,by)]
    return f'v_pk_mul_f32 {v(d,2)}, {v(x,2)}, {v(y,2)} op_sel:[{sel[0]},{sel[1]}] op_sel_hi:[{hi[0]},{hi[1]}]'

def PPF_N():
    for n in (1,2,3,4,5):
        if f'ppf{n}' in FL: return n
    return 3
def PPF_LAST():
    return 8-PPF_N()
def ppf_setup(a,var):
    a.e('s_lshr_b32 s29, s2, 3'); a.e('s_and_b32 s29, s29, 7')
    if var=='ffn':
        L,mul,pitch,nw=3,21846,3072,2
        a.e('s_sub_u32 s31, s18, 6'); a.e('s_mul_i32 s31, s31, 320'); a.e('s_min_u32 s31, s31, 2752'); a.e('s_andn2_b32 s31, s31, 127')
        a.e('s_cmp_eq_u32 s16, 0'); a.e('s_cselect_b32 s4, s40, s42'); a.e('s_cselect_b32 s5, s41, s43')
    else:
        L,mul,pitch,nw=5,13108,3840,1
        a.e('s_mul_i32 s31, s18, 640')
        a.e('s_mov_b32 s4, s38'); a.e('s_mov_b32 s5, s39')
    a.e(f's_add_u32 s29, s29, 64')
    a.e(f'v_mul_u32_u24 v92, {mul}, v0')
    a.e('v_lshrrev_b32 v92, 16, v92')
    a.e(f'v_mul_u32_u24 v93, {L}, v92')
    a.e('v_sub_u32 v93, v0, v93')
    a.e('v_lshlrev_b32 v92, 3, v92')
    a.e('v_add_u32 v92, s29, v92')
    a.e(f'v_mul_u32_u24 v92, {pitch}, v92')
    a.e('v_lshlrev_b32 v93, 7, v93')
    a.e('v_add_u32 v92, v92, v93')
    a.e('v_add_u32 v92, s31, v92')
    a.e('v_bfrev_b32 v93, 1')
    a.e(f'v_cmp_gt_u32 vcc, {8*L}, v0')
    a.e('v_cndmask_b32 v94, v93, v92, vcc')
    a.e(f's_mov_b32 s28, {64*pitch}')
    a.e(f's_cmp_lt_u32 s16, {nw}'); a.e(f's_cselect_b32 s6, {640*pitch}, 0')
    a.e('s_mov_b32 s7, 0x00020000')
    a.e('s_cmp_eq_u32 s16, 2')
    a.e(f's_cbranch_scc0 K1_PPF_{var}')
    a.e('s_lshr_b32 s29, s2, 6'); a.e('s_lshl_b32 s29, s29, 5'); a.e('s_lshl_b32 s31, s17, 7'); a.e('s_add_u32 s29, s29, s31')
    a.e('v_add_u32 v92, s29, v0')
    a.e('v_mul_u32_u24 v92, 1280, v92')
    a.e('v_add_u32 v92, 256, v92')
    a.e('v_cmp_gt_u32 vcc, 32, v0')
    a.e('v_cndmask_b32 v94, v93, v92, vcc')
    a.e('s_mov_b32 s4, s36'); a.e('s_mov_b32 s5, s37'); a.e('s_mov_b32 s6, 2621440'); a.e('s_mov_b32 s28, 128')
    a.label(f'K1_PPF_{var}')
    for j in range(PPF_PRE()):
        a.e('buffer_load_dword v95, v94, s[4:7], 0 offen')
        a.e('v_add_u32 v94, s28, v94')
def PPF_PRE():
    for n in (0,1,2,3,4):
        if f'pre{n}' in FL: return n
    return PPF_N()

def main_loop(a,var):
    L=f'K1_{var.upper()}'
    if 'ppf' in FL: ppf_setup(a,var)
    a.e('s_barrier')
    stamp(a,1); stampc(a,8)
    if 'ppf' in FL:
        for j in range(PPF_N()-PPF_PRE()):
            a.e('buffer_load_dword v95, v94, s[4:7], 0 offen')
            a.e('v_add_u32 v94, s28, v94')
    wread(a,var,0,0)
    xread(a,0,0)
    for t in range(1,5): wread(a,var,0,t)
    a.e('s_mov_b32 s26, 0')
    a.e('s_mov_b32 s22, s44'); a.e('s_mov_b32 s23, 1')
    a.label(f'{L}_LOOP')
    for k in range(4): kstep(a,var,k)
    if stamps.STAMP:
        a.e('s_cmp_eq_u32 s26, 1')
        a.e(f's_cbranch_scc0 {L}_NS')
        stamp(a,7)
        a.label(f'{L}_NS')
        a.e('s_cmp_lt_u32 s26, 10')
    a.e(f's_cbranch_scc1 {L}_LOOP')
    stamp(a,2); stampc(a,9)
    step,r1=(64,640) if var=='ffn' else (128,64)
    a.e('s_nop 7')
    a.e('s_mov_b64 exec, 0xffff')
    for t in range(5):
        a.e(f'ds_write_b32 v62, {v(CSA+4*t)} offset:{t*step}')
        a.e(f'ds_write_b32 v62, {v(CSA+4*t+1)} offset:{t*step+r1}')
    a.e('s_mov_b64 exec, -1')
    a.e('s_waitcnt lgkmcnt(0)')
    stamp(a,5)
    a.e('s_barrier')
    if var!='v':
        a.e('ds_read_b64 v[64:65], v63 offset:0')
        a.e('ds_read_b64 v[66:67], v63 offset:256')
    a.e('s_barrier')
    stamp(a,6)

def k1_kernel(a,name):
    pol=' '.join(x for x in ('sc0','sc1','nt') if 'st_'+x in FL)
    if 'nost' in FL or pol:
        E0=a.e
        def e2(x):
            if x.startswith('buffer_store'):
                if 'nost' in FL: return
                x=x+' '+pol
            E0(x)
        a.e=e2
    a.lines.append(kernel_header(name))
    a.e('s_cmp_ge_u32 s2, 256')
    a.e('s_cbranch_scc1 K1_END')
    for n in (8,12,16,24,32,40,58):
      if f'cpu{n}' in FL:
        a.e('s_getpc_b64 s[4:5]')
        a.label('K1_CPU_PC')
        a.e('s_add_u32 s4, s4, K1_LOADER-K1_CPU_PC'); a.e('s_addc_u32 s5, s5, 0')
        a.e(f's_mov_b32 s6, {n*128}'); a.e('s_mov_b32 s7, 0x00020000')
        a.e('v_lshlrev_b32 v2, 7, v0')
        a.e('buffer_load_dword v3, v2, s[4:7], 0 offen')
        for m in (16,32,64):
          if f'cpw{m}' in FL:
            a.e('s_sub_u32 s4, s4, K1_LOADER-k1_kernel+8192'); a.e('s_subb_u32 s5, s5, 0')
            a.e(f's_mov_b32 s6, {8192+m*128}')
            a.e('v_cmp_le_u32 vcc, 64, v0'); a.e('v_cndmask_b32 v2, -1, v2, vcc')
            a.e('buffer_load_dword v1, v2, s[4:7], 0 offen')
    for n in (8,32,64,256):
      if f'cpt{n}' in FL:
        a.e(f's_cmp_lt_u32 s2, {n}'); a.e('s_cbranch_scc0 K1_CPT_END')
        a.e('s_getpc_b64 s[4:5]')
        a.label('K1_CPT_PC')
        a.e('s_sub_u32 s4, s4, K1_CPT_PC-k1_kernel'); a.e('s_subb_u32 s5, s5, 0')
        a.e('s_mov_b32 s6, FFN_TAIL+4-k1_kernel'); a.e('s_mov_b32 s7, 0x00020000')
        a.e('v_lshlrev_b32 v2, 7, v0')
        a.e('buffer_load_dword v3, v2, s[4:7], 0 offen')
        a.label('K1_CPT_END')
    a.e('s_load_dwordx2 s[34:35], s[0:1], 72')
    a.e('s_load_dwordx2 s[36:37], s[0:1], 0')
    a.e('s_load_dwordx2 s[38:39], s[0:1], 8')
    a.e('s_load_dwordx4 s[40:43], s[0:1], 32')
    if 'wimg' in FL:
        a.e('s_load_dwordx2 s[50:51], s[0:1], 16')
        a.e('s_load_dwordx2 s[52:53], s[0:1], 48')
    stamp(a,0)
    a.e(f'v_lshrrev_b32 {v(vT)}, 6, v0')
    a.e('v_and_b32 v0, 63, v0')
    a.e(f'v_readfirstlane_b32 s16, {v(vT)}')
    a.e('s_and_b32 s27, s2, 7')
    a.e('s_lshr_b32 s29, s2, 3')
    a.e('s_and_b32 s17, s27, 1')
    a.e('s_lshl_b32 s17, s17, 3')
    a.e('s_and_b32 s30, s29, 7')
    a.e('s_add_u32 s17, s17, s30')
    a.e('s_lshr_b32 s18, s27, 1')
    a.e('s_lshl_b32 s18, s18, 2')
    a.e('s_lshr_b32 s30, s29, 3')
    a.e('s_add_u32 s18, s18, s30')
    if 'mix' in FL:
        perm=[0,1,6,7,2,3,8,9,4,10,11,12,5,13,14,15]
        if 'mix2' in FL: perm=[0,1,4,6,2,3,5,7,8,9,10,11,12,13,14,15]
        if 'mix3' in FL: perm=[0,2,4,6,1,3,5,7,8,9,10,11,12,13,14,15]
        if 'mix4' in FL: perm=[0,4,6,7,1,5,8,9,2,10,11,12,3,13,14,15]
        lo=sum(perm[i]<<(4*i) for i in range(8)); hi=sum(perm[8+i]<<(4*i) for i in range(8))
        a.e(f's_mov_b32 s30, {lo}'); a.e(f's_mov_b32 s31, {hi}')
        a.e('s_lshl_b32 s18, s18, 2')
        a.e('s_lshr_b64 s[30:31], s[30:31], s18')
        a.e('s_and_b32 s18, s30, 15')
    a.e('s_cmp_ge_u32 s16, 4')
    a.e('s_cbranch_scc1 K1_LOADER')
    if 'sent' in FL:
        a.e('s_mul_i32 s27, s2, 10240')
        a.e(f's_add_u32 s27, s27, {OIMG}')
        a.e('v_lshlrev_b32 v59, 4, v0')
        for k in range(4): a.e(f'v_mov_b32 v{60+k}, -1')
        a.e('s_lshl_b32 s28, s16, 10')
        a.e('s_waitcnt lgkmcnt(0)')
        a.e('s_add_u32 s4, s34, s27'); a.e('s_addc_u32 s5, s35, 0'); a.e('s_mov_b32 s6, 10240'); a.e('s_mov_b32 s7, 0x00020000')
        a.e('buffer_store_dwordx4 v[60:63], v59, s[4:7], s28 offen')
        a.e('s_add_u32 s28, s28, 4096')
        a.e('buffer_store_dwordx4 v[60:63], v59, s[4:7], s28 offen')
        a.e('s_add_u32 s28, s28, 4096')
        a.e('buffer_store_dwordx4 v[60:63], v59, s[4:7], s28 offen')
        a.e('s_nop 3')
    if 'cpa' in FL:
        a.e('s_cmp_lt_u32 s2, 224' if 'cpl' in FL else 's_cmp_lt_u32 s2, 32'); a.e('s_cbranch_scc1 K1_CPA_END' if 'cpl' in FL else 's_cbranch_scc0 K1_CPA_END')
        a.e('s_getpc_b64 s[4:5]')
        a.label('K1_CPA_PC')
        a.e('s_sub_u32 s4, s4, K1_CPA_PC-k1_kernel'); a.e('s_subb_u32 s5, s5, 0')
        a.e('s_mov_b32 s6, FFN_TAIL+4-k1_kernel'); a.e('s_mov_b32 s7, 0x00020000')
        a.e('v_lshlrev_b32 v52, 7, v0'); a.e('s_lshl_b32 s28, s16, 13')
        a.e('buffer_load_dword v53, v52, s[4:7], s28 offen')
        a.label('K1_CPA_END')
    for nm,wv in (('cpe',3),('cpe0',0)):
      if nm in FL:
        a.e(f's_cmp_eq_u32 s16, {wv}'); a.e('s_cbranch_scc0 K1_CPE_END')
        a.e('s_getpc_b64 s[4:5]')
        a.label('K1_CPE_PC')
        a.e('s_sub_u32 s4, s4, K1_CPE_PC-k1_kernel'); a.e('s_subb_u32 s5, s5, 0')
        a.e('s_mov_b32 s6, FFN_TAIL+4-k1_kernel'); a.e('s_mov_b32 s7, 0x00020000')
        a.e('v_lshlrev_b32 v52, 7, v0'); a.e('s_lshr_b32 s28, s2, 3'); a.e('s_mul_i32 s28, s28, 1152')
        a.e('s_mov_b64 exec, 0x1ff')
        a.e('buffer_load_dword v53, v52, s[4:7], s28 offen')
        a.e('s_mov_b64 exec, -1')
        a.label('K1_CPE_END')
    if 'pf' in FL:
        pol=' '.join(x for x in ('sc0','sc1','nt') if 'pf_'+x in FL)
        a.e('s_lshr_b32 s27, s2, 6')
        a.e('s_lshr_b32 s29, s2, 3'); a.e('s_and_b32 s29, s29, 7')
        a.e('s_lshl_b32 s30, s17, 7'); a.e('s_lshl_b32 s27, s27, 5'); a.e('s_add_u32 s30, s30, s27')
        a.e('v_and_b32 v52, 31, v0')
        a.e('v_add_u32 v52, s30, v52')
        a.e('v_mul_u32_u24 v52, 1280, v52')
        a.e('v_lshrrev_b32 v53, 5, v0')
        a.e('v_lshlrev_b32 v53, 7, v53')
        a.e('v_add_u32 v52, v52, v53')
        a.e('s_lshl_b32 s30, s16, 8')
        a.e('s_cmp_ge_u32 s18, 6')
        a.e('s_cbranch_scc1 K1_PF_FFN')
        a.e('s_lshl_b32 s27, s16, 6')
        for q in range(2):
            a.e(f'v_add_u32 v53, s27, v0')
            if q==1: a.e('v_add_u32 v53, 256, v53')
            a.e(f'v_mul_u32_u24 v54, 13108, v53')
            a.e('v_lshrrev_b32 v54, 16, v54')
            a.e('v_mul_u32_u24 v55, 5, v54')
            a.e('v_sub_u32 v55, v53, v55')
            a.e('v_lshlrev_b32 v54, 3, v54')
            a.e('v_add_u32 v54, s29, v54')
            a.e('v_mul_u32_u24 v54, 3840, v54')
            a.e('v_lshlrev_b32 v55, 7, v55')
            a.e(f'v_add_u32 v{55+q+1}, v54, v55')
        a.e('s_mul_i32 s31, s18, 640')
        a.e('s_waitcnt lgkmcnt(0)')
        a.e('s_mov_b32 s4, s38'); a.e('s_mov_b32 s5, s39'); a.e(f's_mov_b32 s6, {640*3840}')
        a.e('s_branch K1_PF_GO')
        a.label('K1_PF_FFN')
        a.e('s_and_b32 s27, s16, 1')
        a.e('s_lshl_b32 s27, s27, 6')
        for q in range(2):
            a.e(f'v_add_u32 v53, s27, v0')
            if q==1: a.e('v_add_u32 v53, 128, v53')
            a.e(f'v_mul_u32_u24 v54, 21846, v53')
            a.e('v_lshrrev_b32 v54, 16, v54')
            a.e('v_mul_u32_u24 v55, 3, v54')
            a.e('v_sub_u32 v55, v53, v55')
            a.e('v_lshlrev_b32 v54, 3, v54')
            a.e('v_add_u32 v54, s29, v54')
            a.e('v_mul_u32_u24 v54, 3072, v54')
            a.e('v_lshlrev_b32 v55, 7, v55')
            a.e(f'v_add_u32 v{55+q+1}, v54, v55')
        a.e('s_sub_u32 s31, s18, 6')
        a.e('s_mul_i32 s31, s31, 320')
        a.e('s_min_u32 s31, s31, 2752')
        a.e('s_andn2_b32 s31, s31, 127')
        a.e('s_waitcnt lgkmcnt(0)')
        a.e('s_cmp_lt_u32 s16, 2')
        a.e('s_cselect_b32 s4, s40, s42')
        a.e('s_cselect_b32 s5, s41, s43')
        a.e(f's_mov_b32 s6, {640*3072}')
        a.label('K1_PF_GO')
        a.e('s_mov_b32 s7, 0x00020000')
        a.e('s_mov_b32 s8, s36'); a.e('s_mov_b32 s9, s37'); a.e('s_mov_b32 s10, 2621440'); a.e('s_mov_b32 s11, 0x00020000')
        a.e(f'buffer_load_dword v95, v56, s[4:7], s31 offen {pol}')
        a.e(f'buffer_load_dword v95, v52, s[8:11], s30 offen {pol}')
        a.e(f'buffer_load_dword v95, v57, s[4:7], s31 offen {pol}')
        a.e('s_cmp_eq_u32 s16, 0')
        a.e('s_cbranch_scc0 K1_PF_END')
        a.e(f'buffer_load_dword v95, v52, s[8:11], 0 offen offset:1024 {pol}')
        a.label('K1_PF_END')
    if 'cp3' in FL: a.e('s_setprio 3')
    a.e('s_lshr_b32 s19, s16, 1')
    a.e('s_and_b32 s20, s16, 1')
    a.e('s_xor_b32 s21, s19, s20')
    a.e(f's_mov_b32 s44, {WP}'); a.e(f's_mov_b32 s45, {(-4*WP)&0xffffffff}'); a.e(f's_mov_b32 s46, {XS}'); a.e(f's_mov_b32 s47, {(-2*XS)&0xffffffff}')
    a.e(f'v_and_b32 {v(vT)}, 31, v0')
    a.e(f'v_lshrrev_b32 {v(vT2)}, 5, v0')
    a.e(f'v_bfe_u32 {v(vT3)}, v0, 1, 3')
    a.e(f'v_lshlrev_b32 {v(vT4)}, 7, {v(vT)}')
    a.e('s_lshl_b32 s27, s19, 13')
    a.e(f'v_add_u32 {v(vT4)}, s27, {v(vT4)}')
    for kk in range(4):
        a.e(f's_xor_b32 s27, s21, {kk%2}')
        a.e(f's_add_u32 s27, s27, {2*(kk//2)}')
        a.e('s_lshl_b32 s27, s27, 1')
        a.e(f'v_add_u32 {v(XA+kk)}, s27, {v(vT2)}')
        a.e(f'v_xor_b32 {v(XA+kk)}, {v(XA+kk)}, {v(vT3)}')
        a.e(f'v_lshlrev_b32 {v(XA+kk)}, 4, {v(XA+kk)}')
        a.e(f'v_add_u32 {v(XA+kk)}, {v(XA+kk)}, {v(vT4)}')
    a.e('s_lshl_b32 s27, s19, 9')
    a.e(f's_add_u32 s27, s27, {ST2}')
    a.e(f'v_lshlrev_b32 v63, 3, {v(vT)}')
    a.e('v_add_u32 v63, s27, v63')
    for k in range(20): a.e(f'v_mov_b32 {v(CSA+k)}, 0')
    a.e(f'v_and_b32 {v(vT2)}, 15, v0')
    a.e(f'v_bfe_u32 {v(vT3)}, v0, 4, 1')
    a.e(f'v_cmp_eq_u32 vcc, {v(vT2)}, {v(vT3)}')
    a.e(f'v_mov_b32 {v(vT2)}, 0')
    a.e(f'v_mov_b32 {v(vT3)}, 0x3f803f80')
    for k in range(4): a.e(f'v_cndmask_b32 {v(SEL+k)}, {v(vT2)}, {v(vT3)}, vcc')
    a.e('s_mov_b32 s25, 0')
    vH=84; vCh=85; vR=86; vC4=87; vRow=88
    a.e(f'v_lshrrev_b32 {v(vH)}, 5, v0')
    a.e(f'v_bfe_u32 {v(vCh)}, v0, 4, 1')
    a.e(f'v_bfe_u32 {v(vR)}, v0, 2, 2')
    a.e(f'v_and_b32 {v(vC4)}, 3, v0')
    a.e(f'v_lshlrev_b32 {v(vRow)}, 3, {v(vH)}')
    a.e(f'v_add_u32 {v(vRow)}, {v(vRow)}, {v(vR)}')
    a.e('s_cmp_ge_u32 s18, 6')
    a.e('s_cbranch_scc1 K1_FFN_SETUP')
    a.e(f'v_mul_u32_u24 {v(vT2)}, 640, {v(vRow)}')
    a.e(f'v_lshlrev_b32 {v(vT3)}, 5, {v(vCh)}')
    a.e(f'v_add_u32 {v(vT2)}, {v(vT2)}, {v(vT3)}')
    a.e(f'v_lshlrev_b32 {v(vT3)}, 3, {v(vC4)}')
    a.e(f'v_add_u32 {v(vT2)}, {v(vT2)}, {v(vT3)}')
    a.e('s_mul_i32 s27, s20, 320')
    a.e(f's_add_u32 s27, s27, {WBASE}')
    a.e(f'v_add_u32 {v(vT2)}, s27, {v(vT2)}')
    a.e(f'v_lshrrev_b32 {v(vT3)}, 1, {v(vR)}')
    a.e(f'v_lshlrev_b32 {v(vT3)}, 6, {v(vT3)}')
    a.e(f'v_sub_u32 {v(vT4)}, 0, {v(vT3)}')
    a.e('s_cmp_eq_u32 s20, 0')
    a.e('s_cselect_b64 vcc, -1, 0')
    a.e(f'v_cndmask_b32 v89, {v(vT4)}, {v(vT3)}, vcc')
    a.e(f'v_cndmask_b32 v90, {v(vT3)}, {v(vT4)}, vcc')
    for jl in range(2):
        a.e(f's_xor_b32 s27, s21, {jl}')
        a.e(f's_mul_i32 s27, s27, {16*640}')
        a.e(f'v_add_u32 {v(vT3)}, s27, {v(vT2)}')
        a.e(f'v_add_u32 {v(WA+2*jl)}, {v(vT3)}, v89')
        a.e(f'v_add_u32 {v(WA+2*jl+1)}, {v(vT3)}, v90')
    a.e('s_mul_i32 s27, s20, 640')
    a.e('s_mul_i32 s29, s19, 1280')
    a.e('s_add_u32 s27, s27, s29')
    a.e(f's_add_u32 s27, s27, {CSP}')
    a.e(f'v_and_b32 v62, 15, v0')
    a.e(f'v_lshlrev_b32 v62, 2, v62')
    a.e('v_add_u32 v62, s27, v62')
    for k in range(160): a.e(f'v_mov_b32 {v(ACC+k)}, 0')
    a.e('s_waitcnt lgkmcnt(0)')
    a.e('s_cmp_ge_u32 s18, 4')
    a.e('s_cbranch_scc1 K1_V_START')
    main_loop(a,'qk')
    a.e(f'v_lshrrev_b32 {v(vT)}, 5, v0')
    a.e(f'v_lshlrev_b32 {v(vT)}, 4, {v(vT)}')
    a.e('s_mul_i32 s27, s20, 640')
    a.e(f's_add_u32 s27, s27, {CS}')
    a.e(f'v_add_u32 {v(vT)}, s27, {v(vT)}')
    CQ=[4,20]
    for b in range(4): a.e(f'ds_read_b128 {v(CQ[0]+4*b,4)}, {v(vT)} offset:{b*32}')
    a.e('s_cmp_lt_u32 s18, 2')
    a.e(f's_cselect_b32 s27, {QIMG}, {KIMG}')
    a.e('s_add_u32 s4, s34, s27')
    a.e('s_addc_u32 s5, s35, 0')
    a.e('s_mov_b32 s6, 2621440')
    a.e('s_mov_b32 s7, 0x00020000')
    a.e('s_cmp_lt_u32 s18, 2')
    a.e('s_cselect_b32 s29, 0x3ea52b5c, 0x3f800000')
    a.e('s_and_b32 s27, s18, 1')
    a.e('s_lshl_b32 s27, s27, 4')
    a.e('s_lshl_b32 s30, s20, 3')
    a.e('s_add_u32 s27, s27, s30')
    a.e('s_mul_i32 s30, s27, 81920')
    a.e('s_lshl_b32 s31, s17, 2')
    a.e('s_lshl_b32 s27, s19, 1')
    a.e('s_add_u32 s31, s31, s27')
    a.e('s_mul_i32 s31, s31, 1280')
    a.e('s_add_u32 s30, s30, s31')
    vL16=71; vR8=72
    a.e(f'v_lshlrev_b32 {v(vL16)}, 4, v0')
    a.e(f'v_and_b32 {v(vR8)}, 31, v0')
    a.e(f'v_lshlrev_b32 {v(vR8)}, 3, {v(vR8)}')
    a.e(f'v_lshrrev_b32 {v(vT2)}, 5, v0')
    a.e(f'v_mul_u32_u24 {v(vT2)}, 81920, {v(vT2)}')
    a.e(f'v_add_u32 {v(vR8)}, {v(vR8)}, {v(vT2)}')
    a.e(f'v_add_u32 {v(vR8)}, 1024, {v(vR8)}')
    a.e('s_waitcnt lgkmcnt(4)')
    for i in range(2):
        a.e(f'v_mul_f32 {v(65+2*i)}, s29, {v(65+2*i)}')
    TMP=76
    for t in range(5):
        if t<4:
            for b in range(4): a.e(f'ds_read_b128 {v(CQ[(t+1)%2]+4*b,4)}, {v(vT)} offset:{(t+1)*128+b*32}')
            a.e('s_waitcnt lgkmcnt(4)')
        else:
            a.e('s_waitcnt lgkmcnt(0)')
        for b in range(4):
            j=4*t+b; m=j//5; jj=j%5
            dst={0:0,1:2,2:4,3:8,4:10}[jj]+20*m
            for i in range(2):
                A=acc(i,0)+4*j; P=64+2*i; C=CQ[t%2]+4*b; T_=TMP+4*i
                a.e(pkfma(T_,C,P,A,None,0,None))
                a.e(pkfma(T_+2,C+2,P,A+2,None,0,None))
                a.e(pkmul(T_,T_,P,None,1))
                a.e(pkmul(T_+2,T_+2,P,None,1))
            for i in range(2):
                T_=TMP+4*i; D=acc(i,0)+dst
                a.e(f'v_cvt_pk_bf16_f32 {v(D)}, {v(T_)}, {v(T_+1)}')
                a.e(f'v_cvt_pk_bf16_f32 {v(D+1)}, {v(T_+2)}, {v(T_+3)}')
            if jj==4:
                for i in range(2):
                    B=acc(i,0)+20*m
                    a.e(f's_add_u32 s27, s30, {2*m*81920+i*1280}')
                    a.e(f's_add_u32 s31, s27, 81920')
                    a.e(f'buffer_store_dwordx4 {v(B,4)}, {v(vL16)}, s[4:7], s27 offen')
                    a.e(f'buffer_store_dwordx4 {v(B+8,4)}, {v(vL16)}, s[4:7], s31 offen')
                    a.e(f'buffer_store_dwordx2 {v(B+4,2)}, {v(vR8)}, s[4:7], s27 offen')
    a.e('s_branch K1_DONE')
    a.label('K1_V_START')
    main_loop(a,'v')
    CB=76
    a.e('s_mul_i32 s27, s20, 640')
    a.e(f's_add_u32 s27, s27, {CS}')
    a.e(f'v_and_b32 v62, 31, v0')
    a.e(f'v_lshlrev_b32 v62, 2, v62')
    a.e('v_add_u32 v62, s27, v62')
    for t in range(5): a.e(f'ds_read_b32 {v(CB+2*t)}, v62 offset:{t*128}')
    a.e(f'v_lshrrev_b32 {v(vT2)}, 5, v0')
    a.e(f'v_lshlrev_b32 {v(vT2)}, 4, {v(vT2)}')
    a.e('s_lshl_b32 s27, s19, 8')
    a.e(f's_add_u32 s27, s27, {NM}')
    a.e(f'v_add_u32 {v(vT2)}, s27, {v(vT2)}')
    a.e(f's_add_u32 s4, s34, {VIMG}')
    a.e('s_addc_u32 s5, s35, 0')
    a.e('s_mov_b32 s6, 2621440')
    a.e('s_mov_b32 s7, 0x00020000')
    a.e('s_sub_u32 s27, s18, 4')
    a.e(f's_mul_i32 s30, s27, {16*81920}')
    a.e('s_lshl_b32 s31, s17, 2')
    a.e('s_lshl_b32 s27, s19, 1')
    a.e('s_add_u32 s31, s31, s27')
    a.e('s_mul_i32 s31, s31, 1280')
    a.e('s_add_u32 s30, s30, s31')
    VO=86
    a.e(f'v_and_b32 {v(vT3)}, 31, v0')
    a.e('s_mul_i32 s27, s20, 160')
    a.e(f'v_add_u32 {v(vT3)}, s27, {v(vT3)}')
    a.e(f'v_lshrrev_b32 {v(vT4)}, 5, v0')
    a.e(f'v_mul_u32_u24 {v(vT4)}, 320, {v(vT4)}')
    for t in range(5):
        a.e(f'v_add_u32 v91, {32*t}, {v(vT3)}')
        a.e(f'v_mul_u32_u24 v92, 3277, v91')
        a.e(f'v_lshrrev_b32 v92, 16, v92')
        a.e(f'v_mul_u32_u24 v93, 20, v92')
        a.e(f'v_sub_u32 v91, v91, v93')
        a.e(f'v_lshlrev_b32 v91, 4, v91')
        a.e(f'v_add_u32 v91, v91, {v(vT4)}')
        a.e(f's_mov_b32 s27, 81920')
        a.e(f'v_mul_lo_u32 v92, v92, s27')
        a.e(f'v_add_u32 {v(VO+t)}, v91, v92')
    qN=4; qR=20; TMP=36
    for i in range(2):
        a.e('s_waitcnt lgkmcnt(0)')
        for b in range(4):
            a.e(f'ds_read_b128 {v(qN+4*b,4)}, {v(vT2)} offset:{i*128+b*32}')
            a.e(f'ds_read_b128 {v(qR+4*b,4)}, {v(vT2)} offset:{512+i*128+b*32}')
        a.e(f's_add_u32 s27, s30, {i*1280}')
        a.e('s_waitcnt lgkmcnt(0)')
        for t in range(5):
            A=acc(i,t)
            for j in range(2):
                for q in range(4):
                    r_=8*j+2*q
                    a.e(pkfma(TMP+2*q,qN+r_,CB+2*t,A+r_,None,0,None))
                for q in range(4):
                    r_=8*j+2*q
                    a.e(pkmul(TMP+2*q,TMP+2*q,qR+r_))
                for q in range(4):
                    a.e(f'v_cvt_pk_bf16_f32 {v(A+8*j+q)}, {v(TMP+2*q)}, {v(TMP+2*q+1)}')
                a.e(f'buffer_store_dwordx4 {v(A+8*j,4)}, {v(VO+t)}, s[4:7], s27 offen offset:{j*640}')
    a.e('s_branch K1_DONE')
    a.label('K1_FFN_SETUP')
    a.e(f'v_mul_u32_u24 {v(vT2)}, 320, {v(vRow)}')
    a.e(f'v_mul_u32_u24 {v(vT3)}, 10272, {v(vCh)}')
    a.e(f'v_add_u32 {v(vT2)}, {v(vT2)}, {v(vT3)}')
    a.e(f'v_lshlrev_b32 {v(vT3)}, 3, {v(vC4)}')
    a.e(f'v_add_u32 {v(vT2)}, {v(vT2)}, {v(vT3)}')
    a.e('s_mul_i32 s27, s20, 160')
    a.e(f's_add_u32 s27, s27, {WBASE}')
    a.e(f'v_add_u32 {v(vT2)}, s27, {v(vT2)}')
    for jl in range(2):
        a.e(f's_xor_b32 s27, s21, {jl}')
        a.e(f's_mul_i32 s27, s27, {16*320}')
        a.e(f'v_add_u32 {v(WA+2*jl)}, s27, {v(vT2)}')
    a.e(f'v_and_b32 v62, 15, v0')
    a.e('v_lshlrev_b32 v62, 2, v62')
    a.e('s_mul_i32 s27, s20, 320')
    a.e('s_mul_i32 s29, s19, 1280')
    a.e('s_add_u32 s27, s27, s29')
    a.e(f's_add_u32 s27, s27, {CSP}')
    a.e('v_add_u32 v62, s27, v62')
    for k in range(160): a.e(f'v_mov_b32 {v(ACC+k)}, 0')
    a.e('s_waitcnt lgkmcnt(0)')
    main_loop(a,'ffn')
    a.e(f'v_lshrrev_b32 {v(vT)}, 5, v0')
    a.e(f'v_lshlrev_b32 {v(vT)}, 4, {v(vT)}')
    a.e('s_mul_i32 s27, s20, 320')
    a.e(f's_add_u32 s27, s27, {CS}')
    a.e(f'v_add_u32 {v(vT)}, s27, {v(vT)}')
    CQ=[4,20]
    def csread(t):
        C=CQ[t%2]
        for b in range(2):
            a.e(f'ds_read_b128 {v(C+4*b,4)}, {v(vT)} offset:{t*64+b*32}')
            a.e(f'ds_read_b128 {v(C+8+4*b,4)}, {v(vT)} offset:{640+t*64+b*32}')
    csread(0)
    a.e(f's_add_u32 s4, s34, {HIMG}')
    a.e('s_addc_u32 s5, s35, 0')
    a.e('s_cmp_eq_u32 s18, 15'); a.e('s_cselect_b32 s27, 1, 0')
    a.e('s_cmp_eq_u32 s20, 0'); a.e('s_cselect_b32 s27, s27, 0')
    a.e('s_cmp_eq_u32 s27, 1'); a.e('s_cselect_b32 s6, 0, 6291456')
    a.e('s_mov_b32 s7, 0x00020000')
    a.e('s_sub_u32 s27, s18, 6')
    a.e('s_mul_i32 s27, s27, 10')
    a.e('s_min_u32 s27, s27, 86')
    a.e('s_mul_i32 s30, s20, 5')
    a.e('s_add_u32 s27, s27, s30')
    a.e('s_lshl_b32 s30, s27, 10')
    a.e('s_lshl_b32 s31, s17, 2')
    a.e('s_lshl_b32 s27, s19, 1')
    a.e('s_add_u32 s31, s31, s27')
    a.e('s_mul_i32 s31, s31, 98304')
    a.e('s_add_u32 s30, s30, s31')
    vL16=71
    a.e(f'v_lshlrev_b32 {v(vL16)}, 4, v0')
    a.e('s_waitcnt lgkmcnt(4)')
    for i in range(2):
        P=64+2*i
        a.e(f'v_mul_f32 {v(72+2*i)}, {v(P+1)}, {v(P+1)}')
        a.e(f'v_rcp_f32 {v(72+2*i)}, {v(72+2*i)}')
        a.e(f'v_mul_f32 {v(P+1)}, 0xbfb8aa3b, {v(P+1)}')
    E=76
    for t in range(5):
        if t<4:
            csread(t+1); a.e('s_waitcnt lgkmcnt(4)')
        else: a.e('s_waitcnt lgkmcnt(0)')
        C=CQ[t%2]
        for i in range(2):
            A=acc(i,t); P=64+2*i
            for q in range(4): a.e(pkfma(A+2*q,C+2*q,P,A+2*q,None,0,None))
        for i in range(2):
            A=acc(i,t); P=64+2*i
            for q in range(4): a.e(pkmul(E+8*i+2*q,A+2*q,P,None,1))
        for i in range(2):
            A=acc(i,t); P=64+2*i
            for q in range(4):
                a.e(f'v_exp_f32 {v(E+8*i+2*q)}, {v(E+8*i+2*q)}')
                a.e(f'v_exp_f32 {v(E+8*i+2*q+1)}, {v(E+8*i+2*q+1)}')
                a.e(pkfma(A+8+2*q,C+8+2*q,P,A+8+2*q,None,0,None))
        for i in range(2):
            A=acc(i,t); I=72+2*i
            for q in range(4):
                a.e(pkfma(E+8*i+2*q,E+8*i+2*q,I,I,None,0,0))
                a.e(pkmul(A+2*q,A+2*q,A+8+2*q))
        for i in range(2):
            for q in range(8): a.e(f'v_rcp_f32 {v(E+8*i+q)}, {v(E+8*i+q)}')
        for i in range(2):
            A=acc(i,t)
            for q in range(4): a.e(pkmul(A+2*q,A+2*q,E+8*i+2*q))
        if t==4: a.e('s_mov_b32 s6, 6291456')
        for i in range(2):
            A=acc(i,t)
            for q in range(4): a.e(f'v_cvt_pk_bf16_f32 {v(A+8+q)}, {v(A+2*q)}, {v(A+2*q+1)}')
            a.e(f's_add_u32 s27, s30, {i*98304+t*1024}')
            a.e(f'buffer_store_dwordx4 {v(A+8,4)}, {v(vL16)}, s[4:7], s27 offen')
    a.label('K1_DONE')
    stamp(a,3)
    a.e('s_waitcnt vmcnt(0)')
    stamp(a,4)
    stamp_store(a,10,34,'s16',8,3*1024*1024)
    a.e('s_endpgm')
    a.label('K1_LOADER')
    a.e('s_sub_u32 s19, s16, 4')
    if 'lp0' not in FL: a.e('s_setprio 3')
    if 'lst' in FL: stamp(a,5)
    vX=4; vW=8
    a.e(f'v_lshrrev_b32 {v(vT)}, 3, v0')
    a.e(f'v_and_b32 {v(vT2)}, 7, v0')
    a.e(f'v_lshrrev_b32 {v(vT3)}, 4, v0')
    a.e('s_lshl_b32 s27, s17, 7')
    a.e('s_lshl_b32 s29, s19, 5')
    a.e('s_add_u32 s27, s27, s29')
    a.e(f'v_xor_b32 {v(vT4)}, {v(vT3)}, {v(vT2)}')
    a.e(f'v_lshlrev_b32 {v(vT4)}, 4, {v(vT4)}')
    a.e(f'v_add_u32 {v(vX)}, s27, {v(vT)}')
    a.e(f'v_mul_u32_u24 {v(vX)}, 1280, {v(vX)}')
    a.e(f'v_xor_b32 {v(vT3)}, 64, {v(vT4)}')
    a.e(f'v_add_u32 {v(vX+1)}, {v(vX)}, {v(vT3)}')
    a.e(f'v_add_u32 {v(vX)}, {v(vX)}, {v(vT4)}')
    a.e(f'v_add_u32 {v(vX+1)}, 10240, {v(vX+1)}')
    a.e(f'v_add_u32 {v(vX+2)}, 20480, {v(vX)}')
    a.e(f'v_add_u32 {v(vX+3)}, 20480, {v(vX+1)}')
    if 'lst' in FL: stamp(a,6)
    a.e('s_waitcnt lgkmcnt(0)')
    a.e('s_mov_b32 s8, s36'); a.e('s_mov_b32 s9, s37'); a.e('s_mov_b32 s10, 2621440'); a.e('s_mov_b32 s11, 0x00020000')
    a.e('s_lshl_b32 s21, s19, 12')
    a.e('s_mov_b32 s25, 0'); a.e('s_mov_b32 s26, s21')
    a.e(f's_add_u32 s30, s21, {3*XS}')
    def issueX(pro=False):
        for i in range(4):
            if 'nodma' in FL and not pro: break
            a.e(f's_add_u32 m0, s26, {i*1024}')
            a.e('s_nop 0')
            a.e(f'buffer_load_dwordx4 {v(vX+i)}, s[8:11], s25 offen lds')
        a.e('s_add_u32 s25, s25, 128')
        a.e(f's_add_u32 s26, s26, {XS}')
        a.e('s_cmp_eq_u32 s26, s30')
        a.e('s_cselect_b32 s26, s21, s26')
    issueX(True)
    if 'lst' in FL: stamp(a,4)
    a.e('s_cmp_ge_u32 s18, 6')
    a.e('s_cbranch_scc1 K1_LD_FFN')
    a.e('s_mul_i32 s27, s19, 320')
    for p in range(5):
        a.e(f's_add_u32 s29, s27, {64*p}')
        a.e(f'v_add_u32 {v(vT)}, s29, v0')
        a.e(f'v_mul_u32_u24 {v(vT2)}, 1639, {v(vT)}')
        a.e(f'v_lshrrev_b32 {v(vT2)}, 16, {v(vT2)}')
        a.e(f'v_mul_u32_u24 {v(vT3)}, 40, {v(vT2)}')
        a.e(f'v_sub_u32 {v(vT)}, {v(vT)}, {v(vT3)}')
        a.e(f'v_bfe_u32 {v(vT3)}, {v(vT2)}, 1, 1')
        a.e(f'v_lshlrev_b32 {v(vT3)}, 2, {v(vT3)}')
        a.e(f'v_xor_b32 {v(vT)}, {v(vT)}, {v(vT3)}')
        a.e(f'v_lshlrev_b32 {v(vT)}, 4, {v(vT)}')
        a.e(f'v_mul_u32_u24 {v(vT2)}, 3840, {v(vT2)}')
        a.e(f'v_add_u32 {v(vW+p)}, {v(vT)}, {v(vT2)}')
    a.e('s_mul_i32 s29, s18, 640')
    for p in range(5): a.e(f'v_add_u32 {v(vW+p)}, s29, {v(vW+p)}')
    a.e('s_waitcnt lgkmcnt(0)')
    a.e('s_mov_b32 s4, s38'); a.e('s_mov_b32 s5, s39'); a.e(f's_mov_b32 s6, {640*3840}')
    a.e(f's_mov_b32 s22, {32*3840}')
    a.e('s_mul_i32 s20, s19, 5120')
    a.e('s_branch K1_LD_GO')
    a.label('K1_LD_FFN')
    a.e('s_and_b32 s27, s19, 1')
    a.e('s_lshl_b32 s27, s27, 4')
    a.e('s_sub_u32 s29, s18, 6')
    a.e('s_mul_i32 s29, s29, 320')
    a.e('s_min_u32 s29, s29, 2752')
    for p in range(5):
        a.e(f'v_add_u32 {v(vT)}, {64*p}, v0')
        a.e(f'v_mul_u32_u24 {v(vT2)}, 3277, {v(vT)}')
        a.e(f'v_lshrrev_b32 {v(vT2)}, 16, {v(vT2)}')
        a.e(f'v_mul_u32_u24 {v(vT3)}, 20, {v(vT2)}')
        a.e(f'v_sub_u32 {v(vT)}, {v(vT)}, {v(vT3)}')
        a.e(f'v_lshlrev_b32 {v(vT)}, 4, {v(vT)}')
        a.e(f'v_add_u32 {v(vT2)}, s27, {v(vT2)}')
        a.e(f'v_mul_u32_u24 {v(vT2)}, 3072, {v(vT2)}')
        a.e(f'v_add_u32 {v(vW+p)}, {v(vT)}, {v(vT2)}')
        a.e(f'v_add_u32 {v(vW+p)}, s29, {v(vW+p)}')
    a.e('s_waitcnt lgkmcnt(0)')
    a.e('s_cmp_lt_u32 s19, 2')
    a.e('s_cselect_b32 s4, s40, s42')
    a.e('s_cselect_b32 s5, s41, s43')
    a.e(f's_mov_b32 s6, {640*3072}')
    a.e(f's_mov_b32 s22, {32*3072}')
    a.e('s_mul_i32 s20, s19, 5120')
    a.e('s_lshr_b32 s27, s19, 1')
    a.e('s_lshl_b32 s27, s27, 5')
    a.e('s_add_u32 s20, s20, s27')
    a.label('K1_LD_GO')
    if 'lst' in FL: stamp(a,7)
    a.e('s_mov_b32 s7, 0x00020000')
    a.e(f's_add_u32 s20, s20, {WBASE}')
    a.e('s_mov_b32 s23, 0'); a.e('s_mov_b32 s24, s20')
    a.e(f's_add_u32 s29, s20, {5*WP}')
    def issueW(pro=False):
        for p in range(5):
            if 'nodma' in FL and not pro: break
            a.e(f's_add_u32 m0, s24, {p*1024}')
            a.e('s_nop 0')
            a.e(f'buffer_load_dwordx4 {v(vW+p)}, s[4:7], s23 offen lds')
        a.e('s_add_u32 s23, s23, s22')
        a.e(f's_add_u32 s24, s24, {WP}')
        a.e('s_cmp_eq_u32 s24, s29')
        a.e('s_cselect_b32 s24, s20, s24')
    issueW(True); issueW(True); issueX(True)
    stamp(a,1)
    if 'lp0' in FL or 'lp30' in FL: a.e('s_setprio 0')
    vU=50
    if 'wimg' in FL:
        a.e('s_lshl_b32 s27, s2, 1'); a.e('s_add_u32 s27, s27, s19')
        a.e('s_add_u32 s28, s2, 512')
        a.e('s_cmp_eq_u32 s19, 2'); a.e('s_cselect_b32 s27, s28, s27')
        a.e('s_cmp_lt_u32 s27, 544'); a.e('s_cselect_b32 s33, 1, 0')
        a.e('s_cmp_eq_u32 s19, 3'); a.e('s_cselect_b32 s33, 0, s33')
        a.e('s_and_b32 s32, s27, 7')
        a.e('s_lshr_b32 s27, s27, 3')
        a.e('s_mul_i32 s54, s32, 68'); a.e('s_add_u32 s54, s54, s27'); a.e('s_mul_i32 s54, s54, 5120')
        a.e('s_mul_i32 s32, s32, 160')
        a.e('s_lshl_b32 s28, s27, 5'); a.e('s_mov_b32 s55, 16'); a.e('s_mov_b32 s48, 8'); a.e('s_mov_b32 s49, 4')
        a.e('s_mov_b32 s12, s52'); a.e('s_mov_b32 s13, s53'); a.e(f's_mov_b32 s14, {1536*1280}')
        a.e('s_cmp_lt_u32 s27, 48'); a.e('s_cbranch_scc1 K1_WI_SET')
        a.e('s_mov_b32 s12, s50'); a.e('s_mov_b32 s13, s51'); a.e(f's_mov_b32 s14, {640*1280}')
        a.e('s_sub_u32 s27, s27, 48')
        a.e('s_mul_i32 s28, s27, 40'); a.e('s_mov_b32 s55, 20')
        a.e('s_cmp_lt_u32 s27, 16'); a.e('s_cbranch_scc1 K1_WI_SET')
        a.e('s_sub_u32 s27, s27, 16')
        a.e('s_mul_i32 s28, s27, 160'); a.e('s_add_u32 s28, s28, 16')
        a.e('s_mov_b32 s55, 80'); a.e('s_mov_b32 s48, 20'); a.e('s_mov_b32 s49, 40')
        a.label('K1_WI_SET')
        a.e('s_mov_b32 s15, 0x00020000')
        a.e('s_cmp_eq_u32 s33, 0'); a.e('s_cselect_b32 s14, 0, s14')
        for p in range(5):
            a.e(f'v_add_u32 v56, {64*p}, v0')
            a.e('v_mul_u32_u24 v57, 6554, v56')
            a.e('v_lshrrev_b32 v57, 16, v57')
            a.e('v_mul_u32_u24 v58, 10, v57')
            a.e('v_sub_u32 v56, v56, v58')
            a.e('v_lshlrev_b32 v56, 4, v56')
            a.e('v_add_u32 v56, s32, v56')
            a.e('v_lshrrev_b32 v58, 4, v57')
            a.e('v_mul_u32_u24 v58, s55, v58')
            a.e('v_bfe_u32 v59, v57, 3, 1')
            a.e('v_mul_u32_u24 v59, s48, v59')
            a.e('v_add_u32 v58, v58, v59')
            a.e('v_bfe_u32 v59, v57, 2, 1')
            a.e('v_mul_u32_u24 v59, s49, v59')
            a.e('v_add_u32 v58, v58, v59')
            a.e('v_and_b32 v59, 3, v57')
            a.e('v_add_u32 v58, v58, v59')
            a.e('v_add_u32 v58, s28, v58')
            a.e('v_mul_u32_u24 v58, 1280, v58')
            a.e(f'v_add_u32 {v(vU+p)}, v56, v58')
        if 'wearly' in FL:
            a.e('v_lshrrev_b32 v56, 5, v0'); a.e('v_lshlrev_b32 v56, 4, v56')
            a.e('v_bfe_u32 v57, v0, 4, 1'); a.e('v_lshlrev_b32 v57, 2, v57'); a.e('v_add_u32 v56, v56, v57')
            a.e('v_bfe_u32 v57, v0, 2, 2'); a.e('v_add_u32 v56, v56, v57')
            a.e('v_mul_u32_u24 v56, 160, v56'); a.e(f'v_add_u32 v56, {SP}, v56')
            a.e('v_and_b32 v57, 3, v0'); a.e('v_lshlrev_b32 v58, 4, v57'); a.e('v_add_u32 v76, v56, v58')
            a.e('v_lshlrev_b32 v58, 3, v57'); a.e('v_add_u32 v77, v56, v58')
            a.e('v_lshlrev_b32 v78, 4, v0')
            a.e(f's_add_u32 s88, s34, {WIMG}'); a.e('s_addc_u32 s89, s35, 0')
            a.e('s_cmp_eq_u32 s33, 0'); a.e(f's_cselect_b32 s90, 0, {WIMG_BYTES}'); a.e('s_mov_b32 s91, 0x00020000')
    vSA=16
    D=20
    U=36
    sL,sH,qL,qH=40,41,42,43
    a.e(f'v_and_b32 {v(vT)}, 31, v0')
    a.e(f'v_lshrrev_b32 {v(vT2)}, 5, v0')
    a.e(f'v_lshlrev_b32 {v(vT2)}, 2, {v(vT2)}')
    a.e(f'v_bfe_u32 {v(vT3)}, v0, 1, 3')
    a.e(f'v_xor_b32 {v(vT2)}, {v(vT2)}, {v(vT3)}')
    a.e(f'v_lshlrev_b32 {v(vT2)}, 4, {v(vT2)}')
    a.e(f'v_lshlrev_b32 {v(vT3)}, 7, {v(vT)}')
    a.e(f'v_add_u32 {v(vT2)}, {v(vT2)}, {v(vT3)}')
    a.e(f'v_add_u32 {v(vSA)}, s21, {v(vT2)}')
    for i in range(1,4): a.e(f'v_xor_b32 {v(vSA+i)}, {16*i}, {v(vSA)}')
    for r in (sL,sH,qL,qH): a.e(f'v_mov_b32 {v(r)}, 0')
    if 'dot2' in FL: a.e('s_mov_b32 s56, 0x3f803f80')
    a.e(f's_mov_b32 s27, 0')
    a.e(f's_mov_b32 s46, {XS}'); a.e(f's_mov_b32 s47, {(-2*XS)&0xffffffff}')
    def st_read():
        if 'nostat' in FL: return
        for i in range(4): a.e(f'ds_read_b128 {v(D+4*i,4)}, {v(vSA+i)}')
        a.e('s_add_u32 s27, s27, 1')
        a.e('s_cmp_eq_u32 s27, 3')
        a.e('s_cselect_b32 s28, s47, s46')
        a.e('s_cselect_b32 s27, 0, s27')
        for i in range(4): a.e(f'v_add_u32 {v(vSA+i)}, s28, {v(vSA+i)}')
    def st_acc(half):
        if 'nostat' in FL: return
        a.e(f's_waitcnt lgkmcnt({2 if half==0 else 0})')
        if 'dot2' in FL:
            for d in range(8*half,8*half+8,2):
                a.e(f'v_dot2c_f32_bf16 {v(qL)}, {v(D+d)}, {v(D+d)}')
                a.e(f'v_dot2c_f32_bf16 {v(sL)}, s56, {v(D+d)}')
                a.e(f'v_dot2c_f32_bf16 {v(qH)}, {v(D+d+1)}, {v(D+d+1)}')
                a.e(f'v_dot2c_f32_bf16 {v(sH)}, s56, {v(D+d+1)}')
            return
        for d in range(8*half,8*half+8,2):
            a.e(f'v_lshlrev_b32 {v(U)}, 16, {v(D+d)}')
            a.e(f'v_and_b32 {v(U+1)}, 0xffff0000, {v(D+d)}')
            a.e(f'v_lshlrev_b32 {v(U+2)}, 16, {v(D+d+1)}')
            a.e(f'v_and_b32 {v(U+3)}, 0xffff0000, {v(D+d+1)}')
            a.e(f'v_add_f32 {v(sL)}, {v(sL)}, {v(U)}')
            a.e(f'v_add_f32 {v(sH)}, {v(sH)}, {v(U+1)}')
            a.e(f'v_fma_f32 {v(qL)}, {v(U)}, {v(U)}, {v(qL)}')
            a.e(f'v_fma_f32 {v(qH)}, {v(U+1)}, {v(U+1)}, {v(qH)}')
            a.e(f'v_add_f32 {v(sL)}, {v(sL)}, {v(U+2)}')
            a.e(f'v_add_f32 {v(sH)}, {v(sH)}, {v(U+3)}')
            a.e(f'v_fma_f32 {v(qL)}, {v(U+2)}, {v(U+2)}, {v(qL)}')
            a.e(f'v_fma_f32 {v(qH)}, {v(U+3)}, {v(U+3)}, {v(qH)}')
    bst=('bst' in FL)
    we=('wearly' in FL)
    def bs(i):
        if bst:
            (stampc if 'bstc' in FL else stamp)(a,i)
    def wave_only(w,fn):
        l=a.newlabel('K1_WO')
        a.e(f's_cmp_eq_u32 s19, {w}'); a.e(f's_cbranch_scc0 {l}')
        fn(); a.label(l)
    def unit_dma():
        for p in range(5):
            a.e(f's_mov_b32 m0, {SP+p*1024}')
            a.e('s_nop 0')
            a.e(f'buffer_load_dwordx4 {v(vU+p)}, s[12:15], 0 offen lds')
    def unit_tr():
        for t in range(5):
            reg,off=(76,[0,8,64,72][t]) if t<4 else (77,128)
            a.e(f'ds_read_b64_tr_b16 {v(56+4*t,2)}, {v(reg)} offset:{off}')
            a.e(f'ds_read_b64_tr_b16 {v(58+4*t,2)}, {v(reg)} offset:{off+1280}')
    def unit_store():
        a.e('s_waitcnt lgkmcnt(0)')
        for t in range(5):
            a.e(f's_add_u32 s28, s54, {t*1024}')
            a.e(f'buffer_store_dwordx4 {v(56+4*t,4)}, v78, s[88:91], s28 offen')
    U0={0:-1,1:4,2:9}; T0={0:2,1:7,2:12}; S0={0:3,1:8,2:13}
    WIDE={0:{0,1,4,5,6},1:{5,6,9,10,11},2:{10,11,14,15,16}}
    late=('wlate' in FL)
    if late:
        S0={}
        WIDE={0:{0,1,17,18,19},1:{5,6,17,18,19},2:{10,11,17,18,19}}
    def ldwait(s_,n):
        ws=[w for w in WIDE if s_ in WIDE[w]] if we else []
        if not ws:
            a.e(f's_waitcnt vmcnt({n})'); return
        l1=a.newlabel('K1_LW'); l2=a.newlabel('K1_LW')
        if len(ws)==1:
            a.e(f's_cmp_eq_u32 s19, {ws[0]}')
        elif len(ws)==3:
            a.e('s_cmp_lt_u32 s19, 3')
        else:
            assert ws[1]==ws[0]+1
            a.e(f's_sub_u32 s28, s19, {ws[0]}'); a.e('s_cmp_lt_u32 s28, 2')
        a.e(f's_cbranch_scc1 {l1}')
        a.e(f's_waitcnt vmcnt({n})'); a.e(f's_branch {l2}')
        a.label(l1); a.e(f's_waitcnt vmcnt({n+5})'); a.label(l2)
    def hook(tab,fn,s_):
        if we:
            for w in tab:
                if tab[w]==s_: wave_only(w,fn)
    pre=lambda s_: hook(U0,unit_dma,s_)
    mid=lambda s_: hook(T0,unit_tr,s_)
    post=lambda s_: hook(S0,unit_store,s_)
    pre(-1)
    ldwait(0,9); a.e('s_barrier'); bs(4); issueW(True); st_read(); st_acc(0)
    ldwait(1,9); a.e('s_barrier'); issueW(True); issueX(True); st_acc(1)
    ldwait(2,9); a.e('s_barrier'); bs(5); issueW(True); issueW(True); st_read(); st_acc(0); mid(2)
    ldwait(3,14); a.e('s_barrier'); issueW(True); issueX(True); st_acc(1); post(3)
    if bst or we:
        for it in range(2,8):
            ldwait(2*it,14); a.e('s_barrier'); bs(4+it); pre(2*it); issueW(); st_read(); st_acc(0); mid(2*it); post(2*it)
            ldwait(2*it+1,14); a.e('s_barrier'); pre(2*it+1); issueW(); issueX(); st_acc(1); mid(2*it+1); post(2*it+1)
    else:
        a.e('s_mov_b32 s31, 2')
        a.label('K1_LD_LOOP')
        a.e('s_waitcnt vmcnt(14)'); a.e('s_barrier'); issueW(); st_read(); st_acc(0)
        a.e('s_waitcnt vmcnt(14)'); a.e('s_barrier'); issueW(); issueX(); st_acc(1)
        a.e('s_add_u32 s31, s31, 1')
        a.e('s_cmp_lt_u32 s31, 8')
        a.e('s_cbranch_scc1 K1_LD_LOOP')
    ldwait(16,14); a.e('s_barrier'); bs(12); issueW(); st_read(); st_acc(0)
    if we and late:
        l=a.newlabel('K1_WS')
        a.e('s_cmp_lt_u32 s19, 3'); a.e(f's_cbranch_scc0 {l}')
        unit_store(); a.label(l)
    wi=5 if ('wimg' in FL and not we) else 0
    ldwait(17,14); a.e('s_barrier')
    if wi:
        for p in range(5):
            a.e(f's_add_u32 m0, s20, {p*1024}')
            a.e('s_nop 0')
            a.e(f'buffer_load_dwordx4 {v(vU+p)}, s[12:15], 0 offen lds')
    st_acc(1)
    ldwait(18,5+wi); a.e('s_barrier'); bs(13); st_read(); st_acc(0)
    ldwait(19,wi); a.e('s_barrier'); st_acc(1)
    a.e('s_barrier')
    stamp(a,2)
    if 'cpb' in FL:
        a.e('s_cmp_eq_u32 s19, 3'); a.e('s_cbranch_scc0 K1_CPB_END')
        a.e('s_getpc_b64 s[12:13]')
        a.label('K1_CPB_PC')
        a.e('s_add_u32 s12, s12, att_kernel-K1_CPB_PC'); a.e('s_addc_u32 s13, s13, 0')
        a.e('s_mov_b32 s14, FFN_TAIL+4-att_kernel'); a.e('s_mov_b32 s15, 0x00020000')
        a.e('v_lshlrev_b32 v120, 7, v0')
        a.e('buffer_load_dword v121, v120, s[12:15], 0 offen')
        a.e('v_add_u32 v120, 8192, v120')
        a.e('buffer_load_dword v122, v120, s[12:15], 0 offen')
        a.label('K1_CPB_END')
    P=44
    a.e(f'v_add_f32 {v(P)}, {v(sL)}, {v(sH)}')
    a.e(f'v_add_f32 {v(P+1)}, {v(qL)}, {v(qH)}')
    a.e(f'v_mov_b32 {v(U)}, {v(P)}')
    a.e(f'v_mov_b32 {v(U+1)}, {v(P+1)}')
    a.e('s_nop 1')
    a.e(f'v_permlane32_swap_b32 {v(U)}, {v(P)}')
    a.e(f'v_permlane32_swap_b32 {v(U+1)}, {v(P+1)}')
    a.e('s_nop 1')
    a.e(f'v_add_f32 {v(P)}, {v(U)}, {v(P)}')
    a.e(f'v_add_f32 {v(P+1)}, {v(U+1)}, {v(P+1)}')
    stats(a,0,P)
    a.e(f'v_and_b32 {v(vT)}, 31, v0')
    a.e('s_lshl_b32 s27, s19, 5')
    a.e(f'v_add_u32 {v(vT)}, s27, {v(vT)}')
    a.e(f'v_lshlrev_b32 {v(vT2)}, 2, {v(vT)}')
    a.e(f'v_lshlrev_b32 {v(vT3)}, 3, {v(vT)}')
    a.e('s_mov_b64 exec, 0xffffffff')
    a.e(f'ds_write_b32 {v(vT2)}, {v(P)} offset:{NM}' if NM<65536 else f'v_add_u32 {v(vT2)}, {NM}, {v(vT2)}')
    if NM>=65536:
        a.e(f'v_add_u32 {v(vT3)}, {ST2}, {v(vT3)}')
        a.e(f'ds_write_b32 {v(vT2)}, {v(P)}')
        a.e(f'ds_write_b32 {v(vT2)}, {v(P+1)} offset:512')
        a.e(f'ds_write_b64 {v(vT3)}, {v(P,2)}')
    a.e('s_mov_b64 exec, -1')
    a.e('s_lshl_b32 s27, s19, 6')
    a.e(f'v_add_u32 {v(vT)}, s27, v0')
    a.e(f'v_lshlrev_b32 {v(vT2)}, 3, {v(vT)}')
    a.e(f'v_add_u32 {v(vT2)}, {CS}, {v(vT2)}')
    a.e('s_waitcnt lgkmcnt(0)')
    stamp(a,3)
    a.e('s_barrier')
    a.e(f'v_cmp_gt_u32 vcc, 160, {v(vT)}')
    a.e('s_and_saveexec_b64 s[48:49], vcc')
    a.e(f'ds_read_b64 {v(D,2)}, {v(vT2)} offset:1280')
    a.e(f'ds_read_b64 {v(D+2,2)}, {v(vT2)} offset:2560')
    a.e('s_waitcnt lgkmcnt(0)')
    a.e(f'v_add_f32 {v(D)}, {v(D)}, {v(D+2)}')
    a.e(f'v_add_f32 {v(D+1)}, {v(D+1)}, {v(D+3)}')
    a.e(f'ds_write_b64 {v(vT2)}, {v(D,2)}')
    a.e('s_mov_b64 exec, -1')
    a.e('s_waitcnt lgkmcnt(0)')
    a.e('s_barrier')
    if 'wimg' in FL and 'wearly' not in FL:
        a.e('s_cmp_eq_u32 s33, 0')
        a.e('s_cbranch_scc1 K1_WI_END')
        a.e('v_lshrrev_b32 v56, 5, v0')
        a.e('v_lshlrev_b32 v56, 4, v56')
        a.e('v_bfe_u32 v57, v0, 4, 1')
        a.e('v_lshlrev_b32 v57, 2, v57')
        a.e('v_add_u32 v56, v56, v57')
        a.e('v_bfe_u32 v57, v0, 2, 2')
        a.e('v_add_u32 v56, v56, v57')
        a.e('v_mul_u32_u24 v56, 160, v56')
        a.e('v_add_u32 v56, s20, v56')
        a.e('v_and_b32 v57, 3, v0')
        a.e('v_lshlrev_b32 v58, 4, v57')
        a.e('v_add_u32 v54, v56, v58')
        a.e('v_lshlrev_b32 v58, 3, v57')
        a.e('v_add_u32 v55, v56, v58')
        a.e('v_lshlrev_b32 v53, 4, v0')
        a.e(f's_add_u32 s12, s34, {WIMG}'); a.e('s_addc_u32 s13, s35, 0'); a.e(f's_mov_b32 s14, {WIMG_BYTES}')
        a.e('s_waitcnt vmcnt(0)')
        for t in range(5):
            reg,off=(54,[0,8,64,72][t]) if t<4 else (55,128)
            a.e(f'ds_read_b64_tr_b16 {v(56+4*t,2)}, {v(reg)} offset:{off}')
            a.e(f'ds_read_b64_tr_b16 {v(58+4*t,2)}, {v(reg)} offset:{off+1280}')
        a.e('s_waitcnt lgkmcnt(0)')
        for t in range(5):
            a.e(f's_add_u32 s27, s54, {t*1024}')
            a.e(f'buffer_store_dwordx4 {v(56+4*t,4)}, v53, s[12:15], s27 offen')
        a.e('s_waitcnt vmcnt(0)')
        a.label('K1_WI_END')
    if 'fuse' in FL and ('can' not in FL or 'hl' in FL):
        a.e('s_cmp_eq_u32 s19, 3'); a.e('s_cbranch_scc0 K1_FL_END')
        a.e(f's_cmp_lt_u32 s2, {FLAGS_BYTES//1024}'); a.e('s_cbranch_scc0 K1_FL_END')
        a.e(f's_add_u32 s12, s34, {FLAGS}'); a.e('s_addc_u32 s13, s35, 0'); a.e(f's_mov_b32 s14, {FLAGS_BYTES}'); a.e('s_mov_b32 s15, 0x00020000')
        a.e('s_lshl_b32 s27, s2, 10')
        a.e('v_lshlrev_b32 v53, 4, v0')
        for k in range(4): a.e(f'v_mov_b32 v{56+k}, 0')
        a.e('buffer_store_dwordx4 v[56:59], v53, s[12:15], s27 offen')
        a.e('s_waitcnt vmcnt(0)')
        a.label('K1_FL_END')
    if 'wearly' in FL: a.e('s_waitcnt vmcnt(0)')
    if 'lst' not in FL and 'bst' not in FL:
        stamp(a,4); stamp(a,5); stamp(a,6); stamp(a,7)
    stamp_store(a,14 if 'bst' in FL else 8,34,'s16',8,3*1024*1024)
    a.label('K1_END')
    a.e('s_endpgm')
    return NV
```

```python
from asmlib import *
from layouts import QIMG,KIMG,VIMG,HIMG,WIMG,WIMG_BYTES,FLAGS,FLAGS_BYTES,OIMG
from stamps import stamp, stamp_store, stampc
import stamps
XS=16384; WBASE=49152; WP=20544
CS=WBASE+5*WP
CSP=CS+1280
NM=CSP+2560
RR=NM+512
ST2=RR+512
LDS=ST2+1024
SP=LDS
def lds_size(): return LDS+(5120 if 'wearly' in FL else 0)
WF=4
XF=24
XA=40
WA=44
SEL=48
vT=58; vT2=59; vT3=60; vT4=61
CSA=64
ACC=96
NV=256
FL=set()
def acc(i,t): return ACC+(i*5+t)*16
def mfma(d,a_,b_):
    if 'm16' in FL:
        return f'v_mfma_f32_16x16x32_bf16 {v(d,4)}, {v(a_,4)}, {v(b_,4)}, {v(d,4)}\n    v_mfma_f32_16x16x32_bf16 {v(d+4,4)}, {v(a_,4)}, {v(b_,4)}, {v(d+4,4)}'
    return f'v_mfma_f32_32x32x16_bf16 {v(d,16)}, {v(a_,4)}, {v(b_,4)}, {v(d,16)}'

def wread(a,var,jl,t):
    if var=='ffn':
        reg=WA+2*jl; pitch=320; off=32*t
    else:
        reg=WA+2*jl+(t%2); pitch=640; off=64*t
    for p in range(2):
        a.e(f'ds_read_b64_tr_b16 {v(WF+4*t+2*p,2)}, {v(reg)} offset:{off+4*p*pitch}')
def xread(a,buf,j):
    for i in range(2):
        a.e(f'ds_read_b128 {v(XF+buf*8+i*4,4)}, {v(XA+j)} offset:{i*4096}')

def kstep(a,var,k):
    jl=k%2; xb=k%2
    a.c(f'kstep {k}')
    A=[[] for _ in range(5)]
    if jl==1 and 'nobar' not in FL: A[0].append('BAR')
    A[1]+=[f'ds_read_b128 {v(XF+(1-xb)*8+i*4,4)}, {v(XA+(k+1)%4)} offset:{i*4096}' for i in range(2)]
    regs=[WA+2*jl] if var=='ffn' else [WA+2*jl,WA+2*jl+1]
    A[2]+=[f'v_add_u32 {v(r)}, s22, {v(r)}' for r in regs]
    xs={1:[0,1],2:[2],3:[3]}.get(k,[])
    A[3]+=[f'v_add_u32 {v(XA+j)}, s24, {v(XA+j)}' for j in xs]
    if jl==1:
        A[3]+=['s_add_u32 s23, s23, 1','s_cmp_eq_u32 s23, 5']
        A[4]+=['s_cselect_b32 s22, s45, s44','s_cselect_b32 s23, 0, s23']
    if k==0:
        A[0]+=['s_add_u32 s25, s25, 1','s_cmp_eq_u32 s25, 3']
        A[0]+=['s_cselect_b32 s24, s47, s46']
        A[4]+=['s_cmp_eq_u32 s25, 3','s_cselect_b32 s25, 0, s25']
    if k==2:
        A[4]=['s_add_u32 s26, s26, 1']+A[4]
    if k==1 and 'ppf' in FL:
        A[1]+=['s_cmp_le_u32 s26, %d'%PPF_LAST(),'s_cselect_b32 s6, s6, 0']
        A[2]+=['buffer_load_dword v95, v94, s[4:7], 0 offen']
        A[3]=['v_add_u32 v94, s28, v94']+A[3]
    if k==3:
        A[4]+=['s_cmp_lt_u32 s26, 10']
    for t in range(5):
        n=8 if t<2 else 10
        a.e(f's_waitcnt lgkmcnt({n})')
        if 'nocs' not in FL and ((jl==0 and t%2==0) or (jl==1 and t%2==1)):
            a.e(f'v_mfma_f32_16x16x32_bf16 {v(CSA+4*t,4)}, {v(SEL,4)}, {v(WF+4*t,4)}, {v(CSA+4*t,4)}')
        for i in range(2):
            X=XF+xb*8+i*4
            if var=='v': a.e(mfma(acc(i,t),X,WF+4*t))
            else:        a.e(mfma(acc(i,t),WF+4*t,X))
            if i==0:
                for f in A[t]:
                    a.e('s_barrier' if f=='BAR' else f)
        wread(a,var,1-jl,t)

def stats(a,i,P,Pc=None,mode='qk'):
    a.e(f'v_mul_f32 {v(P)}, 0x3acccccd, {v(P)}')
    a.e(f'v_mul_f32 {v(P+1)}, 0x3acccccd, {v(P+1)}')
    a.e(f'v_fma_f32 {v(P+1)}, -{v(P)}, {v(P)}, {v(P+1)}')
    a.e(f'v_max_f32 {v(P+1)}, 0, {v(P+1)}')
    a.e(f'v_cvt_pk_bf16_f32 {v(P)}, {v(P)}, {v(P+1)}')
    a.e(f'v_and_b32 {v(P+1)}, 0xffff0000, {v(P)}')
    a.e(f'v_lshlrev_b32 {v(P)}, 16, {v(P)}')
    a.e(f'v_add_f32 {v(P+1)}, 0x3727c5ac, {v(P+1)}')
    a.e(f'v_cvt_pk_bf16_f32 {v(P+1)}, {v(P+1)}, {v(P+1)}')
    a.e(f'v_and_b32 {v(P+1)}, 0xffff0000, {v(P+1)}')
    a.e(f'v_sqrt_f32 {v(P+1)}, {v(P+1)}')
    a.e(f'v_xor_b32 {v(P)}, 0x80000000, {v(P)}')
    a.e(f'v_cvt_pk_bf16_f32 {v(P+1)}, {v(P+1)}, {v(P+1)}')
    a.e(f'v_and_b32 {v(P+1)}, 0xffff0000, {v(P+1)}')
    a.e(f'v_rcp_f32 {v(P+1)}, {v(P+1)}')
    a.e('s_nop 0')

def pkfma(d,x,y,z,bx=None,by=None,bz=None):
    sel=[0 if b is None else b for b in (bx,by,bz)]
    hi=[1 if b is None else b for b in (bx,by,bz)]
    return f'v_pk_fma_f32 {v(d,2)}, {v(x,2)}, {v(y,2)}, {v(z,2)} op_sel:[{sel[0]},{sel[1]},{sel[2]}] op_sel_hi:[{hi[0]},{hi[1]},{hi[2]}]'
def pkmul(d,x,y,bx=None,by=None):
    sel=[0 if b is None else b for b in (bx,by)]
    hi=[1 if b is None else b for b in (bx,by)]
    return f'v_pk_mul_f32 {v(d,2)}, {v(x,2)}, {v(y,2)} op_sel:[{sel[0]},{sel[1]}] op_sel_hi:[{hi[0]},{hi[1]}]'

def PPF_N():
    for n in (1,2,3,4,5):
        if f'ppf{n}' in FL: return n
    return 3
def PPF_LAST():
    return 8-PPF_N()
def ppf_setup(a,var):
    a.e('s_lshr_b32 s29, s2, 3'); a.e('s_and_b32 s29, s29, 7')
    if var=='ffn':
        L,mul,pitch,nw=3,21846,3072,2
        a.e('s_sub_u32 s31, s18, 6'); a.e('s_mul_i32 s31, s31, 320'); a.e('s_min_u32 s31, s31, 2752'); a.e('s_andn2_b32 s31, s31, 127')
        a.e('s_cmp_eq_u32 s16, 0'); a.e('s_cselect_b32 s4, s40, s42'); a.e('s_cselect_b32 s5, s41, s43')
    else:
        L,mul,pitch,nw=5,13108,3840,1
        a.e('s_mul_i32 s31, s18, 640')
        a.e('s_mov_b32 s4, s38'); a.e('s_mov_b32 s5, s39')
    a.e(f's_add_u32 s29, s29, 64')
    a.e(f'v_mul_u32_u24 v92, {mul}, v0')
    a.e('v_lshrrev_b32 v92, 16, v92')
    a.e(f'v_mul_u32_u24 v93, {L}, v92')
    a.e('v_sub_u32 v93, v0, v93')
    a.e('v_lshlrev_b32 v92, 3, v92')
    a.e('v_add_u32 v92, s29, v92')
    a.e(f'v_mul_u32_u24 v92, {pitch}, v92')
    a.e('v_lshlrev_b32 v93, 7, v93')
    a.e('v_add_u32 v92, v92, v93')
    a.e('v_add_u32 v92, s31, v92')
    a.e('v_bfrev_b32 v93, 1')
    a.e(f'v_cmp_gt_u32 vcc, {8*L}, v0')
    a.e('v_cndmask_b32 v94, v93, v92, vcc')
    a.e(f's_mov_b32 s28, {64*pitch}')
    a.e(f's_cmp_lt_u32 s16, {nw}'); a.e(f's_cselect_b32 s6, {640*pitch}, 0')
    a.e('s_mov_b32 s7, 0x00020000')
    a.e('s_cmp_eq_u32 s16, 2')
    a.e(f's_cbranch_scc0 K1_PPF_{var}')
    a.e('s_lshr_b32 s29, s2, 6'); a.e('s_lshl_b32 s29, s29, 5'); a.e('s_lshl_b32 s31, s17, 7'); a.e('s_add_u32 s29, s29, s31')
    a.e('v_add_u32 v92, s29, v0')
    a.e('v_mul_u32_u24 v92, 1280, v92')
    a.e('v_add_u32 v92, 256, v92')
    a.e('v_cmp_gt_u32 vcc, 32, v0')
    a.e('v_cndmask_b32 v94, v93, v92, vcc')
    a.e('s_mov_b32 s4, s36'); a.e('s_mov_b32 s5, s37'); a.e('s_mov_b32 s6, 2621440'); a.e('s_mov_b32 s28, 128')
    a.label(f'K1_PPF_{var}')
    for j in range(PPF_PRE()):
        a.e('buffer_load_dword v95, v94, s[4:7], 0 offen')
        a.e('v_add_u32 v94, s28, v94')
def PPF_PRE():
    for n in (0,1,2,3,4):
        if f'pre{n}' in FL: return n
    return PPF_N()

def main_loop(a,var):
    L=f'K1_{var.upper()}'
    if 'ppf' in FL: ppf_setup(a,var)
    a.e('s_barrier')
    stamp(a,1); stampc(a,8)
    if 'ppf' in FL:
        for j in range(PPF_N()-PPF_PRE()):
            a.e('buffer_load_dword v95, v94, s[4:7], 0 offen')
            a.e('v_add_u32 v94, s28, v94')
    wread(a,var,0,0)
    xread(a,0,0)
    for t in range(1,5): wread(a,var,0,t)
    a.e('s_mov_b32 s26, 0')
    a.e('s_mov_b32 s22, s44'); a.e('s_mov_b32 s23, 1')
    a.label(f'{L}_LOOP')
    for k in range(4): kstep(a,var,k)
    if stamps.STAMP:
        a.e('s_cmp_eq_u32 s26, 1')
        a.e(f's_cbranch_scc0 {L}_NS')
        stamp(a,7)
        a.label(f'{L}_NS')
        a.e('s_cmp_lt_u32 s26, 10')
    a.e(f's_cbranch_scc1 {L}_LOOP')
    stamp(a,2); stampc(a,9)
    step,r1=(64,640) if var=='ffn' else (128,64)
    a.e('s_nop 7')
    a.e('s_mov_b64 exec, 0xffff')
    for t in range(5):
        a.e(f'ds_write_b32 v62, {v(CSA+4*t)} offset:{t*step}')
        a.e(f'ds_write_b32 v62, {v(CSA+4*t+1)} offset:{t*step+r1}')
    a.e('s_mov_b64 exec, -1')
    a.e('s_waitcnt lgkmcnt(0)')
    stamp(a,5)
    a.e('s_barrier')
    if var!='v':
        a.e('ds_read_b64 v[64:65], v63 offset:0')
        a.e('ds_read_b64 v[66:67], v63 offset:256')
    a.e('s_barrier')
    stamp(a,6)

def k1_kernel(a,name):
    pol=' '.join(x for x in ('sc0','sc1','nt') if 'st_'+x in FL)
    if 'nost' in FL or pol:
        E0=a.e
        cnt=[0]; a.cur=None
        def e2(x):
            if x.startswith('buffer_store'):
                if 'nost' in FL: return
                cnt[0]+=1
                plain=False
                if 'dwordx4' in x and a.cur in ('qk','v'):
                    if 'hyb2' in FL: plain=(cnt[0]%2==0)
                    if 'hyb4' in FL: plain=(cnt[0]%4==0)
                    if 'hyb1' in FL: plain=True
                if not plain: x=x+' '+pol
            E0(x)
        a.e=e2
    a.lines.append(kernel_header(name))
    a.e('s_cmp_ge_u32 s2, 256')
    a.e('s_cbranch_scc1 K1_END')
    if 'cpz' in FL:
        a.e('s_getpc_b64 s[4:5]')
        a.label('K1_CPZ_PC')
        a.e('s_sub_u32 s4, s4, K1_CPZ_PC-k1_kernel'); a.e('s_subb_u32 s5, s5, 0')
        a.e('s_mov_b32 s6, FFN_TAIL+4-k1_kernel'); a.e('s_mov_b32 s7, 0x00020000')
        a.e('s_lshr_b32 s28, s2, 3'); a.e('s_mul_i32 s28, s28, 1152')
        a.e('v_lshlrev_b32 v2, 7, v0'); a.e('v_cmp_gt_u32 vcc, 9, v0'); a.e('v_cndmask_b32 v2, -1, v2, vcc')
        a.e('buffer_load_dword v3, v2, s[4:7], s28 offen')
    for n in (8,12,16,24,32,40,58):
      if f'cpu{n}' in FL:
        a.e('s_getpc_b64 s[4:5]')
        a.label('K1_CPU_PC')
        a.e('s_add_u32 s4, s4, K1_LOADER-K1_CPU_PC'); a.e('s_addc_u32 s5, s5, 0')
        a.e(f's_mov_b32 s6, {n*128}'); a.e('s_mov_b32 s7, 0x00020000')
        a.e('v_lshlrev_b32 v2, 7, v0')
        a.e('buffer_load_dword v3, v2, s[4:7], 0 offen')
        for m in (16,32,64):
          if f'cpw{m}' in FL:
            a.e('s_sub_u32 s4, s4, K1_LOADER-k1_kernel+8192'); a.e('s_subb_u32 s5, s5, 0')
            a.e(f's_mov_b32 s6, {8192+m*128}')
            a.e('v_cmp_le_u32 vcc, 64, v0'); a.e('v_cndmask_b32 v2, -1, v2, vcc')
            a.e('buffer_load_dword v1, v2, s[4:7], 0 offen')
    for n in (8,32,64,256):
      if f'cpt{n}' in FL:
        a.e(f's_cmp_lt_u32 s2, {n}'); a.e('s_cbranch_scc0 K1_CPT_END')
        a.e('s_getpc_b64 s[4:5]')
        a.label('K1_CPT_PC')
        a.e('s_sub_u32 s4, s4, K1_CPT_PC-k1_kernel'); a.e('s_subb_u32 s5, s5, 0')
        a.e('s_mov_b32 s6, FFN_TAIL+4-k1_kernel'); a.e('s_mov_b32 s7, 0x00020000')
        a.e('v_lshlrev_b32 v2, 7, v0')
        a.e('buffer_load_dword v3, v2, s[4:7], 0 offen')
        a.label('K1_CPT_END')
    a.e('s_load_dwordx2 s[34:35], s[0:1], 72')
    a.e('s_load_dwordx2 s[36:37], s[0:1], 0')
    a.e('s_load_dwordx2 s[38:39], s[0:1], 8')
    a.e('s_load_dwordx4 s[40:43], s[0:1], 32')
    if 'wimg' in FL:
        a.e('s_load_dwordx2 s[50:51], s[0:1], 16')
        a.e('s_load_dwordx2 s[52:53], s[0:1], 48')
    stamp(a,0)
    a.e(f'v_lshrrev_b32 {v(vT)}, 6, v0')
    a.e('v_and_b32 v0, 63, v0')
    a.e(f'v_readfirstlane_b32 s16, {v(vT)}')
    a.e('s_and_b32 s27, s2, 7')
    a.e('s_lshr_b32 s29, s2, 3')
    a.e('s_and_b32 s17, s27, 1')
    a.e('s_lshl_b32 s17, s17, 3')
    a.e('s_and_b32 s30, s29, 7')
    a.e('s_add_u32 s17, s17, s30')
    a.e('s_lshr_b32 s18, s27, 1')
    a.e('s_lshl_b32 s18, s18, 2')
    a.e('s_lshr_b32 s30, s29, 3')
    a.e('s_add_u32 s18, s18, s30')
    if 'mix' in FL:
        perm=[0,1,6,7,2,3,8,9,4,10,11,12,5,13,14,15]
        if 'mix2' in FL: perm=[0,1,4,6,2,3,5,7,8,9,10,11,12,13,14,15]
        if 'mix3' in FL: perm=[0,2,4,6,1,3,5,7,8,9,10,11,12,13,14,15]
        if 'mix4' in FL: perm=[0,4,6,7,1,5,8,9,2,10,11,12,3,13,14,15]
        lo=sum(perm[i]<<(4*i) for i in range(8)); hi=sum(perm[8+i]<<(4*i) for i in range(8))
        a.e(f's_mov_b32 s30, {lo}'); a.e(f's_mov_b32 s31, {hi}')
        a.e('s_lshl_b32 s18, s18, 2')
        a.e('s_lshr_b64 s[30:31], s[30:31], s18')
        a.e('s_and_b32 s18, s30, 15')
    a.e('s_cmp_ge_u32 s16, 4')
    a.e('s_cbranch_scc1 K1_LOADER')
    if 'sent' in FL:
        a.e('s_mul_i32 s27, s2, 10240')
        a.e(f's_add_u32 s27, s27, {OIMG}')
        a.e('v_lshlrev_b32 v59, 4, v0')
        for k in range(4): a.e(f'v_mov_b32 v{60+k}, -1')
        a.e('s_lshl_b32 s28, s16, 10')
        a.e('s_waitcnt lgkmcnt(0)')
        a.e('s_add_u32 s4, s34, s27'); a.e('s_addc_u32 s5, s35, 0'); a.e('s_mov_b32 s6, 10240'); a.e('s_mov_b32 s7, 0x00020000')
        a.e('buffer_store_dwordx4 v[60:63], v59, s[4:7], s28 offen')
        a.e('s_add_u32 s28, s28, 4096')
        a.e('buffer_store_dwordx4 v[60:63], v59, s[4:7], s28 offen')
        a.e('s_add_u32 s28, s28, 4096')
        a.e('buffer_store_dwordx4 v[60:63], v59, s[4:7], s28 offen')
        a.e('s_nop 3')
    if 'cpa' in FL:
        a.e('s_cmp_lt_u32 s2, 224' if 'cpl' in FL else 's_cmp_lt_u32 s2, 32'); a.e('s_cbranch_scc1 K1_CPA_END' if 'cpl' in FL else 's_cbranch_scc0 K1_CPA_END')
        a.e('s_getpc_b64 s[4:5]')
        a.label('K1_CPA_PC')
        a.e('s_sub_u32 s4, s4, K1_CPA_PC-k1_kernel'); a.e('s_subb_u32 s5, s5, 0')
        a.e('s_mov_b32 s6, FFN_TAIL+4-k1_kernel'); a.e('s_mov_b32 s7, 0x00020000')
        a.e('v_lshlrev_b32 v52, 7, v0'); a.e('s_lshl_b32 s28, s16, 13')
        a.e('buffer_load_dword v53, v52, s[4:7], s28 offen')
        a.label('K1_CPA_END')
    if 'tlk' in FL:
        a.e('s_cmp_eq_u32 s16, 2'); a.e('s_cbranch_scc0 K1_TLK_END')
        a.e('s_mov_b32 s4, s34'); a.e('s_mov_b32 s5, s35'); a.e(f's_mov_b32 s6, {32*1024*1024}'); a.e('s_mov_b32 s7, 0x00020000')
        a.e('v_lshlrev_b32 v54, 19, v0')
        a.e('buffer_load_dword v55, v54, s[4:7], 0 offen')
        a.label('K1_TLK_END')
    for nm,wv in (('cpe',3),('cpe0',0)):
      if nm in FL:
        a.e(f's_cmp_eq_u32 s16, {wv}'); a.e('s_cbranch_scc0 K1_CPE_END')
        a.e('s_getpc_b64 s[4:5]')
        a.label('K1_CPE_PC')
        a.e('s_sub_u32 s4, s4, K1_CPE_PC-k1_kernel'); a.e('s_subb_u32 s5, s5, 0')
        a.e('s_mov_b32 s6, FFN_TAIL+4-k1_kernel'); a.e('s_mov_b32 s7, 0x00020000')
        a.e('v_lshlrev_b32 v52, 7, v0'); a.e('s_lshr_b32 s28, s2, 3'); a.e('s_mul_i32 s28, s28, 1152')
        a.e('s_mov_b64 exec, 0x1ff')
        a.e('buffer_load_dword v53, v52, s[4:7], s28 offen')
        a.e('s_mov_b64 exec, -1')
        a.label('K1_CPE_END')
    if 'pf' in FL:
        pol=' '.join(x for x in ('sc0','sc1','nt') if 'pf_'+x in FL)
        a.e('s_lshr_b32 s27, s2, 6')
        a.e('s_lshr_b32 s29, s2, 3'); a.e('s_and_b32 s29, s29, 7')
        a.e('s_lshl_b32 s30, s17, 7'); a.e('s_lshl_b32 s27, s27, 5'); a.e('s_add_u32 s30, s30, s27')
        a.e('v_and_b32 v52, 31, v0')
        a.e('v_add_u32 v52, s30, v52')
        a.e('v_mul_u32_u24 v52, 1280, v52')
        a.e('v_lshrrev_b32 v53, 5, v0')
        a.e('v_lshlrev_b32 v53, 7, v53')
        a.e('v_add_u32 v52, v52, v53')
        a.e('s_lshl_b32 s30, s16, 8')
        a.e('s_cmp_ge_u32 s18, 6')
        a.e('s_cbranch_scc1 K1_PF_FFN')
        a.e('s_lshl_b32 s27, s16, 6')
        for q in range(2):
            a.e(f'v_add_u32 v53, s27, v0')
            if q==1: a.e('v_add_u32 v53, 256, v53')
            a.e(f'v_mul_u32_u24 v54, 13108, v53')
            a.e('v_lshrrev_b32 v54, 16, v54')
            a.e('v_mul_u32_u24 v55, 5, v54')
            a.e('v_sub_u32 v55, v53, v55')
            a.e('v_lshlrev_b32 v54, 3, v54')
            a.e('v_add_u32 v54, s29, v54')
            a.e('v_mul_u32_u24 v54, 3840, v54')
            a.e('v_lshlrev_b32 v55, 7, v55')
            a.e(f'v_add_u32 v{55+q+1}, v54, v55')
        a.e('s_mul_i32 s31, s18, 640')
        a.e('s_waitcnt lgkmcnt(0)')
        a.e('s_mov_b32 s4, s38'); a.e('s_mov_b32 s5, s39'); a.e(f's_mov_b32 s6, {640*3840}')
        a.e('s_branch K1_PF_GO')
        a.label('K1_PF_FFN')
        a.e('s_and_b32 s27, s16, 1')
        a.e('s_lshl_b32 s27, s27, 6')
        for q in range(2):
            a.e(f'v_add_u32 v53, s27, v0')
            if q==1: a.e('v_add_u32 v53, 128, v53')
            a.e(f'v_mul_u32_u24 v54, 21846, v53')
            a.e('v_lshrrev_b32 v54, 16, v54')
            a.e('v_mul_u32_u24 v55, 3, v54')
            a.e('v_sub_u32 v55, v53, v55')
            a.e('v_lshlrev_b32 v54, 3, v54')
            a.e('v_add_u32 v54, s29, v54')
            a.e('v_mul_u32_u24 v54, 3072, v54')
            a.e('v_lshlrev_b32 v55, 7, v55')
            a.e(f'v_add_u32 v{55+q+1}, v54, v55')
        a.e('s_sub_u32 s31, s18, 6')
        a.e('s_mul_i32 s31, s31, 320')
        a.e('s_min_u32 s31, s31, 2752')
        a.e('s_andn2_b32 s31, s31, 127')
        a.e('s_waitcnt lgkmcnt(0)')
        a.e('s_cmp_lt_u32 s16, 2')
        a.e('s_cselect_b32 s4, s40, s42')
        a.e('s_cselect_b32 s5, s41, s43')
        a.e(f's_mov_b32 s6, {640*3072}')
        a.label('K1_PF_GO')
        a.e('s_mov_b32 s7, 0x00020000')
        a.e('s_mov_b32 s8, s36'); a.e('s_mov_b32 s9, s37'); a.e('s_mov_b32 s10, 2621440'); a.e('s_mov_b32 s11, 0x00020000')
        a.e(f'buffer_load_dword v95, v56, s[4:7], s31 offen {pol}')
        a.e(f'buffer_load_dword v95, v52, s[8:11], s30 offen {pol}')
        a.e(f'buffer_load_dword v95, v57, s[4:7], s31 offen {pol}')
        a.e('s_cmp_eq_u32 s16, 0')
        a.e('s_cbranch_scc0 K1_PF_END')
        a.e(f'buffer_load_dword v95, v52, s[8:11], 0 offen offset:1024 {pol}')
        a.label('K1_PF_END')
    if 'cp3' in FL: a.e('s_setprio 3')
    a.e('s_lshr_b32 s19, s16, 1')
    a.e('s_and_b32 s20, s16, 1')
    a.e('s_xor_b32 s21, s19, s20')
    a.e(f's_mov_b32 s44, {WP}'); a.e(f's_mov_b32 s45, {(-4*WP)&0xffffffff}'); a.e(f's_mov_b32 s46, {XS}'); a.e(f's_mov_b32 s47, {(-2*XS)&0xffffffff}')
    a.e(f'v_and_b32 {v(vT)}, 31, v0')
    a.e(f'v_lshrrev_b32 {v(vT2)}, 5, v0')
    a.e(f'v_bfe_u32 {v(vT3)}, v0, 1, 3')
    a.e(f'v_lshlrev_b32 {v(vT4)}, 7, {v(vT)}')
    a.e('s_lshl_b32 s27, s19, 13')
    a.e(f'v_add_u32 {v(vT4)}, s27, {v(vT4)}')
    for kk in range(4):
        a.e(f's_xor_b32 s27, s21, {kk%2}')
        a.e(f's_add_u32 s27, s27, {2*(kk//2)}')
        a.e('s_lshl_b32 s27, s27, 1')
        a.e(f'v_add_u32 {v(XA+kk)}, s27, {v(vT2)}')
        a.e(f'v_xor_b32 {v(XA+kk)}, {v(XA+kk)}, {v(vT3)}')
        a.e(f'v_lshlrev_b32 {v(XA+kk)}, 4, {v(XA+kk)}')
        a.e(f'v_add_u32 {v(XA+kk)}, {v(XA+kk)}, {v(vT4)}')
    a.e('s_lshl_b32 s27, s19, 9')
    a.e(f's_add_u32 s27, s27, {ST2}')
    a.e(f'v_lshlrev_b32 v63, 3, {v(vT)}')
    a.e('v_add_u32 v63, s27, v63')
    for k in range(20): a.e(f'v_mov_b32 {v(CSA+k)}, 0')
    a.e(f'v_and_b32 {v(vT2)}, 15, v0')
    a.e(f'v_bfe_u32 {v(vT3)}, v0, 4, 1')
    a.e(f'v_cmp_eq_u32 vcc, {v(vT2)}, {v(vT3)}')
    a.e(f'v_mov_b32 {v(vT2)}, 0')
    a.e(f'v_mov_b32 {v(vT3)}, 0x3f803f80')
    for k in range(4): a.e(f'v_cndmask_b32 {v(SEL+k)}, {v(vT2)}, {v(vT3)}, vcc')
    a.e('s_mov_b32 s25, 0')
    vH=84; vCh=85; vR=86; vC4=87; vRow=88
    a.e(f'v_lshrrev_b32 {v(vH)}, 5, v0')
    a.e(f'v_bfe_u32 {v(vCh)}, v0, 4, 1')
    a.e(f'v_bfe_u32 {v(vR)}, v0, 2, 2')
    a.e(f'v_and_b32 {v(vC4)}, 3, v0')
    a.e(f'v_lshlrev_b32 {v(vRow)}, 3, {v(vH)}')
    a.e(f'v_add_u32 {v(vRow)}, {v(vRow)}, {v(vR)}')
    a.e('s_cmp_ge_u32 s18, 6')
    a.e('s_cbranch_scc1 K1_FFN_SETUP')
    a.e(f'v_mul_u32_u24 {v(vT2)}, 640, {v(vRow)}')
    a.e(f'v_lshlrev_b32 {v(vT3)}, 5, {v(vCh)}')
    a.e(f'v_add_u32 {v(vT2)}, {v(vT2)}, {v(vT3)}')
    a.e(f'v_lshlrev_b32 {v(vT3)}, 3, {v(vC4)}')
    a.e(f'v_add_u32 {v(vT2)}, {v(vT2)}, {v(vT3)}')
    a.e('s_mul_i32 s27, s20, 320')
    a.e(f's_add_u32 s27, s27, {WBASE}')
    a.e(f'v_add_u32 {v(vT2)}, s27, {v(vT2)}')
    a.e(f'v_lshrrev_b32 {v(vT3)}, 1, {v(vR)}')
    a.e(f'v_lshlrev_b32 {v(vT3)}, 6, {v(vT3)}')
    a.e(f'v_sub_u32 {v(vT4)}, 0, {v(vT3)}')
    a.e('s_cmp_eq_u32 s20, 0')
    a.e('s_cselect_b64 vcc, -1, 0')
    a.e(f'v_cndmask_b32 v89, {v(vT4)}, {v(vT3)}, vcc')
    a.e(f'v_cndmask_b32 v90, {v(vT3)}, {v(vT4)}, vcc')
    for jl in range(2):
        a.e(f's_xor_b32 s27, s21, {jl}')
        a.e(f's_mul_i32 s27, s27, {16*640}')
        a.e(f'v_add_u32 {v(vT3)}, s27, {v(vT2)}')
        a.e(f'v_add_u32 {v(WA+2*jl)}, {v(vT3)}, v89')
        a.e(f'v_add_u32 {v(WA+2*jl+1)}, {v(vT3)}, v90')
    a.e('s_mul_i32 s27, s20, 640')
    a.e('s_mul_i32 s29, s19, 1280')
    a.e('s_add_u32 s27, s27, s29')
    a.e(f's_add_u32 s27, s27, {CSP}')
    a.e(f'v_and_b32 v62, 15, v0')
    a.e(f'v_lshlrev_b32 v62, 2, v62')
    a.e('v_add_u32 v62, s27, v62')
    for k in range(160): a.e(f'v_mov_b32 {v(ACC+k)}, 0')
    a.e('s_waitcnt lgkmcnt(0)')
    a.e('s_cmp_ge_u32 s18, 4')
    a.e('s_cbranch_scc1 K1_V_START')
    main_loop(a,'qk')
    a.cur='qk'
    a.e(f'v_lshrrev_b32 {v(vT)}, 5, v0')
    a.e(f'v_lshlrev_b32 {v(vT)}, 4, {v(vT)}')
    a.e('s_mul_i32 s27, s20, 640')
    a.e(f's_add_u32 s27, s27, {CS}')
    a.e(f'v_add_u32 {v(vT)}, s27, {v(vT)}')
    CQ=[4,20]
    for b in range(4): a.e(f'ds_read_b128 {v(CQ[0]+4*b,4)}, {v(vT)} offset:{b*32}')
    a.e('s_cmp_lt_u32 s18, 2')
    a.e(f's_cselect_b32 s27, {QIMG}, {KIMG}')
    a.e('s_add_u32 s4, s34, s27')
    a.e('s_addc_u32 s5, s35, 0')
    a.e('s_mov_b32 s6, 2621440')
    a.e('s_mov_b32 s7, 0x00020000')
    a.e('s_cmp_lt_u32 s18, 2')
    a.e('s_cselect_b32 s29, 0x3ea52b5c, 0x3f800000')
    a.e('s_and_b32 s27, s18, 1')
    a.e('s_lshl_b32 s27, s27, 4')
    a.e('s_lshl_b32 s30, s20, 3')
    a.e('s_add_u32 s27, s27, s30')
    a.e('s_mul_i32 s30, s27, 81920')
    a.e('s_lshl_b32 s31, s17, 2')
    a.e('s_lshl_b32 s27, s19, 1')
    a.e('s_add_u32 s31, s31, s27')
    a.e('s_mul_i32 s31, s31, 1280')
    a.e('s_add_u32 s30, s30, s31')
    vL16=71; vR8=72
    a.e(f'v_lshlrev_b32 {v(vL16)}, 4, v0')
    a.e(f'v_and_b32 {v(vR8)}, 31, v0')
    a.e(f'v_lshlrev_b32 {v(vR8)}, 3, {v(vR8)}')
    a.e(f'v_lshrrev_b32 {v(vT2)}, 5, v0')
    a.e(f'v_mul_u32_u24 {v(vT2)}, 81920, {v(vT2)}')
    a.e(f'v_add_u32 {v(vR8)}, {v(vR8)}, {v(vT2)}')
    a.e(f'v_add_u32 {v(vR8)}, 1024, {v(vR8)}')
    a.e('s_waitcnt lgkmcnt(4)')
    for i in range(2):
        a.e(f'v_mul_f32 {v(65+2*i)}, s29, {v(65+2*i)}')
    TMP=76
    for t in range(5):
        if t<4:
            for b in range(4): a.e(f'ds_read_b128 {v(CQ[(t+1)%2]+4*b,4)}, {v(vT)} offset:{(t+1)*128+b*32}')
            a.e('s_waitcnt lgkmcnt(4)')
        else:
            a.e('s_waitcnt lgkmcnt(0)')
        for b in range(4):
            j=4*t+b; m=j//5; jj=j%5
            dst={0:0,1:2,2:4,3:8,4:10}[jj]+20*m
            for i in range(2):
                A=acc(i,0)+4*j; P=64+2*i; C=CQ[t%2]+4*b; T_=TMP+4*i
                a.e(pkfma(T_,C,P,A,None,0,None))
                a.e(pkfma(T_+2,C+2,P,A+2,None,0,None))
                a.e(pkmul(T_,T_,P,None,1))
                a.e(pkmul(T_+2,T_+2,P,None,1))
            for i in range(2):
                T_=TMP+4*i; D=acc(i,0)+dst
                a.e(f'v_cvt_pk_bf16_f32 {v(D)}, {v(T_)}, {v(T_+1)}')
                a.e(f'v_cvt_pk_bf16_f32 {v(D+1)}, {v(T_+2)}, {v(T_+3)}')
            if jj==4:
                for i in range(2):
                    B=acc(i,0)+20*m
                    a.e(f's_add_u32 s27, s30, {2*m*81920+i*1280}')
                    a.e(f's_add_u32 s31, s27, 81920')
                    a.e(f'buffer_store_dwordx4 {v(B,4)}, {v(vL16)}, s[4:7], s27 offen')
                    a.e(f'buffer_store_dwordx4 {v(B+8,4)}, {v(vL16)}, s[4:7], s31 offen')
                    a.e(f'buffer_store_dwordx2 {v(B+4,2)}, {v(vR8)}, s[4:7], s27 offen')
    a.e('s_branch K1_DONE')
    a.label('K1_V_START')
    main_loop(a,'v')
    a.cur='v'
    CB=76
    a.e('s_mul_i32 s27, s20, 640')
    a.e(f's_add_u32 s27, s27, {CS}')
    a.e(f'v_and_b32 v62, 31, v0')
    a.e(f'v_lshlrev_b32 v62, 2, v62')
    a.e('v_add_u32 v62, s27, v62')
    for t in range(5): a.e(f'ds_read_b32 {v(CB+2*t)}, v62 offset:{t*128}')
    a.e(f'v_lshrrev_b32 {v(vT2)}, 5, v0')
    a.e(f'v_lshlrev_b32 {v(vT2)}, 4, {v(vT2)}')
    a.e('s_lshl_b32 s27, s19, 8')
    a.e(f's_add_u32 s27, s27, {NM}')
    a.e(f'v_add_u32 {v(vT2)}, s27, {v(vT2)}')
    a.e(f's_add_u32 s4, s34, {VIMG}')
    a.e('s_addc_u32 s5, s35, 0')
    a.e('s_mov_b32 s6, 2621440')
    a.e('s_mov_b32 s7, 0x00020000')
    a.e('s_sub_u32 s27, s18, 4')
    a.e(f's_mul_i32 s30, s27, {16*81920}')
    a.e('s_lshl_b32 s31, s17, 2')
    a.e('s_lshl_b32 s27, s19, 1')
    a.e('s_add_u32 s31, s31, s27')
    a.e('s_mul_i32 s31, s31, 1280')
    a.e('s_add_u32 s30, s30, s31')
    VO=86
    a.e(f'v_and_b32 {v(vT3)}, 31, v0')
    a.e('s_mul_i32 s27, s20, 160')
    a.e(f'v_add_u32 {v(vT3)}, s27, {v(vT3)}')
    a.e(f'v_lshrrev_b32 {v(vT4)}, 5, v0')
    a.e(f'v_mul_u32_u24 {v(vT4)}, 320, {v(vT4)}')
    for t in range(5):
        a.e(f'v_add_u32 v91, {32*t}, {v(vT3)}')
        a.e(f'v_mul_u32_u24 v92, 3277, v91')
        a.e(f'v_lshrrev_b32 v92, 16, v92')
        a.e(f'v_mul_u32_u24 v93, 20, v92')
        a.e(f'v_sub_u32 v91, v91, v93')
        a.e(f'v_lshlrev_b32 v91, 4, v91')
        a.e(f'v_add_u32 v91, v91, {v(vT4)}')
        a.e(f's_mov_b32 s27, 81920')
        a.e(f'v_mul_lo_u32 v92, v92, s27')
        a.e(f'v_add_u32 {v(VO+t)}, v91, v92')
    qN=4; qR=20; TMP=36
    for i in range(2):
        a.e('s_waitcnt lgkmcnt(0)')
        for b in range(4):
            a.e(f'ds_read_b128 {v(qN+4*b,4)}, {v(vT2)} offset:{i*128+b*32}')
            a.e(f'ds_read_b128 {v(qR+4*b,4)}, {v(vT2)} offset:{512+i*128+b*32}')
        a.e(f's_add_u32 s27, s30, {i*1280}')
        a.e('s_waitcnt lgkmcnt(0)')
        for t in range(5):
            A=acc(i,t)
            for j in range(2):
                for q in range(4):
                    r_=8*j+2*q
                    a.e(pkfma(TMP+2*q,qN+r_,CB+2*t,A+r_,None,0,None))
                for q in range(4):
                    r_=8*j+2*q
                    a.e(pkmul(TMP+2*q,TMP+2*q,qR+r_))
                for q in range(4):
                    a.e(f'v_cvt_pk_bf16_f32 {v(A+8*j+q)}, {v(TMP+2*q)}, {v(TMP+2*q+1)}')
                a.e(f'buffer_store_dwordx4 {v(A+8*j,4)}, {v(VO+t)}, s[4:7], s27 offen offset:{j*640}')
    a.e('s_branch K1_DONE')
    a.label('K1_FFN_SETUP')
    a.e(f'v_mul_u32_u24 {v(vT2)}, 320, {v(vRow)}')
    a.e(f'v_mul_u32_u24 {v(vT3)}, 10272, {v(vCh)}')
    a.e(f'v_add_u32 {v(vT2)}, {v(vT2)}, {v(vT3)}')
    a.e(f'v_lshlrev_b32 {v(vT3)}, 3, {v(vC4)}')
    a.e(f'v_add_u32 {v(vT2)}, {v(vT2)}, {v(vT3)}')
    a.e('s_mul_i32 s27, s20, 160')
    a.e(f's_add_u32 s27, s27, {WBASE}')
    a.e(f'v_add_u32 {v(vT2)}, s27, {v(vT2)}')
    for jl in range(2):
        a.e(f's_xor_b32 s27, s21, {jl}')
        a.e(f's_mul_i32 s27, s27, {16*320}')
        a.e(f'v_add_u32 {v(WA+2*jl)}, s27, {v(vT2)}')
    a.e(f'v_and_b32 v62, 15, v0')
    a.e('v_lshlrev_b32 v62, 2, v62')
    a.e('s_mul_i32 s27, s20, 320')
    a.e('s_mul_i32 s29, s19, 1280')
    a.e('s_add_u32 s27, s27, s29')
    a.e(f's_add_u32 s27, s27, {CSP}')
    a.e('v_add_u32 v62, s27, v62')
    for k in range(160): a.e(f'v_mov_b32 {v(ACC+k)}, 0')
    a.e('s_waitcnt lgkmcnt(0)')
    main_loop(a,'ffn')
    a.cur='ffn'
    a.e(f'v_lshrrev_b32 {v(vT)}, 5, v0')
    a.e(f'v_lshlrev_b32 {v(vT)}, 4, {v(vT)}')
    a.e('s_mul_i32 s27, s20, 320')
    a.e(f's_add_u32 s27, s27, {CS}')
    a.e(f'v_add_u32 {v(vT)}, s27, {v(vT)}')
    CQ=[4,20]
    def csread(t):
        C=CQ[t%2]
        for b in range(2):
            a.e(f'ds_read_b128 {v(C+4*b,4)}, {v(vT)} offset:{t*64+b*32}')
            a.e(f'ds_read_b128 {v(C+8+4*b,4)}, {v(vT)} offset:{640+t*64+b*32}')
    csread(0)
    a.e(f's_add_u32 s4, s34, {HIMG}')
    a.e('s_addc_u32 s5, s35, 0')
    a.e('s_cmp_eq_u32 s18, 15'); a.e('s_cselect_b32 s27, 1, 0')
    a.e('s_cmp_eq_u32 s20, 0'); a.e('s_cselect_b32 s27, s27, 0')
    a.e('s_cmp_eq_u32 s27, 1'); a.e('s_cselect_b32 s6, 0, 6291456')
    a.e('s_mov_b32 s7, 0x00020000')
    a.e('s_sub_u32 s27, s18, 6')
    a.e('s_mul_i32 s27, s27, 10')
    a.e('s_min_u32 s27, s27, 86')
    a.e('s_mul_i32 s30, s20, 5')
    a.e('s_add_u32 s27, s27, s30')
    a.e('s_lshl_b32 s30, s27, 10')
    a.e('s_lshl_b32 s31, s17, 2')
    a.e('s_lshl_b32 s27, s19, 1')
    a.e('s_add_u32 s31, s31, s27')
    a.e('s_mul_i32 s31, s31, 98304')
    a.e('s_add_u32 s30, s30, s31')
    vL16=71
    a.e(f'v_lshlrev_b32 {v(vL16)}, 4, v0')
    a.e('s_waitcnt lgkmcnt(4)')
    for i in range(2):
        P=64+2*i
        a.e(f'v_mul_f32 {v(72+2*i)}, {v(P+1)}, {v(P+1)}')
        a.e(f'v_rcp_f32 {v(72+2*i)}, {v(72+2*i)}')
        a.e(f'v_mul_f32 {v(P+1)}, 0xbfb8aa3b, {v(P+1)}')
    E=76
    for t in range(5):
        if t<4:
            csread(t+1); a.e('s_waitcnt lgkmcnt(4)')
        else: a.e('s_waitcnt lgkmcnt(0)')
        C=CQ[t%2]
        for i in range(2):
            A=acc(i,t); P=64+2*i
            for q in range(4): a.e(pkfma(A+2*q,C+2*q,P,A+2*q,None,0,None))
        for i in range(2):
            A=acc(i,t); P=64+2*i
            for q in range(4): a.e(pkmul(E+8*i+2*q,A+2*q,P,None,1))
        for i in range(2):
            A=acc(i,t); P=64+2*i
            for q in range(4):
                a.e(f'v_exp_f32 {v(E+8*i+2*q)}, {v(E+8*i+2*q)}')
                a.e(f'v_exp_f32 {v(E+8*i+2*q+1)}, {v(E+8*i+2*q+1)}')
                a.e(pkfma(A+8+2*q,C+8+2*q,P,A+8+2*q,None,0,None))
        for i in range(2):
            A=acc(i,t); I=72+2*i
            for q in range(4):
                a.e(pkfma(E+8*i+2*q,E+8*i+2*q,I,I,None,0,0))
                a.e(pkmul(A+2*q,A+2*q,A+8+2*q))
        for i in range(2):
            for q in range(8): a.e(f'v_rcp_f32 {v(E+8*i+q)}, {v(E+8*i+q)}')
        for i in range(2):
            A=acc(i,t)
            for q in range(4): a.e(pkmul(A+2*q,A+2*q,E+8*i+2*q))
        if t==4: a.e('s_mov_b32 s6, 6291456')
        for i in range(2):
            A=acc(i,t)
            for q in range(4): a.e(f'v_cvt_pk_bf16_f32 {v(A+8+q)}, {v(A+2*q)}, {v(A+2*q+1)}')
            a.e(f's_add_u32 s27, s30, {i*98304+t*1024}')
            a.e(f'buffer_store_dwordx4 {v(A+8,4)}, {v(vL16)}, s[4:7], s27 offen')
    a.cur=None
    a.label('K1_DONE')
    stamp(a,3)
    a.e('s_waitcnt vmcnt(0)')
    stamp(a,4)
    stamp_store(a,10,34,'s16',8,3*1024*1024)
    a.e('s_endpgm')
    a.label('K1_LOADER')
    a.e('s_sub_u32 s19, s16, 4')
    if 'lp0' not in FL: a.e('s_setprio 3')
    if 'lst' in FL: stamp(a,5)
    vX=4; vW=8
    a.e(f'v_lshrrev_b32 {v(vT)}, 3, v0')
    a.e(f'v_and_b32 {v(vT2)}, 7, v0')
    a.e(f'v_lshrrev_b32 {v(vT3)}, 4, v0')
    a.e('s_lshl_b32 s27, s17, 7')
    a.e('s_lshl_b32 s29, s19, 5')
    a.e('s_add_u32 s27, s27, s29')
    a.e(f'v_xor_b32 {v(vT4)}, {v(vT3)}, {v(vT2)}')
    a.e(f'v_lshlrev_b32 {v(vT4)}, 4, {v(vT4)}')
    a.e(f'v_add_u32 {v(vX)}, s27, {v(vT)}')
    a.e(f'v_mul_u32_u24 {v(vX)}, 1280, {v(vX)}')
    a.e(f'v_xor_b32 {v(vT3)}, 64, {v(vT4)}')
    a.e(f'v_add_u32 {v(vX+1)}, {v(vX)}, {v(vT3)}')
    a.e(f'v_add_u32 {v(vX)}, {v(vX)}, {v(vT4)}')
    a.e(f'v_add_u32 {v(vX+1)}, 10240, {v(vX+1)}')
    a.e(f'v_add_u32 {v(vX+2)}, 20480, {v(vX)}')
    a.e(f'v_add_u32 {v(vX+3)}, 20480, {v(vX+1)}')
    if 'lst' in FL: stamp(a,6)
    a.e('s_waitcnt lgkmcnt(0)')
    a.e('s_mov_b32 s8, s36'); a.e('s_mov_b32 s9, s37'); a.e('s_mov_b32 s10, 2621440'); a.e('s_mov_b32 s11, 0x00020000')
    a.e('s_lshl_b32 s21, s19, 12')
    a.e('s_mov_b32 s25, 0'); a.e('s_mov_b32 s26, s21')
    a.e(f's_add_u32 s30, s21, {3*XS}')
    def issueX(pro=False):
        for i in range(4):
            if 'nodma' in FL and not pro: break
            a.e(f's_add_u32 m0, s26, {i*1024}')
            a.e('s_nop 0')
            a.e(f'buffer_load_dwordx4 {v(vX+i)}, s[8:11], s25 offen lds')
        a.e('s_add_u32 s25, s25, 128')
        a.e(f's_add_u32 s26, s26, {XS}')
        a.e('s_cmp_eq_u32 s26, s30')
        a.e('s_cselect_b32 s26, s21, s26')
    issueX(True)
    if 'lst' in FL: stamp(a,4)
    a.e('s_cmp_ge_u32 s18, 6')
    a.e('s_cbranch_scc1 K1_LD_FFN')
    a.e('s_mul_i32 s27, s19, 320')
    for p in range(5):
        a.e(f's_add_u32 s29, s27, {64*p}')
        a.e(f'v_add_u32 {v(vT)}, s29, v0')
        a.e(f'v_mul_u32_u24 {v(vT2)}, 1639, {v(vT)}')
        a.e(f'v_lshrrev_b32 {v(vT2)}, 16, {v(vT2)}')
        a.e(f'v_mul_u32_u24 {v(vT3)}, 40, {v(vT2)}')
        a.e(f'v_sub_u32 {v(vT)}, {v(vT)}, {v(vT3)}')
        a.e(f'v_bfe_u32 {v(vT3)}, {v(vT2)}, 1, 1')
        a.e(f'v_lshlrev_b32 {v(vT3)}, 2, {v(vT3)}')
        a.e(f'v_xor_b32 {v(vT)}, {v(vT)}, {v(vT3)}')
        a.e(f'v_lshlrev_b32 {v(vT)}, 4, {v(vT)}')
        a.e(f'v_mul_u32_u24 {v(vT2)}, 3840, {v(vT2)}')
        a.e(f'v_add_u32 {v(vW+p)}, {v(vT)}, {v(vT2)}')
    a.e('s_mul_i32 s29, s18, 640')
    for p in range(5): a.e(f'v_add_u32 {v(vW+p)}, s29, {v(vW+p)}')
    a.e('s_waitcnt lgkmcnt(0)')
    a.e('s_mov_b32 s4, s38'); a.e('s_mov_b32 s5, s39'); a.e(f's_mov_b32 s6, {640*3840}')
    a.e(f's_mov_b32 s22, {32*3840}')
    a.e('s_mul_i32 s20, s19, 5120')
    a.e('s_branch K1_LD_GO')
    a.label('K1_LD_FFN')
    a.e('s_and_b32 s27, s19, 1')
    a.e('s_lshl_b32 s27, s27, 4')
    a.e('s_sub_u32 s29, s18, 6')
    a.e('s_mul_i32 s29, s29, 320')
    a.e('s_min_u32 s29, s29, 2752')
    for p in range(5):
        a.e(f'v_add_u32 {v(vT)}, {64*p}, v0')
        a.e(f'v_mul_u32_u24 {v(vT2)}, 3277, {v(vT)}')
        a.e(f'v_lshrrev_b32 {v(vT2)}, 16, {v(vT2)}')
        a.e(f'v_mul_u32_u24 {v(vT3)}, 20, {v(vT2)}')
        a.e(f'v_sub_u32 {v(vT)}, {v(vT)}, {v(vT3)}')
        a.e(f'v_lshlrev_b32 {v(vT)}, 4, {v(vT)}')
        a.e(f'v_add_u32 {v(vT2)}, s27, {v(vT2)}')
        a.e(f'v_mul_u32_u24 {v(vT2)}, 3072, {v(vT2)}')
        a.e(f'v_add_u32 {v(vW+p)}, {v(vT)}, {v(vT2)}')
        a.e(f'v_add_u32 {v(vW+p)}, s29, {v(vW+p)}')
    a.e('s_waitcnt lgkmcnt(0)')
    a.e('s_cmp_lt_u32 s19, 2')
    a.e('s_cselect_b32 s4, s40, s42')
    a.e('s_cselect_b32 s5, s41, s43')
    a.e(f's_mov_b32 s6, {640*3072}')
    a.e(f's_mov_b32 s22, {32*3072}')
    a.e('s_mul_i32 s20, s19, 5120')
    a.e('s_lshr_b32 s27, s19, 1')
    a.e('s_lshl_b32 s27, s27, 5')
    a.e('s_add_u32 s20, s20, s27')
    a.label('K1_LD_GO')
    if 'lst' in FL: stamp(a,7)
    a.e('s_mov_b32 s7, 0x00020000')
    a.e(f's_add_u32 s20, s20, {WBASE}')
    a.e('s_mov_b32 s23, 0'); a.e('s_mov_b32 s24, s20')
    a.e(f's_add_u32 s29, s20, {5*WP}')
    def issueW(pro=False):
        for p in range(5):
            if 'nodma' in FL and not pro: break
            a.e(f's_add_u32 m0, s24, {p*1024}')
            a.e('s_nop 0')
            a.e(f'buffer_load_dwordx4 {v(vW+p)}, s[4:7], s23 offen lds')
        a.e('s_add_u32 s23, s23, s22')
        a.e(f's_add_u32 s24, s24, {WP}')
        a.e('s_cmp_eq_u32 s24, s29')
        a.e('s_cselect_b32 s24, s20, s24')
    issueW(True); issueW(True); issueX(True)
    stamp(a,1)
    if 'lp0' in FL or 'lp30' in FL: a.e('s_setprio 0')
    vU=50
    if 'wimg' in FL:
        a.e('s_lshl_b32 s27, s2, 1'); a.e('s_add_u32 s27, s27, s19')
        a.e('s_add_u32 s28, s2, 512')
        a.e('s_cmp_eq_u32 s19, 2'); a.e('s_cselect_b32 s27, s28, s27')
        a.e('s_cmp_lt_u32 s27, 544'); a.e('s_cselect_b32 s33, 1, 0')
        a.e('s_cmp_eq_u32 s19, 3'); a.e('s_cselect_b32 s33, 0, s33')
        a.e('s_and_b32 s32, s27, 7')
        a.e('s_lshr_b32 s27, s27, 3')
        a.e('s_mul_i32 s54, s32, 68'); a.e('s_add_u32 s54, s54, s27'); a.e('s_mul_i32 s54, s54, 5120')
        a.e('s_mul_i32 s32, s32, 160')
        a.e('s_lshl_b32 s28, s27, 5'); a.e('s_mov_b32 s55, 16'); a.e('s_mov_b32 s48, 8'); a.e('s_mov_b32 s49, 4')
        a.e('s_mov_b32 s12, s52'); a.e('s_mov_b32 s13, s53'); a.e(f's_mov_b32 s14, {1536*1280}')
        a.e('s_cmp_lt_u32 s27, 48'); a.e('s_cbranch_scc1 K1_WI_SET')
        a.e('s_mov_b32 s12, s50'); a.e('s_mov_b32 s13, s51'); a.e(f's_mov_b32 s14, {640*1280}')
        a.e('s_sub_u32 s27, s27, 48')
        a.e('s_mul_i32 s28, s27, 40'); a.e('s_mov_b32 s55, 20')
        a.e('s_cmp_lt_u32 s27, 16'); a.e('s_cbranch_scc1 K1_WI_SET')
        a.e('s_sub_u32 s27, s27, 16')
        a.e('s_mul_i32 s28, s27, 160'); a.e('s_add_u32 s28, s28, 16')
        a.e('s_mov_b32 s55, 80'); a.e('s_mov_b32 s48, 20'); a.e('s_mov_b32 s49, 40')
        a.label('K1_WI_SET')
        a.e('s_mov_b32 s15, 0x00020000')
        a.e('s_cmp_eq_u32 s33, 0'); a.e('s_cselect_b32 s14, 0, s14')
        for p in range(5):
            a.e(f'v_add_u32 v56, {64*p}, v0')
            a.e('v_mul_u32_u24 v57, 6554, v56')
            a.e('v_lshrrev_b32 v57, 16, v57')
            a.e('v_mul_u32_u24 v58, 10, v57')
            a.e('v_sub_u32 v56, v56, v58')
            a.e('v_lshlrev_b32 v56, 4, v56')
            a.e('v_add_u32 v56, s32, v56')
            a.e('v_lshrrev_b32 v58, 4, v57')
            a.e('v_mul_u32_u24 v58, s55, v58')
            a.e('v_bfe_u32 v59, v57, 3, 1')
            a.e('v_mul_u32_u24 v59, s48, v59')
            a.e('v_add_u32 v58, v58, v59')
            a.e('v_bfe_u32 v59, v57, 2, 1')
            a.e('v_mul_u32_u24 v59, s49, v59')
            a.e('v_add_u32 v58, v58, v59')
            a.e('v_and_b32 v59, 3, v57')
            a.e('v_add_u32 v58, v58, v59')
            a.e('v_add_u32 v58, s28, v58')
            a.e('v_mul_u32_u24 v58, 1280, v58')
            a.e(f'v_add_u32 {v(vU+p)}, v56, v58')
        if 'wearly' in FL:
            a.e('v_lshrrev_b32 v56, 5, v0'); a.e('v_lshlrev_b32 v56, 4, v56')
            a.e('v_bfe_u32 v57, v0, 4, 1'); a.e('v_lshlrev_b32 v57, 2, v57'); a.e('v_add_u32 v56, v56, v57')
            a.e('v_bfe_u32 v57, v0, 2, 2'); a.e('v_add_u32 v56, v56, v57')
            a.e('v_mul_u32_u24 v56, 160, v56'); a.e(f'v_add_u32 v56, {SP}, v56')
            a.e('v_and_b32 v57, 3, v0'); a.e('v_lshlrev_b32 v58, 4, v57'); a.e('v_add_u32 v76, v56, v58')
            a.e('v_lshlrev_b32 v58, 3, v57'); a.e('v_add_u32 v77, v56, v58')
            a.e('v_lshlrev_b32 v78, 4, v0')
            a.e(f's_add_u32 s88, s34, {WIMG}'); a.e('s_addc_u32 s89, s35, 0')
            a.e('s_cmp_eq_u32 s33, 0'); a.e(f's_cselect_b32 s90, 0, {WIMG_BYTES}'); a.e('s_mov_b32 s91, 0x00020000')
    vSA=16
    D=20
    U=36
    sL,sH,qL,qH=40,41,42,43
    a.e(f'v_and_b32 {v(vT)}, 31, v0')
    a.e(f'v_lshrrev_b32 {v(vT2)}, 5, v0')
    a.e(f'v_lshlrev_b32 {v(vT2)}, 2, {v(vT2)}')
    a.e(f'v_bfe_u32 {v(vT3)}, v0, 1, 3')
    a.e(f'v_xor_b32 {v(vT2)}, {v(vT2)}, {v(vT3)}')
    a.e(f'v_lshlrev_b32 {v(vT2)}, 4, {v(vT2)}')
    a.e(f'v_lshlrev_b32 {v(vT3)}, 7, {v(vT)}')
    a.e(f'v_add_u32 {v(vT2)}, {v(vT2)}, {v(vT3)}')
    a.e(f'v_add_u32 {v(vSA)}, s21, {v(vT2)}')
    for i in range(1,4): a.e(f'v_xor_b32 {v(vSA+i)}, {16*i}, {v(vSA)}')
    for r in (sL,sH,qL,qH): a.e(f'v_mov_b32 {v(r)}, 0')
    if 'dot2' in FL: a.e('s_mov_b32 s56, 0x3f803f80')
    a.e(f's_mov_b32 s27, 0')
    a.e(f's_mov_b32 s46, {XS}'); a.e(f's_mov_b32 s47, {(-2*XS)&0xffffffff}')
    def st_read():
        if 'nostat' in FL: return
        for i in range(4): a.e(f'ds_read_b128 {v(D+4*i,4)}, {v(vSA+i)}')
        a.e('s_add_u32 s27, s27, 1')
        a.e('s_cmp_eq_u32 s27, 3')
        a.e('s_cselect_b32 s28, s47, s46')
        a.e('s_cselect_b32 s27, 0, s27')
        for i in range(4): a.e(f'v_add_u32 {v(vSA+i)}, s28, {v(vSA+i)}')
    def st_acc(half):
        if 'nostat' in FL: return
        a.e(f's_waitcnt lgkmcnt({2 if half==0 else 0})')
        if 'dot2' in FL:
            for d in range(8*half,8*half+8,2):
                a.e(f'v_dot2c_f32_bf16 {v(qL)}, {v(D+d)}, {v(D+d)}')
                a.e(f'v_dot2c_f32_bf16 {v(sL)}, s56, {v(D+d)}')
                a.e(f'v_dot2c_f32_bf16 {v(qH)}, {v(D+d+1)}, {v(D+d+1)}')
                a.e(f'v_dot2c_f32_bf16 {v(sH)}, s56, {v(D+d+1)}')
            return
        for d in range(8*half,8*half+8,2):
            a.e(f'v_lshlrev_b32 {v(U)}, 16, {v(D+d)}')
            a.e(f'v_and_b32 {v(U+1)}, 0xffff0000, {v(D+d)}')
            a.e(f'v_lshlrev_b32 {v(U+2)}, 16, {v(D+d+1)}')
            a.e(f'v_and_b32 {v(U+3)}, 0xffff0000, {v(D+d+1)}')
            a.e(f'v_add_f32 {v(sL)}, {v(sL)}, {v(U)}')
            a.e(f'v_add_f32 {v(sH)}, {v(sH)}, {v(U+1)}')
            a.e(f'v_fma_f32 {v(qL)}, {v(U)}, {v(U)}, {v(qL)}')
            a.e(f'v_fma_f32 {v(qH)}, {v(U+1)}, {v(U+1)}, {v(qH)}')
            a.e(f'v_add_f32 {v(sL)}, {v(sL)}, {v(U+2)}')
            a.e(f'v_add_f32 {v(sH)}, {v(sH)}, {v(U+3)}')
            a.e(f'v_fma_f32 {v(qL)}, {v(U+2)}, {v(U+2)}, {v(qL)}')
            a.e(f'v_fma_f32 {v(qH)}, {v(U+3)}, {v(U+3)}, {v(qH)}')
    bst=('bst' in FL)
    we=('wearly' in FL)
    def bs(i):
        if bst:
            (stampc if 'bstc' in FL else stamp)(a,i)
    def wave_only(w,fn):
        l=a.newlabel('K1_WO')
        a.e(f's_cmp_eq_u32 s19, {w}'); a.e(f's_cbranch_scc0 {l}')
        fn(); a.label(l)
    def unit_dma():
        for p in range(5):
            a.e(f's_mov_b32 m0, {SP+p*1024}')
            a.e('s_nop 0')
            a.e(f'buffer_load_dwordx4 {v(vU+p)}, s[12:15], 0 offen lds')
    def unit_tr():
        for t in range(5):
            reg,off=(76,[0,8,64,72][t]) if t<4 else (77,128)
            a.e(f'ds_read_b64_tr_b16 {v(56+4*t,2)}, {v(reg)} offset:{off}')
            a.e(f'ds_read_b64_tr_b16 {v(58+4*t,2)}, {v(reg)} offset:{off+1280}')
    def unit_store():
        a.e('s_waitcnt lgkmcnt(0)')
        for t in range(5):
            a.e(f's_add_u32 s28, s54, {t*1024}')
            a.e(f'buffer_store_dwordx4 {v(56+4*t,4)}, v78, s[88:91], s28 offen')
    U0={0:-1,1:4,2:9}; T0={0:2,1:7,2:12}; S0={0:3,1:8,2:13}
    WIDE={0:{0,1,4,5,6},1:{5,6,9,10,11},2:{10,11,14,15,16}}
    late=('wlate' in FL)
    if late:
        S0={}
        WIDE={0:{0,1,17,18,19},1:{5,6,17,18,19},2:{10,11,17,18,19}}
    def ldwait(s_,n):
        ws=[w for w in WIDE if s_ in WIDE[w]] if we else []
        if not ws:
            a.e(f's_waitcnt vmcnt({n})'); return
        l1=a.newlabel('K1_LW'); l2=a.newlabel('K1_LW')
        if len(ws)==1:
            a.e(f's_cmp_eq_u32 s19, {ws[0]}')
        elif len(ws)==3:
            a.e('s_cmp_lt_u32 s19, 3')
        else:
            assert ws[1]==ws[0]+1
            a.e(f's_sub_u32 s28, s19, {ws[0]}'); a.e('s_cmp_lt_u32 s28, 2')
        a.e(f's_cbranch_scc1 {l1}')
        a.e(f's_waitcnt vmcnt({n})'); a.e(f's_branch {l2}')
        a.label(l1); a.e(f's_waitcnt vmcnt({n+5})'); a.label(l2)
    def hook(tab,fn,s_):
        if we:
            for w in tab:
                if tab[w]==s_: wave_only(w,fn)
    pre=lambda s_: hook(U0,unit_dma,s_)
    mid=lambda s_: hook(T0,unit_tr,s_)
    post=lambda s_: hook(S0,unit_store,s_)
    pre(-1)
    ldwait(0,9); a.e('s_barrier'); bs(4); issueW(True); st_read(); st_acc(0)
    ldwait(1,9); a.e('s_barrier'); issueW(True); issueX(True); st_acc(1)
    ldwait(2,9); a.e('s_barrier'); bs(5); issueW(True); issueW(True); st_read(); st_acc(0); mid(2)
    ldwait(3,14); a.e('s_barrier'); issueW(True); issueX(True); st_acc(1); post(3)
    if bst or we:
        for it in range(2,8):
            ldwait(2*it,14); a.e('s_barrier'); bs(4+it); pre(2*it); issueW(); st_read(); st_acc(0); mid(2*it); post(2*it)
            ldwait(2*it+1,14); a.e('s_barrier'); pre(2*it+1); issueW(); issueX(); st_acc(1); mid(2*it+1); post(2*it+1)
    else:
        a.e('s_mov_b32 s31, 2')
        a.label('K1_LD_LOOP')
        a.e('s_waitcnt vmcnt(14)'); a.e('s_barrier'); issueW(); st_read(); st_acc(0)
        a.e('s_waitcnt vmcnt(14)'); a.e('s_barrier'); issueW(); issueX(); st_acc(1)
        a.e('s_add_u32 s31, s31, 1')
        a.e('s_cmp_lt_u32 s31, 8')
        a.e('s_cbranch_scc1 K1_LD_LOOP')
    ldwait(16,14); a.e('s_barrier'); bs(12); issueW(); st_read(); st_acc(0)
    if we and late:
        l=a.newlabel('K1_WS')
        a.e('s_cmp_lt_u32 s19, 3'); a.e(f's_cbranch_scc0 {l}')
        unit_store(); a.label(l)
    wi=5 if ('wimg' in FL and not we) else 0
    ldwait(17,14); a.e('s_barrier')
    if wi:
        for p in range(5):
            a.e(f's_add_u32 m0, s20, {p*1024}')
            a.e('s_nop 0')
            a.e(f'buffer_load_dwordx4 {v(vU+p)}, s[12:15], 0 offen lds')
    st_acc(1)
    ldwait(18,5+wi); a.e('s_barrier'); bs(13); st_read(); st_acc(0)
    ldwait(19,wi); a.e('s_barrier'); st_acc(1)
    a.e('s_barrier')
    stamp(a,2)
    if 'cpb' in FL:
        a.e('s_cmp_eq_u32 s19, 3'); a.e('s_cbranch_scc0 K1_CPB_END')
        a.e('s_getpc_b64 s[12:13]')
        a.label('K1_CPB_PC')
        a.e('s_add_u32 s12, s12, att_kernel-K1_CPB_PC'); a.e('s_addc_u32 s13, s13, 0')
        a.e('s_mov_b32 s14, FFN_TAIL+4-att_kernel'); a.e('s_mov_b32 s15, 0x00020000')
        a.e('v_lshlrev_b32 v120, 7, v0')
        a.e('buffer_load_dword v121, v120, s[12:15], 0 offen')
        a.e('v_add_u32 v120, 8192, v120')
        a.e('buffer_load_dword v122, v120, s[12:15], 0 offen')
        a.label('K1_CPB_END')
    P=44
    a.e(f'v_add_f32 {v(P)}, {v(sL)}, {v(sH)}')
    a.e(f'v_add_f32 {v(P+1)}, {v(qL)}, {v(qH)}')
    a.e(f'v_mov_b32 {v(U)}, {v(P)}')
    a.e(f'v_mov_b32 {v(U+1)}, {v(P+1)}')
    a.e('s_nop 1')
    a.e(f'v_permlane32_swap_b32 {v(U)}, {v(P)}')
    a.e(f'v_permlane32_swap_b32 {v(U+1)}, {v(P+1)}')
    a.e('s_nop 1')
    a.e(f'v_add_f32 {v(P)}, {v(U)}, {v(P)}')
    a.e(f'v_add_f32 {v(P+1)}, {v(U+1)}, {v(P+1)}')
    stats(a,0,P)
    a.e(f'v_and_b32 {v(vT)}, 31, v0')
    a.e('s_lshl_b32 s27, s19, 5')
    a.e(f'v_add_u32 {v(vT)}, s27, {v(vT)}')
    a.e(f'v_lshlrev_b32 {v(vT2)}, 2, {v(vT)}')
    a.e(f'v_lshlrev_b32 {v(vT3)}, 3, {v(vT)}')
    a.e('s_mov_b64 exec, 0xffffffff')
    a.e(f'ds_write_b32 {v(vT2)}, {v(P)} offset:{NM}' if NM<65536 else f'v_add_u32 {v(vT2)}, {NM}, {v(vT2)}')
    if NM>=65536:
        a.e(f'v_add_u32 {v(vT3)}, {ST2}, {v(vT3)}')
        a.e(f'ds_write_b32 {v(vT2)}, {v(P)}')
        a.e(f'ds_write_b32 {v(vT2)}, {v(P+1)} offset:512')
        a.e(f'ds_write_b64 {v(vT3)}, {v(P,2)}')
    a.e('s_mov_b64 exec, -1')
    a.e('s_lshl_b32 s27, s19, 6')
    a.e(f'v_add_u32 {v(vT)}, s27, v0')
    a.e(f'v_lshlrev_b32 {v(vT2)}, 3, {v(vT)}')
    a.e(f'v_add_u32 {v(vT2)}, {CS}, {v(vT2)}')
    a.e('s_waitcnt lgkmcnt(0)')
    stamp(a,3)
    a.e('s_barrier')
    a.e(f'v_cmp_gt_u32 vcc, 160, {v(vT)}')
    a.e('s_and_saveexec_b64 s[48:49], vcc')
    a.e(f'ds_read_b64 {v(D,2)}, {v(vT2)} offset:1280')
    a.e(f'ds_read_b64 {v(D+2,2)}, {v(vT2)} offset:2560')
    a.e('s_waitcnt lgkmcnt(0)')
    a.e(f'v_add_f32 {v(D)}, {v(D)}, {v(D+2)}')
    a.e(f'v_add_f32 {v(D+1)}, {v(D+1)}, {v(D+3)}')
    a.e(f'ds_write_b64 {v(vT2)}, {v(D,2)}')
    a.e('s_mov_b64 exec, -1')
    a.e('s_waitcnt lgkmcnt(0)')
    a.e('s_barrier')
    if 'wimg' in FL and 'wearly' not in FL:
        a.e('s_cmp_eq_u32 s33, 0')
        a.e('s_cbranch_scc1 K1_WI_END')
        a.e('v_lshrrev_b32 v56, 5, v0')
        a.e('v_lshlrev_b32 v56, 4, v56')
        a.e('v_bfe_u32 v57, v0, 4, 1')
        a.e('v_lshlrev_b32 v57, 2, v57')
        a.e('v_add_u32 v56, v56, v57')
        a.e('v_bfe_u32 v57, v0, 2, 2')
        a.e('v_add_u32 v56, v56, v57')
        a.e('v_mul_u32_u24 v56, 160, v56')
        a.e('v_add_u32 v56, s20, v56')
        a.e('v_and_b32 v57, 3, v0')
        a.e('v_lshlrev_b32 v58, 4, v57')
        a.e('v_add_u32 v54, v56, v58')
        a.e('v_lshlrev_b32 v58, 3, v57')
        a.e('v_add_u32 v55, v56, v58')
        a.e('v_lshlrev_b32 v53, 4, v0')
        a.e(f's_add_u32 s12, s34, {WIMG}'); a.e('s_addc_u32 s13, s35, 0'); a.e(f's_mov_b32 s14, {WIMG_BYTES}')
        a.e('s_waitcnt vmcnt(0)')
        for t in range(5):
            reg,off=(54,[0,8,64,72][t]) if t<4 else (55,128)
            a.e(f'ds_read_b64_tr_b16 {v(56+4*t,2)}, {v(reg)} offset:{off}')
            a.e(f'ds_read_b64_tr_b16 {v(58+4*t,2)}, {v(reg)} offset:{off+1280}')
        a.e('s_waitcnt lgkmcnt(0)')
        for t in range(5):
            a.e(f's_add_u32 s27, s54, {t*1024}')
            a.e(f'buffer_store_dwordx4 {v(56+4*t,4)}, v53, s[12:15], s27 offen')
        a.e('s_waitcnt vmcnt(0)')
        a.label('K1_WI_END')
    if 'fuse' in FL and ('can' not in FL or 'hl' in FL):
        a.e('s_cmp_eq_u32 s19, 3'); a.e('s_cbranch_scc0 K1_FL_END')
        a.e(f's_cmp_lt_u32 s2, {FLAGS_BYTES//1024}'); a.e('s_cbranch_scc0 K1_FL_END')
        a.e(f's_add_u32 s12, s34, {FLAGS}'); a.e('s_addc_u32 s13, s35, 0'); a.e(f's_mov_b32 s14, {FLAGS_BYTES}'); a.e('s_mov_b32 s15, 0x00020000')
        a.e('s_lshl_b32 s27, s2, 10')
        a.e('v_lshlrev_b32 v53, 4, v0')
        for k in range(4): a.e(f'v_mov_b32 v{56+k}, 0')
        a.e('buffer_store_dwordx4 v[56:59], v53, s[12:15], s27 offen')
        a.e('s_waitcnt vmcnt(0)')
        a.label('K1_FL_END')
    if 'wearly' in FL: a.e('s_waitcnt vmcnt(0)')
    if 'lst' not in FL and 'bst' not in FL:
        stamp(a,4); stamp(a,5); stamp(a,6); stamp(a,7)
    stamp_store(a,14 if 'bst' in FL else 8,34,'s16',8,3*1024*1024)
    a.label('K1_END')
    a.e('s_endpgm')
    return NV
```
